```python
import torch

def _softmax(x, axis=-1):
    return torch.softmax(x, dim=axis)
def _gelu(x):
    return torch.nn.functional.gelu(x, approximate="tanh")
def _silu(x):
    return torch.nn.functional.silu(x)
def _sigmoid(x):
    return torch.sigmoid(x)
def _layernorm(x, axis=-1, eps=1e-5):
    m = x.mean(dim=axis, keepdim=True)
    v = x.var(dim=axis, keepdim=True, unbiased=False)
    return (x - m) / torch.sqrt(v + eps)
def _scatter_add(tgt, idx, src, axis=0):
    return tgt.clone().index_add_(axis, idx, src)
def _segment_sum(src, seg, n):
    out = torch.zeros((n,) + src.shape[1:], dtype=src.dtype)
    return out.index_add_(0, seg, src)
def _pad(x, pw):
    flat = tuple(v for pair in reversed(pw) for v in pair)
    return torch.nn.functional.pad(x, flat)

kernel_name = 'parallel_sum__grouped_kv_mqa__dense_activation_silu__prompt'

def setup_inputs():

    _w = (lambda a: (lambda t: t.to(torch.bfloat16) if t.is_floating_point() else t)(torch.as_tensor(a)))
    def _A_setup():
        B, S, D, H = 1, 2048, 512, 32
        Dh = D // H
        return {
            "x": _w((lambda *s: torch.randn(*s, dtype=torch.bfloat16) * 0.05)(B, S, D)),
            "wq": _w((lambda *s: torch.randn(*s, dtype=torch.bfloat16) * 0.05)(D, H * Dh)),
            "wk": _w((lambda *s: torch.randn(*s, dtype=torch.bfloat16) * 0.05)(D, Dh)),
            "wv": _w((lambda *s: torch.randn(*s, dtype=torch.bfloat16) * 0.05)(D, Dh)),
            "wo": _w((lambda *s: torch.randn(*s, dtype=torch.bfloat16) * 0.05)(H * Dh, D)),
        }
    _A_in = _A_setup()

    def _B_setup():
        B, S, D, F = 1, 2048, 512, 1376
        return {
            "x": _w((lambda *s: torch.randn(*s, dtype=torch.bfloat16) * 0.05)(B, S, D)),
            "w1": _w((lambda *s: torch.randn(*s, dtype=torch.bfloat16) * 0.8)(D, F) * (D ** -0.5)),
            "w2": _w((lambda *s: torch.randn(*s, dtype=torch.bfloat16) * 0.2)(F, D) * (F ** -0.5)),
        }
    _B_in = _B_setup()

    return {
        "A_x": _A_in["x"],
        "A_wq": _A_in["wq"],
        "A_wk": _A_in["wk"],
        "A_wv": _A_in["wv"],
        "A_wo": _A_in["wo"],
        "B_x": _B_in["x"],
        "B_w1": _B_in["w1"],
        "B_w2": _B_in["w2"],
    }

def reference(A_x, A_wq, A_wk, A_wv, A_wo, B_x, B_w1, B_w2):
    def _A_ref(x, wq, wk, wv, wo):
        B, S, D = x.shape
        H = 32
        Dh = D // H
        q = (lambda x, *d: x.permute(*d))((x @ wq).reshape(B, S, H, Dh), 0, 2, 1, 3)
        k = x @ wk
        v = x @ wv
        scores = torch.einsum("bhqd,bkd->bhqk", q, k) * (Dh ** -0.5)
        p = _softmax(scores, axis=-1)
        o = torch.einsum("bhqk,bkd->bhqd", p, v)
        return (lambda x, *d: x.permute(*d))(o, 0, 2, 1, 3).reshape(B, S, H * Dh) @ wo

    def _B_ref(x, w1, w2):
        h = torch.einsum("bsd,df->bsf", x, w1)
        h = _silu(h)
        out = torch.einsum("bsf,fd->bsd", h, w2)
        return out

    x = A_x
    xn = _layernorm(x, axis=-1)
    return x + _A_ref(xn, A_wq, A_wk, A_wv, A_wo) + _B_ref(xn, B_w1, B_w2)
```

```python
import sys, struct

NAME = "parallel_sum__grouped_kv_mqa__dense_activation_silu__prompt"
OPT = dict(stamps=0, force_slow=0, pf_code=1, pf_w=1, pf_late=1)
for a in sys.argv[2:]:
    k, v = a.split("=")
    OPT[k] = int(v)

def f2u(x):
    return struct.unpack("<I", struct.pack("<f", x))[0]

WS_KV = 0x0
WS_Q = 0x40000
WS_H = 0x300000
WS_Y = 0x900000
WS_FL = 0xE00000
WS_ST = 0xF00000
WS_SIZE = 0x1000000
H_GRP = 86 * 2048
FL_Q, FL_H, FL_Y = 1024, 1024 + 16 * 32, 1024 + 60 * 32

L_H = 0
H_STR = 14336
L_X = 57344
X_STR = 1040
L_A = L_X + 64 * X_STR
L_M = L_A + 32768
L_LS = L_M
L_OWNQ = L_M + 4096
L_RSTD = L_M + 5120
L_SIG = L_M + 5376
L_FLG = L_M + 5632
L_MB = L_M + 6144
LDS_BYTES = 163840
L_P2 = 65536
L_OBF = L_P2 + 32768
F_OWNQ, F_G1, F_RED, F_CONS, F_OF, F_BAD = 0, 16, 48, 64, 80, 112
assert L_MB + 1024 <= LDS_BYTES and L_OBF + 8192 <= L_A

S_W, S_G, S_J, S_GL = 4, 5, 6, 7
SRD_X, SRD_WS = 8, 12
P_X, P_WQ, P_WK, P_WV, P_WO, P_BX, P_W1, P_W2 = 16, 18, 20, 22, 24, 26, 28, 30
P_OUT, P_DBG, P_WS = 32, 34, 36
S_T, S_VALID = 38, 39
SRD_W, SRD_DBG, SRD_A, SRD_B, SRD_C, SRD_OUT = 40, 44, 48, 52, 56, 60
S_STEP, S_SOFF, S_RING, S_FLB = 64, 65, 66, 67
S_C10, S_C01, S_C11 = 68, 69, 70
S_T0, S_T1, S_T2, S_T3, S_T4, S_T5 = 71, 72, 73, 74, 75, 76
S_CLR = 77
S_EX = 78
S_QO = 80
S_HW, S_IT = 88, 89
S_STMP = 90
S_ST0 = 92

VK, VV, SA, SB, VO, VQ0, VQ1 = 8, 72, 200, 216, 232, 248, 252

out = []
def e(s):
    for l in s.split("\n"):
        l = l.strip()
        if not l:
            continue
        out.append(l if l.endswith(":") or l.startswith(".") else "    " + l)

def vr(a, n=1):
    return f"v{a}" if n == 1 else f"v[{a}:{a+n-1}]"
def sr(a, n=1):
    return f"s{a}" if n == 1 else f"s[{a}:{a+n-1}]"
def mf32(d, a, b, c=None):
    e(f"v_mfma_f32_32x32x16_bf16 {vr(d,16)}, {vr(a,4)}, {vr(b,4)}, {vr(c,16) if c is not None else 0}")
def mf16(d, a, b, c=None):
    e(f"v_mfma_f32_16x16x32_bf16 {vr(d,4)}, {vr(a,4)}, {vr(b,4)}, {vr(c,4) if c is not None else 0}")
def srd(d, p, n):
    e(f"s_mov_b32 s{d}, s{p}\ns_mov_b32 s{d+1}, s{p+1}\ns_mov_b32 s{d+2}, {hex(n)}\ns_mov_b32 s{d+3}, 0x20000")
def stamp(k):
    if OPT["stamps"]:
        e(f"s_memtime {sr(S_STMP,2)}\ns_waitcnt lgkmcnt(0)\ns_mov_b32 s{S_ST0+k}, s{S_STMP}")
def off(n):
    return f" offset:{n}" if n else ""

class Queue:
    def __init__(self, kind):
        self.kind, self.n, self.tags = kind, 0, {}
    def issue(self, tag=None):
        self.n += 1
        if tag is not None:
            self.tags[tag] = self.n
    def left(self, tag):
        return self.n - self.tags[tag]
    def wait(self, tag):
        lim = 63 if self.kind == "vmcnt" else 15
        e(f"s_waitcnt {self.kind}({min(self.left(tag), lim)})")

uid = [0]
def label(p):
    uid[0] += 1
    return f"L_{p}_{uid[0]}"

def lds_spin(vaddr, offset, vtmp, cmp, ref, sleep=1, prio=None):
    top, done = label("spin"), label("spun")
    e(f"{top}:")
    e(f"ds_read_b32 v{vtmp}, v{vaddr}{off(offset)}\ns_waitcnt lgkmcnt(0)")
    if prio: e(f"s_setprio {prio[0]}")
    e(f"{cmp} vcc, {ref}, v{vtmp}")
    if prio: e(f"s_setprio {prio[1]}")
    e(f"s_nop 0\ns_cbranch_vccz {done}\ns_sub_u32 s3, s3, 1\ns_cbranch_scc1 L_exit\ns_sleep {sleep}\ns_branch {top}\n{done}:")

def glb_spin(vaddr, srdreg, soff, vtmp, sleep=2, prio=None, preissued=False):
    top, chk, done = label("poll"), label("pchk"), label("pdone")
    if preissued:
        e(f"s_branch {chk}")
    e(f"{top}:\nbuffer_load_dword v{vtmp}, v{vaddr}, {sr(srdreg,4)}, {soff} offen sc1\n{chk}:\ns_waitcnt vmcnt(0)")
    if prio: e(f"s_setprio {prio[0]}")
    e(f"v_cmp_ne_u32 vcc, 1, v{vtmp}")
    if prio: e(f"s_setprio {prio[1]}")
    e(f"s_nop 0\ns_cbranch_vccz {done}\ns_sub_u32 s3, s3, 1\ns_cbranch_scc1 L_exit\ns_sleep {sleep}\ns_branch {top}\n{done}:")

def set_glb_flag(soff, va, vb):
    e(f"v_mov_b32 v{va}, 0\nv_mov_b32 v{vb}, 1\ns_mov_b64 exec, 1")
    e(f"buffer_store_dword v{vb}, v{va}, {sr(SRD_WS,4)}, {soff} offen sc1\ns_mov_b64 exec, -1")

def set_lds_flag(saddr, va, vb, offset=0):
    e(f"v_mov_b32 v{va}, {saddr}\nv_mov_b32 v{vb}, 1\nds_write_b32 v{va}, v{vb}{off(offset)}")

HDR = open("cdna_kernels/" + NAME + ".s.ref").read().split("\n")
hdr = [l for l in HDR if l.startswith(";") and "@launch" not in l]
out += hdr
out.append(f"; @launch grid=(256,1,1) block=(512,1,1) lds={LDS_BYTES}")
e(f'.amdgcn_target "amdgcn-amd-amdhsa--gfx950"\n.text\n.globl {NAME}_kernel\n.p2align 8\n.type {NAME}_kernel,@function')
e(f"{NAME}_kernel:")

e("s_cmp_ge_u32 s2, 256\ns_cbranch_scc1 L_exit")
if OPT["stamps"]:
    e(f"s_memrealtime {sr(S_STMP,2)}\ns_waitcnt lgkmcnt(0)\ns_mov_b32 s{S_ST0+9}, s{S_STMP}")
    stamp(0)
e("s_load_dwordx16 s[16:31], s[0:1], 0\ns_load_dwordx4 s[32:35], s[0:1], 64\ns_load_dwordx2 s[36:37], s[0:1], 80")
e("v_lshrrev_b32 v1, 6, v0\nv_and_b32 v0, 63, v0")
e(f"s_lshr_b32 s3, s2, 3\nv_readfirstlane_b32 s{S_W}, v1")
if OPT["pf_code"]:
    e(f"s_getpc_b64 {sr(S_T0+1,2)}\nL_pc:")
    e(f"s_mul_i32 s{S_T0}, s3, PF_LINES*128\nv_min_u32 v2, PF_LINES-1, v0\nv_lshl_add_u32 v2, v2, 7, s{S_T0}")
    e(f"v_min_u32 v2, L_code_end-L_pc-4, v2\nglobal_load_dword v64, v2, {sr(S_T0+1,2)}")
e(f"""s_and_b32 s{S_GL}, s3, 7
s_bfe_u32 s{S_T0}, s2, 0x20001
s_lshl_b32 s{S_T0}, s{S_T0}, 3
s_add_u32 s{S_G}, s{S_T0}, s{S_GL}
s_and_b32 s{S_T0}, s2, 1
s_lshl_b32 s{S_T0}, s{S_T0}, 2
s_lshr_b32 s{S_J}, s3, 3
s_add_u32 s{S_J}, s{S_J}, s{S_T0}
s_and_b32 s{S_HW}, s{S_W}, 3
s_mov_b32 s3, 0x40000""")
e(f"""v_lshrrev_b32 v4, 4, v0
v_and_b32 v5, 15, v0
s_lshl_b32 s{S_T0}, s{S_HW}, 2
v_add_u32 v4, s{S_T0}, v4
v_lshlrev_b32 v1, 10, v4
v_lshl_add_u32 v1, v5, 4, v1
s_lshr_b32 s{S_T0}, s{S_J}, 1
s_cmp_lt_u32 s{S_W}, 4
s_cselect_b32 s{S_T3}, 2, 0
s_add_u32 s{S_T3}, s{S_T3}, s{S_T0}
s_and_b32 s{S_T3}, s{S_T3}, 3
s_add_u32 s{S_T4}, s{S_T3}, 1
s_and_b32 s{S_T4}, s{S_T4}, 3
s_lshl_b32 s{S_T0}, s{S_G}, 2
s_add_u32 s{S_SOFF}, s{S_T0}, s{S_T3}
s_lshl_b32 s{S_SOFF}, s{S_SOFF}, 14
s_add_u32 s{S_T5}, s{S_T0}, s{S_T4}
s_lshl_b32 s{S_T5}, s{S_T5}, 14
s_lshl_b32 s{S_FLB}, s{S_G}, 12
s_add_u32 s{S_FLB}, s{S_FLB}, {hex(WS_FL)}
s_waitcnt lgkmcnt(0)""")
srd(SRD_X, P_X, 2048 * 1024)
srd(SRD_WS, P_WS, WS_SIZE)
srd(SRD_DBG, P_DBG, 256)
e(f"s_and_b32 s{S_T0}, s{S_G}, 7\ns_cmp_eq_u32 s{S_T0}, s{S_J}\ns_cselect_b32 s{S_CLR}, s{S_W}, 0")
e(f"s_cmp_eq_u32 s{S_CLR}, 7\ns_cbranch_scc1 L_clear\nL_clear_ret:")
XA, XB = 8, 24
for i in range(4):
    e(f"buffer_load_dwordx4 {vr(XA+4*i,4)}, v1, {sr(SRD_X,4)}, s{S_SOFF} offen{off(256*i)}")
e(f"s_cmp_eq_u32 s{S_W}, 4\ns_cbranch_scc1 L_wkv\nL_wkv_ret:")
for i in range(4):
    e(f"buffer_load_dwordx4 {vr(XB+4*i,4)}, v1, {sr(SRD_X,4)}, s{S_T5} offen{off(256*i)}")

e(f"""s_mul_i32 s{S_T0}, s{S_J}, 5
s_min_u32 s{S_T1}, s{S_J}, 3
s_add_u32 s{S_T0}, s{S_T0}, s{S_T1}
s_sub_u32 s{S_T1}, s{S_W}, 2
s_sub_u32 s{S_T2}, s{S_W}, 3
s_cmp_lt_u32 s{S_W}, 4
s_cselect_b32 s{S_T1}, s{S_T1}, s{S_T2}
s_cmp_eq_u32 s{S_W}, 4
s_cselect_b32 s{S_T1}, 5, s{S_T1}
s_cselect_b32 s{S_T2}, s{S_J}, 0
s_add_u32 s{S_T}, s{S_T0}, s{S_T1}
s_cmp_lt_u32 s{S_T2}, 3
s_cselect_b32 s{S_VALID}, 1, 0
s_lshl_b32 s{S_T0}, s{S_J}, 1
s_add_u32 s{S_T0}, s{S_T0}, s{S_W}
s_cmp_lt_u32 s{S_W}, 2
s_cselect_b32 s{SRD_W}, s{P_WQ}, s{P_W1}
s_cselect_b32 s{SRD_W+1}, s{P_WQ+1}, s{P_W1+1}
s_cselect_b32 s{S_T0}, s{S_T0}, s{S_T}
s_cselect_b32 s{S_T1}, 0, 1
s_mov_b32 s{SRD_W+3}, 0x20000
s_mul_i32 s{S_T2}, s{S_T1}, {2752-1024}
s_add_u32 s{S_T2}, s{S_T2}, 1024
s_lshl_b32 s{SRD_W+2}, s{S_T2}, 9
s_lshl_b32 s{S_STEP}, s{S_T2}, 4
s_lshl_b32 s{S_T0}, s{S_T0}, 6
v_lshrrev_b32 v6, 2, v0
v_mul_lo_u32 v6, v6, s{S_T2}
v_and_b32 v7, 3, v0
v_lshl_add_u32 v6, v7, 4, v6
v_add_u32 v6, s{S_T0}, v6""")
if OPT["pf_w"]:
    e(f"""s_lshl_b32 s{S_T1}, s{S_GL}, 6
v_add_u32 v3, s{S_T1}, v0
v_mul_lo_u32 v3, v3, s{S_T2}
buffer_load_dword v65, v3, {sr(SRD_W,4)}, s{S_T0} offen""")
e(f"""s_mul_i32 s{S_T0}, s{S_HW}, {H_STR}
s_lshl_b32 s{S_T1}, s{S_HW}, 13
s_add_u32 s{S_T1}, s{S_T1}, {L_A}
s_cmp_lt_u32 s{S_W}, 4
s_cselect_b32 s{S_RING}, s{S_T1}, s{S_T0}
s_mov_b32 s{S_SOFF}, 0""")

def w_dma(slot):
    e(f"s_add_u32 m0, s{S_RING}, {slot*1024}\ns_nop 0" if slot else f"s_mov_b32 m0, s{S_RING}\ns_nop 0")
    e(f"buffer_load_dwordx4 v6, {sr(SRD_W,4)}, s{S_SOFF} offen lds\ns_add_u32 s{S_SOFF}, s{S_SOFF}, s{S_STEP}")

e(f"""v_mul_u32_u24 v2, {X_STR}, v5
v_lshl_add_u32 v2, v4, 4, v2
v_add_u32 v2, {L_X}, v2
v_lshlrev_b32 v4, 2, v4
v_add_u32 v4, {L_RSTD}, v4
s_mov_b32 s{S_C10}, 0x00003f80
s_mov_b32 s{S_C01}, 0x3f800000
s_mov_b32 s{S_C11}, 0x3f803f80
s_cmp_lt_u32 s{S_W}, 4
s_cbranch_scc0 L_hinit""")
for i in range(8):
    w_dma(i)
e(f"v_mov_b32 v42, s{S_C11}\nv_mov_b32 v43, s{S_C11}")
for i in range(0, 128, 2):
    e(f"v_mov_b64 {vr(VV+i,2)}, v[42:43]")
e(f"""v_mov_b32 v44, -1
v_mov_b32 v45, -1
v_mov_b32 v46, -1
v_mov_b32 v47, -1
s_lshl_b32 s{S_T0}, s{S_W}, 10
s_add_u32 s{S_T0}, s{S_T0}, {L_LS}
v_lshl_add_u32 v3, v0, 4, s{S_T0}
ds_write_b128 v3, v[44:47]
s_waitcnt vmcnt({12 + OPT['pf_w']})
s_branch L_lnA
L_hinit:
s_setprio 2
v_mov_b32 v44, 0
v_lshlrev_b32 v3, 2, v0
v_add_u32 v3, {L_FLG}, v3
ds_write_b32 v3, v44
s_cmp_eq_u32 s{S_CLR}, 7
s_cbranch_scc1 L_clear2
s_cmp_eq_u32 s{S_W}, 4
s_cbranch_scc1 L_w4wait
s_waitcnt vmcnt({4 + OPT['pf_w']})
L_lnA:""")
stamp(1)

def ln_unit(X, squarter):
    T, A = 44, 41
    for i in range(16):
        e(f"v_dot2_f32_bf16 v{A}, v{X+i}, s{S_C11}, {'v%d' % A if i else 0}")
    e(f"s_lshl_b32 s{S_T0}, s{squarter}, 8\ns_lshl_b32 s{S_T1}, s{squarter}, 6\nv_add_u32 v3, s{S_T0}, v2\nv_add_u32 v5, s{S_T1}, v4")
    for r in (8, 4, 2, 1):
        e(f"v_add_f32_dpp v{A}, v{A}, v{A} row_ror:{r} row_mask:0xf bank_mask:0xf\ns_nop 1")
    e(f"v_mul_f32 v{A}, {hex(f2u(-1.0/512))}, v{A}")
    B = 42
    for gidx in range(4):
        for k in range(4):
            e(f"v_dot2_f32_bf16 v{T+2*k}, v{X+4*gidx+k}, s{S_C10}, v{A}")
            e(f"v_dot2_f32_bf16 v{T+2*k+1}, v{X+4*gidx+k}, s{S_C01}, v{A}")
        for k in range(4):
            e(f"v_cvt_pk_bf16_f32 v{X+4*gidx+k}, v{T+2*k}, v{T+2*k+1}")
        e(f"ds_write_b128 v3, {vr(X+4*gidx,4)}{off(gidx*16*X_STR)}")
        for k in range(4):
            e(f"v_dot2_f32_bf16 v{B}, v{X+4*gidx+k}, v{X+4*gidx+k}, {'v%d' % B if gidx or k else 0}")
    e("s_nop 2")
    for r in (8, 4, 2, 1):
        e(f"v_add_f32_dpp v{B}, v{B}, v{B} row_ror:{r} row_mask:0xf bank_mask:0xf\ns_nop 1")
    e(f"""v_mov_b32 v{A}, {hex(f2u(1e-5))}
v_fmac_f32 v{A}, {hex(f2u(1.0/512))}, v{B}
v_rsq_f32 v{B}, v{A}
s_nop 0
v_mul_f32 v{A}, v{A}, v{B}
ds_write_b32 v5, v{B}
ds_write_b32 v5, v{A} offset:256""")

ln_unit(XA, S_T3)
e(f"s_cmp_eq_u32 s{S_W}, 4\ns_cbranch_scc1 L_kv")
e("s_waitcnt lgkmcnt(0)\ns_barrier")
e(f"s_cmp_lt_u32 s{S_W}, 4\ns_cbranch_scc1 L_lnB_a\nL_kv_ret:")
for i in range(8):
    w_dma(i)
e(f"L_lnB_a:\ns_waitcnt vmcnt({8 + OPT['pf_w']})\nL_lnB_k:")
ln_unit(XB, S_T4)
e(f"""v_and_b32 v7, 3, v0
v_lshlrev_b32 v7, 3, v7
v_bfe_u32 v3, v0, 2, 2
v_lshl_add_u32 v7, v3, 6, v7
v_bfe_u32 v3, v0, 4, 1
v_lshl_add_u32 v7, v3, 5, v7
v_lshrrev_b32 v3, 5, v0
v_lshl_add_u32 v7, v3, 9, v7
v_add_u32 v7, s{S_RING}, v7
v_mul_u32_u24 v5, {X_STR}, v3
v_and_b32 v3, 31, v0
v_lshl_add_u32 v5, v3, 4, v5
v_add_u32 v5, {L_X}, v5
v_lshlrev_b32 v4, 2, v3
s_waitcnt lgkmcnt(0)
s_barrier""")
stamp(2)
e(f"s_cmp_lt_u32 s{S_W}, 4\ns_cbranch_scc1 L_g1_a\ns_setprio 0")
e(f"s_cmp_eq_u32 s{S_W}, 4\ns_cbranch_scc1 L_kvflag\ns_branch L_g1\nL_g1_a:\ns_setprio 1\nL_g1:")

AC0, AC1 = SA, SB
FR = [8, 20, 32]
vq, lq = Queue("vmcnt"), Queue("lgkmcnt")
for s in range(8):
    vq.issue(("w", s))
def g1_reads(s):
    vq.wait(("w", s))
    f = FR[s % 3]
    for i in range(2):
        e(f"ds_read_b64_tr_b16 {vr(f+2*i,2)}, v7{off((s % 8)*1024 + i*256)}")
        lq.issue()
    for tb in range(2):
        e(f"ds_read_b128 {vr(f+4+4*tb,4)}, v5{off(s*2*X_STR + tb*512)}")
        lq.issue(("r", s))
g1_reads(0)
g1_reads(1)
for s in range(32):
    if s + 2 < 32:
        g1_reads(s + 2)
    lq.wait(("r", s))
    f = FR[s % 3]
    mf32(AC0, f, f + 4, AC0 if s else None)
    if s + 8 < 32:
        w_dma(s % 8)
        vq.issue(("w", s + 8))
    elif s == 24:
        e(f"buffer_load_dword v48, v4, {sr(SRD_DBG,4)}, 0 offen sc1")
        vq.issue("dbg")
    mf32(AC1, f, f + 8, AC1 if s else None)
e(f"s_setprio 2\nv_add_u32 v3, {L_RSTD}, v4")
e("ds_read_b32 v44, v3\nds_read_b32 v46, v3 offset:128\nds_read_b32 v52, v3 offset:256\nds_read_b32 v54, v3 offset:384")
e(f"s_lshl_b32 s{S_T0}, s{S_W}, 2\ns_add_u32 s{S_T0}, s{S_T0}, {L_FLG+F_G1}")
set_lds_flag(f"s{S_T0}", 49, 50)
stamp(3)
e(f"s_cmp_lt_u32 s{S_W}, 2\ns_cbranch_scc1 L_qepi")

e(f"""s_mul_i32 s{S_T0}, s{S_G}, {H_GRP}
s_lshl_b32 s{S_T1}, s{S_T}, 12
s_add_u32 s{S_T0}, s{S_T0}, s{S_T1}
s_add_u32 s{S_T0}, s{S_T0}, {hex(WS_H)}
v_lshlrev_b32 v3, 4, v0
s_waitcnt lgkmcnt(0)
v_mul_f32 v44, {hex(f2u(-1.4426950408889634))}, v44
v_mul_f32 v46, {hex(f2u(-1.4426950408889634))}, v46
v_mov_b32 v53, v52
v_mov_b32 v55, v54
v_mov_b32 v45, v44
v_mov_b32 v47, v46""")
for tb in range(2):
    for u in range(2):
        A, T, C, R = (AC0, AC1)[tb] + 8 * u, 8, 44 + 2 * tb, 16 + 4 * (2 * tb + u)
        for k in range(4):
            e(f"v_pk_mul_f32 {vr(T+2*k,2)}, {vr(A+2*k,2)}, {vr(C,2)}")
        for k in range(8):
            e(f"v_exp_f32 v{T+k}, v{T+k}")
        for k in range(4):
            e(f"v_pk_fma_f32 {vr(T+2*k,2)}, {vr(T+2*k,2)}, {vr(C+8,2)}, {vr(C+8,2)}")
        for k in range(8):
            e(f"v_rcp_f32 v{T+k}, v{T+k}")
        for k in range(4):
            e(f"v_pk_mul_f32 {vr(T+2*k,2)}, {vr(T+2*k,2)}, {vr(A+2*k,2)}")
        for k in range(4):
            e(f"v_cvt_pk_bf16_f32 v{R+k}, v{T+2*k}, v{T+2*k+1}")
        e(f"buffer_store_dwordx4 {vr(R,4)}, v3, {sr(SRD_WS,4)}, s{S_T0} offen{off(u*2048 + tb*1024)} sc1")
e(f"s_lshl_b32 s{S_T5}, s{S_T}, 5\ns_add_u32 s{S_T5}, s{S_T5}, {FL_H}\ns_add_u32 s{S_T5}, s{S_T5}, s{S_FLB}")
e(f"s_cmp_lt_u32 s{S_W}, 4\ns_cbranch_scc0 L_helper\ns_branch L_attn")

e(f"""L_qepi:
s_lshl_b32 s{S_T0}, s{S_G}, 16
s_lshl_b32 s{S_T1}, s{S_J}, 10
s_add_u32 s{S_T0}, s{S_T0}, s{S_T1}
s_lshl_b32 s{S_T1}, s{S_W}, 8
s_add_u32 s{S_T0}, s{S_T0}, s{S_T1}
s_add_u32 s{S_T0}, s{S_T0}, {hex(WS_Q)}
s_add_u32 s{S_T2}, s{S_T0}, 32768
v_and_b32 v3, 7, v0
v_lshlrev_b32 v3, 4, v3
v_lshrrev_b32 v8, 5, v0
v_lshl_add_u32 v3, v8, 9, v3
s_add_u32 s{S_T1}, s{S_T1}, {L_OWNQ}
v_add_u32 v9, s{S_T1}, v3
v_bfe_u32 v8, v0, 3, 2
v_lshl_add_u32 v3, v8, 13, v3
s_and_b32 s{S_T1}, s{S_J}, 3
s_lshl_b32 s{S_T1}, s{S_T1}, 3
s_lshl_b32 s{S_T3}, 0xff, s{S_T1}
s_waitcnt lgkmcnt(0)
v_mul_f32 v44, {hex(f2u(0.25*1.4426950408889634))}, v44
v_mul_f32 v46, {hex(f2u(0.25*1.4426950408889634))}, v46
v_mov_b32 v45, v44
v_mov_b32 v47, v46""")
for tb in range(2):
    A, C = (AC0, AC1)[tb], 44 + 2 * tb
    for k in range(8):
        e(f"v_pk_mul_f32 {vr(A+2*k,2)}, {vr(A+2*k,2)}, {vr(C,2)}")
    for k in range(8):
        e(f"v_cvt_pk_bf16_f32 v{16+8*tb+k}, v{A+2*k}, v{A+2*k+1}")
    for hl in range(2):
        e(f"buffer_store_dwordx4 {vr(16+8*tb+4*hl,4)}, v3, {sr(SRD_WS,4)}, s{(S_T0, S_T2)[tb]} offen{off(hl*128)} sc1")
    e(f"s_cmp_{'lt' if tb == 0 else 'ge'}_u32 s{S_J}, 4\ns_cselect_b32 exec_lo, s{S_T3}, 0\ns_cselect_b32 exec_hi, s{S_T3}, 0")
    for hl in range(2):
        e(f"ds_write_b128 v9, {vr(16+8*tb+4*hl,4)}{off(hl*128)}")
    e("s_mov_b64 exec, -1")
e(f"s_lshl_b32 s{S_T0}, s{S_W}, 2\ns_add_u32 s{S_T0}, s{S_T0}, {L_FLG+F_OWNQ}")
set_lds_flag(f"s{S_T0}", 49, 50)
e(f"s_lshl_b32 s{S_T5}, s{S_J}, 1\ns_add_u32 s{S_T5}, s{S_T5}, s{S_W}\ns_lshl_b32 s{S_T5}, s{S_T5}, 5")
e(f"s_add_u32 s{S_T5}, s{S_T5}, {FL_Q}\ns_add_u32 s{S_T5}, s{S_T5}, s{S_FLB}")

e("L_attn:\ns_setprio 1")
stamp(4)
e("s_waitcnt vmcnt(4)\nv_cmp_ne_u32 vcc, 1, v48\ns_nop 0\ns_cbranch_vccnz L_dbgslow_a\nL_dbgok_a:")
e(f"""v_lshrrev_b32 v3, 3, v0
v_lshlrev_b32 v3, 12, v3
v_and_b32 v8, 7, v0
v_lshl_add_u32 v3, v8, 7, v3
s_lshl_b32 s{S_T0}, s{S_W}, 15
s_add_u32 s{S_T1}, s{S_T0}, {hex(WS_FL)}
buffer_load_dword v8, v3, {sr(SRD_WS,4)}, s{S_T1} offen sc1
s_waitcnt vmcnt(1)""")
set_glb_flag(f"s{S_T5}", 49, 50)
e(f"""v_lshlrev_b32 v1, 4, v0
v_and_b32 v4, 15, v0
v_lshlrev_b32 v7, 5, v4
v_lshlrev_b32 v4, 4, v4
v_lshrrev_b32 v9, 5, v0
v_lshl_add_u32 v4, v9, 8, v4
v_bfe_u32 v9, v0, 4, 1
v_lshl_add_u32 v2, v9, 9, v4
v_add_u32 v5, s{S_RING}, v1
v_and_b32 v6, 31, v0
s_lshl_b32 s{S_T2}, s{S_W}, 7
s_add_u32 s{S_T2}, s{S_T2}, {L_LS}
v_lshl_add_u32 v6, v6, 2, s{S_T2}
s_lshl_b32 s{S_T2}, s{S_G}, 16
s_lshl_b32 s{S_T3}, s{S_J}, 13
s_add_u32 s{S_T2}, s{S_T2}, s{S_T3}
s_add_u32 s{S_T2}, s{S_T2}, {hex(WS_Q)}""")
for t in range(8):
    e(f"s_add_u32 s{S_T3}, s{S_J}, {t}\ns_and_b32 s{S_T3}, s{S_T3}, 7\ns_lshl_b32 s{S_T3}, s{S_T3}, 10\ns_add_u32 s{S_QO+t}, s{S_T2}, s{S_T3}")
e(f"s_add_u32 s{S_T4}, s{S_FLB}, {FL_Q}\ns_mov_b32 s{S_EX}, 0x0000ffff\ns_mov_b32 s{S_EX+1}, 0x0000ffff")
e("s_waitcnt vmcnt(1)\nv_cmp_ne_u32 vcc, 1, v8\ns_nop 0\ns_cbranch_vccnz L_kvslow\nL_kvok:")
stamp(5)
vq = Queue("vmcnt")
for b in range(16):
    if b % 2 == 0 and b:
        e(f"s_add_u32 s{S_T0}, s{S_T0}, 4096")
    o = (b % 2) * 2048
    e(f"buffer_load_dwordx4 {vr(VK+4*b,4)}, v2, {sr(SRD_WS,4)}, s{S_T0} offen{off(o)} sc1")
    vq.issue(("K", b))
    e(f"s_mov_b64 exec, {sr(S_EX,2)}")
    for i in range(2):
        e(f"buffer_load_dwordx4 {vr(VV+8*b+4*i,4)}, v4, {sr(SRD_WS,4)}, s{S_T0} offen{off(o+1024+512*i)} sc1")
        vq.issue(("V", b))
    e("s_mov_b64 exec, -1")
    if b == 7:
        e(f"buffer_load_dword v3, v7, {sr(SRD_WS,4)}, s{S_T4} offen sc1")
        vq.issue("qf")
e(f"v_and_b32 v2, 1, v0\nv_lshlrev_b32 v2, 2, v2\nv_add_u32 v2, {L_FLG}, v2")
lds_spin(2, F_OWNQ, 4, "v_cmp_ne_u32", 1)
e(f"v_add_u32 v4, {L_OWNQ}, v1\nds_read_b128 {vr(VQ0,4)}, v4")
e(f"v_and_b32 v2, 7, v0\nv_lshlrev_b32 v2, 2, v2\nv_add_u32 v2, {L_FLG}, v2")
e(f"s_waitcnt vmcnt({vq.left(('K', 0))}) lgkmcnt(0)")
stamp(6)
mf32(SA, VK, VQ0)
e("s_nop 11")

ORDER = "e0 d7 a e1 e2 e3 b e4 e5 c0 c1 Q e6 e7 c2 e8 c3 e9 e10 e11 c4 e12 e13 c5 e14 e15 c6".split()
def flush(t):
    o = (t % 4) * 2048
    return [f"ds_write_b128 v5, {vr(VO,4)}{off(o)}", f"ds_write_b128 v5, {vr(VO+4,4)}{off(o+1024)}",
            f"ds_write_b32 v6, v{VO+8}{off(t*512)}"]
for i in range(128):
    t, b = divmod(i, 16)
    S, T = (SA, SB) if i % 2 == 0 else (SB, SA)
    pb = (b - 1) % 16
    after = {}
    if t == 0 and b < 15:
        after["b"] = [f"s_waitcnt vmcnt({vq.left(('K', b+1))})"]
    if t == 0 and b == 7:
        after["e7"] = ["v_cmp_ne_u32 vcc, 1, v3"]
        after["e8"] = ["s_cbranch_vccnz L_qslow", "L_qok:"]
    if (t == 0 and b == 7) or (0 < t < 7 and b == 4):
        after["e9"] = [f"buffer_load_dwordx4 {vr((VQ0, VQ1)[(t+1) % 2],4)}, v1, {sr(SRD_WS,4)}, s{S_QO+t+1} offen sc1"]
    if b == 15 and t < 7:
        after["b"] = ["s_waitcnt vmcnt(0)"]
    if b == 0 and t > 0:
        fl = flush(t - 1)
        after["e11"], after["e12"], after["e14"] = [fl[0]], [fl[1]], [fl[2]]
    if t == 4 and b == 6:
        after["a"] = [f"ds_read_b32 v3, v2 offset:{F_G1}"]
    if t == 4 and b == 7:
        after["a"] = ["s_waitcnt lgkmcnt(0)"]
        after["e7"] = ["v_cmp_ne_u32 vcc, 1, v3"]
        after["e8"] = ["s_cbranch_vccnz L_g1slow", "L_g1ok:"]
        after["e9"] = [f"v_add_u32 v5, {L_P2 - L_A}, v5"]
    for tok in ORDER:
        k = tok[0]
        if k == "e":
            n = int(tok[1:]); e(f"v_exp_f32 v{S+n}, v{S+n}")
        elif k == "c":
            n = int(tok[1:]); e(f"v_cvt_pk_bf16_f32 v{S+(n//4)*8+n%4}, v{S+2*n}, v{S+2*n+1}")
        elif k == "d":
            if i: e(f"v_cvt_pk_bf16_f32 v{T+11}, v{T+14}, v{T+15}")
        elif k == "a":
            if i: mf32(VO, VV + 8 * pb, T, None if b == 1 else VO)
        elif k == "b":
            if i: mf32(VO, VV + 8 * pb + 4, T + 8, VO)
        elif k == "Q":
            if i < 127:
                mf32(T, VK + 4 * ((b + 1) % 16), (VQ0, VQ1)[((i + 1) // 16) % 2])
        for x in after.get(tok, []):
            e(x)
            if x.startswith("buffer_load"):
                vq.issue()
    if i == 15:
        stamp(7)
e(f"v_cvt_pk_bf16_f32 v{SB+11}, v{SB+14}, v{SB+15}")
mf32(VO, VV + 8 * 15, SB, VO)
e("s_nop 0")
mf32(VO, VV + 8 * 15 + 4, SB + 8, VO)
e("s_nop 11")
for x in flush(7):
    e(x)
e("s_waitcnt lgkmcnt(0)\ns_barrier")
stamp(8)
e("s_barrier")
e(f"v_mov_b32 v2, {L_FLG}\nds_read_b32 v3, v2 offset:{F_BAD}\ns_waitcnt lgkmcnt(0)")
e("v_cmp_ne_u32 vcc, 0, v3\ns_nop 0\ns_cbranch_vccnz L_slow_a\ns_branch L_fin")

e("L_helper:")
stamp(4)
e("s_waitcnt vmcnt(4)\nv_cmp_ne_u32 vcc, 1, v48\ns_nop 0\ns_cbranch_vccnz L_dbgslow_h\nL_dbgok_h:\ns_waitcnt vmcnt(0)")
set_glb_flag(f"s{S_T5}", 49, 50)
e("L_helper2:")
e(f"""s_mul_i32 s{S_T0}, s{S_G}, {H_GRP}
s_add_u32 s{S_T0}, s{S_T0}, {hex(WS_H)}
s_add_u32 s{SRD_A}, s{P_WS}, s{S_T0}
s_addc_u32 s{SRD_A+1}, s{P_WS+1}, 0
s_mov_b32 s{SRD_A+2}, {H_GRP}
s_mov_b32 s{SRD_A+3}, 0x20000""")
srd(SRD_B, P_W2, 1376 * 1024)
srd(SRD_C, P_WO, 512 * 1024)
srd(SRD_OUT, P_OUT, 2048 * 1024)
F2ACC, F2B, F2A, XR = 8, 72, 128, 144
e(f"""v_lshrrev_b32 v1, 2, v0
v_lshlrev_b32 v1, 10, v1
v_and_b32 v5, 3, v0
v_lshl_add_u32 v1, v5, 4, v1
s_and_b32 s{S_T0}, s{S_HW}, 1
s_lshl_b32 s{S_T0}, s{S_T0}, 6
s_lshl_b32 s{S_T1}, s{S_J}, 7
s_add_u32 s{S_T0}, s{S_T0}, s{S_T1}
v_add_u32 v1, s{S_T0}, v1
v_xor_b32 v2, 64, v1
s_lshr_b32 s{S_T1}, s{S_HW}, 1
s_lshl_b32 s{S_T2}, s{S_T1}, 10
v_lshl_add_u32 v3, v0, 4, s{S_T2}
v_xor_b32 v4, 0x400, v3
v_lshlrev_b32 v7, 3, v5
v_bfe_u32 v5, v0, 2, 2
v_lshl_add_u32 v7, v5, 6, v7
v_bfe_u32 v5, v0, 4, 1
v_lshl_add_u32 v7, v5, 5, v7
v_lshrrev_b32 v5, 5, v0
v_lshl_add_u32 v7, v5, 8, v7
v_add_u32 v7, s{S_RING}, v7
v_and_b32 v6, 31, v0
v_lshlrev_b32 v6, 10, v6
v_lshl_add_u32 v6, v5, 3, v6
s_lshl_b32 s{S_T2}, s{S_G}, 1
s_add_u32 s{S_T2}, s{S_T2}, s{S_T1}
s_lshl_b32 s{S_T2}, s{S_T2}, 15
s_add_u32 s{S_T2}, s{S_T2}, s{S_T0}
s_mul_i32 s{S_SOFF}, s{S_HW}, {22*16384}
s_mul_i32 s{S_STEP}, s{S_HW}, {22*2048}""")
vq, lq = Queue("vmcnt"), Queue("lgkmcnt")
def f2_dma(s):
    for c in range(2):
        e(f"s_add_u32 m0, s{S_RING}, {(s % 7)*2048 + c*1024}\ns_nop 0")
        e(f"buffer_load_dwordx4 v{1+c}, {sr(SRD_B,4)}, s{S_SOFF} offen lds")
        vq.issue(("w", s))
    e(f"s_add_u32 s{S_SOFF}, s{S_SOFF}, 16384")
def f2_h(s):
    for c in range(2):
        e(f"buffer_load_dwordx4 {vr(F2B+8*(s % 7)+4*c,4)}, v{3+c}, {sr(SRD_A,4)}, s{S_STEP} offen sc1")
        vq.issue(("h", s))
    e(f"s_add_u32 s{S_STEP}, s{S_STEP}, 2048")
for s in range(7):
    f2_dma(s)
for a in range(4):
    e(f"buffer_load_dwordx2 {vr(XR+2*a,2)}, v6, {sr(SRD_X,4)}, s{S_T2} offen{off(16*a)}")
if OPT["pf_late"]:
    e(f"""s_lshl_b32 s{S_T1}, s{S_GL}, 2
s_add_u32 s{S_T1}, s{S_T1}, s{S_HW}
s_mul_i32 s{S_T3}, s{S_T1}, 43*1024
s_lshl_b32 s{S_T4}, s{S_J}, 7
s_add_u32 s{S_T3}, s{S_T3}, s{S_T4}
v_min_u32 v5, 42, v0
v_lshlrev_b32 v5, 10, v5
buffer_load_dword v152, v5, {sr(SRD_B,4)}, s{S_T3} offen
s_lshr_b32 s{S_T3}, s2, 3
s_lshl_b32 s{S_T3}, s{S_T3}, 2
s_add_u32 s{S_T3}, s{S_T3}, s{S_HW}
s_lshl_b32 s{S_T3}, s{S_T3}, 12
v_lshlrev_b32 v5, 6, v0
buffer_load_dword v153, v5, {sr(SRD_C,4)}, s{S_T3} offen""")
e(f"""v_min_u32 v5, 10, v0
s_mul_i32 s{S_T3}, s{S_HW}, 11
v_add_u32 v5, s{S_T3}, v5
v_min_u32 v5, 42, v5
v_lshlrev_b32 v5, 5, v5
s_add_u32 s{S_T3}, s{S_FLB}, {FL_H}
s_setprio 0""")
glb_spin(5, SRD_WS, f"s{S_T3}", 154, sleep=4, prio=(2, 0))
stamp(5)
for s in range(7):
    f2_h(s)
def f2_reads(s):
    f = F2A + 8 * (s % 2)
    for c in range(2):
        for i in range(2):
            e(f"ds_read_b64_tr_b16 {vr(f+4*c+2*i,2)}, v7{off((s % 7)*2048 + c*1024 + i*512)}")
            lq.issue(("r", s))
f2_reads(0)
for s in range(22):
    need = vq.left(("h", s))
    if s + 1 < 22:
        need = min(need, vq.left(("w", s + 1)))
    e(f"s_waitcnt vmcnt({need})")
    if s + 1 < 22:
        f2_reads(s + 1)
    lq.wait(("r", s))
    f, bb = F2A + 8 * (s % 2), F2B + 8 * (s % 7)
    for u in range(4):
        mf32(F2ACC + 16 * u, f + 4 * (u & 1), bb + 4 * (u >> 1), F2ACC + 16 * u if s else None)
    if s + 7 < 22:
        f2_dma(s + 7)
        f2_h(s + 7)
stamp(6)
e(f"s_setprio 2\nv_lshlrev_b32 v1, 4, v0\nv_add_u32 v2, s{S_RING}, v1\ns_nop 9")
for u in range(1, 4):
    for a in range(4):
        e(f"ds_write_b128 v2, {vr(F2ACC+16*u+4*a,4)}{off((u-1)*4096 + a*1024)}")
e(f"s_lshl_b32 s{S_T0}, s{S_HW}, 2\ns_add_u32 s{S_T0}, s{S_T0}, {L_FLG}")
set_lds_flag(f"s{S_T0}", 6, 3, F_RED)
for k in range(8):
    e(f"v_dot2_f32_bf16 v{F2ACC+2*k}, v{XR+k}, s{S_C10}, v{F2ACC+2*k}")
    e(f"v_dot2_f32_bf16 v{F2ACC+2*k+1}, v{XR+k}, s{S_C01}, v{F2ACC+2*k+1}")
for u in range(1, 4):
    e(f"s_xor_b32 s{S_T1}, s{S_HW}, {u}\ns_mul_i32 s{S_T1}, s{S_T1}, {H_STR}\nv_add_u32 v{152+u}, s{S_T1}, v1")
e(f"v_and_b32 v5, 3, v0\nv_lshlrev_b32 v5, 2, v5\nv_add_u32 v5, {L_FLG}, v5\ns_setprio 0")
lds_spin(5, F_RED, 4, "v_cmp_ne_u32", 1, prio=(2, 0))
for u in range(1, 4):
    for a in range(4):
        e(f"ds_read_b128 {vr(F2B+16*(u-1)+4*a,4)}, v{152+u}{off((u-1)*4096 + a*1024)}")
e(f"""s_setprio 2
v_bfe_u32 v4, v0, 3, 2
v_lshlrev_b32 v4, 14, v4
v_lshrrev_b32 v2, 5, v0
v_lshl_add_u32 v4, v2, 7, v4
v_and_b32 v2, 7, v0
v_lshl_add_u32 v4, v2, 4, v4
s_lshl_b32 s{S_T0}, s{S_G}, 17
s_lshr_b32 s{S_T1}, s{S_HW}, 1
s_lshl_b32 s{S_T1}, s{S_T1}, 16
s_add_u32 s{S_T0}, s{S_T0}, s{S_T1}
s_and_b32 s{S_T1}, s{S_HW}, 1
s_lshl_b32 s{S_T1}, s{S_T1}, 10
s_add_u32 s{S_T0}, s{S_T0}, s{S_T1}
s_lshl_b32 s{S_T1}, s{S_J}, 11
s_add_u32 s{S_T0}, s{S_T0}, s{S_T1}
s_add_u32 s{S_T0}, s{S_T0}, {hex(WS_Y)}
s_waitcnt lgkmcnt(0)
ds_write_b32 v6, v3 offset:{F_CONS}""")
for a in range(4):
    for u in range(3):
        for k in range(2):
            r = F2ACC + 4 * a + 2 * k
            e(f"v_pk_add_f32 {vr(r,2)}, {vr(r,2)}, {vr(F2B+16*u+4*a+2*k,2)}")
    e(f"buffer_store_dwordx4 {vr(F2ACC+4*a,4)}, v4, {sr(SRD_WS,4)}, s{S_T0} offen{off(a*256)} sc1")

OACC, OA, OB, YR, RT, RL = 24, 56, 120, 128, 160, 192
VD = 200
V_TR0, V_TR1, V_PART, V_LS, V_OBW, V_OBR, V_OUT, V_YF, V_YO, V_FL, V_LSP = 204, 205, 206, 207, 208, 209, 210, 211, 212, 213, 214
e(f"""v_lshrrev_b32 v1, 2, v0
v_lshlrev_b32 v2, 10, v1
v_bfe_u32 v1, v0, 4, 1
v_lshlrev_b32 v7, 1, v1
v_and_b32 v{VD+1}, 3, v0
v_xor_b32 v7, v7, v{VD+1}
v_lshl_add_u32 v2, v7, 4, v2
s_lshl_b32 s{S_T1}, s{S_HW}, 8
v_add_u32 v{VD}, s{S_T1}, v2
s_lshl_b32 s{S_RING}, s{S_HW}, 14
v_lshlrev_b32 v7, 3, v{VD+1}
v_bfe_u32 v2, v0, 2, 2
v_lshl_add_u32 v7, v2, 6, v7
v_lshl_add_u32 v7, v1, 8, v7
v_lshl_add_u32 v7, v1, 5, v7
v_lshrrev_b32 v2, 5, v0
v_lshl_add_u32 v7, v2, 10, v7
v_add_u32 v{V_TR0}, s{S_RING}, v7
v_xor_b32 v{V_TR1}, 32, v{V_TR0}
v_add_u32 v{VD+1}, 64, v{VD}
v_add_u32 v{VD+2}, 0x80, v{VD}
v_add_u32 v{VD+3}, 0xc0, v{VD}
v_bfe_u32 v7, v0, 3, 1
v_lshl_add_u32 v7, v7, 1, v2
v_and_b32 v2, 7, v0
v_lshl_add_u32 v7, v7, 3, v2
v_lshlrev_b32 v{V_LS}, 2, v7
v_add_u32 v{V_LS}, {L_LS}, v{V_LS}
v_lshl_add_u32 v7, v1, 5, v7
v_lshlrev_b32 v{V_PART}, 4, v7
v_lshlrev_b32 v{V_OBW}, 4, v0
v_add_u32 v{V_OBW}, {L_OBF}, v{V_OBW}
v_and_b32 v{V_OBR}, 0xffffff7f, v{V_OBW}
v_lshrrev_b32 v1, 4, v0
v_lshlrev_b32 v{V_OUT}, 3, v1
v_lshl_add_u32 v{V_OUT}, v2, 10, v{V_OUT}
v_lshlrev_b32 v{V_YO}, 7, v1
v_lshl_add_u32 v{V_YO}, v2, 4, v{V_YO}
v_lshlrev_b32 v{V_LSP}, 7, v1
v_add_u32 v{V_LSP}, {L_LS}, v{V_LSP}
v_and_b32 v1, 1, v0
v_bfe_u32 v7, v0, 1, 1
v_lshl_add_u32 v1, v7, 2, v1
v_lshlrev_b32 v{V_YF}, 5, v1
v_mov_b32 v{V_FL}, {L_FLG}
v_lshlrev_b32 v2, 2, v2
v_add_u32 v2, {L_FLG}, v2""")
for k in range(32):
    e(f"v_mov_b32 v{OACC+k}, 0")
e("s_setprio 0")
lds_spin(5, F_CONS, 1, "v_cmp_ne_u32", 1, prio=(2, 0))
lds_spin(2, F_G1, 1, "v_cmp_ne_u32", 1, prio=(2, 0))

def wo_row(sreg, tplus):
    e(f"s_add_u32 s{sreg}, s{S_J}, s{S_IT}" + (f"\ns_add_u32 s{sreg}, s{sreg}, {tplus}" if tplus else ""))
    e(f"s_and_b32 s{sreg}, s{sreg}, 7\ns_lshl_b32 s{sreg}, s{sreg}, 16")
    for k in range(1, 4):
        e(f"s_add_u32 s{sreg+k}, s{sreg}, {k*16384}")
def wo_dma(u):
    s_, c4 = divmod(u, 4)
    for hl in range(2):
        e(f"s_add_u32 m0, s{S_RING}, {u*2048 + hl*1024}\ns_nop 0")
        e(f"buffer_load_dwordx4 v{VD+c4}, {sr(SRD_C,4)}, s{S_QO+2*s_+hl} offen lds")
def wo_reads(u):
    for ee in range(2):
        for i in range(2):
            e(f"ds_read_b64_tr_b16 {vr(OA+8*u+4*ee+2*i,2)}, v{V_TR0+ee}{off(u*2048 + i*512)}")
def wo_mfma():
    for u in range(8):
        s_, c4 = divmod(u, 4)
        for ee in range(2):
            mf16(OACC + 4 * (2 * c4 + ee), OA + 8 * u + 4 * ee, OB + 4 * s_, OACC + 4 * (2 * c4 + ee))
def reduce_reads(vp, vl):
    for w in range(4):
        e(f"ds_read_b32 v{RL+w}, v{vl}{off(w*128)}")
    for w in range(4):
        for h in range(2):
            e(f"ds_read_b128 {vr(RT+8*w+4*h,4)}, v{vp}{off(w*8192 + h*1024)}")
def reduce_math(dst, check):
    e("s_waitcnt lgkmcnt(8)")
    e(f"v_add_f32 v{RL}, v{RL}, v{RL+1}\nv_add_f32 v{RL+2}, v{RL+2}, v{RL+3}\nv_add_f32 v{RL}, v{RL}, v{RL+2}\nv_rcp_f32 v{RL+2}, v{RL}")
    e("s_waitcnt lgkmcnt(4)")
    for k in range(4):
        e(f"v_pk_add_f32 {vr(RT+2*k,2)}, {vr(RT+2*k,2)}, {vr(RT+8+2*k,2)}")
    e(f"v_mov_b32 v{RL+3}, v{RL+2}\ns_waitcnt lgkmcnt(0)")
    for k in range(4):
        e(f"v_pk_add_f32 {vr(RT+16+2*k,2)}, {vr(RT+16+2*k,2)}, {vr(RT+24+2*k,2)}")
    for k in range(4):
        e(f"v_pk_add_f32 {vr(RT+2*k,2)}, {vr(RT+2*k,2)}, {vr(RT+16+2*k,2)}")
    for k in range(4):
        e(f"v_pk_mul_f32 {vr(RT+2*k,2)}, {vr(RT+2*k,2)}, {vr(RL+2,2)}")
    for k in range(4):
        e(f"v_cvt_pk_bf16_f32 v{dst+k}, v{RT+2*k}, v{RT+2*k+1}")
def range_check(src):
    lo, hi = f2u(2.0**-32), f2u(2.0**48)
    for k in range(4):
        e(f"v_dot2_f32_bf16 v{RL+1}, v{src+k}, s{S_C11}, {'v%d' % (RL+1) if k else 0}")
    e(f"v_subrev_u32 v{RL+3}, {hex(lo)}, v{RL}\nv_cmp_lt_u32 vcc, {hex(hi-lo)}, v{RL+3}\ns_nop 0")
    e(f"v_mov_b32 v{RL+3}, 0x207\nv_cmp_class_f32 {sr(S_EX,2)}, v{RL+1}, v{RL+3}\ns_nop 0\ns_or_b64 vcc, vcc, {sr(S_EX,2)}")
    if OPT["force_slow"]:
        e("s_mov_b64 vcc, -1")

e(f"s_mov_b32 s{S_IT}, 0")
wo_row(S_QO, 0)
for u in range(8):
    wo_dma(u)
e(f"s_lshl_b32 s{S_T5}, s{S_J}, 2\ns_add_u32 s{S_T5}, s{S_T5}, s{S_HW}\ns_lshl_b32 s{S_T5}, s{S_T5}, 5")
e(f"s_add_u32 s{S_T5}, s{S_T5}, {FL_Y}\ns_add_u32 s{S_T5}, s{S_T5}, s{S_FLB}\ns_waitcnt vmcnt(16)\ns_setprio 2")
set_glb_flag(f"s{S_T5}", 1, 3)
e("s_setprio 0")
stamp(7)
e("L_oloop:")
wo_row(S_QO, 1)
for u in range(8):
    e(f"s_waitcnt vmcnt({14 if u == 0 else 12})")
    wo_reads(u)
    if u:
        e("s_waitcnt lgkmcnt(4)")
        wo_dma(u - 1)
e("s_waitcnt lgkmcnt(0)")
wo_dma(7)
e(f"""s_and_b32 s{S_T0}, s{S_IT}, 3
s_lshl_b32 s{S_T2}, s{S_IT}, 2
s_lshl_b32 s{S_T3}, s{S_IT}, 10
s_setprio 2
v_add_u32 v1, s{S_T2}, v{V_FL}
v_add_u32 v2, s{S_T3}, v{V_OBR}
s_cmp_eq_u32 s{S_T0}, s{S_HW}
s_cbranch_scc0 L_owait
s_lshl_b32 s{S_T0}, s{S_T0}, 11
s_mov_b32 s{S_T1}, {L_P2}
s_cmp_lt_u32 s{S_IT}, 4
s_cselect_b32 s{S_T1}, {L_A}, s{S_T1}
s_add_u32 s{S_T0}, s{S_T0}, s{S_T1}
s_lshl_b32 s{S_T1}, s{S_IT}, 9
v_add_u32 v3, s{S_T0}, v{V_PART}
v_add_u32 v4, s{S_T1}, v{V_LS}
v_add_u32 v5, s{S_T1}, v{V_LSP}
v_add_u32 v6, s{S_T3}, v{V_OBW}
s_setprio 0""")
lds_spin(5, 0, 7, "v_cmp_eq_u32", -1, sleep=2, prio=(2, 0))
reduce_reads(3, 4)
e("s_setprio 2")
reduce_math(OB, True)
e(f"ds_write_b128 v6, {vr(OB,4)}")
range_check(OB)
e(f"v_mov_b32 v7, 1\nds_write_b32 v1, v7 offset:{F_OF}\ns_cbranch_vccz L_owait\nds_write_b32 v{V_FL}, v7 offset:{F_BAD}")
e("L_owait:\ns_setprio 0")
lds_spin(1, F_OF, 7, "v_cmp_ne_u32", 1, sleep=2, prio=(2, 0))
e(f"ds_read_b128 {vr(OB,4)}, v2\nds_read_b128 {vr(OB+4,4)}, v2 offset:128\ns_waitcnt lgkmcnt(0)")
wo_mfma()
e(f"s_cmp_eq_u32 s{S_IT}, 5\ns_cbranch_scc1 L_yload\nL_yret:")
e(f"s_add_u32 s{S_IT}, s{S_IT}, 1\ns_cmp_lt_u32 s{S_IT}, 7\ns_cbranch_scc1 L_oloop")
for u in range(8):
    e(f"s_waitcnt vmcnt({14 - 2*u}) lgkmcnt(8)")
    wo_reads(u)
e(f"""s_setprio 2
v_add_u32 v3, {L_P2 + 3*2048}, v{V_PART}
v_add_u32 v4, {7*512}, v{V_LS}
s_lshl_b32 s{S_T0}, s{S_G}, 3
s_add_u32 s{S_T0}, s{S_T0}, s{S_J}
s_lshl_b32 s{S_T0}, s{S_T0}, 13
s_lshl_b32 s{S_T1}, s{S_HW}, 8
s_add_u32 s{S_T5}, s{S_T0}, s{S_T1}""")
for k in range(16):
    e(f"v_pk_add_f32 {vr(OACC+2*k,2)}, {vr(OACC+2*k,2)}, {vr(YR+2*k,2)}")
e("s_waitcnt lgkmcnt(0)\ns_barrier")
stamp(8)
e(f"ds_read_b32 v5, v{V_FL} offset:{F_BAD}")
reduce_reads(3, 4)
reduce_math(OB, True)
e("s_nop 1")
for k in range(4):
    e(f"v_mov_b32_dpp v{OB+4+k}, v{OB+k} row_ror:8 row_mask:0xf bank_mask:0xf")
e("s_nop 1")
wo_mfma()
range_check(OB)
e(f"v_cmp_ne_u32 {sr(S_EX,2)}, 0, v5\ns_nop 0\ns_or_b64 vcc, vcc, {sr(S_EX,2)}\ns_cbranch_vccnz L_slow_h\ns_barrier")
e("L_store:")
e(f"s_mov_b32 exec_lo, 0x00ff00ff\ns_mov_b32 exec_hi, 0x00ff00ff")
for c in range(8):
    e(f"v_cvt_pk_bf16_f32 v{OA+2*c}, v{OACC+4*c}, v{OACC+4*c+1}\nv_cvt_pk_bf16_f32 v{OA+2*c+1}, v{OACC+4*c+2}, v{OACC+4*c+3}")
    e(f"buffer_store_dwordx2 {vr(OA+2*c,2)}, v{V_OUT}, {sr(SRD_OUT,4)}, s{S_T5} offen{off(32*c)}")
e("s_mov_b64 exec, -1")
e("L_fin:")
if OPT["stamps"]:
    e(f"s_waitcnt vmcnt(0)\ns_memtime {sr(S_STMP,2)}\ns_waitcnt lgkmcnt(0)")
    e(f"s_lshl_b32 s{S_T0}, s2, 3\ns_add_u32 s{S_T0}, s{S_T0}, s{S_W}\ns_lshl_b32 s{S_T0}, s{S_T0}, 6\ns_add_u32 s{S_T0}, s{S_T0}, {hex(WS_ST)}")
    for k in range(10):
        e(f"v_mov_b32 v{8+k}, s{S_ST0+k}")
    e(f"v_mov_b32 v18, s{S_STMP}\nv_mov_b32 v19, 0\nv_mov_b32 v1, 0\ns_mov_b64 exec, 1")
    for k in range(3):
        e(f"buffer_store_dwordx4 {vr(8+4*k,4)}, v1, {sr(SRD_WS,4)}, s{S_T0} offen{off(16*k)}")
e("L_exit:\ns_endpgm")

e(f"""L_yload:
s_lshr_b32 s{S_T0}, s{S_J}, 2
s_lshl_b32 s{S_T0}, s{S_T0}, 1
s_lshl_b32 s{S_T1}, s{S_HW}, 3
s_add_u32 s{S_T0}, s{S_T0}, s{S_T1}
s_lshl_b32 s{S_T0}, s{S_T0}, 5
s_add_u32 s{S_T0}, s{S_T0}, {FL_Y}
s_add_u32 s{S_T0}, s{S_T0}, s{S_FLB}""")
glb_spin(V_YF, SRD_WS, f"s{S_T0}", 7, sleep=4, prio=(2, 0))
e(f"""s_lshl_b32 s{S_T0}, s{S_G}, 3
s_add_u32 s{S_T0}, s{S_T0}, s{S_J}
s_lshl_b32 s{S_T0}, s{S_T0}, 2
s_add_u32 s{S_T0}, s{S_T0}, s{S_HW}
s_lshl_b32 s{S_T0}, s{S_T0}, 12
s_add_u32 s{S_T0}, s{S_T0}, {hex(WS_Y)}""")
for c in range(8):
    e(f"buffer_load_dwordx4 {vr(YR+4*c,4)}, v{V_YO}, {sr(SRD_WS,4)}, s{S_T0} offen{off(512*c)} sc1")
e("s_waitcnt vmcnt(0)\ns_branch L_yret")

e(f"""L_clear:
v_mov_b32 v44, 0
v_mov_b32 v45, 0
v_mov_b32 v46, 0
v_mov_b32 v47, 0
v_lshlrev_b32 v3, 4, v0""")
for i in range(4):
    e(f"buffer_store_dwordx4 v[44:47], v3, {sr(SRD_WS,4)}, s{S_FLB} offen{off(1024*i)} sc1")
e(f"""s_branch L_clear_ret
L_clear2:
s_lshl_b32 s{S_T0}, s{S_G}, 2
v_mov_b32 v3, 1
s_waitcnt vmcnt({8 + OPT['pf_w']})
s_mov_b64 exec, 1
buffer_store_dword v3, v44, {sr(SRD_DBG,4)}, s{S_T0} offen sc1
s_mov_b64 exec, -1
s_waitcnt vmcnt({5 + OPT['pf_w']})
s_branch L_lnA
L_w4wait:
s_waitcnt vmcnt({20 + OPT['pf_w']})
s_branch L_lnA""")

e(f"""L_wkv:
s_bitcmp1_b32 s{S_J}, 0
s_cselect_b32 s{SRD_A}, s{P_WV}, s{P_WK}
s_cselect_b32 s{SRD_A+1}, s{P_WV+1}, s{P_WK+1}
s_mov_b32 s{SRD_A+2}, 16384
s_mov_b32 s{SRD_A+3}, 0x20000
v_lshlrev_b32 v3, 4, v0""")
for i in range(4):
    e(f"s_mov_b32 m0, {i*H_STR + 8192}\ns_mov_b32 s{S_T0}, {i*4096}")
    for k in range(4):
        e(f"buffer_load_dwordx4 v3, {sr(SRD_A,4)}, s{S_T0} offen{off(1024*k)} lds")
e("s_branch L_wkv_ret")

WF, XF, KA = 72, 136, 200
e(f"""L_kv:
v_and_b32 v3, 3, v0
v_lshlrev_b32 v3, 3, v3
v_bfe_u32 v5, v0, 2, 2
v_lshl_add_u32 v3, v5, 5, v3
v_lshrrev_b32 v5, 4, v0
v_lshl_add_u32 v3, v5, 8, v3
s_waitcnt vmcnt({4 + OPT['pf_w']})""")
for s in range(16):
    if s % 4 == 0:
        e("s_waitcnt lgkmcnt(6)")
    for i in range(2):
        e(f"ds_read_b64_tr_b16 {vr(WF+4*s+2*i,2)}, v3{off((s >> 2)*H_STR + 8192 + (s & 3)*1024 + i*128)}")
e(f"""v_and_b32 v52, 31, v0
v_lshlrev_b32 v52, 2, v52
buffer_load_dword v53, v52, {sr(SRD_DBG,4)}, 0 offen sc1
v_mul_u32_u24 v3, {X_STR}, v5
v_and_b32 v54, 15, v0
v_lshl_add_u32 v3, v54, 4, v3
s_lshl_b32 s{S_T0}, s{S_T3}, 8
s_add_u32 s{S_T0}, s{S_T0}, {L_X}
v_add_u32 v3, s{S_T0}, v3
s_lshl_b32 s{S_T0}, s{S_T3}, 6
s_add_u32 s{S_T0}, s{S_T0}, {L_RSTD}
v_lshl_add_u32 v54, v54, 2, s{S_T0}
v_lshl_add_u32 v55, v5, 4, s{S_T0}
s_lshl_b32 s{S_T0}, s{S_G}, 12
s_lshr_b32 s{S_T1}, s{S_T3}, 1
s_lshl_b32 s{S_T1}, s{S_T1}, 11
s_add_u32 s{S_T0}, s{S_T0}, s{S_T1}
s_and_b32 s{S_T1}, s{S_T3}, 1
s_lshl_b32 s{S_T1}, s{S_T1}, 9
s_add_u32 s{S_T0}, s{S_T0}, s{S_T1}
s_and_b32 s{S_T1}, s{S_J}, 1
s_lshl_b32 s{S_T1}, s{S_T1}, 10
s_add_u32 s{S_T2}, s{S_T0}, s{S_T1}
v_lshlrev_b32 v5, 4, v0
s_bitcmp1_b32 s{S_J}, 0
s_waitcnt lgkmcnt(0)
s_cbranch_scc1 L_kv_v""")
for isv in range(2):
    if isv:
        e("L_kv_v:")
    e("s_barrier")
    lq = Queue("lgkmcnt")
    def xr(s):
        e(f"ds_read_b128 {vr(XF+4*s,4)}, v3{off(s*4*X_STR)}")
        lq.issue(s)
    for s in range(8):
        xr(s)
    for s in range(16):
        if s + 8 < 16:
            xr(s + 8)
        elif s == 8:
            e("ds_read_b128 v[56:59], v55" if isv else "ds_read_b32 v56, v54")
            lq.issue("rs")
        lq.wait(s)
        if isv:
            mf16(KA, XF + 4 * s, WF + 4 * s, KA if s else None)
        else:
            mf16(KA, WF + 4 * s, XF + 4 * s, KA if s else None)
    e("s_waitcnt lgkmcnt(0)\ns_nop 6")
    for k in range(4):
        e(f"v_mul_f32 v{KA+k}, v{KA+k}, v{56 + (k if isv else 0)}")
    if not isv:
        e("s_branch L_kv_st")
e(f"""L_kv_st:
v_cvt_pk_bf16_f32 v60, v{KA}, v{KA+1}
v_cvt_pk_bf16_f32 v61, v{KA+2}, v{KA+3}
v_mov_b32 v62, 0
v_mov_b32 v63, 0
s_nop 1
v_permlane32_swap_b32 v60, v62
v_permlane32_swap_b32 v61, v63
s_mov_b32 exec_hi, 0
buffer_store_dwordx4 v[60:63], v5, {sr(SRD_WS,4)}, s{S_T2} offen sc1
s_mov_b32 exec_hi, -1""")
for i in range(8):
    w_dma(i)
e(f"s_waitcnt vmcnt({10 + OPT['pf_w']})\ns_branch L_lnB_k")

e(f"L_kvflag:\ns_setprio 2\ns_waitcnt vmcnt(8)\nv_cmp_ne_u32 vcc, 1, v53\ns_nop 0\ns_cbranch_vccz L_kvflag2")
glb_spin(4, SRD_DBG, "0", 53)
e(f"L_kvflag2:\ns_lshl_b32 s{S_T5}, s{S_J}, 7\ns_add_u32 s{S_T5}, s{S_T5}, s{S_FLB}")
set_glb_flag(f"s{S_T5}", 49, 50)
e(f"s_setprio 0\ns_cmp_eq_u32 s{S_VALID}, 1\ns_cbranch_scc1 L_g1\ns_setprio 2")
set_lds_flag(L_FLG + F_G1 + 16, 49, 50)
e("s_waitcnt vmcnt(0)\ns_branch L_helper2")

e("L_dbgslow_a:")
glb_spin(4, SRD_DBG, "0", 48)
e("s_branch L_dbgok_a\nL_dbgslow_h:")
glb_spin(4, SRD_DBG, "0", 48)
e("s_branch L_dbgok_h\nL_kvslow:")
glb_spin(3, SRD_WS, f"s{S_T1}", 8, sleep=1)
e("s_branch L_kvok\nL_qslow:")
glb_spin(7, SRD_WS, f"s{S_T4}", 3, sleep=1)
e("s_branch L_qok\nL_g1slow:")
lds_spin(2, F_G1, 3, "v_cmp_ne_u32", 1)
e("s_branch L_g1ok")

e(f"""L_slow_a:
v_add_u32 v5, s{S_RING}, v1
s_lshl_b32 s{S_T0}, s{S_W}, 8
s_add_u32 s{S_T0}, s{S_T0}, {L_MB}
v_lshl_add_u32 v2, v0, 2, s{S_T0}
v_and_b32 v4, 31, v0
v_lshlrev_b32 v4, 2, v4
v_add_u32 v4, {L_MB}, v4
s_lshl_b32 s{S_T2}, s{S_G}, 16
s_lshl_b32 s{S_T3}, s{S_J}, 13
s_add_u32 s{S_T2}, s{S_T2}, s{S_T3}
s_add_u32 s{S_T2}, s{S_T2}, {hex(WS_Q)}
s_mov_b32 s{S_IT}, 0
L_slow_a_loop:
s_add_u32 s{S_T3}, s{S_J}, s{S_IT}
s_and_b32 s{S_T3}, s{S_T3}, 7
s_lshl_b32 s{S_T3}, s{S_T3}, 10
s_add_u32 s{S_T3}, s{S_T3}, s{S_T2}
buffer_load_dwordx4 {vr(VQ0,4)}, v1, {sr(SRD_WS,4)}, s{S_T3} offen sc1
v_mov_b32 v3, 0xff800000
s_waitcnt vmcnt(0)""")
for b in range(16):
    mf32(SA, VK + 4 * b, VQ0)
    e("s_nop 11")
    for k in range(8):
        e(f"v_max3_f32 v3, v3, v{SA+2*k}, v{SA+2*k+1}")
e("ds_write_b32 v2, v3\ns_waitcnt lgkmcnt(0)\ns_barrier")
for k in range(8):
    e(f"ds_read_b32 v{SA+k}, v4{off(128*k)}")
e("s_waitcnt lgkmcnt(0)")
e(f"v_max3_f32 v3, v{SA}, v{SA+1}, v{SA+2}\nv_max3_f32 v3, v3, v{SA+3}, v{SA+4}\nv_max3_f32 v3, v3, v{SA+5}, v{SA+6}\nv_max_f32 v3, v3, v{SA+7}")
for k in range(16):
    e(f"v_sub_f32 v{SB+k}, 0, v3")
e("s_nop 1")
for b in range(16):
    mf32(SA, VK + 4 * b, VQ0, SB)
    e("s_nop 11")
    for k in range(16):
        e(f"v_exp_f32 v{SA+k}, v{SA+k}")
    for n in range(8):
        e(f"v_cvt_pk_bf16_f32 v{SA+(n//4)*8+n%4}, v{SA+2*n}, v{SA+2*n+1}")
    e("s_nop 1")
    mf32(VO, VV + 8 * b, SA, VO if b else None)
    mf32(VO, VV + 8 * b + 4, SA + 8, VO)
e("s_nop 11")
for x in flush(0):
    e(x)
e(f"s_waitcnt lgkmcnt(0)\ns_barrier\ns_add_u32 s{S_IT}, s{S_IT}, 1\ns_cmp_lt_u32 s{S_IT}, 8\ns_cbranch_scc1 L_slow_a_loop\ns_branch L_fin")

e(f"""L_slow_h:
v_mov_b32 v7, 1
ds_write_b32 v{V_FL}, v7 offset:{F_BAD}
s_waitcnt lgkmcnt(0)
s_barrier
v_add_u32 v3, {L_A}, v{V_PART}
s_nop 7""")
for k in range(32):
    e(f"v_mov_b32 v{OACC+k}, v{YR+k}")
e(f"s_mov_b32 s{S_IT}, 0\nL_slow_h_loop:")
wo_row(S_QO, 0)
for u in range(8):
    wo_dma(u)
e("s_waitcnt vmcnt(0)")
for u in range(8):
    e("s_waitcnt lgkmcnt(8)")
    wo_reads(u)
e("s_waitcnt lgkmcnt(0)\ns_barrier\ns_barrier")
reduce_reads(3, V_LS)
reduce_math(OB, False)
e("s_nop 1")
for k in range(4):
    e(f"v_mov_b32_dpp v{OB+4+k}, v{OB+k} row_ror:8 row_mask:0xf bank_mask:0xf")
e("s_nop 1")
wo_mfma()
e(f"s_add_u32 s{S_IT}, s{S_IT}, 1\ns_cmp_lt_u32 s{S_IT}, 8\ns_cbranch_scc1 L_slow_h_loop\ns_nop 7\ns_branch L_store")
e("L_code_end:")

e(f""".section .rodata,"a"
.p2align 6
.amdhsa_kernel {NAME}_kernel
.amdhsa_next_free_vgpr 256
.amdhsa_next_free_sgpr 102
.amdhsa_accum_offset 256
.amdhsa_group_segment_fixed_size 0
.amdhsa_kernarg_size 88
.amdhsa_user_sgpr_count 2
.amdhsa_user_sgpr_kernarg_segment_ptr 1
.amdhsa_system_sgpr_workgroup_id_x 1
.end_amdhsa_kernel""")

txt = "\n".join(out) + "\n"
txt = txt.replace("PF_LINES*128", str(10 * 128)).replace("PF_LINES-1", "9")
open(sys.argv[1], "w").write(txt)
```

```python
import sys, struct

NAME = "parallel_sum__grouped_kv_mqa__dense_activation_silu__prompt"
OPT = dict(hold=-1, holdT=6000, stamps=0, force_slow=0, pf_code=1, pf_w=1, pf_late=1)
for a in sys.argv[2:]:
    k, v = a.split("=")
    OPT[k] = int(v)

def f2u(x):
    return struct.unpack("<I", struct.pack("<f", x))[0]

WS_KV = 0x0
WS_Q = 0x40000
WS_H = 0x300000
WS_Y = 0x900000
WS_FL = 0xE00000
WS_ST = 0xF00000
WS_SIZE = 0x1000000
H_GRP = 86 * 2048
FL_Q, FL_H, FL_Y = 1024, 1024 + 16 * 32, 1024 + 60 * 32

L_H = 0
H_STR = 14336
L_X = 57344
X_STR = 1040
L_A = L_X + 64 * X_STR
L_M = L_A + 32768
L_LS = L_M
L_OWNQ = L_M + 4096
L_RSTD = L_M + 5120
L_SIG = L_M + 5376
L_FLG = L_M + 5632
L_MB = L_M + 6144
LDS_BYTES = 163840
L_P2 = 65536
L_OBF = L_P2 + 32768
F_OWNQ, F_G1, F_RED, F_CONS, F_OF, F_BAD = 0, 16, 48, 64, 80, 112
assert L_MB + 1024 <= LDS_BYTES and L_OBF + 8192 <= L_A

S_W, S_G, S_J, S_GL = 4, 5, 6, 7
SRD_X, SRD_WS = 8, 12
P_X, P_WQ, P_WK, P_WV, P_WO, P_BX, P_W1, P_W2 = 16, 18, 20, 22, 24, 26, 28, 30
P_OUT, P_DBG, P_WS = 32, 34, 36
S_T, S_VALID = 38, 39
SRD_W, SRD_DBG, SRD_A, SRD_B, SRD_C, SRD_OUT = 40, 44, 48, 52, 56, 60
S_STEP, S_SOFF, S_RING, S_FLB = 64, 65, 66, 67
S_C10, S_C01, S_C11 = 68, 69, 70
S_T0, S_T1, S_T2, S_T3, S_T4, S_T5 = 71, 72, 73, 74, 75, 76
S_CLR = 77
S_EX = 78
S_QO = 80
S_HW, S_IT = 88, 89
S_STMP = 90
S_ST0 = 92

VK, VV, SA, SB, VO, VQ0, VQ1 = 8, 72, 200, 216, 232, 248, 252

out = []
def e(s):
    for l in s.split("\n"):
        l = l.strip()
        if not l:
            continue
        out.append(l if l.endswith(":") or l.startswith(".") else "    " + l)

def vr(a, n=1):
    return f"v{a}" if n == 1 else f"v[{a}:{a+n-1}]"
def sr(a, n=1):
    return f"s{a}" if n == 1 else f"s[{a}:{a+n-1}]"
def mf32(d, a, b, c=None):
    e(f"v_mfma_f32_32x32x16_bf16 {vr(d,16)}, {vr(a,4)}, {vr(b,4)}, {vr(c,16) if c is not None else 0}")
def mf16(d, a, b, c=None):
    e(f"v_mfma_f32_16x16x32_bf16 {vr(d,4)}, {vr(a,4)}, {vr(b,4)}, {vr(c,4) if c is not None else 0}")
def srd(d, p, n):
    e(f"s_mov_b32 s{d}, s{p}\ns_mov_b32 s{d+1}, s{p+1}\ns_mov_b32 s{d+2}, {hex(n)}\ns_mov_b32 s{d+3}, 0x20000")
def stamp(k):
    if OPT["hold"] == k:
        lb = label("hold")
        e(f"{lb}:\ns_memrealtime {sr(S_STMP,2)}\ns_waitcnt lgkmcnt(0)\ns_sub_u32 s{S_STMP}, s{S_STMP}, s{S_ST0+9}\ns_cmp_lt_u32 s{S_STMP}, {OPT['holdT']}\ns_cbranch_scc1 {lb}")
    if OPT["stamps"]:
        e(f"s_memtime {sr(S_STMP,2)}\ns_waitcnt lgkmcnt(0)\ns_mov_b32 s{S_ST0+k}, s{S_STMP}")
def off(n):
    return f" offset:{n}" if n else ""

class Queue:
    def __init__(self, kind):
        self.kind, self.n, self.tags = kind, 0, {}
    def issue(self, tag=None):
        self.n += 1
        if tag is not None:
            self.tags[tag] = self.n
    def left(self, tag):
        return self.n - self.tags[tag]
    def wait(self, tag):
        lim = 63 if self.kind == "vmcnt" else 15
        e(f"s_waitcnt {self.kind}({min(self.left(tag), lim)})")

uid = [0]
def label(p):
    uid[0] += 1
    return f"L_{p}_{uid[0]}"

def lds_spin(vaddr, offset, vtmp, cmp, ref, sleep=1, prio=None):
    top, done = label("spin"), label("spun")
    e(f"{top}:")
    e(f"ds_read_b32 v{vtmp}, v{vaddr}{off(offset)}\ns_waitcnt lgkmcnt(0)")
    if prio: e(f"s_setprio {prio[0]}")
    e(f"{cmp} vcc, {ref}, v{vtmp}")
    if prio: e(f"s_setprio {prio[1]}")
    e(f"s_nop 0\ns_cbranch_vccz {done}\ns_sub_u32 s3, s3, 1\ns_cbranch_scc1 L_exit\ns_sleep {sleep}\ns_branch {top}\n{done}:")

def glb_spin(vaddr, srdreg, soff, vtmp, sleep=2, prio=None, preissued=False):
    top, chk, done = label("poll"), label("pchk"), label("pdone")
    if preissued:
        e(f"s_branch {chk}")
    e(f"{top}:\nbuffer_load_dword v{vtmp}, v{vaddr}, {sr(srdreg,4)}, {soff} offen sc1\n{chk}:\ns_waitcnt vmcnt(0)")
    if prio: e(f"s_setprio {prio[0]}")
    e(f"v_cmp_ne_u32 vcc, 1, v{vtmp}")
    if prio: e(f"s_setprio {prio[1]}")
    e(f"s_nop 0\ns_cbranch_vccz {done}\ns_sub_u32 s3, s3, 1\ns_cbranch_scc1 L_exit\ns_sleep {sleep}\ns_branch {top}\n{done}:")

def set_glb_flag(soff, va, vb):
    e(f"v_mov_b32 v{va}, 0\nv_mov_b32 v{vb}, 1\ns_mov_b64 exec, 1")
    e(f"buffer_store_dword v{vb}, v{va}, {sr(SRD_WS,4)}, {soff} offen sc1\ns_mov_b64 exec, -1")

def set_lds_flag(saddr, va, vb, offset=0):
    e(f"v_mov_b32 v{va}, {saddr}\nv_mov_b32 v{vb}, 1\nds_write_b32 v{va}, v{vb}{off(offset)}")

HDR = open("cdna_kernels/" + NAME + ".s.ref").read().split("\n")
hdr = [l for l in HDR if l.startswith(";") and "@launch" not in l]
out += hdr
out.append(f"; @launch grid=(256,1,1) block=(512,1,1) lds={LDS_BYTES}")
e(f'.amdgcn_target "amdgcn-amd-amdhsa--gfx950"\n.text\n.globl {NAME}_kernel\n.p2align 8\n.type {NAME}_kernel,@function')
e(f"{NAME}_kernel:")

e("s_cmp_ge_u32 s2, 256\ns_cbranch_scc1 L_exit")
if OPT["stamps"] or OPT["hold"] >= 0:
    e(f"s_memrealtime {sr(S_STMP,2)}\ns_waitcnt lgkmcnt(0)\ns_mov_b32 s{S_ST0+9}, s{S_STMP}")
    stamp(0)
e("s_load_dwordx16 s[16:31], s[0:1], 0\ns_load_dwordx4 s[32:35], s[0:1], 64\ns_load_dwordx2 s[36:37], s[0:1], 80")
e("v_lshrrev_b32 v1, 6, v0\nv_and_b32 v0, 63, v0")
e(f"s_lshr_b32 s3, s2, 3\nv_readfirstlane_b32 s{S_W}, v1")
if OPT["pf_code"]:
    e(f"s_getpc_b64 {sr(S_T0+1,2)}\nL_pc:")
    e(f"s_mul_i32 s{S_T0}, s3, PF_LINES*128\nv_min_u32 v2, PF_LINES-1, v0\nv_lshl_add_u32 v2, v2, 7, s{S_T0}")
    e(f"v_min_u32 v2, L_code_end-L_pc-4, v2\nglobal_load_dword v64, v2, {sr(S_T0+1,2)}")
e(f"""s_and_b32 s{S_GL}, s3, 7
s_bfe_u32 s{S_T0}, s2, 0x20001
s_lshl_b32 s{S_T0}, s{S_T0}, 3
s_add_u32 s{S_G}, s{S_T0}, s{S_GL}
s_and_b32 s{S_T0}, s2, 1
s_lshl_b32 s{S_T0}, s{S_T0}, 2
s_lshr_b32 s{S_J}, s3, 3
s_add_u32 s{S_J}, s{S_J}, s{S_T0}
s_and_b32 s{S_HW}, s{S_W}, 3
s_mov_b32 s3, 0x40000""")
e(f"""v_lshrrev_b32 v4, 4, v0
v_and_b32 v5, 15, v0
s_lshl_b32 s{S_T0}, s{S_HW}, 2
v_add_u32 v4, s{S_T0}, v4
v_lshlrev_b32 v1, 10, v4
v_lshl_add_u32 v1, v5, 4, v1
s_lshr_b32 s{S_T0}, s{S_J}, 1
s_cmp_lt_u32 s{S_W}, 4
s_cselect_b32 s{S_T3}, 2, 0
s_add_u32 s{S_T3}, s{S_T3}, s{S_T0}
s_and_b32 s{S_T3}, s{S_T3}, 3
s_add_u32 s{S_T4}, s{S_T3}, 1
s_and_b32 s{S_T4}, s{S_T4}, 3
s_lshl_b32 s{S_T0}, s{S_G}, 2
s_add_u32 s{S_SOFF}, s{S_T0}, s{S_T3}
s_lshl_b32 s{S_SOFF}, s{S_SOFF}, 14
s_add_u32 s{S_T5}, s{S_T0}, s{S_T4}
s_lshl_b32 s{S_T5}, s{S_T5}, 14
s_lshl_b32 s{S_FLB}, s{S_G}, 12
s_add_u32 s{S_FLB}, s{S_FLB}, {hex(WS_FL)}
s_waitcnt lgkmcnt(0)""")
srd(SRD_X, P_X, 2048 * 1024)
srd(SRD_WS, P_WS, WS_SIZE)
srd(SRD_DBG, P_DBG, 256)
e(f"s_and_b32 s{S_T0}, s{S_G}, 7\ns_cmp_eq_u32 s{S_T0}, s{S_J}\ns_cselect_b32 s{S_CLR}, s{S_W}, 0")
e(f"s_cmp_eq_u32 s{S_CLR}, 7\ns_cbranch_scc1 L_clear\nL_clear_ret:")
XA, XB = 8, 24
for i in range(4):
    e(f"buffer_load_dwordx4 {vr(XA+4*i,4)}, v1, {sr(SRD_X,4)}, s{S_SOFF} offen{off(256*i)}")
e(f"s_cmp_eq_u32 s{S_W}, 4\ns_cbranch_scc1 L_wkv\nL_wkv_ret:")
for i in range(4):
    e(f"buffer_load_dwordx4 {vr(XB+4*i,4)}, v1, {sr(SRD_X,4)}, s{S_T5} offen{off(256*i)}")

e(f"""s_mul_i32 s{S_T0}, s{S_J}, 5
s_min_u32 s{S_T1}, s{S_J}, 3
s_add_u32 s{S_T0}, s{S_T0}, s{S_T1}
s_sub_u32 s{S_T1}, s{S_W}, 2
s_sub_u32 s{S_T2}, s{S_W}, 3
s_cmp_lt_u32 s{S_W}, 4
s_cselect_b32 s{S_T1}, s{S_T1}, s{S_T2}
s_cmp_eq_u32 s{S_W}, 4
s_cselect_b32 s{S_T1}, 5, s{S_T1}
s_cselect_b32 s{S_T2}, s{S_J}, 0
s_add_u32 s{S_T}, s{S_T0}, s{S_T1}
s_cmp_lt_u32 s{S_T2}, 3
s_cselect_b32 s{S_VALID}, 1, 0
s_lshl_b32 s{S_T0}, s{S_J}, 1
s_add_u32 s{S_T0}, s{S_T0}, s{S_W}
s_cmp_lt_u32 s{S_W}, 2
s_cselect_b32 s{SRD_W}, s{P_WQ}, s{P_W1}
s_cselect_b32 s{SRD_W+1}, s{P_WQ+1}, s{P_W1+1}
s_cselect_b32 s{S_T0}, s{S_T0}, s{S_T}
s_cselect_b32 s{S_T1}, 0, 1
s_mov_b32 s{SRD_W+3}, 0x20000
s_mul_i32 s{S_T2}, s{S_T1}, {2752-1024}
s_add_u32 s{S_T2}, s{S_T2}, 1024
s_lshl_b32 s{SRD_W+2}, s{S_T2}, 9
s_lshl_b32 s{S_STEP}, s{S_T2}, 4
s_lshl_b32 s{S_T0}, s{S_T0}, 6
v_lshrrev_b32 v6, 2, v0
v_mul_lo_u32 v6, v6, s{S_T2}
v_and_b32 v7, 3, v0
v_lshl_add_u32 v6, v7, 4, v6
v_add_u32 v6, s{S_T0}, v6""")
if OPT["pf_w"]:
    e(f"""s_lshl_b32 s{S_T1}, s{S_GL}, 6
v_add_u32 v3, s{S_T1}, v0
v_mul_lo_u32 v3, v3, s{S_T2}
buffer_load_dword v65, v3, {sr(SRD_W,4)}, s{S_T0} offen""")
e(f"""s_mul_i32 s{S_T0}, s{S_HW}, {H_STR}
s_lshl_b32 s{S_T1}, s{S_HW}, 13
s_add_u32 s{S_T1}, s{S_T1}, {L_A}
s_cmp_lt_u32 s{S_W}, 4
s_cselect_b32 s{S_RING}, s{S_T1}, s{S_T0}
s_mov_b32 s{S_SOFF}, 0""")

def w_dma(slot):
    e(f"s_add_u32 m0, s{S_RING}, {slot*1024}\ns_nop 0" if slot else f"s_mov_b32 m0, s{S_RING}\ns_nop 0")
    e(f"buffer_load_dwordx4 v6, {sr(SRD_W,4)}, s{S_SOFF} offen lds\ns_add_u32 s{S_SOFF}, s{S_SOFF}, s{S_STEP}")

e(f"""v_mul_u32_u24 v2, {X_STR}, v5
v_lshl_add_u32 v2, v4, 4, v2
v_add_u32 v2, {L_X}, v2
v_lshlrev_b32 v4, 2, v4
v_add_u32 v4, {L_RSTD}, v4
s_mov_b32 s{S_C10}, 0x00003f80
s_mov_b32 s{S_C01}, 0x3f800000
s_mov_b32 s{S_C11}, 0x3f803f80
s_cmp_lt_u32 s{S_W}, 4
s_cbranch_scc0 L_hinit""")
for i in range(8):
    w_dma(i)
e(f"v_mov_b32 v42, s{S_C11}\nv_mov_b32 v43, s{S_C11}")
for i in range(0, 128, 2):
    e(f"v_mov_b64 {vr(VV+i,2)}, v[42:43]")
e(f"""v_mov_b32 v44, -1
v_mov_b32 v45, -1
v_mov_b32 v46, -1
v_mov_b32 v47, -1
s_lshl_b32 s{S_T0}, s{S_W}, 10
s_add_u32 s{S_T0}, s{S_T0}, {L_LS}
v_lshl_add_u32 v3, v0, 4, s{S_T0}
ds_write_b128 v3, v[44:47]
s_waitcnt vmcnt({12 + OPT['pf_w']})
s_branch L_lnA
L_hinit:
s_setprio 2
v_mov_b32 v44, 0
v_lshlrev_b32 v3, 2, v0
v_add_u32 v3, {L_FLG}, v3
ds_write_b32 v3, v44
s_cmp_eq_u32 s{S_CLR}, 7
s_cbranch_scc1 L_clear2
s_cmp_eq_u32 s{S_W}, 4
s_cbranch_scc1 L_w4wait
s_waitcnt vmcnt({4 + OPT['pf_w']})
L_lnA:""")
stamp(1)

def ln_unit(X, squarter):
    T, A = 44, 41
    for i in range(16):
        e(f"v_dot2_f32_bf16 v{A}, v{X+i}, s{S_C11}, {'v%d' % A if i else 0}")
    e(f"s_lshl_b32 s{S_T0}, s{squarter}, 8\ns_lshl_b32 s{S_T1}, s{squarter}, 6\nv_add_u32 v3, s{S_T0}, v2\nv_add_u32 v5, s{S_T1}, v4")
    for r in (8, 4, 2, 1):
        e(f"v_add_f32_dpp v{A}, v{A}, v{A} row_ror:{r} row_mask:0xf bank_mask:0xf\ns_nop 1")
    e(f"v_mul_f32 v{A}, {hex(f2u(-1.0/512))}, v{A}")
    B = 42
    for gidx in range(4):
        for k in range(4):
            e(f"v_dot2_f32_bf16 v{T+2*k}, v{X+4*gidx+k}, s{S_C10}, v{A}")
            e(f"v_dot2_f32_bf16 v{T+2*k+1}, v{X+4*gidx+k}, s{S_C01}, v{A}")
        for k in range(4):
            e(f"v_cvt_pk_bf16_f32 v{X+4*gidx+k}, v{T+2*k}, v{T+2*k+1}")
        e(f"ds_write_b128 v3, {vr(X+4*gidx,4)}{off(gidx*16*X_STR)}")
        for k in range(4):
            e(f"v_dot2_f32_bf16 v{B}, v{X+4*gidx+k}, v{X+4*gidx+k}, {'v%d' % B if gidx or k else 0}")
    e("s_nop 2")
    for r in (8, 4, 2, 1):
        e(f"v_add_f32_dpp v{B}, v{B}, v{B} row_ror:{r} row_mask:0xf bank_mask:0xf\ns_nop 1")
    e(f"""v_mov_b32 v{A}, {hex(f2u(1e-5))}
v_fmac_f32 v{A}, {hex(f2u(1.0/512))}, v{B}
v_rsq_f32 v{B}, v{A}
s_nop 0
v_mul_f32 v{A}, v{A}, v{B}
ds_write_b32 v5, v{B}
ds_write_b32 v5, v{A} offset:256""")

ln_unit(XA, S_T3)
e(f"s_cmp_eq_u32 s{S_W}, 4\ns_cbranch_scc1 L_kv")
e("s_waitcnt lgkmcnt(0)\ns_barrier")
e(f"s_cmp_lt_u32 s{S_W}, 4\ns_cbranch_scc1 L_lnB_a\nL_kv_ret:")
for i in range(8):
    w_dma(i)
e(f"L_lnB_a:\ns_waitcnt vmcnt({8 + OPT['pf_w']})\nL_lnB_k:")
ln_unit(XB, S_T4)
e(f"""v_and_b32 v7, 3, v0
v_lshlrev_b32 v7, 3, v7
v_bfe_u32 v3, v0, 2, 2
v_lshl_add_u32 v7, v3, 6, v7
v_bfe_u32 v3, v0, 4, 1
v_lshl_add_u32 v7, v3, 5, v7
v_lshrrev_b32 v3, 5, v0
v_lshl_add_u32 v7, v3, 9, v7
v_add_u32 v7, s{S_RING}, v7
v_mul_u32_u24 v5, {X_STR}, v3
v_and_b32 v3, 31, v0
v_lshl_add_u32 v5, v3, 4, v5
v_add_u32 v5, {L_X}, v5
v_lshlrev_b32 v4, 2, v3
s_waitcnt lgkmcnt(0)
s_barrier""")
stamp(2)
e(f"s_cmp_lt_u32 s{S_W}, 4\ns_cbranch_scc1 L_g1_a\ns_setprio 0")
e(f"s_cmp_eq_u32 s{S_W}, 4\ns_cbranch_scc1 L_kvflag\ns_branch L_g1\nL_g1_a:\ns_setprio 1\nL_g1:")

AC0, AC1 = SA, SB
FR = [8, 20, 32]
vq, lq = Queue("vmcnt"), Queue("lgkmcnt")
for s in range(8):
    vq.issue(("w", s))
def g1_reads(s):
    vq.wait(("w", s))
    f = FR[s % 3]
    for i in range(2):
        e(f"ds_read_b64_tr_b16 {vr(f+2*i,2)}, v7{off((s % 8)*1024 + i*256)}")
        lq.issue()
    for tb in range(2):
        e(f"ds_read_b128 {vr(f+4+4*tb,4)}, v5{off(s*2*X_STR + tb*512)}")
        lq.issue(("r", s))
g1_reads(0)
g1_reads(1)
for s in range(32):
    if s + 2 < 32:
        g1_reads(s + 2)
    lq.wait(("r", s))
    f = FR[s % 3]
    mf32(AC0, f, f + 4, AC0 if s else None)
    if s + 8 < 32:
        w_dma(s % 8)
        vq.issue(("w", s + 8))
    elif s == 24:
        e(f"buffer_load_dword v48, v4, {sr(SRD_DBG,4)}, 0 offen sc1")
        vq.issue("dbg")
    mf32(AC1, f, f + 8, AC1 if s else None)
e(f"s_setprio 2\nv_add_u32 v3, {L_RSTD}, v4")
e("ds_read_b32 v44, v3\nds_read_b32 v46, v3 offset:128\nds_read_b32 v52, v3 offset:256\nds_read_b32 v54, v3 offset:384")
e(f"s_lshl_b32 s{S_T0}, s{S_W}, 2\ns_add_u32 s{S_T0}, s{S_T0}, {L_FLG+F_G1}")
set_lds_flag(f"s{S_T0}", 49, 50)
stamp(3)
e(f"s_cmp_lt_u32 s{S_W}, 2\ns_cbranch_scc1 L_qepi")

e(f"""s_mul_i32 s{S_T0}, s{S_G}, {H_GRP}
s_lshl_b32 s{S_T1}, s{S_T}, 12
s_add_u32 s{S_T0}, s{S_T0}, s{S_T1}
s_add_u32 s{S_T0}, s{S_T0}, {hex(WS_H)}
v_lshlrev_b32 v3, 4, v0
s_waitcnt lgkmcnt(0)
v_mul_f32 v44, {hex(f2u(-1.4426950408889634))}, v44
v_mul_f32 v46, {hex(f2u(-1.4426950408889634))}, v46
v_mov_b32 v53, v52
v_mov_b32 v55, v54
v_mov_b32 v45, v44
v_mov_b32 v47, v46""")
for tb in range(2):
    for u in range(2):
        A, T, C, R = (AC0, AC1)[tb] + 8 * u, 8, 44 + 2 * tb, 16 + 4 * (2 * tb + u)
        for k in range(4):
            e(f"v_pk_mul_f32 {vr(T+2*k,2)}, {vr(A+2*k,2)}, {vr(C,2)}")
        for k in range(8):
            e(f"v_exp_f32 v{T+k}, v{T+k}")
        for k in range(4):
            e(f"v_pk_fma_f32 {vr(T+2*k,2)}, {vr(T+2*k,2)}, {vr(C+8,2)}, {vr(C+8,2)}")
        for k in range(8):
            e(f"v_rcp_f32 v{T+k}, v{T+k}")
        for k in range(4):
            e(f"v_pk_mul_f32 {vr(T+2*k,2)}, {vr(T+2*k,2)}, {vr(A+2*k,2)}")
        for k in range(4):
            e(f"v_cvt_pk_bf16_f32 v{R+k}, v{T+2*k}, v{T+2*k+1}")
        e(f"buffer_store_dwordx4 {vr(R,4)}, v3, {sr(SRD_WS,4)}, s{S_T0} offen{off(u*2048 + tb*1024)} sc1")
e(f"s_lshl_b32 s{S_T5}, s{S_T}, 5\ns_add_u32 s{S_T5}, s{S_T5}, {FL_H}\ns_add_u32 s{S_T5}, s{S_T5}, s{S_FLB}")
e(f"s_cmp_lt_u32 s{S_W}, 4\ns_cbranch_scc0 L_helper\ns_branch L_attn")

e(f"""L_qepi:
s_lshl_b32 s{S_T0}, s{S_G}, 16
s_lshl_b32 s{S_T1}, s{S_J}, 10
s_add_u32 s{S_T0}, s{S_T0}, s{S_T1}
s_lshl_b32 s{S_T1}, s{S_W}, 8
s_add_u32 s{S_T0}, s{S_T0}, s{S_T1}
s_add_u32 s{S_T0}, s{S_T0}, {hex(WS_Q)}
s_add_u32 s{S_T2}, s{S_T0}, 32768
v_and_b32 v3, 7, v0
v_lshlrev_b32 v3, 4, v3
v_lshrrev_b32 v8, 5, v0
v_lshl_add_u32 v3, v8, 9, v3
s_add_u32 s{S_T1}, s{S_T1}, {L_OWNQ}
v_add_u32 v9, s{S_T1}, v3
v_bfe_u32 v8, v0, 3, 2
v_lshl_add_u32 v3, v8, 13, v3
s_and_b32 s{S_T1}, s{S_J}, 3
s_lshl_b32 s{S_T1}, s{S_T1}, 3
s_lshl_b32 s{S_T3}, 0xff, s{S_T1}
s_waitcnt lgkmcnt(0)
v_mul_f32 v44, {hex(f2u(0.25*1.4426950408889634))}, v44
v_mul_f32 v46, {hex(f2u(0.25*1.4426950408889634))}, v46
v_mov_b32 v45, v44
v_mov_b32 v47, v46""")
for tb in range(2):
    A, C = (AC0, AC1)[tb], 44 + 2 * tb
    for k in range(8):
        e(f"v_pk_mul_f32 {vr(A+2*k,2)}, {vr(A+2*k,2)}, {vr(C,2)}")
    for k in range(8):
        e(f"v_cvt_pk_bf16_f32 v{16+8*tb+k}, v{A+2*k}, v{A+2*k+1}")
    for hl in range(2):
        e(f"buffer_store_dwordx4 {vr(16+8*tb+4*hl,4)}, v3, {sr(SRD_WS,4)}, s{(S_T0, S_T2)[tb]} offen{off(hl*128)} sc1")
    e(f"s_cmp_{'lt' if tb == 0 else 'ge'}_u32 s{S_J}, 4\ns_cselect_b32 exec_lo, s{S_T3}, 0\ns_cselect_b32 exec_hi, s{S_T3}, 0")
    for hl in range(2):
        e(f"ds_write_b128 v9, {vr(16+8*tb+4*hl,4)}{off(hl*128)}")
    e("s_mov_b64 exec, -1")
e(f"s_lshl_b32 s{S_T0}, s{S_W}, 2\ns_add_u32 s{S_T0}, s{S_T0}, {L_FLG+F_OWNQ}")
set_lds_flag(f"s{S_T0}", 49, 50)
e(f"s_lshl_b32 s{S_T5}, s{S_J}, 1\ns_add_u32 s{S_T5}, s{S_T5}, s{S_W}\ns_lshl_b32 s{S_T5}, s{S_T5}, 5")
e(f"s_add_u32 s{S_T5}, s{S_T5}, {FL_Q}\ns_add_u32 s{S_T5}, s{S_T5}, s{S_FLB}")

e("L_attn:\ns_setprio 1")
stamp(4)
e("s_waitcnt vmcnt(4)\nv_cmp_ne_u32 vcc, 1, v48\ns_nop 0\ns_cbranch_vccnz L_dbgslow_a\nL_dbgok_a:")
e(f"""v_lshrrev_b32 v3, 3, v0
v_lshlrev_b32 v3, 12, v3
v_and_b32 v8, 7, v0
v_lshl_add_u32 v3, v8, 7, v3
s_lshl_b32 s{S_T0}, s{S_W}, 15
s_add_u32 s{S_T1}, s{S_T0}, {hex(WS_FL)}
buffer_load_dword v8, v3, {sr(SRD_WS,4)}, s{S_T1} offen sc1
s_waitcnt vmcnt(1)""")
set_glb_flag(f"s{S_T5}", 49, 50)
e(f"""v_lshlrev_b32 v1, 4, v0
v_and_b32 v4, 15, v0
v_lshlrev_b32 v7, 5, v4
v_lshlrev_b32 v4, 4, v4
v_lshrrev_b32 v9, 5, v0
v_lshl_add_u32 v4, v9, 8, v4
v_bfe_u32 v9, v0, 4, 1
v_lshl_add_u32 v2, v9, 9, v4
v_add_u32 v5, s{S_RING}, v1
v_and_b32 v6, 31, v0
s_lshl_b32 s{S_T2}, s{S_W}, 7
s_add_u32 s{S_T2}, s{S_T2}, {L_LS}
v_lshl_add_u32 v6, v6, 2, s{S_T2}
s_lshl_b32 s{S_T2}, s{S_G}, 16
s_lshl_b32 s{S_T3}, s{S_J}, 13
s_add_u32 s{S_T2}, s{S_T2}, s{S_T3}
s_add_u32 s{S_T2}, s{S_T2}, {hex(WS_Q)}""")
for t in range(8):
    e(f"s_add_u32 s{S_T3}, s{S_J}, {t}\ns_and_b32 s{S_T3}, s{S_T3}, 7\ns_lshl_b32 s{S_T3}, s{S_T3}, 10\ns_add_u32 s{S_QO+t}, s{S_T2}, s{S_T3}")
e(f"s_add_u32 s{S_T4}, s{S_FLB}, {FL_Q}\ns_mov_b32 s{S_EX}, 0x0000ffff\ns_mov_b32 s{S_EX+1}, 0x0000ffff")
e("s_waitcnt vmcnt(1)\nv_cmp_ne_u32 vcc, 1, v8\ns_nop 0\ns_cbranch_vccnz L_kvslow\nL_kvok:")
stamp(5)
vq = Queue("vmcnt")
for b in range(16):
    if b % 2 == 0 and b:
        e(f"s_add_u32 s{S_T0}, s{S_T0}, 4096")
    o = (b % 2) * 2048
    e(f"buffer_load_dwordx4 {vr(VK+4*b,4)}, v2, {sr(SRD_WS,4)}, s{S_T0} offen{off(o)} sc1")
    vq.issue(("K", b))
    e(f"s_mov_b64 exec, {sr(S_EX,2)}")
    for i in range(2):
        e(f"buffer_load_dwordx4 {vr(VV+8*b+4*i,4)}, v4, {sr(SRD_WS,4)}, s{S_T0} offen{off(o+1024+512*i)} sc1")
        vq.issue(("V", b))
    e("s_mov_b64 exec, -1")
    if b == 7:
        e(f"buffer_load_dword v3, v7, {sr(SRD_WS,4)}, s{S_T4} offen sc1")
        vq.issue("qf")
e(f"v_and_b32 v2, 1, v0\nv_lshlrev_b32 v2, 2, v2\nv_add_u32 v2, {L_FLG}, v2")
lds_spin(2, F_OWNQ, 4, "v_cmp_ne_u32", 1)
e(f"v_add_u32 v4, {L_OWNQ}, v1\nds_read_b128 {vr(VQ0,4)}, v4")
e(f"v_and_b32 v2, 7, v0\nv_lshlrev_b32 v2, 2, v2\nv_add_u32 v2, {L_FLG}, v2")
e(f"s_waitcnt vmcnt({vq.left(('K', 0))}) lgkmcnt(0)")
stamp(6)
mf32(SA, VK, VQ0)
e("s_nop 11")

ORDER = "e0 d7 a e1 e2 e3 b e4 e5 c0 c1 Q e6 e7 c2 e8 c3 e9 e10 e11 c4 e12 e13 c5 e14 e15 c6".split()
def flush(t):
    o = (t % 4) * 2048
    return [f"ds_write_b128 v5, {vr(VO,4)}{off(o)}", f"ds_write_b128 v5, {vr(VO+4,4)}{off(o+1024)}",
            f"ds_write_b32 v6, v{VO+8}{off(t*512)}"]
for i in range(128):
    t, b = divmod(i, 16)
    S, T = (SA, SB) if i % 2 == 0 else (SB, SA)
    pb = (b - 1) % 16
    after = {}
    if t == 0 and b < 15:
        after["b"] = [f"s_waitcnt vmcnt({vq.left(('K', b+1))})"]
    if t == 0 and b == 7:
        after["e7"] = ["v_cmp_ne_u32 vcc, 1, v3"]
        after["e8"] = ["s_cbranch_vccnz L_qslow", "L_qok:"]
    if (t == 0 and b == 7) or (0 < t < 7 and b == 4):
        after["e9"] = [f"buffer_load_dwordx4 {vr((VQ0, VQ1)[(t+1) % 2],4)}, v1, {sr(SRD_WS,4)}, s{S_QO+t+1} offen sc1"]
    if b == 15 and t < 7:
        after["b"] = ["s_waitcnt vmcnt(0)"]
    if b == 0 and t > 0:
        fl = flush(t - 1)
        after["e11"], after["e12"], after["e14"] = [fl[0]], [fl[1]], [fl[2]]
    if t == 4 and b == 6:
        after["a"] = [f"ds_read_b32 v3, v2 offset:{F_G1}"]
    if t == 4 and b == 7:
        after["a"] = ["s_waitcnt lgkmcnt(0)"]
        after["e7"] = ["v_cmp_ne_u32 vcc, 1, v3"]
        after["e8"] = ["s_cbranch_vccnz L_g1slow", "L_g1ok:"]
        after["e9"] = [f"v_add_u32 v5, {L_P2 - L_A}, v5"]
    for tok in ORDER:
        k = tok[0]
        if k == "e":
            n = int(tok[1:]); e(f"v_exp_f32 v{S+n}, v{S+n}")
        elif k == "c":
            n = int(tok[1:]); e(f"v_cvt_pk_bf16_f32 v{S+(n//4)*8+n%4}, v{S+2*n}, v{S+2*n+1}")
        elif k == "d":
            if i: e(f"v_cvt_pk_bf16_f32 v{T+11}, v{T+14}, v{T+15}")
        elif k == "a":
            if i: mf32(VO, VV + 8 * pb, T, None if b == 1 else VO)
        elif k == "b":
            if i: mf32(VO, VV + 8 * pb + 4, T + 8, VO)
        elif k == "Q":
            if i < 127:
                mf32(T, VK + 4 * ((b + 1) % 16), (VQ0, VQ1)[((i + 1) // 16) % 2])
        for x in after.get(tok, []):
            e(x)
            if x.startswith("buffer_load"):
                vq.issue()
    if i == 15:
        stamp(7)
e(f"v_cvt_pk_bf16_f32 v{SB+11}, v{SB+14}, v{SB+15}")
mf32(VO, VV + 8 * 15, SB, VO)
e("s_nop 0")
mf32(VO, VV + 8 * 15 + 4, SB + 8, VO)
e("s_nop 11")
for x in flush(7):
    e(x)
e("s_waitcnt lgkmcnt(0)\ns_barrier")
stamp(8)
e("s_barrier")
e(f"v_mov_b32 v2, {L_FLG}\nds_read_b32 v3, v2 offset:{F_BAD}\ns_waitcnt lgkmcnt(0)")
e("v_cmp_ne_u32 vcc, 0, v3\ns_nop 0\ns_cbranch_vccnz L_slow_a\ns_branch L_fin")

e("L_helper:")
stamp(4)
e("s_waitcnt vmcnt(4)\nv_cmp_ne_u32 vcc, 1, v48\ns_nop 0\ns_cbranch_vccnz L_dbgslow_h\nL_dbgok_h:\ns_waitcnt vmcnt(0)")
set_glb_flag(f"s{S_T5}", 49, 50)
e("L_helper2:")
e(f"""s_mul_i32 s{S_T0}, s{S_G}, {H_GRP}
s_add_u32 s{S_T0}, s{S_T0}, {hex(WS_H)}
s_add_u32 s{SRD_A}, s{P_WS}, s{S_T0}
s_addc_u32 s{SRD_A+1}, s{P_WS+1}, 0
s_mov_b32 s{SRD_A+2}, {H_GRP}
s_mov_b32 s{SRD_A+3}, 0x20000""")
srd(SRD_B, P_W2, 1376 * 1024)
srd(SRD_C, P_WO, 512 * 1024)
srd(SRD_OUT, P_OUT, 2048 * 1024)
F2ACC, F2B, F2A, XR = 8, 72, 128, 144
e(f"""v_lshrrev_b32 v1, 2, v0
v_lshlrev_b32 v1, 10, v1
v_and_b32 v5, 3, v0
v_lshl_add_u32 v1, v5, 4, v1
s_and_b32 s{S_T0}, s{S_HW}, 1
s_lshl_b32 s{S_T0}, s{S_T0}, 6
s_lshl_b32 s{S_T1}, s{S_J}, 7
s_add_u32 s{S_T0}, s{S_T0}, s{S_T1}
v_add_u32 v1, s{S_T0}, v1
v_xor_b32 v2, 64, v1
s_lshr_b32 s{S_T1}, s{S_HW}, 1
s_lshl_b32 s{S_T2}, s{S_T1}, 10
v_lshl_add_u32 v3, v0, 4, s{S_T2}
v_xor_b32 v4, 0x400, v3
v_lshlrev_b32 v7, 3, v5
v_bfe_u32 v5, v0, 2, 2
v_lshl_add_u32 v7, v5, 6, v7
v_bfe_u32 v5, v0, 4, 1
v_lshl_add_u32 v7, v5, 5, v7
v_lshrrev_b32 v5, 5, v0
v_lshl_add_u32 v7, v5, 8, v7
v_add_u32 v7, s{S_RING}, v7
v_and_b32 v6, 31, v0
v_lshlrev_b32 v6, 10, v6
v_lshl_add_u32 v6, v5, 3, v6
s_lshl_b32 s{S_T2}, s{S_G}, 1
s_add_u32 s{S_T2}, s{S_T2}, s{S_T1}
s_lshl_b32 s{S_T2}, s{S_T2}, 15
s_add_u32 s{S_T2}, s{S_T2}, s{S_T0}
s_mul_i32 s{S_SOFF}, s{S_HW}, {22*16384}
s_mul_i32 s{S_STEP}, s{S_HW}, {22*2048}""")
vq, lq = Queue("vmcnt"), Queue("lgkmcnt")
def f2_dma(s):
    for c in range(2):
        e(f"s_add_u32 m0, s{S_RING}, {(s % 7)*2048 + c*1024}\ns_nop 0")
        e(f"buffer_load_dwordx4 v{1+c}, {sr(SRD_B,4)}, s{S_SOFF} offen lds")
        vq.issue(("w", s))
    e(f"s_add_u32 s{S_SOFF}, s{S_SOFF}, 16384")
def f2_h(s):
    for c in range(2):
        e(f"buffer_load_dwordx4 {vr(F2B+8*(s % 7)+4*c,4)}, v{3+c}, {sr(SRD_A,4)}, s{S_STEP} offen sc1")
        vq.issue(("h", s))
    e(f"s_add_u32 s{S_STEP}, s{S_STEP}, 2048")
for s in range(7):
    f2_dma(s)
for a in range(4):
    e(f"buffer_load_dwordx2 {vr(XR+2*a,2)}, v6, {sr(SRD_X,4)}, s{S_T2} offen{off(16*a)}")
if OPT["pf_late"]:
    e(f"""s_lshl_b32 s{S_T1}, s{S_GL}, 2
s_add_u32 s{S_T1}, s{S_T1}, s{S_HW}
s_mul_i32 s{S_T3}, s{S_T1}, 43*1024
s_lshl_b32 s{S_T4}, s{S_J}, 7
s_add_u32 s{S_T3}, s{S_T3}, s{S_T4}
v_min_u32 v5, 42, v0
v_lshlrev_b32 v5, 10, v5
buffer_load_dword v152, v5, {sr(SRD_B,4)}, s{S_T3} offen
s_lshr_b32 s{S_T3}, s2, 3
s_lshl_b32 s{S_T3}, s{S_T3}, 2
s_add_u32 s{S_T3}, s{S_T3}, s{S_HW}
s_lshl_b32 s{S_T3}, s{S_T3}, 12
v_lshlrev_b32 v5, 6, v0
buffer_load_dword v153, v5, {sr(SRD_C,4)}, s{S_T3} offen""")
e(f"""v_min_u32 v5, 10, v0
s_mul_i32 s{S_T3}, s{S_HW}, 11
v_add_u32 v5, s{S_T3}, v5
v_min_u32 v5, 42, v5
v_lshlrev_b32 v5, 5, v5
s_add_u32 s{S_T3}, s{S_FLB}, {FL_H}
s_setprio 0""")
glb_spin(5, SRD_WS, f"s{S_T3}", 154, sleep=4, prio=(2, 0))
stamp(5)
for s in range(7):
    f2_h(s)
def f2_reads(s):
    f = F2A + 8 * (s % 2)
    for c in range(2):
        for i in range(2):
            e(f"ds_read_b64_tr_b16 {vr(f+4*c+2*i,2)}, v7{off((s % 7)*2048 + c*1024 + i*512)}")
            lq.issue(("r", s))
f2_reads(0)
for s in range(22):
    need = vq.left(("h", s))
    if s + 1 < 22:
        need = min(need, vq.left(("w", s + 1)))
    e(f"s_waitcnt vmcnt({need})")
    if s + 1 < 22:
        f2_reads(s + 1)
    lq.wait(("r", s))
    f, bb = F2A + 8 * (s % 2), F2B + 8 * (s % 7)
    for u in range(4):
        mf32(F2ACC + 16 * u, f + 4 * (u & 1), bb + 4 * (u >> 1), F2ACC + 16 * u if s else None)
    if s + 7 < 22:
        f2_dma(s + 7)
        f2_h(s + 7)
stamp(6)
e(f"s_setprio 2\nv_lshlrev_b32 v1, 4, v0\nv_add_u32 v2, s{S_RING}, v1\ns_nop 9")
for u in range(1, 4):
    for a in range(4):
        e(f"ds_write_b128 v2, {vr(F2ACC+16*u+4*a,4)}{off((u-1)*4096 + a*1024)}")
e(f"s_lshl_b32 s{S_T0}, s{S_HW}, 2\ns_add_u32 s{S_T0}, s{S_T0}, {L_FLG}")
set_lds_flag(f"s{S_T0}", 6, 3, F_RED)
for k in range(8):
    e(f"v_dot2_f32_bf16 v{F2ACC+2*k}, v{XR+k}, s{S_C10}, v{F2ACC+2*k}")
    e(f"v_dot2_f32_bf16 v{F2ACC+2*k+1}, v{XR+k}, s{S_C01}, v{F2ACC+2*k+1}")
for u in range(1, 4):
    e(f"s_xor_b32 s{S_T1}, s{S_HW}, {u}\ns_mul_i32 s{S_T1}, s{S_T1}, {H_STR}\nv_add_u32 v{152+u}, s{S_T1}, v1")
e(f"v_and_b32 v5, 3, v0\nv_lshlrev_b32 v5, 2, v5\nv_add_u32 v5, {L_FLG}, v5\ns_setprio 0")
lds_spin(5, F_RED, 4, "v_cmp_ne_u32", 1, prio=(2, 0))
for u in range(1, 4):
    for a in range(4):
        e(f"ds_read_b128 {vr(F2B+16*(u-1)+4*a,4)}, v{152+u}{off((u-1)*4096 + a*1024)}")
e(f"""s_setprio 2
v_bfe_u32 v4, v0, 3, 2
v_lshlrev_b32 v4, 14, v4
v_lshrrev_b32 v2, 5, v0
v_lshl_add_u32 v4, v2, 7, v4
v_and_b32 v2, 7, v0
v_lshl_add_u32 v4, v2, 4, v4
s_lshl_b32 s{S_T0}, s{S_G}, 17
s_lshr_b32 s{S_T1}, s{S_HW}, 1
s_lshl_b32 s{S_T1}, s{S_T1}, 16
s_add_u32 s{S_T0}, s{S_T0}, s{S_T1}
s_and_b32 s{S_T1}, s{S_HW}, 1
s_lshl_b32 s{S_T1}, s{S_T1}, 10
s_add_u32 s{S_T0}, s{S_T0}, s{S_T1}
s_lshl_b32 s{S_T1}, s{S_J}, 11
s_add_u32 s{S_T0}, s{S_T0}, s{S_T1}
s_add_u32 s{S_T0}, s{S_T0}, {hex(WS_Y)}
s_waitcnt lgkmcnt(0)
ds_write_b32 v6, v3 offset:{F_CONS}""")
for a in range(4):
    for u in range(3):
        for k in range(2):
            r = F2ACC + 4 * a + 2 * k
            e(f"v_pk_add_f32 {vr(r,2)}, {vr(r,2)}, {vr(F2B+16*u+4*a+2*k,2)}")
    e(f"buffer_store_dwordx4 {vr(F2ACC+4*a,4)}, v4, {sr(SRD_WS,4)}, s{S_T0} offen{off(a*256)} sc1")

OACC, OA, OB, YR, RT, RL = 24, 56, 120, 128, 160, 192
VD = 200
V_TR0, V_TR1, V_PART, V_LS, V_OBW, V_OBR, V_OUT, V_YF, V_YO, V_FL, V_LSP = 204, 205, 206, 207, 208, 209, 210, 211, 212, 213, 214
e(f"""v_lshrrev_b32 v1, 2, v0
v_lshlrev_b32 v2, 10, v1
v_bfe_u32 v1, v0, 4, 1
v_lshlrev_b32 v7, 1, v1
v_and_b32 v{VD+1}, 3, v0
v_xor_b32 v7, v7, v{VD+1}
v_lshl_add_u32 v2, v7, 4, v2
s_lshl_b32 s{S_T1}, s{S_HW}, 8
v_add_u32 v{VD}, s{S_T1}, v2
s_lshl_b32 s{S_RING}, s{S_HW}, 14
v_lshlrev_b32 v7, 3, v{VD+1}
v_bfe_u32 v2, v0, 2, 2
v_lshl_add_u32 v7, v2, 6, v7
v_lshl_add_u32 v7, v1, 8, v7
v_lshl_add_u32 v7, v1, 5, v7
v_lshrrev_b32 v2, 5, v0
v_lshl_add_u32 v7, v2, 10, v7
v_add_u32 v{V_TR0}, s{S_RING}, v7
v_xor_b32 v{V_TR1}, 32, v{V_TR0}
v_add_u32 v{VD+1}, 64, v{VD}
v_add_u32 v{VD+2}, 0x80, v{VD}
v_add_u32 v{VD+3}, 0xc0, v{VD}
v_bfe_u32 v7, v0, 3, 1
v_lshl_add_u32 v7, v7, 1, v2
v_and_b32 v2, 7, v0
v_lshl_add_u32 v7, v7, 3, v2
v_lshlrev_b32 v{V_LS}, 2, v7
v_add_u32 v{V_LS}, {L_LS}, v{V_LS}
v_lshl_add_u32 v7, v1, 5, v7
v_lshlrev_b32 v{V_PART}, 4, v7
v_lshlrev_b32 v{V_OBW}, 4, v0
v_add_u32 v{V_OBW}, {L_OBF}, v{V_OBW}
v_and_b32 v{V_OBR}, 0xffffff7f, v{V_OBW}
v_lshrrev_b32 v1, 4, v0
v_lshlrev_b32 v{V_OUT}, 3, v1
v_lshl_add_u32 v{V_OUT}, v2, 10, v{V_OUT}
v_lshlrev_b32 v{V_YO}, 7, v1
v_lshl_add_u32 v{V_YO}, v2, 4, v{V_YO}
v_lshlrev_b32 v{V_LSP}, 7, v1
v_add_u32 v{V_LSP}, {L_LS}, v{V_LSP}
v_and_b32 v1, 1, v0
v_bfe_u32 v7, v0, 1, 1
v_lshl_add_u32 v1, v7, 2, v1
v_lshlrev_b32 v{V_YF}, 5, v1
v_mov_b32 v{V_FL}, {L_FLG}
v_lshlrev_b32 v2, 2, v2
v_add_u32 v2, {L_FLG}, v2""")
for k in range(32):
    e(f"v_mov_b32 v{OACC+k}, 0")
e("s_setprio 0")
lds_spin(5, F_CONS, 1, "v_cmp_ne_u32", 1, prio=(2, 0))
lds_spin(2, F_G1, 1, "v_cmp_ne_u32", 1, prio=(2, 0))

def wo_row(sreg, tplus):
    e(f"s_add_u32 s{sreg}, s{S_J}, s{S_IT}" + (f"\ns_add_u32 s{sreg}, s{sreg}, {tplus}" if tplus else ""))
    e(f"s_and_b32 s{sreg}, s{sreg}, 7\ns_lshl_b32 s{sreg}, s{sreg}, 16")
    for k in range(1, 4):
        e(f"s_add_u32 s{sreg+k}, s{sreg}, {k*16384}")
def wo_dma(u):
    s_, c4 = divmod(u, 4)
    for hl in range(2):
        e(f"s_add_u32 m0, s{S_RING}, {u*2048 + hl*1024}\ns_nop 0")
        e(f"buffer_load_dwordx4 v{VD+c4}, {sr(SRD_C,4)}, s{S_QO+2*s_+hl} offen lds")
def wo_reads(u):
    for ee in range(2):
        for i in range(2):
            e(f"ds_read_b64_tr_b16 {vr(OA+8*u+4*ee+2*i,2)}, v{V_TR0+ee}{off(u*2048 + i*512)}")
def wo_mfma():
    for u in range(8):
        s_, c4 = divmod(u, 4)
        for ee in range(2):
            mf16(OACC + 4 * (2 * c4 + ee), OA + 8 * u + 4 * ee, OB + 4 * s_, OACC + 4 * (2 * c4 + ee))
def reduce_reads(vp, vl):
    for w in range(4):
        e(f"ds_read_b32 v{RL+w}, v{vl}{off(w*128)}")
    for w in range(4):
        for h in range(2):
            e(f"ds_read_b128 {vr(RT+8*w+4*h,4)}, v{vp}{off(w*8192 + h*1024)}")
def reduce_math(dst, check):
    e("s_waitcnt lgkmcnt(8)")
    e(f"v_add_f32 v{RL}, v{RL}, v{RL+1}\nv_add_f32 v{RL+2}, v{RL+2}, v{RL+3}\nv_add_f32 v{RL}, v{RL}, v{RL+2}\nv_rcp_f32 v{RL+2}, v{RL}")
    e("s_waitcnt lgkmcnt(4)")
    for k in range(4):
        e(f"v_pk_add_f32 {vr(RT+2*k,2)}, {vr(RT+2*k,2)}, {vr(RT+8+2*k,2)}")
    e(f"v_mov_b32 v{RL+3}, v{RL+2}\ns_waitcnt lgkmcnt(0)")
    for k in range(4):
        e(f"v_pk_add_f32 {vr(RT+16+2*k,2)}, {vr(RT+16+2*k,2)}, {vr(RT+24+2*k,2)}")
    for k in range(4):
        e(f"v_pk_add_f32 {vr(RT+2*k,2)}, {vr(RT+2*k,2)}, {vr(RT+16+2*k,2)}")
    for k in range(4):
        e(f"v_pk_mul_f32 {vr(RT+2*k,2)}, {vr(RT+2*k,2)}, {vr(RL+2,2)}")
    for k in range(4):
        e(f"v_cvt_pk_bf16_f32 v{dst+k}, v{RT+2*k}, v{RT+2*k+1}")
def range_check(src):
    lo, hi = f2u(2.0**-32), f2u(2.0**48)
    for k in range(4):
        e(f"v_dot2_f32_bf16 v{RL+1}, v{src+k}, s{S_C11}, {'v%d' % (RL+1) if k else 0}")
    e(f"v_subrev_u32 v{RL+3}, {hex(lo)}, v{RL}\nv_cmp_lt_u32 vcc, {hex(hi-lo)}, v{RL+3}\ns_nop 0")
    e(f"v_mov_b32 v{RL+3}, 0x207\nv_cmp_class_f32 {sr(S_EX,2)}, v{RL+1}, v{RL+3}\ns_nop 0\ns_or_b64 vcc, vcc, {sr(S_EX,2)}")
    if OPT["force_slow"]:
        e("s_mov_b64 vcc, -1")

e(f"s_mov_b32 s{S_IT}, 0")
wo_row(S_QO, 0)
for u in range(8):
    wo_dma(u)
e(f"s_lshl_b32 s{S_T5}, s{S_J}, 2\ns_add_u32 s{S_T5}, s{S_T5}, s{S_HW}\ns_lshl_b32 s{S_T5}, s{S_T5}, 5")
e(f"s_add_u32 s{S_T5}, s{S_T5}, {FL_Y}\ns_add_u32 s{S_T5}, s{S_T5}, s{S_FLB}\ns_waitcnt vmcnt(16)\ns_setprio 2")
set_glb_flag(f"s{S_T5}", 1, 3)
e("s_setprio 0")
stamp(7)
e("L_oloop:")
wo_row(S_QO, 1)
for u in range(8):
    e(f"s_waitcnt vmcnt({14 if u == 0 else 12})")
    wo_reads(u)
    if u:
        e("s_waitcnt lgkmcnt(4)")
        wo_dma(u - 1)
e("s_waitcnt lgkmcnt(0)")
wo_dma(7)
e(f"""s_and_b32 s{S_T0}, s{S_IT}, 3
s_lshl_b32 s{S_T2}, s{S_IT}, 2
s_lshl_b32 s{S_T3}, s{S_IT}, 10
s_setprio 2
v_add_u32 v1, s{S_T2}, v{V_FL}
v_add_u32 v2, s{S_T3}, v{V_OBR}
s_cmp_eq_u32 s{S_T0}, s{S_HW}
s_cbranch_scc0 L_owait
s_lshl_b32 s{S_T0}, s{S_T0}, 11
s_mov_b32 s{S_T1}, {L_P2}
s_cmp_lt_u32 s{S_IT}, 4
s_cselect_b32 s{S_T1}, {L_A}, s{S_T1}
s_add_u32 s{S_T0}, s{S_T0}, s{S_T1}
s_lshl_b32 s{S_T1}, s{S_IT}, 9
v_add_u32 v3, s{S_T0}, v{V_PART}
v_add_u32 v4, s{S_T1}, v{V_LS}
v_add_u32 v5, s{S_T1}, v{V_LSP}
v_add_u32 v6, s{S_T3}, v{V_OBW}
s_setprio 0""")
lds_spin(5, 0, 7, "v_cmp_eq_u32", -1, sleep=2, prio=(2, 0))
reduce_reads(3, 4)
e("s_setprio 2")
reduce_math(OB, True)
e(f"ds_write_b128 v6, {vr(OB,4)}")
range_check(OB)
e(f"v_mov_b32 v7, 1\nds_write_b32 v1, v7 offset:{F_OF}\ns_cbranch_vccz L_owait\nds_write_b32 v{V_FL}, v7 offset:{F_BAD}")
e("L_owait:\ns_setprio 0")
lds_spin(1, F_OF, 7, "v_cmp_ne_u32", 1, sleep=2, prio=(2, 0))
e(f"ds_read_b128 {vr(OB,4)}, v2\nds_read_b128 {vr(OB+4,4)}, v2 offset:128\ns_waitcnt lgkmcnt(0)")
wo_mfma()
e(f"s_cmp_eq_u32 s{S_IT}, 5\ns_cbranch_scc1 L_yload\nL_yret:")
e(f"s_add_u32 s{S_IT}, s{S_IT}, 1\ns_cmp_lt_u32 s{S_IT}, 7\ns_cbranch_scc1 L_oloop")
for u in range(8):
    e(f"s_waitcnt vmcnt({14 - 2*u}) lgkmcnt(8)")
    wo_reads(u)
e(f"""s_setprio 2
v_add_u32 v3, {L_P2 + 3*2048}, v{V_PART}
v_add_u32 v4, {7*512}, v{V_LS}
s_lshl_b32 s{S_T0}, s{S_G}, 3
s_add_u32 s{S_T0}, s{S_T0}, s{S_J}
s_lshl_b32 s{S_T0}, s{S_T0}, 13
s_lshl_b32 s{S_T1}, s{S_HW}, 8
s_add_u32 s{S_T5}, s{S_T0}, s{S_T1}""")
for k in range(16):
    e(f"v_pk_add_f32 {vr(OACC+2*k,2)}, {vr(OACC+2*k,2)}, {vr(YR+2*k,2)}")
e("s_waitcnt lgkmcnt(0)\ns_barrier")
stamp(8)
e(f"ds_read_b32 v5, v{V_FL} offset:{F_BAD}")
reduce_reads(3, 4)
reduce_math(OB, True)
e("s_nop 1")
for k in range(4):
    e(f"v_mov_b32_dpp v{OB+4+k}, v{OB+k} row_ror:8 row_mask:0xf bank_mask:0xf")
e("s_nop 1")
wo_mfma()
range_check(OB)
e(f"v_cmp_ne_u32 {sr(S_EX,2)}, 0, v5\ns_nop 0\ns_or_b64 vcc, vcc, {sr(S_EX,2)}\ns_cbranch_vccnz L_slow_h\ns_barrier")
e("L_store:")
e(f"s_mov_b32 exec_lo, 0x00ff00ff\ns_mov_b32 exec_hi, 0x00ff00ff")
for c in range(8):
    e(f"v_cvt_pk_bf16_f32 v{OA+2*c}, v{OACC+4*c}, v{OACC+4*c+1}\nv_cvt_pk_bf16_f32 v{OA+2*c+1}, v{OACC+4*c+2}, v{OACC+4*c+3}")
    e(f"buffer_store_dwordx2 {vr(OA+2*c,2)}, v{V_OUT}, {sr(SRD_OUT,4)}, s{S_T5} offen{off(32*c)}")
e("s_mov_b64 exec, -1")
e("L_fin:")
if OPT["hold"] == 10:
    e("s_waitcnt vmcnt(0)")
    stamp(10)
if OPT["stamps"]:
    e(f"s_waitcnt vmcnt(0)\ns_memtime {sr(S_STMP,2)}\ns_waitcnt lgkmcnt(0)")
    e(f"s_lshl_b32 s{S_T0}, s2, 3\ns_add_u32 s{S_T0}, s{S_T0}, s{S_W}\ns_lshl_b32 s{S_T0}, s{S_T0}, 6\ns_add_u32 s{S_T0}, s{S_T0}, {hex(WS_ST)}")
    for k in range(10):
        e(f"v_mov_b32 v{8+k}, s{S_ST0+k}")
    e(f"v_mov_b32 v18, s{S_STMP}\nv_mov_b32 v19, 0\nv_mov_b32 v1, 0\ns_mov_b64 exec, 1")
    for k in range(3):
        e(f"buffer_store_dwordx4 {vr(8+4*k,4)}, v1, {sr(SRD_WS,4)}, s{S_T0} offen{off(16*k)}")
e("L_exit:\ns_endpgm")

e(f"""L_yload:
s_lshr_b32 s{S_T0}, s{S_J}, 2
s_lshl_b32 s{S_T0}, s{S_T0}, 1
s_lshl_b32 s{S_T1}, s{S_HW}, 3
s_add_u32 s{S_T0}, s{S_T0}, s{S_T1}
s_lshl_b32 s{S_T0}, s{S_T0}, 5
s_add_u32 s{S_T0}, s{S_T0}, {FL_Y}
s_add_u32 s{S_T0}, s{S_T0}, s{S_FLB}""")
glb_spin(V_YF, SRD_WS, f"s{S_T0}", 7, sleep=4, prio=(2, 0))
e(f"""s_lshl_b32 s{S_T0}, s{S_G}, 3
s_add_u32 s{S_T0}, s{S_T0}, s{S_J}
s_lshl_b32 s{S_T0}, s{S_T0}, 2
s_add_u32 s{S_T0}, s{S_T0}, s{S_HW}
s_lshl_b32 s{S_T0}, s{S_T0}, 12
s_add_u32 s{S_T0}, s{S_T0}, {hex(WS_Y)}""")
for c in range(8):
    e(f"buffer_load_dwordx4 {vr(YR+4*c,4)}, v{V_YO}, {sr(SRD_WS,4)}, s{S_T0} offen{off(512*c)} sc1")
e("s_waitcnt vmcnt(0)\ns_branch L_yret")

e(f"""L_clear:
v_mov_b32 v44, 0
v_mov_b32 v45, 0
v_mov_b32 v46, 0
v_mov_b32 v47, 0
v_lshlrev_b32 v3, 4, v0""")
for i in range(4):
    e(f"buffer_store_dwordx4 v[44:47], v3, {sr(SRD_WS,4)}, s{S_FLB} offen{off(1024*i)} sc1")
e(f"""s_branch L_clear_ret
L_clear2:
s_lshl_b32 s{S_T0}, s{S_G}, 2
v_mov_b32 v3, 1
s_waitcnt vmcnt({8 + OPT['pf_w']})
s_mov_b64 exec, 1
buffer_store_dword v3, v44, {sr(SRD_DBG,4)}, s{S_T0} offen sc1
s_mov_b64 exec, -1
s_waitcnt vmcnt({5 + OPT['pf_w']})
s_branch L_lnA
L_w4wait:
s_waitcnt vmcnt({20 + OPT['pf_w']})
s_branch L_lnA""")

e(f"""L_wkv:
s_bitcmp1_b32 s{S_J}, 0
s_cselect_b32 s{SRD_A}, s{P_WV}, s{P_WK}
s_cselect_b32 s{SRD_A+1}, s{P_WV+1}, s{P_WK+1}
s_mov_b32 s{SRD_A+2}, 16384
s_mov_b32 s{SRD_A+3}, 0x20000
v_lshlrev_b32 v3, 4, v0""")
for i in range(4):
    e(f"s_mov_b32 m0, {i*H_STR + 8192}\ns_mov_b32 s{S_T0}, {i*4096}")
    for k in range(4):
        e(f"buffer_load_dwordx4 v3, {sr(SRD_A,4)}, s{S_T0} offen{off(1024*k)} lds")
e("s_branch L_wkv_ret")

WF, XF, KA = 72, 136, 200
e(f"""L_kv:
v_and_b32 v3, 3, v0
v_lshlrev_b32 v3, 3, v3
v_bfe_u32 v5, v0, 2, 2
v_lshl_add_u32 v3, v5, 5, v3
v_lshrrev_b32 v5, 4, v0
v_lshl_add_u32 v3, v5, 8, v3
s_waitcnt vmcnt({4 + OPT['pf_w']})""")
for s in range(16):
    if s % 4 == 0:
        e("s_waitcnt lgkmcnt(6)")
    for i in range(2):
        e(f"ds_read_b64_tr_b16 {vr(WF+4*s+2*i,2)}, v3{off((s >> 2)*H_STR + 8192 + (s & 3)*1024 + i*128)}")
e(f"""v_and_b32 v52, 31, v0
v_lshlrev_b32 v52, 2, v52
buffer_load_dword v53, v52, {sr(SRD_DBG,4)}, 0 offen sc1
v_mul_u32_u24 v3, {X_STR}, v5
v_and_b32 v54, 15, v0
v_lshl_add_u32 v3, v54, 4, v3
s_lshl_b32 s{S_T0}, s{S_T3}, 8
s_add_u32 s{S_T0}, s{S_T0}, {L_X}
v_add_u32 v3, s{S_T0}, v3
s_lshl_b32 s{S_T0}, s{S_T3}, 6
s_add_u32 s{S_T0}, s{S_T0}, {L_RSTD}
v_lshl_add_u32 v54, v54, 2, s{S_T0}
v_lshl_add_u32 v55, v5, 4, s{S_T0}
s_lshl_b32 s{S_T0}, s{S_G}, 12
s_lshr_b32 s{S_T1}, s{S_T3}, 1
s_lshl_b32 s{S_T1}, s{S_T1}, 11
s_add_u32 s{S_T0}, s{S_T0}, s{S_T1}
s_and_b32 s{S_T1}, s{S_T3}, 1
s_lshl_b32 s{S_T1}, s{S_T1}, 9
s_add_u32 s{S_T0}, s{S_T0}, s{S_T1}
s_and_b32 s{S_T1}, s{S_J}, 1
s_lshl_b32 s{S_T1}, s{S_T1}, 10
s_add_u32 s{S_T2}, s{S_T0}, s{S_T1}
v_lshlrev_b32 v5, 4, v0
s_bitcmp1_b32 s{S_J}, 0
s_waitcnt lgkmcnt(0)
s_cbranch_scc1 L_kv_v""")
for isv in range(2):
    if isv:
        e("L_kv_v:")
    e("s_barrier")
    lq = Queue("lgkmcnt")
    def xr(s):
        e(f"ds_read_b128 {vr(XF+4*s,4)}, v3{off(s*4*X_STR)}")
        lq.issue(s)
    for s in range(8):
        xr(s)
    for s in range(16):
        if s + 8 < 16:
            xr(s + 8)
        elif s == 8:
            e("ds_read_b128 v[56:59], v55" if isv else "ds_read_b32 v56, v54")
            lq.issue("rs")
        lq.wait(s)
        if isv:
            mf16(KA, XF + 4 * s, WF + 4 * s, KA if s else None)
        else:
            mf16(KA, WF + 4 * s, XF + 4 * s, KA if s else None)
    e("s_waitcnt lgkmcnt(0)\ns_nop 6")
    for k in range(4):
        e(f"v_mul_f32 v{KA+k}, v{KA+k}, v{56 + (k if isv else 0)}")
    if not isv:
        e("s_branch L_kv_st")
e(f"""L_kv_st:
v_cvt_pk_bf16_f32 v60, v{KA}, v{KA+1}
v_cvt_pk_bf16_f32 v61, v{KA+2}, v{KA+3}
v_mov_b32 v62, 0
v_mov_b32 v63, 0
s_nop 1
v_permlane32_swap_b32 v60, v62
v_permlane32_swap_b32 v61, v63
s_mov_b32 exec_hi, 0
buffer_store_dwordx4 v[60:63], v5, {sr(SRD_WS,4)}, s{S_T2} offen sc1
s_mov_b32 exec_hi, -1""")
for i in range(8):
    w_dma(i)
e(f"s_waitcnt vmcnt({10 + OPT['pf_w']})\ns_branch L_lnB_k")

e(f"L_kvflag:\ns_setprio 2\ns_waitcnt vmcnt(8)\nv_cmp_ne_u32 vcc, 1, v53\ns_nop 0\ns_cbranch_vccz L_kvflag2")
glb_spin(4, SRD_DBG, "0", 53)
e(f"L_kvflag2:\ns_lshl_b32 s{S_T5}, s{S_J}, 7\ns_add_u32 s{S_T5}, s{S_T5}, s{S_FLB}")
set_glb_flag(f"s{S_T5}", 49, 50)
e(f"s_setprio 0\ns_cmp_eq_u32 s{S_VALID}, 1\ns_cbranch_scc1 L_g1\ns_setprio 2")
set_lds_flag(L_FLG + F_G1 + 16, 49, 50)
e("s_waitcnt vmcnt(0)\ns_branch L_helper2")

e("L_dbgslow_a:")
glb_spin(4, SRD_DBG, "0", 48)
e("s_branch L_dbgok_a\nL_dbgslow_h:")
glb_spin(4, SRD_DBG, "0", 48)
e("s_branch L_dbgok_h\nL_kvslow:")
glb_spin(3, SRD_WS, f"s{S_T1}", 8, sleep=1)
e("s_branch L_kvok\nL_qslow:")
glb_spin(7, SRD_WS, f"s{S_T4}", 3, sleep=1)
e("s_branch L_qok\nL_g1slow:")
lds_spin(2, F_G1, 3, "v_cmp_ne_u32", 1)
e("s_branch L_g1ok")

e(f"""L_slow_a:
v_add_u32 v5, s{S_RING}, v1
s_lshl_b32 s{S_T0}, s{S_W}, 8
s_add_u32 s{S_T0}, s{S_T0}, {L_MB}
v_lshl_add_u32 v2, v0, 2, s{S_T0}
v_and_b32 v4, 31, v0
v_lshlrev_b32 v4, 2, v4
v_add_u32 v4, {L_MB}, v4
s_lshl_b32 s{S_T2}, s{S_G}, 16
s_lshl_b32 s{S_T3}, s{S_J}, 13
s_add_u32 s{S_T2}, s{S_T2}, s{S_T3}
s_add_u32 s{S_T2}, s{S_T2}, {hex(WS_Q)}
s_mov_b32 s{S_IT}, 0
L_slow_a_loop:
s_add_u32 s{S_T3}, s{S_J}, s{S_IT}
s_and_b32 s{S_T3}, s{S_T3}, 7
s_lshl_b32 s{S_T3}, s{S_T3}, 10
s_add_u32 s{S_T3}, s{S_T3}, s{S_T2}
buffer_load_dwordx4 {vr(VQ0,4)}, v1, {sr(SRD_WS,4)}, s{S_T3} offen sc1
v_mov_b32 v3, 0xff800000
s_waitcnt vmcnt(0)""")
for b in range(16):
    mf32(SA, VK + 4 * b, VQ0)
    e("s_nop 11")
    for k in range(8):
        e(f"v_max3_f32 v3, v3, v{SA+2*k}, v{SA+2*k+1}")
e("ds_write_b32 v2, v3\ns_waitcnt lgkmcnt(0)\ns_barrier")
for k in range(8):
    e(f"ds_read_b32 v{SA+k}, v4{off(128*k)}")
e("s_waitcnt lgkmcnt(0)")
e(f"v_max3_f32 v3, v{SA}, v{SA+1}, v{SA+2}\nv_max3_f32 v3, v3, v{SA+3}, v{SA+4}\nv_max3_f32 v3, v3, v{SA+5}, v{SA+6}\nv_max_f32 v3, v3, v{SA+7}")
for k in range(16):
    e(f"v_sub_f32 v{SB+k}, 0, v3")
e("s_nop 1")
for b in range(16):
    mf32(SA, VK + 4 * b, VQ0, SB)
    e("s_nop 11")
    for k in range(16):
        e(f"v_exp_f32 v{SA+k}, v{SA+k}")
    for n in range(8):
        e(f"v_cvt_pk_bf16_f32 v{SA+(n//4)*8+n%4}, v{SA+2*n}, v{SA+2*n+1}")
    e("s_nop 1")
    mf32(VO, VV + 8 * b, SA, VO if b else None)
    mf32(VO, VV + 8 * b + 4, SA + 8, VO)
e("s_nop 11")
for x in flush(0):
    e(x)
e(f"s_waitcnt lgkmcnt(0)\ns_barrier\ns_add_u32 s{S_IT}, s{S_IT}, 1\ns_cmp_lt_u32 s{S_IT}, 8\ns_cbranch_scc1 L_slow_a_loop\ns_branch L_fin")

e(f"""L_slow_h:
v_mov_b32 v7, 1
ds_write_b32 v{V_FL}, v7 offset:{F_BAD}
s_waitcnt lgkmcnt(0)
s_barrier
v_add_u32 v3, {L_A}, v{V_PART}
s_nop 7""")
for k in range(32):
    e(f"v_mov_b32 v{OACC+k}, v{YR+k}")
e(f"s_mov_b32 s{S_IT}, 0\nL_slow_h_loop:")
wo_row(S_QO, 0)
for u in range(8):
    wo_dma(u)
e("s_waitcnt vmcnt(0)")
for u in range(8):
    e("s_waitcnt lgkmcnt(8)")
    wo_reads(u)
e("s_waitcnt lgkmcnt(0)\ns_barrier\ns_barrier")
reduce_reads(3, V_LS)
reduce_math(OB, False)
e("s_nop 1")
for k in range(4):
    e(f"v_mov_b32_dpp v{OB+4+k}, v{OB+k} row_ror:8 row_mask:0xf bank_mask:0xf")
e("s_nop 1")
wo_mfma()
e(f"s_add_u32 s{S_IT}, s{S_IT}, 1\ns_cmp_lt_u32 s{S_IT}, 8\ns_cbranch_scc1 L_slow_h_loop\ns_nop 7\ns_branch L_store")
e("L_code_end:")

e(f""".section .rodata,"a"
.p2align 6
.amdhsa_kernel {NAME}_kernel
.amdhsa_next_free_vgpr 256
.amdhsa_next_free_sgpr 102
.amdhsa_accum_offset 256
.amdhsa_group_segment_fixed_size 0
.amdhsa_kernarg_size 88
.amdhsa_user_sgpr_count 2
.amdhsa_user_sgpr_kernarg_segment_ptr 1
.amdhsa_system_sgpr_workgroup_id_x 1
.end_amdhsa_kernel""")

txt = "\n".join(out) + "\n"
txt = txt.replace("PF_LINES*128", str(10 * 128)).replace("PF_LINES-1", "9")
open(sys.argv[1], "w").write(txt)
```

```python
import sys, struct

NAME = "parallel_sum__grouped_kv_mqa__dense_activation_silu__prompt"
OPT = dict(hold=-1, holdT=6000, stamps=0, force_slow=0, pf_code=1, pf_w=0, pf_late=1, rot=1, wearly=0, dbg_nosc=0, dbg_hdelay=0, dbg_kvplain=0, rt=0, dbg_late=0, outfl='')
for a in sys.argv[2:]:
    k, v = a.split("=")
    OPT[k] = int(v) if v.lstrip("-").isdigit() else v
SITES = ["start"] + (OPT["stamps"].split(",") if OPT["stamps"] else [])
assert len(SITES) <= 9

def f2u(x):
    return struct.unpack("<I", struct.pack("<f", x))[0]

WS_KV = 0x0
WS_Q = 0x40000
WS_H = 0x300000
WS_Y = 0x900000
WS_FL = 0xE00000
WS_ST = 0xF00000
WS_SIZE = 0x1000000
H_GRP = 86 * 2048
FL_Q, FL_H, FL_Y = 1024, 1024 + 16 * 32, 1024 + 60 * 32

L_H = 0
H_STR = 14336
L_X = 57344
X_STR = 1040
L_A = L_X + 64 * X_STR
L_M = L_A + 32768
L_LS = L_M
L_OWNQ = L_M + 4096
L_RSTD = L_M + 5120
L_SIG = L_M + 5376
L_FLG = L_M + 5632
L_MB = L_M + 6144
LDS_BYTES = 163840
L_P2 = 65536
L_OBF = L_P2 + 32768
F_OWNQ, F_G1, F_RED, F_CONS, F_OF, F_BAD = 0, 16, 48, 64, 80, 112
assert L_MB + 1024 <= LDS_BYTES and L_OBF + 8192 <= L_A

S_W, S_G, S_J, S_GL = 4, 5, 6, 7
SRD_X, SRD_WS = 8, 12
P_X, P_WQ, P_WK, P_WV, P_WO, P_BX, P_W1, P_W2 = 16, 18, 20, 22, 24, 26, 28, 30
P_OUT, P_DBG, P_WS = 32, 34, 36
S_T, S_VALID = 38, 39
SRD_W, SRD_DBG, SRD_A, SRD_B, SRD_C, SRD_OUT = 40, 44, 48, 52, 56, 60
S_STEP, S_SOFF, S_RING, S_FLB = 64, 65, 66, 67
S_C10, S_C01, S_C11 = 68, 69, 70
S_T0, S_T1, S_T2, S_T3, S_T4, S_T5 = 71, 72, 73, 74, 75, 76
S_CLR = 77
S_EX = 78
S_QO = 80
S_HW, S_IT = 88, 89
S_STMP = 90
S_ST0 = 92

VK, VV, SA, SB, VO, VQ0, VQ1 = 8, 72, 200, 216, 232, 248, 252

out = []
def e(s):
    for l in s.split("\n"):
        l = l.strip()
        if not l:
            continue
        out.append(l if l.endswith(":") or l.startswith(".") else "    " + l)

def vr(a, n=1):
    return f"v{a}" if n == 1 else f"v[{a}:{a+n-1}]"
def sr(a, n=1):
    return f"s{a}" if n == 1 else f"s[{a}:{a+n-1}]"
def mf32(d, a, b, c=None):
    e(f"v_mfma_f32_32x32x16_bf16 {vr(d,16)}, {vr(a,4)}, {vr(b,4)}, {vr(c,16) if c is not None else 0}")
def mf16(d, a, b, c=None):
    e(f"v_mfma_f32_16x16x32_bf16 {vr(d,4)}, {vr(a,4)}, {vr(b,4)}, {vr(c,4) if c is not None else 0}")
def srd(d, p, n):
    e(f"s_mov_b32 s{d}, s{p}\ns_mov_b32 s{d+1}, s{p+1}\ns_mov_b32 s{d+2}, {hex(n)}\ns_mov_b32 s{d+3}, 0x20000")
def stamp(k):
    if OPT["hold"] == k:
        lb = label("hold")
        e(f"{lb}:\ns_memrealtime {sr(S_STMP,2)}\ns_waitcnt lgkmcnt(0)\ns_sub_u32 s{S_STMP}, s{S_STMP}, s{S_ST0+9}\ns_cmp_lt_u32 s{S_STMP}, {OPT['holdT']}\ns_cbranch_scc1 {lb}")
    if OPT["stamps"] and k in SITES:
        e(f"s_mem{'real' if OPT['rt'] else ''}time {sr(S_STMP,2)}\ns_waitcnt lgkmcnt(0)\ns_mov_b32 s{S_ST0+SITES.index(k)}, s{S_STMP}")
def off(n):
    return f" offset:{n}" if n else ""

class Queue:
    def __init__(self, kind):
        self.kind, self.n, self.tags = kind, 0, {}
    def issue(self, tag=None):
        self.n += 1
        if tag is not None:
            self.tags[tag] = self.n
    def left(self, tag):
        return self.n - self.tags[tag]
    def wait(self, tag):
        lim = 63 if self.kind == "vmcnt" else 15
        e(f"s_waitcnt {self.kind}({min(self.left(tag), lim)})")

uid = [0]
def label(p):
    uid[0] += 1
    return f"L_{p}_{uid[0]}"

def lds_spin(vaddr, offset, vtmp, cmp, ref, sleep=1, prio=None):
    top, done = label("spin"), label("spun")
    e(f"{top}:")
    e(f"ds_read_b32 v{vtmp}, v{vaddr}{off(offset)}\ns_waitcnt lgkmcnt(0)")
    if prio: e(f"s_setprio {prio[0]}")
    e(f"{cmp} vcc, {ref}, v{vtmp}")
    if prio: e(f"s_setprio {prio[1]}")
    e(f"s_nop 0\ns_cbranch_vccz {done}\ns_sub_u32 s3, s3, 1\ns_cbranch_scc1 L_exit\ns_sleep {sleep}\ns_branch {top}\n{done}:")

def glb_spin(vaddr, srdreg, soff, vtmp, sleep=2, prio=None, preissued=False):
    top, chk, done = label("poll"), label("pchk"), label("pdone")
    if preissued:
        e(f"s_branch {chk}")
    e(f"{top}:\nbuffer_load_dword v{vtmp}, v{vaddr}, {sr(srdreg,4)}, {soff} offen sc1\n{chk}:\ns_waitcnt vmcnt(0)")
    if prio: e(f"s_setprio {prio[0]}")
    e(f"v_cmp_ne_u32 vcc, 1, v{vtmp}")
    if prio: e(f"s_setprio {prio[1]}")
    e(f"s_nop 0\ns_cbranch_vccz {done}\ns_sub_u32 s3, s3, 1\ns_cbranch_scc1 L_exit\ns_sleep {sleep}\ns_branch {top}\n{done}:")

def set_glb_flag(soff, va, vb):
    e(f"v_mov_b32 v{va}, 0\nv_mov_b32 v{vb}, 1\ns_mov_b64 exec, 1")
    e(f"buffer_store_dword v{vb}, v{va}, {sr(SRD_WS,4)}, {soff} offen sc1\ns_mov_b64 exec, -1")

def set_lds_flag(saddr, va, vb, offset=0):
    e(f"v_mov_b32 v{va}, {saddr}\nv_mov_b32 v{vb}, 1\nds_write_b32 v{va}, v{vb}{off(offset)}")

HDR = open("cdna_kernels/" + NAME + ".s.ref").read().split("\n")
hdr = [l for l in HDR if l.startswith(";") and "@launch" not in l]
out += hdr
out.append(f"; @launch grid=(256,1,1) block=(512,1,1) lds={LDS_BYTES}")
e(f'.amdgcn_target "amdgcn-amd-amdhsa--gfx950"\n.text\n.globl {NAME}_kernel\n.p2align 8\n.type {NAME}_kernel,@function')
e(f"{NAME}_kernel:")

e("s_cmp_ge_u32 s2, 256\ns_cbranch_scc1 L_exit")
if OPT["stamps"] or OPT["hold"] != -1:
    e(f"s_memrealtime {sr(S_STMP,2)}\ns_waitcnt lgkmcnt(0)\ns_mov_b32 s{S_ST0+9}, s{S_STMP}")
    stamp("start")
    for k in range(1, 9):
        e(f"s_mov_b32 s{S_ST0+k}, s{S_ST0}")
e("s_load_dwordx16 s[16:31], s[0:1], 0\ns_load_dwordx4 s[32:35], s[0:1], 64\ns_load_dwordx2 s[36:37], s[0:1], 80")
e("v_lshrrev_b32 v1, 6, v0\nv_and_b32 v0, 63, v0")
e(f"s_lshr_b32 s3, s2, 3\nv_readfirstlane_b32 s{S_W}, v1")
if OPT["pf_code"]:
    e(f"s_getpc_b64 {sr(S_T0+1,2)}\nL_pc:")
    e(f"s_mul_i32 s{S_T0}, s3, PF_LINES*128\nv_min_u32 v2, PF_LINES-1, v0\nv_lshl_add_u32 v2, v2, 7, s{S_T0}")
    e(f"v_min_u32 v2, L_code_end-L_pc-4, v2\ns_cmp_eq_u32 s{S_W}, 0\ns_cbranch_scc0 L_nopf\nglobal_load_dword v64, v2, {sr(S_T0+1,2)}\nL_nopf:")
e(f"""s_and_b32 s{S_GL}, s3, 7
s_bfe_u32 s{S_T0}, s2, 0x20001
s_lshl_b32 s{S_T0}, s{S_T0}, 3
s_add_u32 s{S_G}, s{S_T0}, s{S_GL}
s_and_b32 s{S_T0}, s2, 1
s_lshl_b32 s{S_T0}, s{S_T0}, 2
s_lshr_b32 s{S_J}, s3, 3
s_add_u32 s{S_J}, s{S_J}, s{S_T0}
s_and_b32 s{S_HW}, s{S_W}, 3
s_mov_b32 s3, 0x40000""")
e(f"""v_lshrrev_b32 v4, 4, v0
v_and_b32 v5, 15, v0
s_lshl_b32 s{S_T0}, s{S_HW}, 2
v_add_u32 v4, s{S_T0}, v4
v_lshlrev_b32 v1, 10, v4
v_lshl_add_u32 v1, v5, 4, v1
s_and_b32 s{S_T0}, s{S_J}, 3
s_cmp_lt_u32 s{S_W}, 4
s_cselect_b32 s{S_T3}, 1, 0
s_add_u32 s{S_T3}, s{S_T3}, s{S_T0}
s_and_b32 s{S_T3}, s{S_T3}, 3
s_add_u32 s{S_T4}, s{S_T3}, 2
s_and_b32 s{S_T4}, s{S_T4}, 3
s_lshl_b32 s{S_T0}, s{S_G}, 2
s_add_u32 s{S_SOFF}, s{S_T0}, s{S_T3}
s_lshl_b32 s{S_SOFF}, s{S_SOFF}, 14
s_add_u32 s{S_T5}, s{S_T0}, s{S_T4}
s_lshl_b32 s{S_T5}, s{S_T5}, 14
s_lshl_b32 s{S_FLB}, s{S_G}, 12
s_add_u32 s{S_FLB}, s{S_FLB}, {hex(WS_FL)}
s_waitcnt lgkmcnt(0)""")
stamp("karg")
srd(SRD_X, P_X, 2048 * 1024)
srd(SRD_WS, P_WS, WS_SIZE)
srd(SRD_DBG, P_DBG, 256)
e(f"s_and_b32 s{S_T0}, s{S_G}, 7\ns_cmp_eq_u32 s{S_T0}, s{S_J}\ns_cselect_b32 s{S_CLR}, s{S_W}, 0")
e(f"s_cmp_eq_u32 s{S_CLR}, 7\ns_cbranch_scc1 L_clear\nL_clear_ret:")
XA, XB = 8, 24
e(f"s_cmp_lt_u32 s{S_W}, 4\ns_cbranch_scc0 L_xa\ns_barrier\nL_xa:")
for i in range(4):
    e(f"buffer_load_dwordx4 {vr(XA+4*i,4)}, v1, {sr(SRD_X,4)}, s{S_SOFF} offen{off(256*i)}")
e(f"s_cmp_eq_u32 s{S_W}, 4\ns_cbranch_scc1 L_wkv\nL_wkv_ret:")
e(f"s_cmp_lt_u32 s{S_W}, 4\ns_cbranch_scc1 L_xb\ns_barrier\nL_xb:\ns_barrier")
for i in range(4):
    e(f"buffer_load_dwordx4 {vr(XB+4*i,4)}, v1, {sr(SRD_X,4)}, s{S_T5} offen{off(256*i)}")

e(f"""s_mul_i32 s{S_T0}, s{S_J}, 5
s_min_u32 s{S_T1}, s{S_J}, 3
s_add_u32 s{S_T0}, s{S_T0}, s{S_T1}
s_sub_u32 s{S_T1}, s{S_W}, 2
s_sub_u32 s{S_T2}, s{S_W}, 3
s_cmp_lt_u32 s{S_W}, 4
s_cselect_b32 s{S_T1}, s{S_T1}, s{S_T2}
s_cmp_eq_u32 s{S_W}, 4
s_cselect_b32 s{S_T1}, 5, s{S_T1}
s_cselect_b32 s{S_T2}, s{S_J}, 0
s_add_u32 s{S_T}, s{S_T0}, s{S_T1}
s_cmp_lt_u32 s{S_T2}, 3
s_cselect_b32 s{S_VALID}, 1, 0
s_lshl_b32 s{S_T0}, s{S_J}, 1
s_add_u32 s{S_T0}, s{S_T0}, s{S_W}
s_cmp_lt_u32 s{S_W}, 2
s_cselect_b32 s{SRD_W}, s{P_WQ}, s{P_W1}
s_cselect_b32 s{SRD_W+1}, s{P_WQ+1}, s{P_W1+1}
s_cselect_b32 s{S_T0}, s{S_T0}, s{S_T}
s_cselect_b32 s{S_T1}, 0, 1
s_mov_b32 s{SRD_W+3}, 0x20000
s_mul_i32 s{S_T2}, s{S_T1}, {2752-1024}
s_add_u32 s{S_T2}, s{S_T2}, 1024
s_lshl_b32 s{SRD_W+2}, s{S_T2}, 9
s_lshl_b32 s{S_STEP}, s{S_T2}, 4
s_lshl_b32 s{S_T0}, s{S_T0}, 6
v_lshrrev_b32 v6, 2, v0
v_mul_lo_u32 v6, v6, s{S_T2}
v_and_b32 v7, 3, v0
v_lshl_add_u32 v6, v7, 4, v6
v_add_u32 v6, s{S_T0}, v6""")
if OPT["pf_w"]:
    e(f"""s_lshl_b32 s{S_T1}, s{S_GL}, 6
v_add_u32 v3, s{S_T1}, v0
v_mul_lo_u32 v3, v3, s{S_T2}
buffer_load_dword v65, v3, {sr(SRD_W,4)}, s{S_T0} offen""")
e(f"""s_mul_i32 s{S_T0}, s{S_HW}, {H_STR}
s_lshl_b32 s{S_T1}, s{S_HW}, 13
s_add_u32 s{S_T1}, s{S_T1}, {L_A}
s_cmp_lt_u32 s{S_W}, 4
s_cselect_b32 s{S_RING}, s{S_T1}, s{S_T0}
s_mul_i32 s{S_SOFF}, s{S_GL}, s{S_STEP}
s_mul_i32 s{S_SOFF}, s{S_SOFF}, {4 * OPT['rot']}""")

def w_dma(slot):
    e(f"s_add_u32 m0, s{S_RING}, {slot*1024}\ns_nop 0" if slot else f"s_mov_b32 m0, s{S_RING}\ns_nop 0")
    e(f"buffer_load_dwordx4 v6, {sr(SRD_W,4)}, s{S_SOFF} offen lds\ns_add_u32 s{S_SOFF}, s{S_SOFF}, s{S_STEP}")
    if slot % 4 == 3:
        e(f"s_cmp_ge_u32 s{S_SOFF}, s{SRD_W+2}\ns_cselect_b32 s{S_SOFF}, 0, s{S_SOFF}")

e(f"""v_mul_u32_u24 v2, {X_STR}, v5
v_lshl_add_u32 v2, v4, 4, v2
v_add_u32 v2, {L_X}, v2
v_lshlrev_b32 v4, 2, v4
v_add_u32 v4, {L_RSTD}, v4
s_mov_b32 s{S_C10}, 0x00003f80
s_mov_b32 s{S_C01}, 0x3f800000
s_mov_b32 s{S_C11}, 0x3f803f80
s_cmp_lt_u32 s{S_W}, 4
s_cbranch_scc0 L_hinit""")
e("s_barrier")
for i in range(8):
    w_dma(i)
e(f"v_mov_b32 v42, s{S_C11}\nv_mov_b32 v43, s{S_C11}")
for i in range(0, 128, 2):
    e(f"v_mov_b64 {vr(VV+i,2)}, v[42:43]")
e(f"""v_mov_b32 v44, -1
v_mov_b32 v45, -1
v_mov_b32 v46, -1
v_mov_b32 v47, -1
s_lshl_b32 s{S_T0}, s{S_W}, 10
s_add_u32 s{S_T0}, s{S_T0}, {L_LS}
v_lshl_add_u32 v3, v0, 4, s{S_T0}
ds_write_b128 v3, v[44:47]
s_waitcnt vmcnt({12 + OPT['pf_w']})
s_branch L_lnA
L_hinit:
s_barrier
s_setprio 2
v_mov_b32 v44, 0
v_lshlrev_b32 v3, 2, v0
v_add_u32 v3, {L_FLG}, v3
ds_write_b32 v3, v44
s_cmp_eq_u32 s{S_CLR}, 7
s_cbranch_scc1 L_clear2
s_cmp_eq_u32 s{S_W}, 4
s_cbranch_scc1 L_w4wait
s_waitcnt vmcnt({4 + OPT['pf_w']})
L_lnA:""")
stamp("xarr")

def ln_unit(X, squarter):
    T, A = 44, 41
    for i in range(16):
        e(f"v_dot2_f32_bf16 v{A}, v{X+i}, s{S_C11}, {'v%d' % A if i else 0}")
    e(f"s_lshl_b32 s{S_T0}, s{squarter}, 8\ns_lshl_b32 s{S_T1}, s{squarter}, 6\nv_add_u32 v3, s{S_T0}, v2\nv_add_u32 v5, s{S_T1}, v4")
    for r in (8, 4, 2, 1):
        e(f"v_add_f32_dpp v{A}, v{A}, v{A} row_ror:{r} row_mask:0xf bank_mask:0xf\ns_nop 1")
    e(f"v_mul_f32 v{A}, {hex(f2u(-1.0/512))}, v{A}")
    B = 42
    for gidx in range(4):
        for k in range(4):
            e(f"v_dot2_f32_bf16 v{T+2*k}, v{X+4*gidx+k}, s{S_C10}, v{A}")
            e(f"v_dot2_f32_bf16 v{T+2*k+1}, v{X+4*gidx+k}, s{S_C01}, v{A}")
        for k in range(4):
            e(f"v_cvt_pk_bf16_f32 v{X+4*gidx+k}, v{T+2*k}, v{T+2*k+1}")
        e(f"ds_write_b128 v3, {vr(X+4*gidx,4)}{off(gidx*16*X_STR)}")
        for k in range(4):
            e(f"v_dot2_f32_bf16 v{B}, v{X+4*gidx+k}, v{X+4*gidx+k}, {'v%d' % B if gidx or k else 0}")
    e("s_nop 2")
    for r in (8, 4, 2, 1):
        e(f"v_add_f32_dpp v{B}, v{B}, v{B} row_ror:{r} row_mask:0xf bank_mask:0xf\ns_nop 1")
    e(f"""v_mov_b32 v{A}, {hex(f2u(1e-5))}
v_fmac_f32 v{A}, {hex(f2u(1.0/512))}, v{B}
v_rsq_f32 v{B}, v{A}
s_nop 0
v_mul_f32 v{A}, v{A}, v{B}
ds_write_b32 v5, v{B}
ds_write_b32 v5, v{A} offset:256""")

ln_unit(XA, S_T3)
stamp("lnA")
e(f"s_cmp_eq_u32 s{S_W}, 4\ns_cbranch_scc1 L_kv")
e("s_waitcnt lgkmcnt(0)\ns_barrier")
stamp("bar1")
e(f"s_cmp_lt_u32 s{S_W}, 4\ns_cbranch_scc1 L_lnB_a\nL_kv_ret:")
for i in range(8):
    w_dma(i)
e(f"L_lnB_a:\ns_waitcnt vmcnt({8 + OPT['pf_w']})\nL_lnB_k:")
stamp("xarrB")
ln_unit(XB, S_T4)
stamp("lnB")
e(f"""v_and_b32 v7, 3, v0
v_lshlrev_b32 v7, 3, v7
v_bfe_u32 v3, v0, 2, 2
v_lshl_add_u32 v7, v3, 6, v7
v_bfe_u32 v3, v0, 4, 1
v_lshl_add_u32 v7, v3, 5, v7
v_lshrrev_b32 v3, 5, v0
v_lshl_add_u32 v7, v3, 9, v7
v_add_u32 v7, s{S_RING}, v7
v_mul_u32_u24 v5, {X_STR}, v3
v_and_b32 v3, 31, v0
v_lshl_add_u32 v5, v3, 4, v5
v_add_u32 v5, {L_X}, v5
v_lshlrev_b32 v4, 2, v3""")
for k in range(8):
    e(f"s_mul_i32 s{S_T0}, s{S_GL}, {OPT['rot']}\ns_add_u32 s{S_T0}, s{S_T0}, {k}\ns_and_b32 s{S_T0}, s{S_T0}, 7\ns_mul_i32 s{S_T0}, s{S_T0}, {8*X_STR}\nv_add_u32 v{56+k}, s{S_T0}, v5")
e("s_waitcnt lgkmcnt(0)\ns_barrier")
stamp("ln")
e(f"s_cmp_lt_u32 s{S_W}, 4\ns_cbranch_scc1 L_g1_a\ns_setprio 0")
e(f"s_cmp_eq_u32 s{S_W}, 4\ns_cbranch_scc1 L_kvflag\ns_branch L_g1\nL_g1_a:\ns_setprio 1\nL_g1:")

AC0, AC1 = SA, SB
FR = [8, 20, 32]
vq, lq = Queue("vmcnt"), Queue("lgkmcnt")
for s in range(8):
    vq.issue(("w", s))
def g1_reads(s):
    vq.wait(("w", s))
    f = FR[s % 3]
    for i in range(2):
        e(f"ds_read_b64_tr_b16 {vr(f+2*i,2)}, v7{off((s % 8)*1024 + i*256)}")
        lq.issue()
    for tb in range(2):
        e(f"ds_read_b128 {vr(f+4+4*tb,4)}, v{56 + s//4}{off((s % 4)*2*X_STR + tb*512)}")
        lq.issue(("r", s))
g1_reads(0)
g1_reads(1)
for s in range(32):
    if s + 2 < 32:
        g1_reads(s + 2)
    lq.wait(("r", s))
    f = FR[s % 3]
    mf32(AC0, f, f + 4, AC0 if s else None)
    if s + 8 < 32:
        w_dma(s % 8)
        vq.issue(("w", s + 8))
    elif s == 24:
        e(f"buffer_load_dword v48, v4, {sr(SRD_DBG,4)}, 0 offen sc1")
        vq.issue("dbg")
    mf32(AC1, f, f + 8, AC1 if s else None)
e(f"s_setprio 2\nv_add_u32 v3, {L_RSTD}, v4")
e("ds_read_b32 v44, v3\nds_read_b32 v46, v3 offset:128\nds_read_b32 v52, v3 offset:256\nds_read_b32 v54, v3 offset:384")
e(f"s_lshl_b32 s{S_T0}, s{S_W}, 2\ns_add_u32 s{S_T0}, s{S_T0}, {L_FLG+F_G1}")
set_lds_flag(f"s{S_T0}", 49, 50)
stamp("g1")
e(f"s_cmp_lt_u32 s{S_W}, 2\ns_cbranch_scc1 L_qepi")

e(f"""s_mul_i32 s{S_T0}, s{S_G}, {H_GRP}
s_lshl_b32 s{S_T1}, s{S_T}, 12
s_add_u32 s{S_T0}, s{S_T0}, s{S_T1}
s_add_u32 s{S_T0}, s{S_T0}, {hex(WS_H)}
v_lshlrev_b32 v3, 4, v0
s_waitcnt lgkmcnt(0)
v_mul_f32 v44, {hex(f2u(-1.4426950408889634))}, v44
v_mul_f32 v46, {hex(f2u(-1.4426950408889634))}, v46
v_mov_b32 v53, v52
v_mov_b32 v55, v54
v_mov_b32 v45, v44
v_mov_b32 v47, v46""")
for tb in range(2):
    for u in range(2):
        A, T, C, R = (AC0, AC1)[tb] + 8 * u, 8, 44 + 2 * tb, 16 + 4 * (2 * tb + u)
        for k in range(4):
            e(f"v_pk_mul_f32 {vr(T+2*k,2)}, {vr(A+2*k,2)}, {vr(C,2)}")
        for k in range(8):
            e(f"v_exp_f32 v{T+k}, v{T+k}")
        for k in range(4):
            e(f"v_pk_fma_f32 {vr(T+2*k,2)}, {vr(T+2*k,2)}, {vr(C+8,2)}, {vr(C+8,2)}")
        for k in range(8):
            e(f"v_rcp_f32 v{T+k}, v{T+k}")
        for k in range(4):
            e(f"v_pk_mul_f32 {vr(T+2*k,2)}, {vr(T+2*k,2)}, {vr(A+2*k,2)}")
        for k in range(4):
            e(f"v_cvt_pk_bf16_f32 v{R+k}, v{T+2*k}, v{T+2*k+1}")
        e(f"buffer_store_dwordx4 {vr(R,4)}, v3, {sr(SRD_WS,4)}, s{S_T0} offen{off(u*2048 + tb*1024)}{'' if OPT['dbg_nosc'] else ' sc1'}")
e(f"s_lshl_b32 s{S_T5}, s{S_T}, 5\ns_add_u32 s{S_T5}, s{S_T5}, {FL_H}\ns_add_u32 s{S_T5}, s{S_T5}, s{S_FLB}")
e(f"s_cmp_lt_u32 s{S_W}, 4\ns_cbranch_scc0 L_helper\ns_branch L_attn")

e(f"""L_qepi:
s_lshl_b32 s{S_T0}, s{S_G}, 16
s_lshl_b32 s{S_T1}, s{S_J}, 10
s_add_u32 s{S_T0}, s{S_T0}, s{S_T1}
s_lshl_b32 s{S_T1}, s{S_W}, 8
s_add_u32 s{S_T0}, s{S_T0}, s{S_T1}
s_add_u32 s{S_T0}, s{S_T0}, {hex(WS_Q)}
s_add_u32 s{S_T2}, s{S_T0}, 32768
v_and_b32 v3, 7, v0
v_lshlrev_b32 v3, 4, v3
v_lshrrev_b32 v8, 5, v0
v_lshl_add_u32 v3, v8, 9, v3
s_add_u32 s{S_T1}, s{S_T1}, {L_OWNQ}
v_add_u32 v9, s{S_T1}, v3
v_bfe_u32 v8, v0, 3, 2
v_lshl_add_u32 v3, v8, 13, v3
s_and_b32 s{S_T1}, s{S_J}, 3
s_lshl_b32 s{S_T1}, s{S_T1}, 3
s_lshl_b32 s{S_T3}, 0xff, s{S_T1}
s_waitcnt lgkmcnt(0)
v_mul_f32 v44, {hex(f2u(0.25*1.4426950408889634))}, v44
v_mul_f32 v46, {hex(f2u(0.25*1.4426950408889634))}, v46
v_mov_b32 v45, v44
v_mov_b32 v47, v46""")
for tb in range(2):
    A, C = (AC0, AC1)[tb], 44 + 2 * tb
    for k in range(8):
        e(f"v_pk_mul_f32 {vr(A+2*k,2)}, {vr(A+2*k,2)}, {vr(C,2)}")
    for k in range(8):
        e(f"v_cvt_pk_bf16_f32 v{16+8*tb+k}, v{A+2*k}, v{A+2*k+1}")
    for hl in range(2):
        e(f"buffer_store_dwordx4 {vr(16+8*tb+4*hl,4)}, v3, {sr(SRD_WS,4)}, s{(S_T0, S_T2)[tb]} offen{off(hl*128)}{'' if OPT['dbg_nosc'] else ' sc1'}")
    e(f"s_cmp_{'lt' if tb == 0 else 'ge'}_u32 s{S_J}, 4\ns_cselect_b32 exec_lo, s{S_T3}, 0\ns_cselect_b32 exec_hi, s{S_T3}, 0")
    for hl in range(2):
        e(f"ds_write_b128 v9, {vr(16+8*tb+4*hl,4)}{off(hl*128)}")
    e("s_mov_b64 exec, -1")
e(f"s_lshl_b32 s{S_T0}, s{S_W}, 2\ns_add_u32 s{S_T0}, s{S_T0}, {L_FLG+F_OWNQ}")
set_lds_flag(f"s{S_T0}", 49, 50)
e(f"s_lshl_b32 s{S_T5}, s{S_J}, 1\ns_add_u32 s{S_T5}, s{S_T5}, s{S_W}\ns_lshl_b32 s{S_T5}, s{S_T5}, 5")
e(f"s_add_u32 s{S_T5}, s{S_T5}, {FL_Q}\ns_add_u32 s{S_T5}, s{S_T5}, s{S_FLB}")

e("L_attn:\ns_setprio 1")
stamp("epi")
e("s_waitcnt vmcnt(4)\nv_cmp_ne_u32 vcc, 1, v48\ns_nop 0\ns_cbranch_vccnz L_dbgslow_a\nL_dbgok_a:")
e(f"""v_lshrrev_b32 v3, 3, v0
v_lshlrev_b32 v3, 12, v3
v_and_b32 v8, 7, v0
v_lshl_add_u32 v3, v8, 7, v3
s_lshl_b32 s{S_T0}, s{S_W}, 15
s_add_u32 s{S_T1}, s{S_T0}, {hex(WS_FL)}
buffer_load_dword v8, v3, {sr(SRD_WS,4)}, s{S_T1} offen sc1
s_waitcnt vmcnt(1)""")
set_glb_flag(f"s{S_T5}", 49, 50)
e(f"""v_lshlrev_b32 v1, 4, v0
v_and_b32 v4, 15, v0
v_lshlrev_b32 v7, 5, v4
v_lshlrev_b32 v4, 4, v4
v_lshrrev_b32 v9, 5, v0
v_lshl_add_u32 v4, v9, 8, v4
v_bfe_u32 v9, v0, 4, 1
v_lshl_add_u32 v2, v9, 9, v4
v_add_u32 v5, s{S_RING}, v1
v_and_b32 v6, 31, v0
s_lshl_b32 s{S_T2}, s{S_W}, 7
s_add_u32 s{S_T2}, s{S_T2}, {L_LS}
v_lshl_add_u32 v6, v6, 2, s{S_T2}
s_lshl_b32 s{S_T2}, s{S_G}, 16
s_lshl_b32 s{S_T3}, s{S_J}, 13
s_add_u32 s{S_T2}, s{S_T2}, s{S_T3}
s_add_u32 s{S_T2}, s{S_T2}, {hex(WS_Q)}""")
for t in range(8):
    e(f"s_add_u32 s{S_T3}, s{S_J}, {t}\ns_and_b32 s{S_T3}, s{S_T3}, 7\ns_lshl_b32 s{S_T3}, s{S_T3}, 10\ns_add_u32 s{S_QO+t}, s{S_T2}, s{S_T3}")
e(f"s_add_u32 s{S_T4}, s{S_FLB}, {FL_Q}\ns_mov_b32 s{S_EX}, 0x0000ffff\ns_mov_b32 s{S_EX+1}, 0x0000ffff")
e("s_waitcnt vmcnt(1)\nv_cmp_ne_u32 vcc, 1, v8\ns_nop 0\ns_cbranch_vccnz L_kvslow\nL_kvok:")
stamp("flags")
e(f"s_lshr_b32 s{S_T3}, s2, 3\ns_mul_i32 s{S_T3}, s{S_T3}, {OPT['rot']}")
vq = Queue("vmcnt")
for b in range(16):
    e(f"s_add_u32 s{S_T2}, s{S_T3}, {b}\ns_and_b32 s{S_T2}, s{S_T2}, 15\ns_lshl_b32 s{S_T2}, s{S_T2}, 11\ns_add_u32 s{S_T2}, s{S_T2}, s{S_T0}")
    o = 0
    e(f"buffer_load_dwordx4 {vr(VK+4*b,4)}, v2, {sr(SRD_WS,4)}, s{S_T2} offen{off(o)}{'' if OPT['dbg_kvplain'] else ' sc1'}")
    vq.issue(("K", b))
    e(f"s_mov_b64 exec, {sr(S_EX,2)}")
    for i in range(2):
        e(f"buffer_load_dwordx4 {vr(VV+8*b+4*i,4)}, v4, {sr(SRD_WS,4)}, s{S_T2} offen{off(o+1024+512*i)}{'' if OPT['dbg_kvplain'] else ' sc1'}")
        vq.issue(("V", b))
    e("s_mov_b64 exec, -1")
    if b == 7:
        e(f"buffer_load_dword v3, v7, {sr(SRD_WS,4)}, s{S_T4} offen sc1")
        vq.issue("qf")
stamp("kvis")
e(f"v_and_b32 v2, 1, v0\nv_lshlrev_b32 v2, 2, v2\nv_add_u32 v2, {L_FLG}, v2")
lds_spin(2, F_OWNQ, 4, "v_cmp_ne_u32", 1)
e(f"v_add_u32 v4, {L_OWNQ}, v1\nds_read_b128 {vr(VQ0,4)}, v4")
e(f"v_and_b32 v2, 7, v0\nv_lshlrev_b32 v2, 2, v2\nv_add_u32 v2, {L_FLG}, v2")
e(f"s_waitcnt vmcnt({vq.left(('K', 0))}) lgkmcnt(0)")
stamp("go")
mf32(SA, VK, VQ0)
e("s_nop 11")

ORDER = "e0 d7 a e1 e2 e3 b e4 e5 c0 c1 Q e6 e7 c2 e8 c3 e9 e10 e11 c4 e12 e13 c5 e14 e15 c6".split()
def flush(t):
    o = (t % 4) * 2048
    return [f"ds_write_b128 v5, {vr(VO,4)}{off(o)}", f"ds_write_b128 v5, {vr(VO+4,4)}{off(o+1024)}",
            f"ds_write_b32 v6, v{VO+8}{off(t*512)}"]
for i in range(128):
    t, b = divmod(i, 16)
    S, T = (SA, SB) if i % 2 == 0 else (SB, SA)
    pb = (b - 1) % 16
    after = {}
    if t == 0 and b < 15:
        after["b"] = [f"s_waitcnt vmcnt({vq.left(('K', b+1))})"]
    if t == 0 and b == 7:
        after["e7"] = ["v_cmp_ne_u32 vcc, 1, v3"]
        after["e8"] = ["s_cbranch_vccnz L_qslow", "L_qok:"]
    if (t == 0 and b == 7) or (0 < t < 7 and b == 4):
        after["e9"] = [f"buffer_load_dwordx4 {vr((VQ0, VQ1)[(t+1) % 2],4)}, v1, {sr(SRD_WS,4)}, s{S_QO+t+1} offen sc1"]
    if b == 15 and t < 7:
        after["b"] = ["s_waitcnt vmcnt(0)"]
    if b == 0 and t > 0:
        fl = flush(t - 1)
        after["e11"], after["e12"], after["e14"] = [fl[0]], [fl[1]], [fl[2]]
    if t == 4 and b == 6:
        after["a"] = [f"ds_read_b32 v3, v2 offset:{F_G1}"]
    if t == 4 and b == 7:
        after["a"] = ["s_waitcnt lgkmcnt(0)"]
        after["e7"] = ["v_cmp_ne_u32 vcc, 1, v3"]
        after["e8"] = ["s_cbranch_vccnz L_g1slow", "L_g1ok:"]
        after["e9"] = [f"v_add_u32 v5, {L_P2 - L_A}, v5"]
    for tok in ORDER:
        k = tok[0]
        if k == "e":
            n = int(tok[1:]); e(f"v_exp_f32 v{S+n}, v{S+n}")
        elif k == "c":
            n = int(tok[1:]); e(f"v_cvt_pk_bf16_f32 v{S+(n//4)*8+n%4}, v{S+2*n}, v{S+2*n+1}")
        elif k == "d":
            if i: e(f"v_cvt_pk_bf16_f32 v{T+11}, v{T+14}, v{T+15}")
        elif k == "a":
            if i: mf32(VO, VV + 8 * pb, T, None if b == 1 else VO)
        elif k == "b":
            if i: mf32(VO, VV + 8 * pb + 4, T + 8, VO)
        elif k == "Q":
            if i < 127:
                mf32(T, VK + 4 * ((b + 1) % 16), (VQ0, VQ1)[((i + 1) // 16) % 2])
        for x in after.get(tok, []):
            e(x)
            if x.startswith("buffer_load"):
                vq.issue()
    if b == 15:
        stamp(f"p{t}")
e(f"v_cvt_pk_bf16_f32 v{SB+11}, v{SB+14}, v{SB+15}")
mf32(VO, VV + 8 * 15, SB, VO)
e("s_nop 0")
mf32(VO, VV + 8 * 15 + 4, SB + 8, VO)
e("s_nop 11")
for x in flush(7):
    e(x)
e("s_waitcnt lgkmcnt(0)\ns_barrier")
stamp("fbar")
e("s_barrier")
e(f"v_mov_b32 v2, {L_FLG}\nds_read_b32 v3, v2 offset:{F_BAD}\ns_waitcnt lgkmcnt(0)")
e("v_cmp_ne_u32 vcc, 0, v3\ns_nop 0\ns_cbranch_vccnz L_slow_a\ns_branch L_fin")

e("L_helper:")
stamp("epi")
e("s_waitcnt vmcnt(4)\nv_cmp_ne_u32 vcc, 1, v48\ns_nop 0\ns_cbranch_vccnz L_dbgslow_h\nL_dbgok_h:\ns_waitcnt vmcnt(0)")
set_glb_flag(f"s{S_T5}", 49, 50)
e("L_helper2:")
for k in range(OPT["dbg_hdelay"]):
    e("s_sleep 16")
e(f"""s_mul_i32 s{S_T0}, s{S_G}, {H_GRP}
s_add_u32 s{S_T0}, s{S_T0}, {hex(WS_H)}
s_add_u32 s{SRD_A}, s{P_WS}, s{S_T0}
s_addc_u32 s{SRD_A+1}, s{P_WS+1}, 0
s_mov_b32 s{SRD_A+2}, {H_GRP}
s_mov_b32 s{SRD_A+3}, 0x20000""")
srd(SRD_B, P_W2, 1376 * 1024)
srd(SRD_C, P_WO, 512 * 1024)
srd(SRD_OUT, P_OUT, 2048 * 1024)
F2ACC, F2B, F2A, XR = 8, 72, 128, 144
e(f"""v_lshrrev_b32 v1, 2, v0
v_lshlrev_b32 v1, 10, v1
v_and_b32 v5, 3, v0
v_lshl_add_u32 v1, v5, 4, v1
s_and_b32 s{S_T0}, s{S_HW}, 1
s_lshl_b32 s{S_T0}, s{S_T0}, 6
s_lshl_b32 s{S_T1}, s{S_J}, 7
s_add_u32 s{S_T0}, s{S_T0}, s{S_T1}
v_add_u32 v1, s{S_T0}, v1
v_xor_b32 v2, 64, v1
s_lshr_b32 s{S_T1}, s{S_HW}, 1
s_lshl_b32 s{S_T2}, s{S_T1}, 10
v_lshl_add_u32 v3, v0, 4, s{S_T2}
v_xor_b32 v4, 0x400, v3
v_lshlrev_b32 v7, 3, v5
v_bfe_u32 v5, v0, 2, 2
v_lshl_add_u32 v7, v5, 6, v7
v_bfe_u32 v5, v0, 4, 1
v_lshl_add_u32 v7, v5, 5, v7
v_lshrrev_b32 v5, 5, v0
v_lshl_add_u32 v7, v5, 8, v7
v_add_u32 v7, s{S_RING}, v7
v_and_b32 v6, 31, v0
v_lshlrev_b32 v6, 10, v6
v_lshl_add_u32 v6, v5, 3, v6
s_lshl_b32 s{S_T2}, s{S_G}, 1
s_add_u32 s{S_T2}, s{S_T2}, s{S_T1}
s_lshl_b32 s{S_T2}, s{S_T2}, 15
s_add_u32 s{S_T2}, s{S_T2}, s{S_T0}
s_lshl_b32 s{S_T3}, s{S_J}, 1
s_add_u32 s{S_T3}, s{S_T3}, s{S_GL}
s_and_b32 s{S_T3}, s{S_T3}, 7
s_mul_i32 s{S_T3}, s{S_T3}, {11 * OPT['rot']}
s_lshr_b32 s{S_T3}, s{S_T3}, 2
s_mul_i32 s{S_T4}, s{S_HW}, 22
s_add_u32 s{S_T3}, s{S_T3}, s{S_T4}
s_lshl_b32 s{S_SOFF}, s{S_T3}, 14
s_lshl_b32 s{S_STEP}, s{S_T3}, 11
s_lshl_b32 s{S_QO}, s{S_T4}, 14
s_add_u32 s{S_QO+1}, s{S_QO}, {22*16384}
s_lshl_b32 s{S_QO+2}, s{S_T4}, 11
s_add_u32 s{S_QO+3}, s{S_QO+2}, {22*2048}""")
vq, lq = Queue("vmcnt"), Queue("lgkmcnt")
def f2_dma(s):
    for c in range(2):
        e(f"s_add_u32 m0, s{S_RING}, {(s % 7)*2048 + c*1024}\ns_nop 0")
        e(f"buffer_load_dwordx4 v{1+c}, {sr(SRD_B,4)}, s{S_SOFF} offen lds")
        vq.issue(("w", s))
    e(f"s_add_u32 s{S_SOFF}, s{S_SOFF}, 16384\ns_cmp_ge_u32 s{S_SOFF}, s{S_QO+1}\ns_cselect_b32 s{S_SOFF}, s{S_QO}, s{S_SOFF}")
def f2_h(s):
    for c in range(2):
        e(f"buffer_load_dwordx4 {vr(F2B+8*(s % 7)+4*c,4)}, v{3+c}, {sr(SRD_A,4)}, s{S_STEP} offen sc1")
        vq.issue(("h", s))
    e(f"s_add_u32 s{S_STEP}, s{S_STEP}, 2048\ns_cmp_ge_u32 s{S_STEP}, s{S_QO+3}\ns_cselect_b32 s{S_STEP}, s{S_QO+2}, s{S_STEP}")
for s in range(7):
    f2_dma(s)
for a in range(4):
    e(f"buffer_load_dwordx2 {vr(XR+2*a,2)}, v6, {sr(SRD_X,4)}, s{S_T2} offen{off(16*a)}")
if OPT["pf_late"]:
    e(f"""s_lshr_b32 s{S_T3}, s2, 3
s_lshl_b32 s{S_T3}, s{S_T3}, 2
s_add_u32 s{S_T3}, s{S_T3}, s{S_HW}
s_lshl_b32 s{S_T3}, s{S_T3}, 12
v_lshlrev_b32 v5, 6, v0
buffer_load_dword v153, v5, {sr(SRD_C,4)}, s{S_T3} offen""")
e(f"""v_min_u32 v5, 10, v0
s_mul_i32 s{S_T3}, s{S_HW}, 11
v_add_u32 v5, s{S_T3}, v5
v_min_u32 v5, 42, v5
v_lshlrev_b32 v5, 5, v5
s_add_u32 s{S_T3}, s{S_FLB}, {FL_H}
s_setprio 0""")
glb_spin(5, SRD_WS, f"s{S_T3}", 154, sleep=4, prio=(2, 0))
stamp("flags")
for s in range(7):
    f2_h(s)
def f2_reads(s):
    f = F2A + 8 * (s % 2)
    for c in range(2):
        for i in range(2):
            e(f"ds_read_b64_tr_b16 {vr(f+4*c+2*i,2)}, v7{off((s % 7)*2048 + c*1024 + i*512)}")
            lq.issue(("r", s))
f2_reads(0)
for s in range(22):
    need = vq.left(("h", s))
    if s + 1 < 22:
        need = min(need, vq.left(("w", s + 1)))
    e(f"s_waitcnt vmcnt({need})")
    if s + 1 < 22:
        f2_reads(s + 1)
    lq.wait(("r", s))
    f, bb = F2A + 8 * (s % 2), F2B + 8 * (s % 7)
    for u in range(4):
        mf32(F2ACC + 16 * u, f + 4 * (u & 1), bb + 4 * (u >> 1), F2ACC + 16 * u if s else None)
    if s + 7 < 22:
        f2_dma(s + 7)
        f2_h(s + 7)
stamp("go")
e(f"s_setprio 2\nv_lshlrev_b32 v1, 4, v0\nv_add_u32 v2, s{S_RING}, v1\ns_nop 9")
for u in range(1, 4):
    for a in range(4):
        e(f"ds_write_b128 v2, {vr(F2ACC+16*u+4*a,4)}{off((u-1)*4096 + a*1024)}")
e(f"s_lshl_b32 s{S_T0}, s{S_HW}, 2\ns_add_u32 s{S_T0}, s{S_T0}, {L_FLG}")
set_lds_flag(f"s{S_T0}", 6, 3, F_RED)
for k in range(8):
    e(f"v_dot2_f32_bf16 v{F2ACC+2*k}, v{XR+k}, s{S_C10}, v{F2ACC+2*k}")
    e(f"v_dot2_f32_bf16 v{F2ACC+2*k+1}, v{XR+k}, s{S_C01}, v{F2ACC+2*k+1}")
for u in range(1, 4):
    e(f"s_xor_b32 s{S_T1}, s{S_HW}, {u}\ns_mul_i32 s{S_T1}, s{S_T1}, {H_STR}\nv_add_u32 v{152+u}, s{S_T1}, v1")
e(f"v_and_b32 v5, 3, v0\nv_lshlrev_b32 v5, 2, v5\nv_add_u32 v5, {L_FLG}, v5\ns_setprio 0")
lds_spin(5, F_RED, 4, "v_cmp_ne_u32", 1, prio=(2, 0))
for u in range(1, 4):
    for a in range(4):
        e(f"ds_read_b128 {vr(F2B+16*(u-1)+4*a,4)}, v{152+u}{off((u-1)*4096 + a*1024)}")
e(f"""s_setprio 2
v_bfe_u32 v4, v0, 3, 2
v_lshlrev_b32 v4, 14, v4
v_lshrrev_b32 v2, 5, v0
v_lshl_add_u32 v4, v2, 7, v4
v_and_b32 v2, 7, v0
v_lshl_add_u32 v4, v2, 4, v4
s_lshl_b32 s{S_T0}, s{S_G}, 17
s_lshr_b32 s{S_T1}, s{S_HW}, 1
s_lshl_b32 s{S_T1}, s{S_T1}, 16
s_add_u32 s{S_T0}, s{S_T0}, s{S_T1}
s_and_b32 s{S_T1}, s{S_HW}, 1
s_lshl_b32 s{S_T1}, s{S_T1}, 10
s_add_u32 s{S_T0}, s{S_T0}, s{S_T1}
s_lshl_b32 s{S_T1}, s{S_J}, 11
s_add_u32 s{S_T0}, s{S_T0}, s{S_T1}
s_add_u32 s{S_T0}, s{S_T0}, {hex(WS_Y)}
s_waitcnt lgkmcnt(0)
ds_write_b32 v6, v3 offset:{F_CONS}""")
for a in range(4):
    for u in range(3):
        for k in range(2):
            r = F2ACC + 4 * a + 2 * k
            e(f"v_pk_add_f32 {vr(r,2)}, {vr(r,2)}, {vr(F2B+16*u+4*a+2*k,2)}")
    e(f"buffer_store_dwordx4 {vr(F2ACC+4*a,4)}, v4, {sr(SRD_WS,4)}, s{S_T0} offen{off(a*256)} sc1")

OACC, OA, OB, YR, RT, RL = 24, 56, 120, 128, 160, 192
VD = 200
V_TR0, V_TR1, V_PART, V_LS, V_OBW, V_OBR, V_OUT, V_YF, V_YO, V_FL, V_LSP = 204, 205, 206, 207, 208, 209, 210, 211, 212, 213, 214
e(f"""v_lshrrev_b32 v1, 2, v0
v_lshlrev_b32 v2, 10, v1
v_bfe_u32 v1, v0, 4, 1
v_lshlrev_b32 v7, 1, v1
v_and_b32 v{VD+1}, 3, v0
v_xor_b32 v7, v7, v{VD+1}
v_lshl_add_u32 v2, v7, 4, v2
s_lshl_b32 s{S_T1}, s{S_HW}, 8
v_add_u32 v{VD}, s{S_T1}, v2
s_lshl_b32 s{S_RING}, s{S_HW}, 14
v_lshlrev_b32 v7, 3, v{VD+1}
v_bfe_u32 v2, v0, 2, 2
v_lshl_add_u32 v7, v2, 6, v7
v_lshl_add_u32 v7, v1, 8, v7
v_lshl_add_u32 v7, v1, 5, v7
v_lshrrev_b32 v2, 5, v0
v_lshl_add_u32 v7, v2, 10, v7
v_add_u32 v{V_TR0}, s{S_RING}, v7
v_xor_b32 v{V_TR1}, 32, v{V_TR0}
v_add_u32 v{VD+1}, 64, v{VD}
v_add_u32 v{VD+2}, 0x80, v{VD}
v_add_u32 v{VD+3}, 0xc0, v{VD}
v_bfe_u32 v7, v0, 3, 1
v_lshl_add_u32 v7, v7, 1, v2
v_and_b32 v2, 7, v0
v_lshl_add_u32 v7, v7, 3, v2
v_lshlrev_b32 v{V_LS}, 2, v7
v_add_u32 v{V_LS}, {L_LS}, v{V_LS}
v_lshl_add_u32 v7, v1, 5, v7
v_lshlrev_b32 v{V_PART}, 4, v7
v_lshlrev_b32 v{V_OBW}, 4, v0
v_add_u32 v{V_OBW}, {L_OBF}, v{V_OBW}
v_and_b32 v{V_OBR}, 0xffffff7f, v{V_OBW}
v_lshrrev_b32 v1, 4, v0
v_lshlrev_b32 v{V_OUT}, 3, v1
v_lshl_add_u32 v{V_OUT}, v2, 10, v{V_OUT}
v_lshlrev_b32 v{V_YO}, 7, v1
v_lshl_add_u32 v{V_YO}, v2, 4, v{V_YO}
v_lshlrev_b32 v{V_LSP}, 7, v1
v_add_u32 v{V_LSP}, {L_LS}, v{V_LSP}
v_and_b32 v1, 1, v0
v_bfe_u32 v7, v0, 1, 1
v_lshl_add_u32 v1, v7, 2, v1
v_lshlrev_b32 v{V_YF}, 5, v1
v_mov_b32 v{V_FL}, {L_FLG}
v_lshlrev_b32 v2, 2, v2
v_add_u32 v2, {L_FLG}, v2""")
for k in range(32):
    e(f"v_mov_b32 v{OACC+k}, 0")
e("s_setprio 0")
lds_spin(5, F_CONS, 1, "v_cmp_ne_u32", 1, prio=(2, 0))
lds_spin(2, F_G1, 1, "v_cmp_ne_u32", 1, prio=(2, 0))

def wo_row(sreg, tplus):
    e(f"s_add_u32 s{sreg}, s{S_J}, s{S_IT}" + (f"\ns_add_u32 s{sreg}, s{sreg}, {tplus}" if tplus else ""))
    e(f"s_and_b32 s{sreg}, s{sreg}, 7\ns_lshl_b32 s{sreg}, s{sreg}, 16")
    for k in range(1, 4):
        e(f"s_add_u32 s{sreg+k}, s{sreg}, {k*16384}")
def wo_dma(u):
    s_, c4 = divmod(u, 4)
    for hl in range(2):
        e(f"s_add_u32 m0, s{S_RING}, {u*2048 + hl*1024}\ns_nop 0")
        e(f"buffer_load_dwordx4 v{VD+c4}, {sr(SRD_C,4)}, s{S_QO+2*s_+hl} offen lds")
def wo_reads(u):
    for ee in range(2):
        for i in range(2):
            e(f"ds_read_b64_tr_b16 {vr(OA+8*u+4*ee+2*i,2)}, v{V_TR0+ee}{off(u*2048 + i*512)}")
def wo_mfma():
    for u in range(8):
        s_, c4 = divmod(u, 4)
        for ee in range(2):
            mf16(OACC + 4 * (2 * c4 + ee), OA + 8 * u + 4 * ee, OB + 4 * s_, OACC + 4 * (2 * c4 + ee))
def reduce_reads(vp, vl):
    for w in range(4):
        e(f"ds_read_b32 v{RL+w}, v{vl}{off(w*128)}")
    for w in range(4):
        for h in range(2):
            e(f"ds_read_b128 {vr(RT+8*w+4*h,4)}, v{vp}{off(w*8192 + h*1024)}")
def reduce_math(dst, check):
    e("s_waitcnt lgkmcnt(8)")
    e(f"v_add_f32 v{RL}, v{RL}, v{RL+1}\nv_add_f32 v{RL+2}, v{RL+2}, v{RL+3}\nv_add_f32 v{RL}, v{RL}, v{RL+2}\nv_rcp_f32 v{RL+2}, v{RL}")
    e("s_waitcnt lgkmcnt(4)")
    for k in range(4):
        e(f"v_pk_add_f32 {vr(RT+2*k,2)}, {vr(RT+2*k,2)}, {vr(RT+8+2*k,2)}")
    e(f"v_mov_b32 v{RL+3}, v{RL+2}\ns_waitcnt lgkmcnt(0)")
    for k in range(4):
        e(f"v_pk_add_f32 {vr(RT+16+2*k,2)}, {vr(RT+16+2*k,2)}, {vr(RT+24+2*k,2)}")
    for k in range(4):
        e(f"v_pk_add_f32 {vr(RT+2*k,2)}, {vr(RT+2*k,2)}, {vr(RT+16+2*k,2)}")
    for k in range(4):
        e(f"v_pk_mul_f32 {vr(RT+2*k,2)}, {vr(RT+2*k,2)}, {vr(RL+2,2)}")
    for k in range(4):
        e(f"v_cvt_pk_bf16_f32 v{dst+k}, v{RT+2*k}, v{RT+2*k+1}")
def range_check(src):
    lo, hi = f2u(2.0**-32), f2u(2.0**48)
    for k in range(4):
        e(f"v_dot2_f32_bf16 v{RL+1}, v{src+k}, s{S_C11}, {'v%d' % (RL+1) if k else 0}")
    e(f"v_subrev_u32 v{RL+3}, {hex(lo)}, v{RL}\nv_cmp_lt_u32 vcc, {hex(hi-lo)}, v{RL+3}\ns_nop 0")
    e(f"v_mov_b32 v{RL+3}, 0x207\nv_cmp_class_f32 {sr(S_EX,2)}, v{RL+1}, v{RL+3}\ns_nop 0\ns_or_b64 vcc, vcc, {sr(S_EX,2)}")
    if OPT["force_slow"]:
        e("s_mov_b64 vcc, -1")

for k in range(OPT["dbg_late"]):
    e("s_sleep 16")
e(f"s_mov_b32 s{S_IT}, 0")
wo_row(S_QO, 0)
for u in range(8):
    wo_dma(u)
e(f"s_lshl_b32 s{S_T5}, s{S_J}, 2\ns_add_u32 s{S_T5}, s{S_T5}, s{S_HW}\ns_lshl_b32 s{S_T5}, s{S_T5}, 5")
e(f"s_add_u32 s{S_T5}, s{S_T5}, {FL_Y}\ns_add_u32 s{S_T5}, s{S_T5}, s{S_FLB}\ns_waitcnt vmcnt(16)\ns_setprio 2")
set_glb_flag(f"s{S_T5}", 1, 3)
e("s_setprio 0")
stamp("p0")
e("L_oloop:")
wo_row(S_QO, 1)
for u in range(8):
    e(f"s_waitcnt vmcnt({14 if u == 0 else 12})")
    wo_reads(u)
    if u:
        e("s_waitcnt lgkmcnt(4)")
        wo_dma(u - 1)
e("s_waitcnt lgkmcnt(0)")
wo_dma(7)
e(f"""s_and_b32 s{S_T0}, s{S_IT}, 3
s_lshl_b32 s{S_T2}, s{S_IT}, 2
s_lshl_b32 s{S_T3}, s{S_IT}, 10
s_setprio 2
v_add_u32 v1, s{S_T2}, v{V_FL}
v_add_u32 v2, s{S_T3}, v{V_OBR}
s_cmp_eq_u32 s{S_T0}, s{S_HW}
s_cbranch_scc0 L_owait
s_lshl_b32 s{S_T0}, s{S_T0}, 11
s_mov_b32 s{S_T1}, {L_P2}
s_cmp_lt_u32 s{S_IT}, 4
s_cselect_b32 s{S_T1}, {L_A}, s{S_T1}
s_add_u32 s{S_T0}, s{S_T0}, s{S_T1}
s_lshl_b32 s{S_T1}, s{S_IT}, 9
v_add_u32 v3, s{S_T0}, v{V_PART}
v_add_u32 v4, s{S_T1}, v{V_LS}
v_add_u32 v5, s{S_T1}, v{V_LSP}
v_add_u32 v6, s{S_T3}, v{V_OBW}
s_setprio 0""")
lds_spin(5, 0, 7, "v_cmp_eq_u32", -1, sleep=2, prio=(2, 0))
reduce_reads(3, 4)
e("s_setprio 2")
reduce_math(OB, True)
e(f"ds_write_b128 v6, {vr(OB,4)}")
range_check(OB)
e(f"v_mov_b32 v7, 1\nds_write_b32 v1, v7 offset:{F_OF}\ns_cbranch_vccz L_owait\nds_write_b32 v{V_FL}, v7 offset:{F_BAD}")
e("L_owait:\ns_setprio 0")
lds_spin(1, F_OF, 7, "v_cmp_ne_u32", 1, sleep=2, prio=(2, 0))
e(f"ds_read_b128 {vr(OB,4)}, v2\nds_read_b128 {vr(OB+4,4)}, v2 offset:128\ns_waitcnt lgkmcnt(0)")
wo_mfma()
e(f"s_cmp_eq_u32 s{S_IT}, 5\ns_cbranch_scc1 L_yload\nL_yret:")
e(f"s_add_u32 s{S_IT}, s{S_IT}, 1\ns_cmp_lt_u32 s{S_IT}, 7\ns_cbranch_scc1 L_oloop")
for u in range(8):
    e(f"s_waitcnt vmcnt({14 - 2*u}) lgkmcnt(8)")
    wo_reads(u)
e(f"""s_setprio 2
v_add_u32 v3, {L_P2 + 3*2048}, v{V_PART}
v_add_u32 v4, {7*512}, v{V_LS}
s_lshl_b32 s{S_T0}, s{S_G}, 3
s_add_u32 s{S_T0}, s{S_T0}, s{S_J}
s_lshl_b32 s{S_T0}, s{S_T0}, 13
s_lshl_b32 s{S_T1}, s{S_HW}, 8
s_add_u32 s{S_T5}, s{S_T0}, s{S_T1}""")
for k in range(16):
    e(f"v_pk_add_f32 {vr(OACC+2*k,2)}, {vr(OACC+2*k,2)}, {vr(YR+2*k,2)}")
e("s_waitcnt lgkmcnt(0)\ns_barrier")
stamp("fbar")
e(f"ds_read_b32 v5, v{V_FL} offset:{F_BAD}")
reduce_reads(3, 4)
reduce_math(OB, True)
e("s_nop 1")
for k in range(4):
    e(f"v_mov_b32_dpp v{OB+4+k}, v{OB+k} row_ror:8 row_mask:0xf bank_mask:0xf")
e("s_nop 1")
wo_mfma()
range_check(OB)
e(f"v_cmp_ne_u32 {sr(S_EX,2)}, 0, v5\ns_nop 0\ns_or_b64 vcc, vcc, {sr(S_EX,2)}\ns_cbranch_vccnz L_slow_h\ns_barrier")
e("L_store:")
e(f"s_mov_b32 exec_lo, 0x00ff00ff\ns_mov_b32 exec_hi, 0x00ff00ff")
for c in range(8):
    e(f"v_cvt_pk_bf16_f32 v{OA+2*c}, v{OACC+4*c}, v{OACC+4*c+1}\nv_cvt_pk_bf16_f32 v{OA+2*c+1}, v{OACC+4*c+2}, v{OACC+4*c+3}")
    e(f"buffer_store_dwordx2 {vr(OA+2*c,2)}, v{V_OUT}, {sr(SRD_OUT,4)}, s{S_T5} offen{off(32*c)} {OPT['outfl'].replace('_', ' ')}")
e("s_mov_b64 exec, -1")
e("L_fin:")
if OPT["hold"] == "end":
    e("s_waitcnt vmcnt(0)")
    stamp("end")
if OPT["stamps"]:
    e(f"s_waitcnt vmcnt(0)\ns_memtime {sr(S_STMP,2)}\ns_waitcnt lgkmcnt(0)")
    e(f"s_lshl_b32 s{S_T0}, s2, 3\ns_add_u32 s{S_T0}, s{S_T0}, s{S_W}\ns_lshl_b32 s{S_T0}, s{S_T0}, 6\ns_add_u32 s{S_T0}, s{S_T0}, {hex(WS_ST)}")
    for k in range(10):
        e(f"v_mov_b32 v{8+k}, s{S_ST0+k}")
    e(f"v_mov_b32 v18, s{S_STMP}\ns_memrealtime {sr(S_STMP,2)}\ns_waitcnt lgkmcnt(0)\nv_mov_b32 v19, s{S_STMP}\nv_mov_b32 v1, 0\ns_mov_b64 exec, 1")
    for k in range(3):
        e(f"buffer_store_dwordx4 {vr(8+4*k,4)}, v1, {sr(SRD_WS,4)}, s{S_T0} offen{off(16*k)}")
e("L_exit:\ns_endpgm")

e(f"""L_yload:
s_lshr_b32 s{S_T0}, s{S_J}, 2
s_lshl_b32 s{S_T0}, s{S_T0}, 1
s_lshl_b32 s{S_T1}, s{S_HW}, 3
s_add_u32 s{S_T0}, s{S_T0}, s{S_T1}
s_lshl_b32 s{S_T0}, s{S_T0}, 5
s_add_u32 s{S_T0}, s{S_T0}, {FL_Y}
s_add_u32 s{S_T0}, s{S_T0}, s{S_FLB}""")
glb_spin(V_YF, SRD_WS, f"s{S_T0}", 7, sleep=4, prio=(2, 0))
e(f"""s_lshl_b32 s{S_T0}, s{S_G}, 3
s_add_u32 s{S_T0}, s{S_T0}, s{S_J}
s_lshl_b32 s{S_T0}, s{S_T0}, 2
s_add_u32 s{S_T0}, s{S_T0}, s{S_HW}
s_lshl_b32 s{S_T0}, s{S_T0}, 12
s_add_u32 s{S_T0}, s{S_T0}, {hex(WS_Y)}""")
for c in range(8):
    e(f"buffer_load_dwordx4 {vr(YR+4*c,4)}, v{V_YO}, {sr(SRD_WS,4)}, s{S_T0} offen{off(512*c)} sc1")
e("s_waitcnt vmcnt(0)\ns_branch L_yret")

e(f"""L_clear:
v_mov_b32 v44, 0
v_mov_b32 v45, 0
v_mov_b32 v46, 0
v_mov_b32 v47, 0
v_lshlrev_b32 v3, 4, v0""")
for i in range(4):
    e(f"buffer_store_dwordx4 v[44:47], v3, {sr(SRD_WS,4)}, s{S_FLB} offen{off(1024*i)} sc1")
e(f"""s_branch L_clear_ret
L_clear2:
s_lshl_b32 s{S_T0}, s{S_G}, 2
v_mov_b32 v3, 1
s_waitcnt vmcnt({8 + OPT['pf_w']})
s_mov_b64 exec, 1
buffer_store_dword v3, v44, {sr(SRD_DBG,4)}, s{S_T0} offen sc1
s_mov_b64 exec, -1
s_waitcnt vmcnt({5 + OPT['pf_w']})
s_branch L_lnA
L_w4wait:
s_waitcnt vmcnt({20 + OPT['pf_w']})
s_branch L_lnA""")

e(f"""L_wkv:
s_bitcmp1_b32 s{S_J}, 2
s_cselect_b32 s{SRD_A}, s{P_WV}, s{P_WK}
s_cselect_b32 s{SRD_A+1}, s{P_WV+1}, s{P_WK+1}
s_mov_b32 s{SRD_A+2}, 16384
s_mov_b32 s{SRD_A+3}, 0x20000
v_lshlrev_b32 v3, 4, v0""")
for i in range(4):
    e(f"s_mov_b32 m0, {i*H_STR + 8192}\ns_mov_b32 s{S_T0}, {i*4096}")
    for k in range(4):
        e(f"buffer_load_dwordx4 v3, {sr(SRD_A,4)}, s{S_T0} offen{off(1024*k)} lds")
e("s_branch L_wkv_ret")

WF, XF, KA = 72, 136, 200
e(f"""L_kv:
v_and_b32 v3, 3, v0
v_lshlrev_b32 v3, 3, v3
v_bfe_u32 v5, v0, 2, 2
v_lshl_add_u32 v3, v5, 5, v3
v_lshrrev_b32 v5, 4, v0
v_lshl_add_u32 v3, v5, 8, v3
s_waitcnt vmcnt({4 + OPT['pf_w']})""")
for s in range(16):
    if s % 4 == 0:
        e("s_waitcnt lgkmcnt(6)")
    for i in range(2):
        e(f"ds_read_b64_tr_b16 {vr(WF+4*s+2*i,2)}, v3{off((s >> 2)*H_STR + 8192 + (s & 3)*1024 + i*128)}")
e(f"""v_and_b32 v52, 31, v0
v_lshlrev_b32 v52, 2, v52
buffer_load_dword v53, v52, {sr(SRD_DBG,4)}, 0 offen sc1
v_mul_u32_u24 v3, {X_STR}, v5
v_and_b32 v54, 15, v0
v_lshl_add_u32 v3, v54, 4, v3
s_lshl_b32 s{S_T0}, s{S_T3}, 8
s_add_u32 s{S_T0}, s{S_T0}, {L_X}
v_add_u32 v3, s{S_T0}, v3
s_lshl_b32 s{S_T0}, s{S_T3}, 6
s_add_u32 s{S_T0}, s{S_T0}, {L_RSTD}
v_lshl_add_u32 v54, v54, 2, s{S_T0}
v_lshl_add_u32 v55, v5, 4, s{S_T0}
s_lshl_b32 s{S_T0}, s{S_G}, 12
s_lshr_b32 s{S_T1}, s{S_T3}, 1
s_lshl_b32 s{S_T1}, s{S_T1}, 11
s_add_u32 s{S_T0}, s{S_T0}, s{S_T1}
s_and_b32 s{S_T1}, s{S_T3}, 1
s_lshl_b32 s{S_T1}, s{S_T1}, 9
s_add_u32 s{S_T0}, s{S_T0}, s{S_T1}
s_lshr_b32 s{S_T1}, s{S_J}, 2
s_lshl_b32 s{S_T1}, s{S_T1}, 10
s_add_u32 s{S_T2}, s{S_T0}, s{S_T1}
v_lshlrev_b32 v5, 4, v0
s_bitcmp1_b32 s{S_J}, 2
s_waitcnt lgkmcnt(0)
s_cbranch_scc1 L_kv_v""")
for isv in range(2):
    if isv:
        e("L_kv_v:")
    e("s_barrier")
    stamp("bar1")
    lq = Queue("lgkmcnt")
    def xr(s):
        e(f"ds_read_b128 {vr(XF+4*s,4)}, v3{off(s*4*X_STR)}")
        lq.issue(s)
    for s in range(8):
        xr(s)
    for s in range(16):
        if s + 8 < 16:
            xr(s + 8)
        elif s == 8:
            e("ds_read_b128 v[56:59], v55" if isv else "ds_read_b32 v56, v54")
            lq.issue("rs")
        lq.wait(s)
        if isv:
            mf16(KA, XF + 4 * s, WF + 4 * s, KA if s else None)
        else:
            mf16(KA, WF + 4 * s, XF + 4 * s, KA if s else None)
    e("s_waitcnt lgkmcnt(0)\ns_nop 6")
    for k in range(4):
        e(f"v_mul_f32 v{KA+k}, v{KA+k}, v{56 + (k if isv else 0)}")
    if not isv:
        e("s_branch L_kv_st")
e(f"""L_kv_st:
v_cvt_pk_bf16_f32 v60, v{KA}, v{KA+1}
v_cvt_pk_bf16_f32 v61, v{KA+2}, v{KA+3}
v_mov_b32 v62, 0
v_mov_b32 v63, 0
s_nop 1
v_permlane32_swap_b32 v60, v62
v_permlane32_swap_b32 v61, v63
s_mov_b32 exec_hi, 0
buffer_store_dwordx4 v[60:63], v5, {sr(SRD_WS,4)}, s{S_T2} offen sc1
s_mov_b32 exec_hi, -1""")
stamp("kvst")
for i in range(8):
    w_dma(i)
e(f"s_waitcnt vmcnt({10 + OPT['pf_w']})\ns_branch L_lnB_k")

e(f"L_kvflag:\ns_setprio 2\ns_waitcnt vmcnt(8)\nv_cmp_ne_u32 vcc, 1, v53\ns_nop 0\ns_cbranch_vccz L_kvflag2")
glb_spin(4, SRD_DBG, "0", 53)
e(f"L_kvflag2:\ns_lshl_b32 s{S_T5}, s{S_J}, 7\ns_add_u32 s{S_T5}, s{S_T5}, s{S_FLB}")
set_glb_flag(f"s{S_T5}", 49, 50)
stamp("kvfl")
e(f"s_setprio 0\ns_cmp_eq_u32 s{S_VALID}, 1\ns_cbranch_scc1 L_g1\ns_setprio 2")
set_lds_flag(L_FLG + F_G1 + 16, 49, 50)
e("s_waitcnt vmcnt(0)\ns_branch L_helper2")

e("L_dbgslow_a:")
glb_spin(4, SRD_DBG, "0", 48)
e("s_branch L_dbgok_a\nL_dbgslow_h:")
glb_spin(4, SRD_DBG, "0", 48)
e("s_branch L_dbgok_h\nL_kvslow:")
glb_spin(3, SRD_WS, f"s{S_T1}", 8, sleep=1)
e("s_branch L_kvok\nL_qslow:")
glb_spin(7, SRD_WS, f"s{S_T4}", 3, sleep=1)
e("s_branch L_qok\nL_g1slow:")
lds_spin(2, F_G1, 3, "v_cmp_ne_u32", 1)
e("s_branch L_g1ok")

e(f"""L_slow_a:
v_add_u32 v5, s{S_RING}, v1
s_lshl_b32 s{S_T0}, s{S_W}, 8
s_add_u32 s{S_T0}, s{S_T0}, {L_MB}
v_lshl_add_u32 v2, v0, 2, s{S_T0}
v_and_b32 v4, 31, v0
v_lshlrev_b32 v4, 2, v4
v_add_u32 v4, {L_MB}, v4
s_lshl_b32 s{S_T2}, s{S_G}, 16
s_lshl_b32 s{S_T3}, s{S_J}, 13
s_add_u32 s{S_T2}, s{S_T2}, s{S_T3}
s_add_u32 s{S_T2}, s{S_T2}, {hex(WS_Q)}
s_mov_b32 s{S_IT}, 0
L_slow_a_loop:
s_add_u32 s{S_T3}, s{S_J}, s{S_IT}
s_and_b32 s{S_T3}, s{S_T3}, 7
s_lshl_b32 s{S_T3}, s{S_T3}, 10
s_add_u32 s{S_T3}, s{S_T3}, s{S_T2}
buffer_load_dwordx4 {vr(VQ0,4)}, v1, {sr(SRD_WS,4)}, s{S_T3} offen sc1
v_mov_b32 v3, 0xff800000
s_waitcnt vmcnt(0)""")
for b in range(16):
    mf32(SA, VK + 4 * b, VQ0)
    e("s_nop 11")
    for k in range(8):
        e(f"v_max3_f32 v3, v3, v{SA+2*k}, v{SA+2*k+1}")
e("ds_write_b32 v2, v3\ns_waitcnt lgkmcnt(0)\ns_barrier")
for k in range(8):
    e(f"ds_read_b32 v{SA+k}, v4{off(128*k)}")
e("s_waitcnt lgkmcnt(0)")
e(f"v_max3_f32 v3, v{SA}, v{SA+1}, v{SA+2}\nv_max3_f32 v3, v3, v{SA+3}, v{SA+4}\nv_max3_f32 v3, v3, v{SA+5}, v{SA+6}\nv_max_f32 v3, v3, v{SA+7}")
for k in range(16):
    e(f"v_sub_f32 v{SB+k}, 0, v3")
e("s_nop 1")
for b in range(16):
    mf32(SA, VK + 4 * b, VQ0, SB)
    e("s_nop 11")
    for k in range(16):
        e(f"v_exp_f32 v{SA+k}, v{SA+k}")
    for n in range(8):
        e(f"v_cvt_pk_bf16_f32 v{SA+(n//4)*8+n%4}, v{SA+2*n}, v{SA+2*n+1}")
    e("s_nop 1")
    mf32(VO, VV + 8 * b, SA, VO if b else None)
    mf32(VO, VV + 8 * b + 4, SA + 8, VO)
e("s_nop 11")
for x in flush(0):
    e(x)
e(f"s_waitcnt lgkmcnt(0)\ns_barrier\ns_add_u32 s{S_IT}, s{S_IT}, 1\ns_cmp_lt_u32 s{S_IT}, 8\ns_cbranch_scc1 L_slow_a_loop\ns_branch L_fin")

e(f"""L_slow_h:
v_mov_b32 v7, 1
ds_write_b32 v{V_FL}, v7 offset:{F_BAD}
s_waitcnt lgkmcnt(0)
s_barrier
v_add_u32 v3, {L_A}, v{V_PART}
s_nop 7""")
for k in range(32):
    e(f"v_mov_b32 v{OACC+k}, v{YR+k}")
e(f"s_mov_b32 s{S_IT}, 0\nL_slow_h_loop:")
wo_row(S_QO, 0)
for u in range(8):
    wo_dma(u)
e("s_waitcnt vmcnt(0)")
for u in range(8):
    e("s_waitcnt lgkmcnt(8)")
    wo_reads(u)
e("s_waitcnt lgkmcnt(0)\ns_barrier\ns_barrier")
reduce_reads(3, V_LS)
reduce_math(OB, False)
e("s_nop 1")
for k in range(4):
    e(f"v_mov_b32_dpp v{OB+4+k}, v{OB+k} row_ror:8 row_mask:0xf bank_mask:0xf")
e("s_nop 1")
wo_mfma()
e(f"s_add_u32 s{S_IT}, s{S_IT}, 1\ns_cmp_lt_u32 s{S_IT}, 8\ns_cbranch_scc1 L_slow_h_loop\ns_nop 7\ns_branch L_store")
e("L_code_end:")

e(f""".section .rodata,"a"
.p2align 6
.amdhsa_kernel {NAME}_kernel
.amdhsa_next_free_vgpr 256
.amdhsa_next_free_sgpr 102
.amdhsa_accum_offset 256
.amdhsa_group_segment_fixed_size 0
.amdhsa_kernarg_size 88
.amdhsa_user_sgpr_count 2
.amdhsa_user_sgpr_kernarg_segment_ptr 1
.amdhsa_system_sgpr_workgroup_id_x 1
.end_amdhsa_kernel""")

txt = "\n".join(out) + "\n"
txt = txt.replace("PF_LINES*128", str(10 * 128)).replace("PF_LINES-1", "9")
open(sys.argv[1], "w").write(txt)
```

```python
import sys, struct

NAME = "parallel_sum__grouped_kv_mqa__dense_activation_silu__prompt"
OPT = dict(hold=-1, holdT=6000, stamps=0, force_slow=0, pf_code=1, pf_w=0, pf_late=1, rot=1, wearly=0, dbg_nosc=0, dbg_hdelay=0, dbg_kvplain=0, rt=0, dbg_late=0, outfl='', holdmin=0)
for a in sys.argv[2:]:
    k, v = a.split("=")
    OPT[k] = int(v) if v.lstrip("-").isdigit() else v
SITES = ["start"] + (OPT["stamps"].split(",") if OPT["stamps"] else [])
assert len(SITES) <= 9

def f2u(x):
    return struct.unpack("<I", struct.pack("<f", x))[0]

WS_KV = 0x0
WS_Q = 0x40000
WS_H = 0x300000
WS_Y = 0x900000
WS_FL = 0xE00000
WS_ST = 0xF00000
WS_SIZE = 0x1000000
H_GRP = 86 * 2048
FL_Q, FL_H, FL_Y = 1024, 1024 + 16 * 32, 1024 + 60 * 32

L_H = 0
H_STR = 14336
L_X = 57344
X_STR = 1040
L_A = L_X + 64 * X_STR
L_M = L_A + 32768
L_LS = L_M
L_OWNQ = L_M + 4096
L_RSTD = L_M + 5120
L_SIG = L_M + 5376
L_FLG = L_M + 5632
L_MB = L_M + 6144
LDS_BYTES = 163840
L_P2 = 65536
L_OBF = L_P2 + 32768
F_OWNQ, F_G1, F_RED, F_CONS, F_OF, F_BAD = 0, 16, 48, 64, 80, 112
assert L_MB + 1024 <= LDS_BYTES and L_OBF + 8192 <= L_A

S_W, S_G, S_J, S_GL = 4, 5, 6, 7
SRD_X, SRD_WS = 8, 12
P_X, P_WQ, P_WK, P_WV, P_WO, P_BX, P_W1, P_W2 = 16, 18, 20, 22, 24, 26, 28, 30
P_OUT, P_DBG, P_WS = 32, 34, 36
S_T, S_VALID = 38, 39
SRD_W, SRD_DBG, SRD_A, SRD_B, SRD_C, SRD_OUT = 40, 44, 48, 52, 56, 60
S_STEP, S_SOFF, S_RING, S_FLB = 64, 65, 66, 67
S_C10, S_C01, S_C11 = 68, 69, 70
S_T0, S_T1, S_T2, S_T3, S_T4, S_T5 = 71, 72, 73, 74, 75, 76
S_CLR = 77
S_EX = 78
S_QO = 80
S_HW, S_IT = 88, 89
S_STMP = 90
S_ST0 = 92

VK, VV, SA, SB, VO, VQ0, VQ1 = 8, 72, 200, 216, 232, 248, 252

out = []
def e(s):
    for l in s.split("\n"):
        l = l.strip()
        if not l:
            continue
        out.append(l if l.endswith(":") or l.startswith(".") else "    " + l)

def vr(a, n=1):
    return f"v{a}" if n == 1 else f"v[{a}:{a+n-1}]"
def sr(a, n=1):
    return f"s{a}" if n == 1 else f"s[{a}:{a+n-1}]"
def mf32(d, a, b, c=None):
    e(f"v_mfma_f32_32x32x16_bf16 {vr(d,16)}, {vr(a,4)}, {vr(b,4)}, {vr(c,16) if c is not None else 0}")
def mf16(d, a, b, c=None):
    e(f"v_mfma_f32_16x16x32_bf16 {vr(d,4)}, {vr(a,4)}, {vr(b,4)}, {vr(c,4) if c is not None else 0}")
def srd(d, p, n):
    e(f"s_mov_b32 s{d}, s{p}\ns_mov_b32 s{d+1}, s{p+1}\ns_mov_b32 s{d+2}, {hex(n)}\ns_mov_b32 s{d+3}, 0x20000")
def stamp(k):
    if OPT["hold"] == k:
        lb = label("hold")
        e(f"{lb}:\ns_memrealtime {sr(S_STMP,2)}\ns_waitcnt lgkmcnt(0)\ns_sub_u32 s{S_STMP}, s{S_STMP}, s{S_ST0+9}\ns_cmp_lt_u32 s{S_STMP}, {OPT['holdT']}\ns_cbranch_scc1 {lb}")
    if OPT["stamps"] and k in SITES:
        e(f"s_mem{'real' if OPT['rt'] else ''}time {sr(S_STMP,2)}\ns_waitcnt lgkmcnt(0)\ns_mov_b32 s{S_ST0+SITES.index(k)}, s{S_STMP}")
def off(n):
    return f" offset:{n}" if n else ""

class Queue:
    def __init__(self, kind):
        self.kind, self.n, self.tags = kind, 0, {}
    def issue(self, tag=None):
        self.n += 1
        if tag is not None:
            self.tags[tag] = self.n
    def left(self, tag):
        return self.n - self.tags[tag]
    def wait(self, tag):
        lim = 63 if self.kind == "vmcnt" else 15
        e(f"s_waitcnt {self.kind}({min(self.left(tag), lim)})")

uid = [0]
def label(p):
    uid[0] += 1
    return f"L_{p}_{uid[0]}"

def lds_spin(vaddr, offset, vtmp, cmp, ref, sleep=1, prio=None):
    top, done = label("spin"), label("spun")
    e(f"{top}:")
    e(f"ds_read_b32 v{vtmp}, v{vaddr}{off(offset)}\ns_waitcnt lgkmcnt(0)")
    if prio: e(f"s_setprio {prio[0]}")
    e(f"{cmp} vcc, {ref}, v{vtmp}")
    if prio: e(f"s_setprio {prio[1]}")
    e(f"s_nop 0\ns_cbranch_vccz {done}\ns_sub_u32 s3, s3, 1\ns_cbranch_scc1 L_exit\ns_sleep {sleep}\ns_branch {top}\n{done}:")

def glb_spin(vaddr, srdreg, soff, vtmp, sleep=2, prio=None, preissued=False):
    top, chk, done = label("poll"), label("pchk"), label("pdone")
    if preissued:
        e(f"s_branch {chk}")
    e(f"{top}:\nbuffer_load_dword v{vtmp}, v{vaddr}, {sr(srdreg,4)}, {soff} offen sc1\n{chk}:\ns_waitcnt vmcnt(0)")
    if prio: e(f"s_setprio {prio[0]}")
    e(f"v_cmp_ne_u32 vcc, 1, v{vtmp}")
    if prio: e(f"s_setprio {prio[1]}")
    e(f"s_nop 0\ns_cbranch_vccz {done}\ns_sub_u32 s3, s3, 1\ns_cbranch_scc1 L_exit\ns_sleep {sleep}\ns_branch {top}\n{done}:")

def set_glb_flag(soff, va, vb):
    e(f"v_mov_b32 v{va}, 0\nv_mov_b32 v{vb}, 1\ns_mov_b64 exec, 1")
    e(f"buffer_store_dword v{vb}, v{va}, {sr(SRD_WS,4)}, {soff} offen sc1\ns_mov_b64 exec, -1")

def set_lds_flag(saddr, va, vb, offset=0):
    e(f"v_mov_b32 v{va}, {saddr}\nv_mov_b32 v{vb}, 1\nds_write_b32 v{va}, v{vb}{off(offset)}")

HDR = open("cdna_kernels/" + NAME + ".s.ref").read().split("\n")
hdr = [l for l in HDR if l.startswith(";") and "@launch" not in l]
out += hdr
out.append(f"; @launch grid=(256,1,1) block=(512,1,1) lds={LDS_BYTES}")
e(f'.amdgcn_target "amdgcn-amd-amdhsa--gfx950"\n.text\n.globl {NAME}_kernel\n.p2align 8\n.type {NAME}_kernel,@function')
e(f"{NAME}_kernel:")

e("s_cmp_ge_u32 s2, 256\ns_cbranch_scc1 L_exit")
if OPT["stamps"] or OPT["hold"] != -1:
    e(f"s_memrealtime {sr(S_STMP,2)}\ns_waitcnt lgkmcnt(0)\ns_mov_b32 s{S_ST0+9}, s{S_STMP}")
    stamp("start")
    for k in range(1, 9):
        e(f"s_mov_b32 s{S_ST0+k}, s{S_ST0}")
e("s_load_dwordx16 s[16:31], s[0:1], 0\ns_load_dwordx4 s[32:35], s[0:1], 64\ns_load_dwordx2 s[36:37], s[0:1], 80")
e("v_lshrrev_b32 v1, 6, v0\nv_and_b32 v0, 63, v0")
e(f"s_lshr_b32 s3, s2, 3\nv_readfirstlane_b32 s{S_W}, v1")
if OPT["pf_code"]:
    e(f"s_getpc_b64 {sr(S_T0+1,2)}\nL_pc:")
    e(f"s_mul_i32 s{S_T0}, s3, PF_LINES*128\nv_min_u32 v2, PF_LINES-1, v0\nv_lshl_add_u32 v2, v2, 7, s{S_T0}")
    e(f"v_min_u32 v2, L_code_end-L_pc-4, v2\ns_cmp_eq_u32 s{S_W}, 0\ns_cbranch_scc0 L_nopf\nglobal_load_dword v64, v2, {sr(S_T0+1,2)}\nL_nopf:")
e(f"""s_and_b32 s{S_GL}, s3, 7
s_bfe_u32 s{S_T0}, s2, 0x20001
s_lshl_b32 s{S_T0}, s{S_T0}, 3
s_add_u32 s{S_G}, s{S_T0}, s{S_GL}
s_and_b32 s{S_T0}, s2, 1
s_lshl_b32 s{S_T0}, s{S_T0}, 2
s_lshr_b32 s{S_J}, s3, 3
s_add_u32 s{S_J}, s{S_J}, s{S_T0}
s_and_b32 s{S_HW}, s{S_W}, 3
s_mov_b32 s3, 0x40000""")
e(f"""v_lshrrev_b32 v4, 4, v0
v_and_b32 v5, 15, v0
s_lshl_b32 s{S_T0}, s{S_HW}, 2
v_add_u32 v4, s{S_T0}, v4
v_lshlrev_b32 v1, 10, v4
v_lshl_add_u32 v1, v5, 4, v1
s_and_b32 s{S_T0}, s{S_J}, 3
s_cmp_lt_u32 s{S_W}, 4
s_cselect_b32 s{S_T3}, 1, 0
s_add_u32 s{S_T3}, s{S_T3}, s{S_T0}
s_and_b32 s{S_T3}, s{S_T3}, 3
s_add_u32 s{S_T4}, s{S_T3}, 2
s_and_b32 s{S_T4}, s{S_T4}, 3
s_lshl_b32 s{S_T0}, s{S_G}, 2
s_add_u32 s{S_SOFF}, s{S_T0}, s{S_T3}
s_lshl_b32 s{S_SOFF}, s{S_SOFF}, 14
s_add_u32 s{S_T5}, s{S_T0}, s{S_T4}
s_lshl_b32 s{S_T5}, s{S_T5}, 14
s_lshl_b32 s{S_FLB}, s{S_G}, 12
s_add_u32 s{S_FLB}, s{S_FLB}, {hex(WS_FL)}
s_waitcnt lgkmcnt(0)""")
stamp("karg")
srd(SRD_X, P_X, 2048 * 1024)
srd(SRD_WS, P_WS, WS_SIZE)
srd(SRD_DBG, P_DBG, 256)
e(f"s_and_b32 s{S_T0}, s{S_G}, 7\ns_cmp_eq_u32 s{S_T0}, s{S_J}\ns_cselect_b32 s{S_CLR}, s{S_W}, 0")
e(f"s_cmp_eq_u32 s{S_CLR}, 7\ns_cbranch_scc1 L_clear\nL_clear_ret:")
XA, XB = 8, 24
e(f"s_cmp_lt_u32 s{S_W}, 4\ns_cbranch_scc0 L_xa\ns_barrier\nL_xa:")
for i in range(4):
    e(f"buffer_load_dwordx4 {vr(XA+4*i,4)}, v1, {sr(SRD_X,4)}, s{S_SOFF} offen{off(256*i)}")
e(f"s_cmp_eq_u32 s{S_W}, 4\ns_cbranch_scc1 L_wkv\nL_wkv_ret:")
e(f"s_cmp_lt_u32 s{S_W}, 4\ns_cbranch_scc1 L_xb\ns_barrier\nL_xb:\ns_barrier")
for i in range(4):
    e(f"buffer_load_dwordx4 {vr(XB+4*i,4)}, v1, {sr(SRD_X,4)}, s{S_T5} offen{off(256*i)}")

e(f"""s_mul_i32 s{S_T0}, s{S_J}, 5
s_min_u32 s{S_T1}, s{S_J}, 3
s_add_u32 s{S_T0}, s{S_T0}, s{S_T1}
s_sub_u32 s{S_T1}, s{S_W}, 2
s_sub_u32 s{S_T2}, s{S_W}, 3
s_cmp_lt_u32 s{S_W}, 4
s_cselect_b32 s{S_T1}, s{S_T1}, s{S_T2}
s_cmp_eq_u32 s{S_W}, 4
s_cselect_b32 s{S_T1}, 5, s{S_T1}
s_cselect_b32 s{S_T2}, s{S_J}, 0
s_add_u32 s{S_T}, s{S_T0}, s{S_T1}
s_cmp_lt_u32 s{S_T2}, 3
s_cselect_b32 s{S_VALID}, 1, 0
s_lshl_b32 s{S_T0}, s{S_J}, 1
s_add_u32 s{S_T0}, s{S_T0}, s{S_W}
s_cmp_lt_u32 s{S_W}, 2
s_cselect_b32 s{SRD_W}, s{P_WQ}, s{P_W1}
s_cselect_b32 s{SRD_W+1}, s{P_WQ+1}, s{P_W1+1}
s_cselect_b32 s{S_T0}, s{S_T0}, s{S_T}
s_cselect_b32 s{S_T1}, 0, 1
s_mov_b32 s{SRD_W+3}, 0x20000
s_mul_i32 s{S_T2}, s{S_T1}, {2752-1024}
s_add_u32 s{S_T2}, s{S_T2}, 1024
s_lshl_b32 s{SRD_W+2}, s{S_T2}, 9
s_lshl_b32 s{S_STEP}, s{S_T2}, 4
s_lshl_b32 s{S_T0}, s{S_T0}, 6
v_lshrrev_b32 v6, 2, v0
v_mul_lo_u32 v6, v6, s{S_T2}
v_and_b32 v7, 3, v0
v_lshl_add_u32 v6, v7, 4, v6
v_add_u32 v6, s{S_T0}, v6""")
if OPT["pf_w"]:
    e(f"""s_lshl_b32 s{S_T1}, s{S_GL}, 6
v_add_u32 v3, s{S_T1}, v0
v_mul_lo_u32 v3, v3, s{S_T2}
buffer_load_dword v65, v3, {sr(SRD_W,4)}, s{S_T0} offen""")
e(f"""s_mul_i32 s{S_T0}, s{S_HW}, {H_STR}
s_lshl_b32 s{S_T1}, s{S_HW}, 13
s_add_u32 s{S_T1}, s{S_T1}, {L_A}
s_cmp_lt_u32 s{S_W}, 4
s_cselect_b32 s{S_RING}, s{S_T1}, s{S_T0}
s_mul_i32 s{S_SOFF}, s{S_GL}, s{S_STEP}
s_mul_i32 s{S_SOFF}, s{S_SOFF}, {4 * OPT['rot']}""")

def w_dma(slot):
    e(f"s_add_u32 m0, s{S_RING}, {slot*1024}\ns_nop 0" if slot else f"s_mov_b32 m0, s{S_RING}\ns_nop 0")
    e(f"buffer_load_dwordx4 v6, {sr(SRD_W,4)}, s{S_SOFF} offen lds\ns_add_u32 s{S_SOFF}, s{S_SOFF}, s{S_STEP}")
    if slot % 4 == 3:
        e(f"s_cmp_ge_u32 s{S_SOFF}, s{SRD_W+2}\ns_cselect_b32 s{S_SOFF}, 0, s{S_SOFF}")

e(f"""v_mul_u32_u24 v2, {X_STR}, v5
v_lshl_add_u32 v2, v4, 4, v2
v_add_u32 v2, {L_X}, v2
v_lshlrev_b32 v4, 2, v4
v_add_u32 v4, {L_RSTD}, v4
s_mov_b32 s{S_C10}, 0x00003f80
s_mov_b32 s{S_C01}, 0x3f800000
s_mov_b32 s{S_C11}, 0x3f803f80
s_cmp_lt_u32 s{S_W}, 4
s_cbranch_scc0 L_hinit""")
e("s_barrier")
for i in range(8):
    w_dma(i)
e(f"v_mov_b32 v42, s{S_C11}\nv_mov_b32 v43, s{S_C11}")
for i in range(0, 128, 2):
    e(f"v_mov_b64 {vr(VV+i,2)}, v[42:43]")
e(f"""v_mov_b32 v44, -1
v_mov_b32 v45, -1
v_mov_b32 v46, -1
v_mov_b32 v47, -1
s_lshl_b32 s{S_T0}, s{S_W}, 10
s_add_u32 s{S_T0}, s{S_T0}, {L_LS}
v_lshl_add_u32 v3, v0, 4, s{S_T0}
ds_write_b128 v3, v[44:47]
s_waitcnt vmcnt({12 + OPT['pf_w']})
s_branch L_lnA
L_hinit:
s_barrier
s_setprio 2
v_mov_b32 v44, 0
v_lshlrev_b32 v3, 2, v0
v_add_u32 v3, {L_FLG}, v3
ds_write_b32 v3, v44
s_cmp_eq_u32 s{S_CLR}, 7
s_cbranch_scc1 L_clear2
s_cmp_eq_u32 s{S_W}, 4
s_cbranch_scc1 L_w4wait
s_waitcnt vmcnt({4 + OPT['pf_w']})
L_lnA:""")
stamp("xarr")

def ln_unit(X, squarter):
    T, A = 44, 41
    for i in range(16):
        e(f"v_dot2_f32_bf16 v{A}, v{X+i}, s{S_C11}, {'v%d' % A if i else 0}")
    e(f"s_lshl_b32 s{S_T0}, s{squarter}, 8\ns_lshl_b32 s{S_T1}, s{squarter}, 6\nv_add_u32 v3, s{S_T0}, v2\nv_add_u32 v5, s{S_T1}, v4")
    for r in (8, 4, 2, 1):
        e(f"v_add_f32_dpp v{A}, v{A}, v{A} row_ror:{r} row_mask:0xf bank_mask:0xf\ns_nop 1")
    e(f"v_mul_f32 v{A}, {hex(f2u(-1.0/512))}, v{A}")
    B = 42
    for gidx in range(4):
        for k in range(4):
            e(f"v_dot2_f32_bf16 v{T+2*k}, v{X+4*gidx+k}, s{S_C10}, v{A}")
            e(f"v_dot2_f32_bf16 v{T+2*k+1}, v{X+4*gidx+k}, s{S_C01}, v{A}")
        for k in range(4):
            e(f"v_cvt_pk_bf16_f32 v{X+4*gidx+k}, v{T+2*k}, v{T+2*k+1}")
        e(f"ds_write_b128 v3, {vr(X+4*gidx,4)}{off(gidx*16*X_STR)}")
        for k in range(4):
            e(f"v_dot2_f32_bf16 v{B}, v{X+4*gidx+k}, v{X+4*gidx+k}, {'v%d' % B if gidx or k else 0}")
    e("s_nop 2")
    for r in (8, 4, 2, 1):
        e(f"v_add_f32_dpp v{B}, v{B}, v{B} row_ror:{r} row_mask:0xf bank_mask:0xf\ns_nop 1")
    e(f"""v_mov_b32 v{A}, {hex(f2u(1e-5))}
v_fmac_f32 v{A}, {hex(f2u(1.0/512))}, v{B}
v_rsq_f32 v{B}, v{A}
s_nop 0
v_mul_f32 v{A}, v{A}, v{B}
ds_write_b32 v5, v{B}
ds_write_b32 v5, v{A} offset:256""")

ln_unit(XA, S_T3)
stamp("lnA")
e(f"s_cmp_eq_u32 s{S_W}, 4\ns_cbranch_scc1 L_kv")
e("s_waitcnt lgkmcnt(0)\ns_barrier")
stamp("bar1")
e(f"s_cmp_lt_u32 s{S_W}, 4\ns_cbranch_scc1 L_lnB_a\nL_kv_ret:")
for i in range(8):
    w_dma(i)
e(f"L_lnB_a:\ns_waitcnt vmcnt({8 + OPT['pf_w']})\nL_lnB_k:")
stamp("xarrB")
ln_unit(XB, S_T4)
stamp("lnB")
e(f"""v_and_b32 v7, 3, v0
v_lshlrev_b32 v7, 3, v7
v_bfe_u32 v3, v0, 2, 2
v_lshl_add_u32 v7, v3, 6, v7
v_bfe_u32 v3, v0, 4, 1
v_lshl_add_u32 v7, v3, 5, v7
v_lshrrev_b32 v3, 5, v0
v_lshl_add_u32 v7, v3, 9, v7
v_add_u32 v7, s{S_RING}, v7
v_mul_u32_u24 v5, {X_STR}, v3
v_and_b32 v3, 31, v0
v_lshl_add_u32 v5, v3, 4, v5
v_add_u32 v5, {L_X}, v5
v_lshlrev_b32 v4, 2, v3""")
for k in range(8):
    e(f"s_mul_i32 s{S_T0}, s{S_GL}, {OPT['rot']}\ns_add_u32 s{S_T0}, s{S_T0}, {k}\ns_and_b32 s{S_T0}, s{S_T0}, 7\ns_mul_i32 s{S_T0}, s{S_T0}, {8*X_STR}\nv_add_u32 v{56+k}, s{S_T0}, v5")
e("s_waitcnt lgkmcnt(0)\ns_barrier")
stamp("ln")
e(f"s_cmp_lt_u32 s{S_W}, 4\ns_cbranch_scc1 L_g1_a\ns_setprio 0")
e(f"s_cmp_eq_u32 s{S_W}, 4\ns_cbranch_scc1 L_kvflag\ns_branch L_g1\nL_g1_a:\ns_setprio 1\nL_g1:")

AC0, AC1 = SA, SB
FR = [8, 20, 32]
vq, lq = Queue("vmcnt"), Queue("lgkmcnt")
for s in range(8):
    vq.issue(("w", s))
def g1_reads(s):
    vq.wait(("w", s))
    f = FR[s % 3]
    for i in range(2):
        e(f"ds_read_b64_tr_b16 {vr(f+2*i,2)}, v7{off((s % 8)*1024 + i*256)}")
        lq.issue()
    for tb in range(2):
        e(f"ds_read_b128 {vr(f+4+4*tb,4)}, v{56 + s//4}{off((s % 4)*2*X_STR + tb*512)}")
        lq.issue(("r", s))
g1_reads(0)
g1_reads(1)
for s in range(32):
    if s + 2 < 32:
        g1_reads(s + 2)
    lq.wait(("r", s))
    f = FR[s % 3]
    mf32(AC0, f, f + 4, AC0 if s else None)
    if s + 8 < 32:
        w_dma(s % 8)
        vq.issue(("w", s + 8))
    elif s == 24:
        e(f"buffer_load_dword v48, v4, {sr(SRD_DBG,4)}, 0 offen sc1")
        vq.issue("dbg")
    mf32(AC1, f, f + 8, AC1 if s else None)
e(f"s_setprio 2\nv_add_u32 v3, {L_RSTD}, v4")
e("ds_read_b32 v44, v3\nds_read_b32 v46, v3 offset:128\nds_read_b32 v52, v3 offset:256\nds_read_b32 v54, v3 offset:384")
e(f"s_lshl_b32 s{S_T0}, s{S_W}, 2\ns_add_u32 s{S_T0}, s{S_T0}, {L_FLG+F_G1}")
set_lds_flag(f"s{S_T0}", 49, 50)
stamp("g1")
e(f"s_cmp_lt_u32 s{S_W}, 2\ns_cbranch_scc1 L_qepi")

e(f"""s_mul_i32 s{S_T0}, s{S_G}, {H_GRP}
s_lshl_b32 s{S_T1}, s{S_T}, 12
s_add_u32 s{S_T0}, s{S_T0}, s{S_T1}
s_add_u32 s{S_T0}, s{S_T0}, {hex(WS_H)}
v_lshlrev_b32 v3, 4, v0
s_waitcnt lgkmcnt(0)
v_mul_f32 v44, {hex(f2u(-1.4426950408889634))}, v44
v_mul_f32 v46, {hex(f2u(-1.4426950408889634))}, v46
v_mov_b32 v53, v52
v_mov_b32 v55, v54
v_mov_b32 v45, v44
v_mov_b32 v47, v46""")
for tb in range(2):
    for u in range(2):
        A, T, C, R = (AC0, AC1)[tb] + 8 * u, 8, 44 + 2 * tb, 16 + 4 * (2 * tb + u)
        for k in range(4):
            e(f"v_pk_mul_f32 {vr(T+2*k,2)}, {vr(A+2*k,2)}, {vr(C,2)}")
        for k in range(8):
            e(f"v_exp_f32 v{T+k}, v{T+k}")
        for k in range(4):
            e(f"v_pk_fma_f32 {vr(T+2*k,2)}, {vr(T+2*k,2)}, {vr(C+8,2)}, {vr(C+8,2)}")
        for k in range(8):
            e(f"v_rcp_f32 v{T+k}, v{T+k}")
        for k in range(4):
            e(f"v_pk_mul_f32 {vr(T+2*k,2)}, {vr(T+2*k,2)}, {vr(A+2*k,2)}")
        for k in range(4):
            e(f"v_cvt_pk_bf16_f32 v{R+k}, v{T+2*k}, v{T+2*k+1}")
        e(f"buffer_store_dwordx4 {vr(R,4)}, v3, {sr(SRD_WS,4)}, s{S_T0} offen{off(u*2048 + tb*1024)}{'' if OPT['dbg_nosc'] else ' sc1'}")
e(f"s_lshl_b32 s{S_T5}, s{S_T}, 5\ns_add_u32 s{S_T5}, s{S_T5}, {FL_H}\ns_add_u32 s{S_T5}, s{S_T5}, s{S_FLB}")
e(f"s_cmp_lt_u32 s{S_W}, 4\ns_cbranch_scc0 L_helper\ns_branch L_attn")

e(f"""L_qepi:
s_lshl_b32 s{S_T0}, s{S_G}, 16
s_lshl_b32 s{S_T1}, s{S_J}, 10
s_add_u32 s{S_T0}, s{S_T0}, s{S_T1}
s_lshl_b32 s{S_T1}, s{S_W}, 8
s_add_u32 s{S_T0}, s{S_T0}, s{S_T1}
s_add_u32 s{S_T0}, s{S_T0}, {hex(WS_Q)}
s_add_u32 s{S_T2}, s{S_T0}, 32768
v_and_b32 v3, 7, v0
v_lshlrev_b32 v3, 4, v3
v_lshrrev_b32 v8, 5, v0
v_lshl_add_u32 v3, v8, 9, v3
s_add_u32 s{S_T1}, s{S_T1}, {L_OWNQ}
v_add_u32 v9, s{S_T1}, v3
v_bfe_u32 v8, v0, 3, 2
v_lshl_add_u32 v3, v8, 13, v3
s_and_b32 s{S_T1}, s{S_J}, 3
s_lshl_b32 s{S_T1}, s{S_T1}, 3
s_lshl_b32 s{S_T3}, 0xff, s{S_T1}
s_waitcnt lgkmcnt(0)
v_mul_f32 v44, {hex(f2u(0.25*1.4426950408889634))}, v44
v_mul_f32 v46, {hex(f2u(0.25*1.4426950408889634))}, v46
v_mov_b32 v45, v44
v_mov_b32 v47, v46""")
for tb in range(2):
    A, C = (AC0, AC1)[tb], 44 + 2 * tb
    for k in range(8):
        e(f"v_pk_mul_f32 {vr(A+2*k,2)}, {vr(A+2*k,2)}, {vr(C,2)}")
    for k in range(8):
        e(f"v_cvt_pk_bf16_f32 v{16+8*tb+k}, v{A+2*k}, v{A+2*k+1}")
    for hl in range(2):
        e(f"buffer_store_dwordx4 {vr(16+8*tb+4*hl,4)}, v3, {sr(SRD_WS,4)}, s{(S_T0, S_T2)[tb]} offen{off(hl*128)}{'' if OPT['dbg_nosc'] else ' sc1'}")
    e(f"s_cmp_{'lt' if tb == 0 else 'ge'}_u32 s{S_J}, 4\ns_cselect_b32 exec_lo, s{S_T3}, 0\ns_cselect_b32 exec_hi, s{S_T3}, 0")
    for hl in range(2):
        e(f"ds_write_b128 v9, {vr(16+8*tb+4*hl,4)}{off(hl*128)}")
    e("s_mov_b64 exec, -1")
e(f"s_lshl_b32 s{S_T0}, s{S_W}, 2\ns_add_u32 s{S_T0}, s{S_T0}, {L_FLG+F_OWNQ}")
set_lds_flag(f"s{S_T0}", 49, 50)
e(f"s_lshl_b32 s{S_T5}, s{S_J}, 1\ns_add_u32 s{S_T5}, s{S_T5}, s{S_W}\ns_lshl_b32 s{S_T5}, s{S_T5}, 5")
e(f"s_add_u32 s{S_T5}, s{S_T5}, {FL_Q}\ns_add_u32 s{S_T5}, s{S_T5}, s{S_FLB}")

e("L_attn:\ns_setprio 1")
stamp("epi")
e("s_waitcnt vmcnt(4)\nv_cmp_ne_u32 vcc, 1, v48\ns_nop 0\ns_cbranch_vccnz L_dbgslow_a\nL_dbgok_a:")
e(f"""v_lshrrev_b32 v3, 3, v0
v_lshlrev_b32 v3, 12, v3
v_and_b32 v8, 7, v0
v_lshl_add_u32 v3, v8, 7, v3
s_lshl_b32 s{S_T0}, s{S_W}, 15
s_add_u32 s{S_T1}, s{S_T0}, {hex(WS_FL)}
buffer_load_dword v8, v3, {sr(SRD_WS,4)}, s{S_T1} offen sc1
s_waitcnt vmcnt(1)""")
set_glb_flag(f"s{S_T5}", 49, 50)
e(f"""v_lshlrev_b32 v1, 4, v0
v_and_b32 v4, 15, v0
v_lshlrev_b32 v7, 5, v4
v_lshlrev_b32 v4, 4, v4
v_lshrrev_b32 v9, 5, v0
v_lshl_add_u32 v4, v9, 8, v4
v_bfe_u32 v9, v0, 4, 1
v_lshl_add_u32 v2, v9, 9, v4
v_add_u32 v5, s{S_RING}, v1
v_and_b32 v6, 31, v0
s_lshl_b32 s{S_T2}, s{S_W}, 7
s_add_u32 s{S_T2}, s{S_T2}, {L_LS}
v_lshl_add_u32 v6, v6, 2, s{S_T2}
s_lshl_b32 s{S_T2}, s{S_G}, 16
s_lshl_b32 s{S_T3}, s{S_J}, 13
s_add_u32 s{S_T2}, s{S_T2}, s{S_T3}
s_add_u32 s{S_T2}, s{S_T2}, {hex(WS_Q)}""")
for t in range(8):
    e(f"s_add_u32 s{S_T3}, s{S_J}, {t}\ns_and_b32 s{S_T3}, s{S_T3}, 7\ns_lshl_b32 s{S_T3}, s{S_T3}, 10\ns_add_u32 s{S_QO+t}, s{S_T2}, s{S_T3}")
e(f"s_add_u32 s{S_T4}, s{S_FLB}, {FL_Q}\ns_mov_b32 s{S_EX}, 0x0000ffff\ns_mov_b32 s{S_EX+1}, 0x0000ffff")
e("s_waitcnt vmcnt(1)\nv_cmp_ne_u32 vcc, 1, v8\ns_nop 0\ns_cbranch_vccnz L_kvslow\nL_kvok:")
stamp("flags")
e(f"s_lshr_b32 s{S_T3}, s2, 3\ns_mul_i32 s{S_T3}, s{S_T3}, {OPT['rot']}")
vq = Queue("vmcnt")
for b in range(16):
    e(f"s_add_u32 s{S_T2}, s{S_T3}, {b}\ns_and_b32 s{S_T2}, s{S_T2}, 15\ns_lshl_b32 s{S_T2}, s{S_T2}, 11\ns_add_u32 s{S_T2}, s{S_T2}, s{S_T0}")
    o = 0
    e(f"buffer_load_dwordx4 {vr(VK+4*b,4)}, v2, {sr(SRD_WS,4)}, s{S_T2} offen{off(o)}{'' if OPT['dbg_kvplain'] else ' sc1'}")
    vq.issue(("K", b))
    e(f"s_mov_b64 exec, {sr(S_EX,2)}")
    for i in range(2):
        e(f"buffer_load_dwordx4 {vr(VV+8*b+4*i,4)}, v4, {sr(SRD_WS,4)}, s{S_T2} offen{off(o+1024+512*i)}{'' if OPT['dbg_kvplain'] else ' sc1'}")
        vq.issue(("V", b))
    e("s_mov_b64 exec, -1")
    if b == 7:
        e(f"buffer_load_dword v3, v7, {sr(SRD_WS,4)}, s{S_T4} offen sc1")
        vq.issue("qf")
stamp("kvis")
e(f"v_and_b32 v2, 1, v0\nv_lshlrev_b32 v2, 2, v2\nv_add_u32 v2, {L_FLG}, v2")
lds_spin(2, F_OWNQ, 4, "v_cmp_ne_u32", 1)
e(f"v_add_u32 v4, {L_OWNQ}, v1\nds_read_b128 {vr(VQ0,4)}, v4")
e(f"v_and_b32 v2, 7, v0\nv_lshlrev_b32 v2, 2, v2\nv_add_u32 v2, {L_FLG}, v2")
e(f"s_waitcnt vmcnt({vq.left(('K', 0))}) lgkmcnt(0)")
stamp("go")
mf32(SA, VK, VQ0)
e("s_nop 11")

ORDER = "e0 d7 a e1 e2 e3 b e4 e5 c0 c1 Q e6 e7 c2 e8 c3 e9 e10 e11 c4 e12 e13 c5 e14 e15 c6".split()
def flush(t):
    o = (t % 4) * 2048
    return [f"ds_write_b128 v5, {vr(VO,4)}{off(o)}", f"ds_write_b128 v5, {vr(VO+4,4)}{off(o+1024)}",
            f"ds_write_b32 v6, v{VO+8}{off(t*512)}"]
for i in range(128):
    t, b = divmod(i, 16)
    S, T = (SA, SB) if i % 2 == 0 else (SB, SA)
    pb = (b - 1) % 16
    after = {}
    if t == 0 and b < 15:
        after["b"] = [f"s_waitcnt vmcnt({vq.left(('K', b+1))})"]
    if t == 0 and b == 7:
        after["e7"] = ["v_cmp_ne_u32 vcc, 1, v3"]
        after["e8"] = ["s_cbranch_vccnz L_qslow", "L_qok:"]
    if (t == 0 and b == 7) or (0 < t < 7 and b == 4):
        after["e9"] = [f"buffer_load_dwordx4 {vr((VQ0, VQ1)[(t+1) % 2],4)}, v1, {sr(SRD_WS,4)}, s{S_QO+t+1} offen sc1"]
    if b == 15 and t < 7:
        after["b"] = ["s_waitcnt vmcnt(0)"]
    if b == 0 and t > 0:
        fl = flush(t - 1)
        after["e11"], after["e12"], after["e14"] = [fl[0]], [fl[1]], [fl[2]]
    if t == 4 and b == 6:
        after["a"] = [f"ds_read_b32 v3, v2 offset:{F_G1}"]
    if t == 4 and b == 7:
        after["a"] = ["s_waitcnt lgkmcnt(0)"]
        after["e7"] = ["v_cmp_ne_u32 vcc, 1, v3"]
        after["e8"] = ["s_cbranch_vccnz L_g1slow", "L_g1ok:"]
        after["e9"] = [f"v_add_u32 v5, {L_P2 - L_A}, v5"]
    for tok in ORDER:
        k = tok[0]
        if k == "e":
            n = int(tok[1:]); e(f"v_exp_f32 v{S+n}, v{S+n}")
        elif k == "c":
            n = int(tok[1:]); e(f"v_cvt_pk_bf16_f32 v{S+(n//4)*8+n%4}, v{S+2*n}, v{S+2*n+1}")
        elif k == "d":
            if i: e(f"v_cvt_pk_bf16_f32 v{T+11}, v{T+14}, v{T+15}")
        elif k == "a":
            if i: mf32(VO, VV + 8 * pb, T, None if b == 1 else VO)
        elif k == "b":
            if i: mf32(VO, VV + 8 * pb + 4, T + 8, VO)
        elif k == "Q":
            if i < 127:
                mf32(T, VK + 4 * ((b + 1) % 16), (VQ0, VQ1)[((i + 1) // 16) % 2])
        for x in after.get(tok, []):
            e(x)
            if x.startswith("buffer_load"):
                vq.issue()
    if b == 15:
        stamp(f"p{t}")
e(f"v_cvt_pk_bf16_f32 v{SB+11}, v{SB+14}, v{SB+15}")
mf32(VO, VV + 8 * 15, SB, VO)
e("s_nop 0")
mf32(VO, VV + 8 * 15 + 4, SB + 8, VO)
e("s_nop 11")
for x in flush(7):
    e(x)
e("s_waitcnt lgkmcnt(0)\ns_barrier")
stamp("fbar")
e("s_barrier")
e(f"v_mov_b32 v2, {L_FLG}\nds_read_b32 v3, v2 offset:{F_BAD}\ns_waitcnt lgkmcnt(0)")
e("v_cmp_ne_u32 vcc, 0, v3\ns_nop 0\ns_cbranch_vccnz L_slow_a\ns_branch L_fin")

e("L_helper:")
stamp("epi")
e("s_waitcnt vmcnt(4)\nv_cmp_ne_u32 vcc, 1, v48\ns_nop 0\ns_cbranch_vccnz L_dbgslow_h\nL_dbgok_h:\ns_waitcnt vmcnt(0)")
set_glb_flag(f"s{S_T5}", 49, 50)
e("L_helper2:")
if OPT["holdmin"]:
    e(f"s_cmp_eq_u32 s{S_W}, 5\ns_cbranch_scc0 L_nohm\ns_not_b32 s{S_T0}, s{S_ST0+9}\nv_mov_b32 v1, 160\nv_mov_b32 v2, s{S_T0}\ns_mov_b64 exec, 1\nbuffer_atomic_umax v2, v1, {sr(SRD_DBG,4)}, 0 offen sc1\ns_mov_b64 exec, -1\ns_waitcnt vmcnt(0)\nL_nohm:")
for k in range(OPT["dbg_hdelay"]):
    e("s_sleep 16")
e(f"""s_mul_i32 s{S_T0}, s{S_G}, {H_GRP}
s_add_u32 s{S_T0}, s{S_T0}, {hex(WS_H)}
s_add_u32 s{SRD_A}, s{P_WS}, s{S_T0}
s_addc_u32 s{SRD_A+1}, s{P_WS+1}, 0
s_mov_b32 s{SRD_A+2}, {H_GRP}
s_mov_b32 s{SRD_A+3}, 0x20000""")
srd(SRD_B, P_W2, 1376 * 1024)
srd(SRD_C, P_WO, 512 * 1024)
srd(SRD_OUT, P_OUT, 2048 * 1024)
F2ACC, F2B, F2A, XR = 8, 72, 128, 144
e(f"""v_lshrrev_b32 v1, 2, v0
v_lshlrev_b32 v1, 10, v1
v_and_b32 v5, 3, v0
v_lshl_add_u32 v1, v5, 4, v1
s_and_b32 s{S_T0}, s{S_HW}, 1
s_lshl_b32 s{S_T0}, s{S_T0}, 6
s_lshl_b32 s{S_T1}, s{S_J}, 7
s_add_u32 s{S_T0}, s{S_T0}, s{S_T1}
v_add_u32 v1, s{S_T0}, v1
v_xor_b32 v2, 64, v1
s_lshr_b32 s{S_T1}, s{S_HW}, 1
s_lshl_b32 s{S_T2}, s{S_T1}, 10
v_lshl_add_u32 v3, v0, 4, s{S_T2}
v_xor_b32 v4, 0x400, v3
v_lshlrev_b32 v7, 3, v5
v_bfe_u32 v5, v0, 2, 2
v_lshl_add_u32 v7, v5, 6, v7
v_bfe_u32 v5, v0, 4, 1
v_lshl_add_u32 v7, v5, 5, v7
v_lshrrev_b32 v5, 5, v0
v_lshl_add_u32 v7, v5, 8, v7
v_add_u32 v7, s{S_RING}, v7
v_and_b32 v6, 31, v0
v_lshlrev_b32 v6, 10, v6
v_lshl_add_u32 v6, v5, 3, v6
s_lshl_b32 s{S_T2}, s{S_G}, 1
s_add_u32 s{S_T2}, s{S_T2}, s{S_T1}
s_lshl_b32 s{S_T2}, s{S_T2}, 15
s_add_u32 s{S_T2}, s{S_T2}, s{S_T0}
s_lshl_b32 s{S_T3}, s{S_J}, 1
s_add_u32 s{S_T3}, s{S_T3}, s{S_GL}
s_and_b32 s{S_T3}, s{S_T3}, 7
s_mul_i32 s{S_T3}, s{S_T3}, {11 * OPT['rot']}
s_lshr_b32 s{S_T3}, s{S_T3}, 2
s_mul_i32 s{S_T4}, s{S_HW}, 22
s_add_u32 s{S_T3}, s{S_T3}, s{S_T4}
s_lshl_b32 s{S_SOFF}, s{S_T3}, 14
s_lshl_b32 s{S_STEP}, s{S_T3}, 11
s_lshl_b32 s{S_QO}, s{S_T4}, 14
s_add_u32 s{S_QO+1}, s{S_QO}, {22*16384}
s_lshl_b32 s{S_QO+2}, s{S_T4}, 11
s_add_u32 s{S_QO+3}, s{S_QO+2}, {22*2048}""")
vq, lq = Queue("vmcnt"), Queue("lgkmcnt")
def f2_dma(s):
    for c in range(2):
        e(f"s_add_u32 m0, s{S_RING}, {(s % 7)*2048 + c*1024}\ns_nop 0")
        e(f"buffer_load_dwordx4 v{1+c}, {sr(SRD_B,4)}, s{S_SOFF} offen lds")
        vq.issue(("w", s))
    e(f"s_add_u32 s{S_SOFF}, s{S_SOFF}, 16384\ns_cmp_ge_u32 s{S_SOFF}, s{S_QO+1}\ns_cselect_b32 s{S_SOFF}, s{S_QO}, s{S_SOFF}")
def f2_h(s):
    for c in range(2):
        e(f"buffer_load_dwordx4 {vr(F2B+8*(s % 7)+4*c,4)}, v{3+c}, {sr(SRD_A,4)}, s{S_STEP} offen sc1")
        vq.issue(("h", s))
    e(f"s_add_u32 s{S_STEP}, s{S_STEP}, 2048\ns_cmp_ge_u32 s{S_STEP}, s{S_QO+3}\ns_cselect_b32 s{S_STEP}, s{S_QO+2}, s{S_STEP}")
for s in range(7):
    f2_dma(s)
for a in range(4):
    e(f"buffer_load_dwordx2 {vr(XR+2*a,2)}, v6, {sr(SRD_X,4)}, s{S_T2} offen{off(16*a)}")
if OPT["pf_late"]:
    e(f"""s_lshr_b32 s{S_T3}, s2, 3
s_lshl_b32 s{S_T3}, s{S_T3}, 2
s_add_u32 s{S_T3}, s{S_T3}, s{S_HW}
s_lshl_b32 s{S_T3}, s{S_T3}, 12
v_lshlrev_b32 v5, 6, v0
buffer_load_dword v153, v5, {sr(SRD_C,4)}, s{S_T3} offen""")
e(f"""v_min_u32 v5, 10, v0
s_mul_i32 s{S_T3}, s{S_HW}, 11
v_add_u32 v5, s{S_T3}, v5
v_min_u32 v5, 42, v5
v_lshlrev_b32 v5, 5, v5
s_add_u32 s{S_T3}, s{S_FLB}, {FL_H}
s_setprio 0""")
glb_spin(5, SRD_WS, f"s{S_T3}", 154, sleep=4, prio=(2, 0))
stamp("flags")
for s in range(7):
    f2_h(s)
def f2_reads(s):
    f = F2A + 8 * (s % 2)
    for c in range(2):
        for i in range(2):
            e(f"ds_read_b64_tr_b16 {vr(f+4*c+2*i,2)}, v7{off((s % 7)*2048 + c*1024 + i*512)}")
            lq.issue(("r", s))
f2_reads(0)
for s in range(22):
    need = vq.left(("h", s))
    if s + 1 < 22:
        need = min(need, vq.left(("w", s + 1)))
    e(f"s_waitcnt vmcnt({need})")
    if s + 1 < 22:
        f2_reads(s + 1)
    lq.wait(("r", s))
    f, bb = F2A + 8 * (s % 2), F2B + 8 * (s % 7)
    for u in range(4):
        mf32(F2ACC + 16 * u, f + 4 * (u & 1), bb + 4 * (u >> 1), F2ACC + 16 * u if s else None)
    if s + 7 < 22:
        f2_dma(s + 7)
        f2_h(s + 7)
stamp("go")
e(f"s_setprio 2\nv_lshlrev_b32 v1, 4, v0\nv_add_u32 v2, s{S_RING}, v1\ns_nop 9")
for u in range(1, 4):
    for a in range(4):
        e(f"ds_write_b128 v2, {vr(F2ACC+16*u+4*a,4)}{off((u-1)*4096 + a*1024)}")
e(f"s_lshl_b32 s{S_T0}, s{S_HW}, 2\ns_add_u32 s{S_T0}, s{S_T0}, {L_FLG}")
set_lds_flag(f"s{S_T0}", 6, 3, F_RED)
for k in range(8):
    e(f"v_dot2_f32_bf16 v{F2ACC+2*k}, v{XR+k}, s{S_C10}, v{F2ACC+2*k}")
    e(f"v_dot2_f32_bf16 v{F2ACC+2*k+1}, v{XR+k}, s{S_C01}, v{F2ACC+2*k+1}")
for u in range(1, 4):
    e(f"s_xor_b32 s{S_T1}, s{S_HW}, {u}\ns_mul_i32 s{S_T1}, s{S_T1}, {H_STR}\nv_add_u32 v{152+u}, s{S_T1}, v1")
e(f"v_and_b32 v5, 3, v0\nv_lshlrev_b32 v5, 2, v5\nv_add_u32 v5, {L_FLG}, v5\ns_setprio 0")
lds_spin(5, F_RED, 4, "v_cmp_ne_u32", 1, prio=(2, 0))
for u in range(1, 4):
    for a in range(4):
        e(f"ds_read_b128 {vr(F2B+16*(u-1)+4*a,4)}, v{152+u}{off((u-1)*4096 + a*1024)}")
e(f"""s_setprio 2
v_bfe_u32 v4, v0, 3, 2
v_lshlrev_b32 v4, 14, v4
v_lshrrev_b32 v2, 5, v0
v_lshl_add_u32 v4, v2, 7, v4
v_and_b32 v2, 7, v0
v_lshl_add_u32 v4, v2, 4, v4
s_lshl_b32 s{S_T0}, s{S_G}, 17
s_lshr_b32 s{S_T1}, s{S_HW}, 1
s_lshl_b32 s{S_T1}, s{S_T1}, 16
s_add_u32 s{S_T0}, s{S_T0}, s{S_T1}
s_and_b32 s{S_T1}, s{S_HW}, 1
s_lshl_b32 s{S_T1}, s{S_T1}, 10
s_add_u32 s{S_T0}, s{S_T0}, s{S_T1}
s_lshl_b32 s{S_T1}, s{S_J}, 11
s_add_u32 s{S_T0}, s{S_T0}, s{S_T1}
s_add_u32 s{S_T0}, s{S_T0}, {hex(WS_Y)}
s_waitcnt lgkmcnt(0)
ds_write_b32 v6, v3 offset:{F_CONS}""")
for a in range(4):
    for u in range(3):
        for k in range(2):
            r = F2ACC + 4 * a + 2 * k
            e(f"v_pk_add_f32 {vr(r,2)}, {vr(r,2)}, {vr(F2B+16*u+4*a+2*k,2)}")
    e(f"buffer_store_dwordx4 {vr(F2ACC+4*a,4)}, v4, {sr(SRD_WS,4)}, s{S_T0} offen{off(a*256)} sc1")

OACC, OA, OB, YR, RT, RL = 24, 56, 120, 128, 160, 192
VD = 200
V_TR0, V_TR1, V_PART, V_LS, V_OBW, V_OBR, V_OUT, V_YF, V_YO, V_FL, V_LSP = 204, 205, 206, 207, 208, 209, 210, 211, 212, 213, 214
e(f"""v_lshrrev_b32 v1, 2, v0
v_lshlrev_b32 v2, 10, v1
v_bfe_u32 v1, v0, 4, 1
v_lshlrev_b32 v7, 1, v1
v_and_b32 v{VD+1}, 3, v0
v_xor_b32 v7, v7, v{VD+1}
v_lshl_add_u32 v2, v7, 4, v2
s_lshl_b32 s{S_T1}, s{S_HW}, 8
v_add_u32 v{VD}, s{S_T1}, v2
s_lshl_b32 s{S_RING}, s{S_HW}, 14
v_lshlrev_b32 v7, 3, v{VD+1}
v_bfe_u32 v2, v0, 2, 2
v_lshl_add_u32 v7, v2, 6, v7
v_lshl_add_u32 v7, v1, 8, v7
v_lshl_add_u32 v7, v1, 5, v7
v_lshrrev_b32 v2, 5, v0
v_lshl_add_u32 v7, v2, 10, v7
v_add_u32 v{V_TR0}, s{S_RING}, v7
v_xor_b32 v{V_TR1}, 32, v{V_TR0}
v_add_u32 v{VD+1}, 64, v{VD}
v_add_u32 v{VD+2}, 0x80, v{VD}
v_add_u32 v{VD+3}, 0xc0, v{VD}
v_bfe_u32 v7, v0, 3, 1
v_lshl_add_u32 v7, v7, 1, v2
v_and_b32 v2, 7, v0
v_lshl_add_u32 v7, v7, 3, v2
v_lshlrev_b32 v{V_LS}, 2, v7
v_add_u32 v{V_LS}, {L_LS}, v{V_LS}
v_lshl_add_u32 v7, v1, 5, v7
v_lshlrev_b32 v{V_PART}, 4, v7
v_lshlrev_b32 v{V_OBW}, 4, v0
v_add_u32 v{V_OBW}, {L_OBF}, v{V_OBW}
v_and_b32 v{V_OBR}, 0xffffff7f, v{V_OBW}
v_lshrrev_b32 v1, 4, v0
v_lshlrev_b32 v{V_OUT}, 3, v1
v_lshl_add_u32 v{V_OUT}, v2, 10, v{V_OUT}
v_lshlrev_b32 v{V_YO}, 7, v1
v_lshl_add_u32 v{V_YO}, v2, 4, v{V_YO}
v_lshlrev_b32 v{V_LSP}, 7, v1
v_add_u32 v{V_LSP}, {L_LS}, v{V_LSP}
v_and_b32 v1, 1, v0
v_bfe_u32 v7, v0, 1, 1
v_lshl_add_u32 v1, v7, 2, v1
v_lshlrev_b32 v{V_YF}, 5, v1
v_mov_b32 v{V_FL}, {L_FLG}
v_lshlrev_b32 v2, 2, v2
v_add_u32 v2, {L_FLG}, v2""")
for k in range(32):
    e(f"v_mov_b32 v{OACC+k}, 0")
e("s_setprio 0")
lds_spin(5, F_CONS, 1, "v_cmp_ne_u32", 1, prio=(2, 0))
lds_spin(2, F_G1, 1, "v_cmp_ne_u32", 1, prio=(2, 0))

def wo_row(sreg, tplus):
    e(f"s_add_u32 s{sreg}, s{S_J}, s{S_IT}" + (f"\ns_add_u32 s{sreg}, s{sreg}, {tplus}" if tplus else ""))
    e(f"s_and_b32 s{sreg}, s{sreg}, 7\ns_lshl_b32 s{sreg}, s{sreg}, 16")
    for k in range(1, 4):
        e(f"s_add_u32 s{sreg+k}, s{sreg}, {k*16384}")
def wo_dma(u):
    s_, c4 = divmod(u, 4)
    for hl in range(2):
        e(f"s_add_u32 m0, s{S_RING}, {u*2048 + hl*1024}\ns_nop 0")
        e(f"buffer_load_dwordx4 v{VD+c4}, {sr(SRD_C,4)}, s{S_QO+2*s_+hl} offen lds")
def wo_reads(u):
    for ee in range(2):
        for i in range(2):
            e(f"ds_read_b64_tr_b16 {vr(OA+8*u+4*ee+2*i,2)}, v{V_TR0+ee}{off(u*2048 + i*512)}")
def wo_mfma():
    for u in range(8):
        s_, c4 = divmod(u, 4)
        for ee in range(2):
            mf16(OACC + 4 * (2 * c4 + ee), OA + 8 * u + 4 * ee, OB + 4 * s_, OACC + 4 * (2 * c4 + ee))
def reduce_reads(vp, vl):
    for w in range(4):
        e(f"ds_read_b32 v{RL+w}, v{vl}{off(w*128)}")
    for w in range(4):
        for h in range(2):
            e(f"ds_read_b128 {vr(RT+8*w+4*h,4)}, v{vp}{off(w*8192 + h*1024)}")
def reduce_math(dst, check):
    e("s_waitcnt lgkmcnt(8)")
    e(f"v_add_f32 v{RL}, v{RL}, v{RL+1}\nv_add_f32 v{RL+2}, v{RL+2}, v{RL+3}\nv_add_f32 v{RL}, v{RL}, v{RL+2}\nv_rcp_f32 v{RL+2}, v{RL}")
    e("s_waitcnt lgkmcnt(4)")
    for k in range(4):
        e(f"v_pk_add_f32 {vr(RT+2*k,2)}, {vr(RT+2*k,2)}, {vr(RT+8+2*k,2)}")
    e(f"v_mov_b32 v{RL+3}, v{RL+2}\ns_waitcnt lgkmcnt(0)")
    for k in range(4):
        e(f"v_pk_add_f32 {vr(RT+16+2*k,2)}, {vr(RT+16+2*k,2)}, {vr(RT+24+2*k,2)}")
    for k in range(4):
        e(f"v_pk_add_f32 {vr(RT+2*k,2)}, {vr(RT+2*k,2)}, {vr(RT+16+2*k,2)}")
    for k in range(4):
        e(f"v_pk_mul_f32 {vr(RT+2*k,2)}, {vr(RT+2*k,2)}, {vr(RL+2,2)}")
    for k in range(4):
        e(f"v_cvt_pk_bf16_f32 v{dst+k}, v{RT+2*k}, v{RT+2*k+1}")
def range_check(src):
    lo, hi = f2u(2.0**-32), f2u(2.0**48)
    for k in range(4):
        e(f"v_dot2_f32_bf16 v{RL+1}, v{src+k}, s{S_C11}, {'v%d' % (RL+1) if k else 0}")
    e(f"v_subrev_u32 v{RL+3}, {hex(lo)}, v{RL}\nv_cmp_lt_u32 vcc, {hex(hi-lo)}, v{RL+3}\ns_nop 0")
    e(f"v_mov_b32 v{RL+3}, 0x207\nv_cmp_class_f32 {sr(S_EX,2)}, v{RL+1}, v{RL+3}\ns_nop 0\ns_or_b64 vcc, vcc, {sr(S_EX,2)}")
    if OPT["force_slow"]:
        e("s_mov_b64 vcc, -1")

for k in range(OPT["dbg_late"]):
    e("s_sleep 16")
e(f"s_mov_b32 s{S_IT}, 0")
wo_row(S_QO, 0)
for u in range(8):
    wo_dma(u)
e(f"s_lshl_b32 s{S_T5}, s{S_J}, 2\ns_add_u32 s{S_T5}, s{S_T5}, s{S_HW}\ns_lshl_b32 s{S_T5}, s{S_T5}, 5")
e(f"s_add_u32 s{S_T5}, s{S_T5}, {FL_Y}\ns_add_u32 s{S_T5}, s{S_T5}, s{S_FLB}\ns_waitcnt vmcnt(16)\ns_setprio 2")
set_glb_flag(f"s{S_T5}", 1, 3)
e("s_setprio 0")
stamp("p0")
e("L_oloop:")
wo_row(S_QO, 1)
for u in range(8):
    e(f"s_waitcnt vmcnt({14 if u == 0 else 12})")
    wo_reads(u)
    if u:
        e("s_waitcnt lgkmcnt(4)")
        wo_dma(u - 1)
e("s_waitcnt lgkmcnt(0)")
wo_dma(7)
e(f"""s_and_b32 s{S_T0}, s{S_IT}, 3
s_lshl_b32 s{S_T2}, s{S_IT}, 2
s_lshl_b32 s{S_T3}, s{S_IT}, 10
s_setprio 2
v_add_u32 v1, s{S_T2}, v{V_FL}
v_add_u32 v2, s{S_T3}, v{V_OBR}
s_cmp_eq_u32 s{S_T0}, s{S_HW}
s_cbranch_scc0 L_owait
s_lshl_b32 s{S_T0}, s{S_T0}, 11
s_mov_b32 s{S_T1}, {L_P2}
s_cmp_lt_u32 s{S_IT}, 4
s_cselect_b32 s{S_T1}, {L_A}, s{S_T1}
s_add_u32 s{S_T0}, s{S_T0}, s{S_T1}
s_lshl_b32 s{S_T1}, s{S_IT}, 9
v_add_u32 v3, s{S_T0}, v{V_PART}
v_add_u32 v4, s{S_T1}, v{V_LS}
v_add_u32 v5, s{S_T1}, v{V_LSP}
v_add_u32 v6, s{S_T3}, v{V_OBW}
s_setprio 0""")
lds_spin(5, 0, 7, "v_cmp_eq_u32", -1, sleep=2, prio=(2, 0))
reduce_reads(3, 4)
e("s_setprio 2")
reduce_math(OB, True)
e(f"ds_write_b128 v6, {vr(OB,4)}")
range_check(OB)
e(f"v_mov_b32 v7, 1\nds_write_b32 v1, v7 offset:{F_OF}\ns_cbranch_vccz L_owait\nds_write_b32 v{V_FL}, v7 offset:{F_BAD}")
e("L_owait:\ns_setprio 0")
lds_spin(1, F_OF, 7, "v_cmp_ne_u32", 1, sleep=2, prio=(2, 0))
e(f"ds_read_b128 {vr(OB,4)}, v2\nds_read_b128 {vr(OB+4,4)}, v2 offset:128\ns_waitcnt lgkmcnt(0)")
wo_mfma()
e(f"s_cmp_eq_u32 s{S_IT}, 5\ns_cbranch_scc1 L_yload\nL_yret:")
e(f"s_add_u32 s{S_IT}, s{S_IT}, 1\ns_cmp_lt_u32 s{S_IT}, 7\ns_cbranch_scc1 L_oloop")
for u in range(8):
    e(f"s_waitcnt vmcnt({14 - 2*u}) lgkmcnt(8)")
    wo_reads(u)
e(f"""s_setprio 2
v_add_u32 v3, {L_P2 + 3*2048}, v{V_PART}
v_add_u32 v4, {7*512}, v{V_LS}
s_lshl_b32 s{S_T0}, s{S_G}, 3
s_add_u32 s{S_T0}, s{S_T0}, s{S_J}
s_lshl_b32 s{S_T0}, s{S_T0}, 13
s_lshl_b32 s{S_T1}, s{S_HW}, 8
s_add_u32 s{S_T5}, s{S_T0}, s{S_T1}""")
for k in range(16):
    e(f"v_pk_add_f32 {vr(OACC+2*k,2)}, {vr(OACC+2*k,2)}, {vr(YR+2*k,2)}")
e("s_waitcnt lgkmcnt(0)\ns_barrier")
stamp("fbar")
e(f"ds_read_b32 v5, v{V_FL} offset:{F_BAD}")
reduce_reads(3, 4)
reduce_math(OB, True)
e("s_nop 1")
for k in range(4):
    e(f"v_mov_b32_dpp v{OB+4+k}, v{OB+k} row_ror:8 row_mask:0xf bank_mask:0xf")
e("s_nop 1")
wo_mfma()
range_check(OB)
e(f"v_cmp_ne_u32 {sr(S_EX,2)}, 0, v5\ns_nop 0\ns_or_b64 vcc, vcc, {sr(S_EX,2)}\ns_cbranch_vccnz L_slow_h\ns_barrier")
e("L_store:")
e(f"s_mov_b32 exec_lo, 0x00ff00ff\ns_mov_b32 exec_hi, 0x00ff00ff")
for c in range(8):
    e(f"v_cvt_pk_bf16_f32 v{OA+2*c}, v{OACC+4*c}, v{OACC+4*c+1}\nv_cvt_pk_bf16_f32 v{OA+2*c+1}, v{OACC+4*c+2}, v{OACC+4*c+3}")
    e(f"buffer_store_dwordx2 {vr(OA+2*c,2)}, v{V_OUT}, {sr(SRD_OUT,4)}, s{S_T5} offen{off(32*c)} {OPT['outfl'].replace('_', ' ')}")
e("s_mov_b64 exec, -1")
e("L_fin:")
if OPT["hold"] == "end":
    if OPT["holdmin"]:
        e(f"v_mov_b32 v1, 160\nbuffer_load_dword v2, v1, {sr(SRD_DBG,4)}, 0 offen sc1\ns_waitcnt vmcnt(0)\nv_readfirstlane_b32 s{S_ST0+9}, v2\ns_nop 3\ns_not_b32 s{S_ST0+9}, s{S_ST0+9}")
    e("s_waitcnt vmcnt(0)")
    stamp("end")
if OPT["stamps"]:
    e(f"s_waitcnt vmcnt(0)\ns_memtime {sr(S_STMP,2)}\ns_waitcnt lgkmcnt(0)")
    e(f"s_lshl_b32 s{S_T0}, s2, 3\ns_add_u32 s{S_T0}, s{S_T0}, s{S_W}\ns_lshl_b32 s{S_T0}, s{S_T0}, 6\ns_add_u32 s{S_T0}, s{S_T0}, {hex(WS_ST)}")
    for k in range(10):
        e(f"v_mov_b32 v{8+k}, s{S_ST0+k}")
    e(f"v_mov_b32 v18, s{S_STMP}\ns_memrealtime {sr(S_STMP,2)}\ns_waitcnt lgkmcnt(0)\nv_mov_b32 v19, s{S_STMP}\nv_mov_b32 v1, 0\ns_mov_b64 exec, 1")
    for k in range(3):
        e(f"buffer_store_dwordx4 {vr(8+4*k,4)}, v1, {sr(SRD_WS,4)}, s{S_T0} offen{off(16*k)}")
e("L_exit:\ns_endpgm")

e(f"""L_yload:
s_lshr_b32 s{S_T0}, s{S_J}, 2
s_lshl_b32 s{S_T0}, s{S_T0}, 1
s_lshl_b32 s{S_T1}, s{S_HW}, 3
s_add_u32 s{S_T0}, s{S_T0}, s{S_T1}
s_lshl_b32 s{S_T0}, s{S_T0}, 5
s_add_u32 s{S_T0}, s{S_T0}, {FL_Y}
s_add_u32 s{S_T0}, s{S_T0}, s{S_FLB}""")
glb_spin(V_YF, SRD_WS, f"s{S_T0}", 7, sleep=4, prio=(2, 0))
e(f"""s_lshl_b32 s{S_T0}, s{S_G}, 3
s_add_u32 s{S_T0}, s{S_T0}, s{S_J}
s_lshl_b32 s{S_T0}, s{S_T0}, 2
s_add_u32 s{S_T0}, s{S_T0}, s{S_HW}
s_lshl_b32 s{S_T0}, s{S_T0}, 12
s_add_u32 s{S_T0}, s{S_T0}, {hex(WS_Y)}""")
for c in range(8):
    e(f"buffer_load_dwordx4 {vr(YR+4*c,4)}, v{V_YO}, {sr(SRD_WS,4)}, s{S_T0} offen{off(512*c)} sc1")
e("s_waitcnt vmcnt(0)\ns_branch L_yret")

e(f"""L_clear:
v_mov_b32 v44, 0
v_mov_b32 v45, 0
v_mov_b32 v46, 0
v_mov_b32 v47, 0
v_lshlrev_b32 v3, 4, v0""")
for i in range(4):
    e(f"buffer_store_dwordx4 v[44:47], v3, {sr(SRD_WS,4)}, s{S_FLB} offen{off(1024*i)} sc1")
e(f"""s_branch L_clear_ret
L_clear2:
s_lshl_b32 s{S_T0}, s{S_G}, 2
v_mov_b32 v3, 1
s_waitcnt vmcnt({8 + OPT['pf_w']})
s_mov_b64 exec, 1
buffer_store_dword v3, v44, {sr(SRD_DBG,4)}, s{S_T0} offen sc1
s_mov_b64 exec, -1
s_waitcnt vmcnt({5 + OPT['pf_w']})
s_branch L_lnA
L_w4wait:
s_waitcnt vmcnt({20 + OPT['pf_w']})
s_branch L_lnA""")

e(f"""L_wkv:
s_bitcmp1_b32 s{S_J}, 2
s_cselect_b32 s{SRD_A}, s{P_WV}, s{P_WK}
s_cselect_b32 s{SRD_A+1}, s{P_WV+1}, s{P_WK+1}
s_mov_b32 s{SRD_A+2}, 16384
s_mov_b32 s{SRD_A+3}, 0x20000
v_lshlrev_b32 v3, 4, v0""")
for i in range(4):
    e(f"s_mov_b32 m0, {i*H_STR + 8192}\ns_mov_b32 s{S_T0}, {i*4096}")
    for k in range(4):
        e(f"buffer_load_dwordx4 v3, {sr(SRD_A,4)}, s{S_T0} offen{off(1024*k)} lds")
e("s_branch L_wkv_ret")

WF, XF, KA = 72, 136, 200
e(f"""L_kv:
v_and_b32 v3, 3, v0
v_lshlrev_b32 v3, 3, v3
v_bfe_u32 v5, v0, 2, 2
v_lshl_add_u32 v3, v5, 5, v3
v_lshrrev_b32 v5, 4, v0
v_lshl_add_u32 v3, v5, 8, v3
s_waitcnt vmcnt({4 + OPT['pf_w']})""")
for s in range(16):
    if s % 4 == 0:
        e("s_waitcnt lgkmcnt(6)")
    for i in range(2):
        e(f"ds_read_b64_tr_b16 {vr(WF+4*s+2*i,2)}, v3{off((s >> 2)*H_STR + 8192 + (s & 3)*1024 + i*128)}")
e(f"""v_and_b32 v52, 31, v0
v_lshlrev_b32 v52, 2, v52
buffer_load_dword v53, v52, {sr(SRD_DBG,4)}, 0 offen sc1
v_mul_u32_u24 v3, {X_STR}, v5
v_and_b32 v54, 15, v0
v_lshl_add_u32 v3, v54, 4, v3
s_lshl_b32 s{S_T0}, s{S_T3}, 8
s_add_u32 s{S_T0}, s{S_T0}, {L_X}
v_add_u32 v3, s{S_T0}, v3
s_lshl_b32 s{S_T0}, s{S_T3}, 6
s_add_u32 s{S_T0}, s{S_T0}, {L_RSTD}
v_lshl_add_u32 v54, v54, 2, s{S_T0}
v_lshl_add_u32 v55, v5, 4, s{S_T0}
s_lshl_b32 s{S_T0}, s{S_G}, 12
s_lshr_b32 s{S_T1}, s{S_T3}, 1
s_lshl_b32 s{S_T1}, s{S_T1}, 11
s_add_u32 s{S_T0}, s{S_T0}, s{S_T1}
s_and_b32 s{S_T1}, s{S_T3}, 1
s_lshl_b32 s{S_T1}, s{S_T1}, 9
s_add_u32 s{S_T0}, s{S_T0}, s{S_T1}
s_lshr_b32 s{S_T1}, s{S_J}, 2
s_lshl_b32 s{S_T1}, s{S_T1}, 10
s_add_u32 s{S_T2}, s{S_T0}, s{S_T1}
v_lshlrev_b32 v5, 4, v0
s_bitcmp1_b32 s{S_J}, 2
s_waitcnt lgkmcnt(0)
s_cbranch_scc1 L_kv_v""")
for isv in range(2):
    if isv:
        e("L_kv_v:")
    e("s_barrier")
    stamp("bar1")
    lq = Queue("lgkmcnt")
    def xr(s):
        e(f"ds_read_b128 {vr(XF+4*s,4)}, v3{off(s*4*X_STR)}")
        lq.issue(s)
    for s in range(8):
        xr(s)
    for s in range(16):
        if s + 8 < 16:
            xr(s + 8)
        elif s == 8:
            e("ds_read_b128 v[56:59], v55" if isv else "ds_read_b32 v56, v54")
            lq.issue("rs")
        lq.wait(s)
        if isv:
            mf16(KA, XF + 4 * s, WF + 4 * s, KA if s else None)
        else:
            mf16(KA, WF + 4 * s, XF + 4 * s, KA if s else None)
    e("s_waitcnt lgkmcnt(0)\ns_nop 6")
    for k in range(4):
        e(f"v_mul_f32 v{KA+k}, v{KA+k}, v{56 + (k if isv else 0)}")
    if not isv:
        e("s_branch L_kv_st")
e(f"""L_kv_st:
v_cvt_pk_bf16_f32 v60, v{KA}, v{KA+1}
v_cvt_pk_bf16_f32 v61, v{KA+2}, v{KA+3}
v_mov_b32 v62, 0
v_mov_b32 v63, 0
s_nop 1
v_permlane32_swap_b32 v60, v62
v_permlane32_swap_b32 v61, v63
s_mov_b32 exec_hi, 0
buffer_store_dwordx4 v[60:63], v5, {sr(SRD_WS,4)}, s{S_T2} offen sc1
s_mov_b32 exec_hi, -1""")
stamp("kvst")
for i in range(8):
    w_dma(i)
e(f"s_waitcnt vmcnt({10 + OPT['pf_w']})\ns_branch L_lnB_k")

e(f"L_kvflag:\ns_setprio 2\ns_waitcnt vmcnt(8)\nv_cmp_ne_u32 vcc, 1, v53\ns_nop 0\ns_cbranch_vccz L_kvflag2")
glb_spin(4, SRD_DBG, "0", 53)
e(f"L_kvflag2:\ns_lshl_b32 s{S_T5}, s{S_J}, 7\ns_add_u32 s{S_T5}, s{S_T5}, s{S_FLB}")
set_glb_flag(f"s{S_T5}", 49, 50)
stamp("kvfl")
e(f"s_setprio 0\ns_cmp_eq_u32 s{S_VALID}, 1\ns_cbranch_scc1 L_g1\ns_setprio 2")
set_lds_flag(L_FLG + F_G1 + 16, 49, 50)
e("s_waitcnt vmcnt(0)\ns_branch L_helper2")

e("L_dbgslow_a:")
glb_spin(4, SRD_DBG, "0", 48)
e("s_branch L_dbgok_a\nL_dbgslow_h:")
glb_spin(4, SRD_DBG, "0", 48)
e("s_branch L_dbgok_h\nL_kvslow:")
glb_spin(3, SRD_WS, f"s{S_T1}", 8, sleep=1)
e("s_branch L_kvok\nL_qslow:")
glb_spin(7, SRD_WS, f"s{S_T4}", 3, sleep=1)
e("s_branch L_qok\nL_g1slow:")
lds_spin(2, F_G1, 3, "v_cmp_ne_u32", 1)
e("s_branch L_g1ok")

e(f"""L_slow_a:
v_add_u32 v5, s{S_RING}, v1
s_lshl_b32 s{S_T0}, s{S_W}, 8
s_add_u32 s{S_T0}, s{S_T0}, {L_MB}
v_lshl_add_u32 v2, v0, 2, s{S_T0}
v_and_b32 v4, 31, v0
v_lshlrev_b32 v4, 2, v4
v_add_u32 v4, {L_MB}, v4
s_lshl_b32 s{S_T2}, s{S_G}, 16
s_lshl_b32 s{S_T3}, s{S_J}, 13
s_add_u32 s{S_T2}, s{S_T2}, s{S_T3}
s_add_u32 s{S_T2}, s{S_T2}, {hex(WS_Q)}
s_mov_b32 s{S_IT}, 0
L_slow_a_loop:
s_add_u32 s{S_T3}, s{S_J}, s{S_IT}
s_and_b32 s{S_T3}, s{S_T3}, 7
s_lshl_b32 s{S_T3}, s{S_T3}, 10
s_add_u32 s{S_T3}, s{S_T3}, s{S_T2}
buffer_load_dwordx4 {vr(VQ0,4)}, v1, {sr(SRD_WS,4)}, s{S_T3} offen sc1
v_mov_b32 v3, 0xff800000
s_waitcnt vmcnt(0)""")
for b in range(16):
    mf32(SA, VK + 4 * b, VQ0)
    e("s_nop 11")
    for k in range(8):
        e(f"v_max3_f32 v3, v3, v{SA+2*k}, v{SA+2*k+1}")
e("ds_write_b32 v2, v3\ns_waitcnt lgkmcnt(0)\ns_barrier")
for k in range(8):
    e(f"ds_read_b32 v{SA+k}, v4{off(128*k)}")
e("s_waitcnt lgkmcnt(0)")
e(f"v_max3_f32 v3, v{SA}, v{SA+1}, v{SA+2}\nv_max3_f32 v3, v3, v{SA+3}, v{SA+4}\nv_max3_f32 v3, v3, v{SA+5}, v{SA+6}\nv_max_f32 v3, v3, v{SA+7}")
for k in range(16):
    e(f"v_sub_f32 v{SB+k}, 0, v3")
e("s_nop 1")
for b in range(16):
    mf32(SA, VK + 4 * b, VQ0, SB)
    e("s_nop 11")
    for k in range(16):
        e(f"v_exp_f32 v{SA+k}, v{SA+k}")
    for n in range(8):
        e(f"v_cvt_pk_bf16_f32 v{SA+(n//4)*8+n%4}, v{SA+2*n}, v{SA+2*n+1}")
    e("s_nop 1")
    mf32(VO, VV + 8 * b, SA, VO if b else None)
    mf32(VO, VV + 8 * b + 4, SA + 8, VO)
e("s_nop 11")
for x in flush(0):
    e(x)
e(f"s_waitcnt lgkmcnt(0)\ns_barrier\ns_add_u32 s{S_IT}, s{S_IT}, 1\ns_cmp_lt_u32 s{S_IT}, 8\ns_cbranch_scc1 L_slow_a_loop\ns_branch L_fin")

e(f"""L_slow_h:
v_mov_b32 v7, 1
ds_write_b32 v{V_FL}, v7 offset:{F_BAD}
s_waitcnt lgkmcnt(0)
s_barrier
v_add_u32 v3, {L_A}, v{V_PART}
s_nop 7""")
for k in range(32):
    e(f"v_mov_b32 v{OACC+k}, v{YR+k}")
e(f"s_mov_b32 s{S_IT}, 0\nL_slow_h_loop:")
wo_row(S_QO, 0)
for u in range(8):
    wo_dma(u)
e("s_waitcnt vmcnt(0)")
for u in range(8):
    e("s_waitcnt lgkmcnt(8)")
    wo_reads(u)
e("s_waitcnt lgkmcnt(0)\ns_barrier\ns_barrier")
reduce_reads(3, V_LS)
reduce_math(OB, False)
e("s_nop 1")
for k in range(4):
    e(f"v_mov_b32_dpp v{OB+4+k}, v{OB+k} row_ror:8 row_mask:0xf bank_mask:0xf")
e("s_nop 1")
wo_mfma()
e(f"s_add_u32 s{S_IT}, s{S_IT}, 1\ns_cmp_lt_u32 s{S_IT}, 8\ns_cbranch_scc1 L_slow_h_loop\ns_nop 7\ns_branch L_store")
e("L_code_end:")

e(f""".section .rodata,"a"
.p2align 6
.amdhsa_kernel {NAME}_kernel
.amdhsa_next_free_vgpr 256
.amdhsa_next_free_sgpr 102
.amdhsa_accum_offset 256
.amdhsa_group_segment_fixed_size 0
.amdhsa_kernarg_size 88
.amdhsa_user_sgpr_count 2
.amdhsa_user_sgpr_kernarg_segment_ptr 1
.amdhsa_system_sgpr_workgroup_id_x 1
.end_amdhsa_kernel""")

txt = "\n".join(out) + "\n"
txt = txt.replace("PF_LINES*128", str(10 * 128)).replace("PF_LINES-1", "9")
open(sys.argv[1], "w").write(txt)
```

```python
import sys, struct

NAME = "parallel_sum__grouped_kv_mqa__dense_activation_silu__prompt"
OPT = dict(hold=-1, holdT=6000, stamps=0, rt=0, force_slow=0, pf_code=1, pf_wq=1, pf_w1=0, pf_w2=1, f1wait=1, psl=2, pdl=10, fsh=7, chain=0)
for a in sys.argv[2:]:
    k, v = a.split("=")
    OPT[k] = int(v) if v.lstrip("-").isdigit() else v
SITES = ["start"] + (OPT["stamps"].split(",") if OPT["stamps"] else [])
assert len(SITES) <= 9

def f2u(x):
    return struct.unpack("<I", struct.pack("<f", x))[0]
LOG2E = 1.4426950408889634

WS_KV = 0x0
WS_O = 0x40000
WS_H = 0x300000
WS_FL = 0xE00000
FL_H = 1024
WS_ST = 0xF00000
WS_SIZE = 0x1000000
H_GRP = 86 * 2048

H_STR = 12288
L_P1 = 49152
L_WKV = 65536
L_X = 81920
X_STR = 1040
L_P2 = L_X
L_DUMP = L_X + 32768
L_Q = L_X + 64 * X_STR
L_M = L_Q + 8192
L_LS = L_M
L_RSTD = L_M + 4096
L_FLG = L_M + 4608
L_MB = L_M + 5120
L_SL = L_M + 6144
LDS_BYTES = 163840
F_LN, F_LNA, F_WQ, F_Q, F_KVIS, F_G1, F_D0, F_R0, F_D1, F_DUTY, F_SLOW, F_AS, F_WKV, F_XIS, F_KVS, F_TAG = 0, 16, 32, 48, 64, 80, 96, 112, 128, 144, 176, 192, 208, 224, 240, 256
assert L_SL + 512 <= LDS_BYTES and L_DUMP + 32768 <= L_Q

S_W, S_G, S_J, S_GL = 4, 5, 6, 7
SRD_X, SRD_WS = 8, 12
P_X, P_WQ, P_WK, P_WV, P_WO, P_BX, P_W1, P_W2 = 16, 18, 20, 22, 24, 26, 28, 30
P_OUT, P_DBG, P_WS = 32, 34, 36
S_TA, S_TB = 38, 39
S_TAG = P_BX
SRD_W, SRD_DBG, SRD_A, SRD_B, SRD_C, SRD_OUT = 40, 44, 48, 52, 56, 60
S_STEP, S_SOFF, S_RING, S_FLB = 64, 65, 66, 67
S_C10, S_C01, S_C11 = 68, 69, 70
S_T0, S_T1, S_T2, S_T3, S_T4, S_T5 = 71, 72, 73, 74, 75, 76
S_C = 77
S_EX = 78
S_U = 80
S_HW, S_IT = 88, 89
S_STMP = 90
S_ST0 = 92

VK, VV, SA, SB, VO, VQ = 8, 72, 200, 216, 232, 248

out, tail_code = [], []
cur = [out]
def e(s):
    for l in s.split("\n"):
        l = l.strip()
        if l:
            cur[0].append(l if l.endswith(":") or l.startswith(".") else "    " + l)
class outofline:
    def __enter__(self):
        self.prev, cur[0] = cur[0], []
    def __exit__(self, *a):
        tail_code.extend(cur[0]); cur[0] = self.prev

def vr(a, n=1):
    return f"v{a}" if n == 1 else f"v[{a}:{a+n-1}]"
def sr(a, n=1):
    return f"s{a}" if n == 1 else f"s[{a}:{a+n-1}]"
def mf32(d, a, b, c=None):
    e(f"v_mfma_f32_32x32x16_bf16 {vr(d,16)}, {vr(a,4)}, {vr(b,4)}, {vr(c,16) if c is not None else 0}")
def mf16(d, a, b, c=None):
    e(f"v_mfma_f32_16x16x32_bf16 {vr(d,4)}, {vr(a,4)}, {vr(b,4)}, {vr(c,4) if c is not None else 0}")
def srd(d, p, n):
    e(f"s_mov_b32 s{d}, s{p}\ns_mov_b32 s{d+1}, s{p+1}\ns_mov_b32 s{d+2}, {hex(n)}\ns_mov_b32 s{d+3}, 0x20000")
def off(n):
    return f" offset:{n}" if n else ""
uid = [0]
def label(p):
    uid[0] += 1
    return f"L_{p}_{uid[0]}"
def stamp(k):
    if OPT["hold"] == k:
        lb = label("hold")
        e(f"{lb}:\ns_memrealtime {sr(S_STMP,2)}\ns_waitcnt lgkmcnt(0)\ns_sub_u32 s{S_STMP}, s{S_STMP}, s{S_ST0+9}\ns_cmp_lt_u32 s{S_STMP}, {OPT['holdT']}\ns_cbranch_scc1 {lb}")
    if OPT["stamps"] and k in SITES:
        e(f"s_mem{'real' if OPT['rt'] else ''}time {sr(S_STMP,2)}\ns_waitcnt lgkmcnt(0)\ns_mov_b32 s{S_ST0+SITES.index(k)}, s{S_STMP}")

class Queue:
    def __init__(self, kind):
        self.kind, self.n, self.tags = kind, 0, {}
    def issue(self, tag=None):
        self.n += 1
        if tag is not None:
            self.tags[tag] = self.n
    def left(self, tag):
        return self.n - self.tags[tag]
    def wait(self, tag):
        e(f"s_waitcnt {self.kind}({min(self.left(tag), 63 if self.kind == 'vmcnt' else 15)})")

def retry(top, sleep):
    stub = label("retry")
    e(f"s_cbranch_vccnz {stub}")
    with outofline():
        e(f"{stub}:\ns_sub_u32 s3, s3, 1\ns_cbranch_scc1 L_exit")
        if sleep: e(f"s_sleep {sleep}")
        e(f"s_branch {top}")

def lds_spin(vaddr, offset, vtmp, cmp, ref, sleep=0, prio=None):
    top = label("spin")
    e(f"{top}:\nds_read_b32 v{vtmp}, v{vaddr}{off(offset)}\ns_waitcnt lgkmcnt(0)")
    if prio: e(f"s_setprio {prio[0]}")
    e(f"{cmp} vcc, {ref}, v{vtmp}")
    e(f"s_setprio {prio[1]}" if prio else "s_nop 0")
    retry(top, sleep)

def glb_spin(vaddr, soff, vtmp, sleep=2, prio=None):
    top = label("poll")
    e(f"{top}:\nbuffer_load_dwordx2 {vr(vtmp,2)}, v{vaddr}, {sr(SRD_WS,4)}, {soff} offen sc1\ns_waitcnt vmcnt(0)")
    if prio: e(f"s_setprio {prio[0]}")
    e(f"v_cmp_ne_u64 vcc, {sr(S_TAG,2)}, {vr(vtmp,2)}")
    e(f"s_setprio {prio[1]}" if prio else "s_nop 0")
    retry(top, sleep)

def read_tag(va, vt):
    e(f"""v_mov_b32 v{va}, {L_FLG + F_TAG}
ds_read_b64 {vr(vt,2)}, v{va}
s_waitcnt lgkmcnt(0)
v_readfirstlane_b32 s{S_TAG}, v{vt}
v_readfirstlane_b32 s{S_TAG+1}, v{vt+1}""")

def tr_addr(dst, tmp, half_shift):
    e(f"""v_and_b32 v{dst}, 3, v0
v_lshlrev_b32 v{dst}, 3, v{dst}
v_bfe_u32 v{tmp}, v0, 2, 2
v_lshl_add_u32 v{dst}, v{tmp}, 6, v{dst}
v_bfe_u32 v{tmp}, v0, 4, 1
v_lshl_add_u32 v{dst}, v{tmp}, 5, v{dst}
v_lshrrev_b32 v{tmp}, 5, v0
v_lshl_add_u32 v{dst}, v{tmp}, {half_shift}, v{dst}""")

def dpp_sum(regs):
    for r in (8, 4, 2, 1):
        for a in regs:
            e(f"v_add_f32_dpp v{a}, v{a}, v{a} row_ror:{r} row_mask:0xf bank_mask:0xf")
        if len(regs) < 3 and r != 1:
            e(f"s_nop {2 - len(regs)}")

def ln_units(X, waits, vwr, vst, A, B, T):
    n = len(X)
    for u in range(n):
        e(f"s_waitcnt vmcnt({waits[u]})")
        if u == 0:
            stamp("xarr")
        for i in range(16):
            e(f"v_dot2_f32_bf16 v{A+u}, v{X[u]+i}, s{S_C11}, {'v%d' % (A+u) if i else 0}")
    e(f"s_nop {3 - n}")
    dpp_sum([A + u for u in range(n)])
    for u in range(n):
        e(f"v_mul_f32 v{A+u}, {hex(f2u(-1.0/512))}, v{A+u}")
    for u in range(n):
        for gi in range(4):
            for k in range(4):
                e(f"v_dot2_f32_bf16 v{T+2*k}, v{X[u]+4*gi+k}, s{S_C10}, v{A+u}")
                e(f"v_dot2_f32_bf16 v{T+2*k+1}, v{X[u]+4*gi+k}, s{S_C01}, v{A+u}")
            for k in range(4):
                e(f"v_cvt_pk_bf16_f32 v{X[u]+4*gi+k}, v{T+2*k}, v{T+2*k+1}")
            e(f"ds_write_b128 v{vwr+u}, {vr(X[u]+4*gi,4)}{off(gi*16*X_STR)}")
            for k in range(4):
                e(f"v_dot2_f32_bf16 v{B+u}, v{X[u]+4*gi+k}, v{X[u]+4*gi+k}, {'v%d' % (B+u) if gi or k else 0}")
    e(f"s_nop {3 - n}")
    dpp_sum([B + u for u in range(n)])
    for u in range(n):
        e(f"v_mov_b32 v{A+u}, {hex(f2u(1e-5))}\nv_fmac_f32 v{A+u}, {hex(f2u(1.0/512))}, v{B+u}")
    for u in range(n):
        e(f"v_rsq_f32 v{B+u}, v{A+u}")
    e("s_waitcnt lgkmcnt(6)")
    for u in range(n):
        e(f"v_mul_f32 v{A+u}, v{A+u}, v{B+u}")
        e(f"ds_write_b32 v{vst+u}, v{B+u}\nds_write_b32 v{vst+u}, v{A+u} offset:256")

def w1_prefetch(va, vt, vd):
    e(f"""v_lshrrev_b32 v{va}, 5, v0
v_mul_u32_u24 v{va}, 2752, v{va}
v_and_b32 v{vt}, 31, v0
v_min_u32 v{vt}, 22, v{vt}
v_lshl_add_u32 v{va}, v{vt}, 6, v{va}""")
    e(f"""s_lshl_b32 s{S_T0}, s{S_C}, 2
s_add_u32 s{S_T0}, s{S_T0}, s{S_HW}
s_mul_i32 s{S_T0}, s{S_T0}, {4*2752}
s_lshr_b32 s{S_T2}, s{S_J}, 2
s_mul_i32 s{S_T2}, s{S_T2}, {20*64}
s_add_u32 s{S_T0}, s{S_T0}, s{S_T2}
s_add_u32 s{S_T2}, s{S_T0}, {2*2752}
buffer_load_dword v{vd}, v{va}, {sr(SRD_W,4)}, s{S_T0} offen
buffer_load_dword v{vd}, v{va}, {sr(SRD_W,4)}, s{S_T2} offen""")

HDR = open("cdna_kernels/" + NAME + ".s.ref").read().split("\n")
out += [l for l in HDR if l.startswith(";") and "@launch" not in l]
out.append(f"; @launch grid=(256,1,1) block=(512,1,1) lds={LDS_BYTES}")
e(f'.amdgcn_target "amdgcn-amd-amdhsa--gfx950"\n.text\n.globl {NAME}_kernel\n.p2align 8\n.type {NAME}_kernel,@function')
e(f"{NAME}_kernel:")

e("s_cmp_ge_u32 s2, 256\ns_cbranch_scc1 L_exit")
if OPT["stamps"] or OPT["hold"] != -1:
    e(f"s_memrealtime {sr(S_STMP,2)}\ns_waitcnt lgkmcnt(0)\ns_mov_b32 s{S_ST0+9}, s{S_STMP}")
    stamp("start")
    for k in range(1, 9):
        e(f"s_mov_b32 s{S_ST0+k}, s{S_ST0}")
e(f"""s_load_dwordx16 s[16:31], s[0:1], 0
s_load_dwordx4 s[32:35], s[0:1], 64
s_load_dwordx2 s[36:37], s[0:1], 80
v_lshrrev_b32 v1, 6, v0
v_and_b32 v0, 63, v0
s_lshr_b32 s{S_C}, s2, 3
v_readfirstlane_b32 s{S_W}, v1""")
if OPT["pf_code"]:
    e(f"""s_getpc_b64 {sr(S_T0+1,2)}
L_pc:
v_lshl_add_u32 v1, s{S_C}, 3, v1
v_mul_u32_u24 v1, 192, v1
v_min_u32 v2, 2, v0
v_lshl_add_u32 v1, v2, 6, v1
v_min_u32 v1, L_code_end-L_pc-4, v1
global_load_dword v71, v1, {sr(S_T0+1,2)}""")
e(f"""v_mov_b32 v3, 0
v_lshlrev_b32 v2, 2, v0
v_add_u32 v2, {L_FLG}, v2
ds_write2st64_b32 v2, v3, v3 offset1:1
s_and_b32 s{S_GL}, s{S_C}, 7
s_bfe_u32 s{S_T0}, s2, 0x20001
s_lshl_b32 s{S_T0}, s{S_T0}, 3
s_add_u32 s{S_G}, s{S_T0}, s{S_GL}
s_lshr_b32 s{S_T3}, s{S_C}, 3
s_and_b32 s{S_T0}, s2, 1
s_lshl_b32 s{S_T0}, s{S_T0}, 2
s_add_u32 s{S_J}, s{S_T3}, s{S_T0}
s_and_b32 s{S_HW}, s{S_W}, 3
v_lshrrev_b32 v4, 4, v0
v_and_b32 v5, 15, v0
s_lshl_b32 s{S_T0}, s{S_HW}, 2
v_add_u32 v4, s{S_T0}, v4
v_lshlrev_b32 v1, 10, v4
v_lshl_add_u32 v1, v5, 4, v1
s_lshl_b32 s{S_T4}, s{S_G}, 2
s_add_u32 s{S_SOFF}, s{S_T4}, s{S_T3}
s_lshl_b32 s{S_SOFF}, s{S_SOFF}, 14
s_mov_b32 s{SRD_X+2}, {hex(2048*1024)}
s_mov_b32 s{SRD_X+3}, 0x20000
s_mov_b32 s3, 0x40000
s_waitcnt lgkmcnt(0)""")
if OPT["chain"]:
    srd(SRD_A, OPT["chain"], 1 << 20)
    e(f"s_lshl_b32 s{S_T0}, s2, 12\nv_mov_b32 v2, 0")
    for k in range(32):
        e(f"buffer_load_dword v3, v2, {sr(SRD_A,4)}, s{S_T0} offen offset:{k*128}\ns_waitcnt vmcnt(0)")
e(f"""s_cmp_lt_u32 s{S_W}, 4
s_mov_b32 s{SRD_X}, s{P_X}
s_mov_b32 s{SRD_X+1}, s{P_X+1}
s_cbranch_scc1 L_afront""")

def common_setup():
    srd(SRD_WS, P_WS, WS_SIZE)
    srd(SRD_DBG, P_DBG, 256)
    e(f"""s_lshl_b32 s{S_FLB}, s{S_G}, 11
s_add_u32 s{S_FLB}, s{S_FLB}, {hex(WS_FL)}
s_mov_b32 s{S_C10}, 0x00003f80
s_mov_b32 s{S_C01}, 0x3f800000
s_mov_b32 s{S_C11}, 0x3f803f80
v_mul_u32_u24 v2, {X_STR}, v5
v_lshl_add_u32 v2, v4, 4, v2
v_lshlrev_b32 v4, 2, v4""")

XA = 8
stamp("karg")
for i in range(4):
    e(f"buffer_load_dwordx4 {vr(XA+4*i,4)}, v1, {sr(SRD_X,4)}, s{S_SOFF} offen{off(256*i)}")
e("s_barrier\ns_setprio 2")
common_setup()
srd(SRD_W, P_WQ, 512 * 1024)
V_FLW, V_FLR, V_ONE = 253, 254, 255
e(f"""s_lshl_b32 s{S_T0}, s{S_T3}, 8
s_add_u32 s{S_T0}, s{S_T0}, {L_X}
v_add_u32 v2, s{S_T0}, v2
s_lshl_b32 s{S_T0}, s{S_T3}, 6
s_add_u32 s{S_T0}, s{S_T0}, {L_RSTD}
v_add_u32 v4, s{S_T0}, v4
s_lshl_b32 s{S_T0}, s{S_HW}, 2
s_add_u32 s{S_T0}, s{S_T0}, {L_FLG}
v_mov_b32 v{V_FLW}, s{S_T0}
v_and_b32 v7, 3, v0
v_lshlrev_b32 v{V_FLR}, 2, v7
v_add_u32 v{V_FLR}, {L_FLG}, v{V_FLR}
v_mov_b32 v{V_ONE}, 1
v_lshrrev_b32 v6, 2, v0
v_lshlrev_b32 v6, 10, v6
v_lshl_add_u32 v6, v7, 4, v6
s_and_b32 s{S_T0}, s{S_HW}, 1
s_lshl_b32 s{S_RING}, s{S_T0}, 15
s_lshl_b32 s{S_T0}, s{S_T0}, 6
s_lshl_b32 s{S_T1}, s{S_J}, 7
s_add_u32 s{S_T0}, s{S_T0}, s{S_T1}
s_lshr_b32 s{S_T1}, s{S_HW}, 1
s_lshl_b32 s{S_T2}, s{S_T1}, 18
s_add_u32 s{S_SOFF}, s{S_T0}, s{S_T2}
s_lshl_b32 s{S_T1}, s{S_T1}, 14
s_add_u32 s{S_RING}, s{S_RING}, s{S_T1}
s_cmp_eq_u32 s{S_W}, 4
s_cbranch_scc0 L_h123""")
WF, XF, KA = 72, 136, 200
e(f"""s_bitcmp1_b32 s{S_J}, 2
s_cselect_b32 s{SRD_A}, s{P_WV}, s{P_WK}
s_cselect_b32 s{SRD_A+1}, s{P_WV+1}, s{P_WK+1}
s_mov_b32 s{SRD_A+2}, 16384
s_mov_b32 s{SRD_A+3}, 0x20000
v_lshlrev_b32 v1, 4, v0""")
for i in range(4):
    e(f"s_mov_b32 m0, {L_WKV + i*4096}\ns_mov_b32 s{S_T0}, {i*4096}")
    for k in range(4):
        e(f"buffer_load_dwordx4 v1, {sr(SRD_A,4)}, s{S_T0} offen{off(1024*k)} lds")
e(f"""ds_write_b32 v{V_FLR}, v{V_ONE} offset:{F_WKV}
v_lshlrev_b32 v3, 3, v7
v_bfe_u32 v52, v0, 2, 2
v_lshl_add_u32 v3, v52, 5, v3
v_lshrrev_b32 v52, 4, v0
v_lshl_add_u32 v3, v52, 8, v3
v_add_u32 v3, {L_WKV}, v3
v_mul_u32_u24 v53, {X_STR}, v52
v_lshl_add_u32 v53, v5, 4, v53
s_lshl_b32 s{S_T0}, s{S_T3}, 8
s_add_u32 s{S_T0}, s{S_T0}, {L_X}
v_add_u32 v53, s{S_T0}, v53
s_lshl_b32 s{S_T0}, s{S_T3}, 6
s_add_u32 s{S_T0}, s{S_T0}, {L_RSTD}
v_lshl_add_u32 v54, v5, 2, s{S_T0}
v_lshl_add_u32 v55, v52, 4, s{S_T0}
s_lshl_b32 s{S_T0}, s{S_G}, 12
s_lshr_b32 s{S_T1}, s{S_T3}, 1
s_lshl_b32 s{S_T1}, s{S_T1}, 11
s_add_u32 s{S_T0}, s{S_T0}, s{S_T1}
s_and_b32 s{S_T1}, s{S_T3}, 1
s_lshl_b32 s{S_T1}, s{S_T1}, 9
s_add_u32 s{S_T0}, s{S_T0}, s{S_T1}
s_lshr_b32 s{S_T1}, s{S_J}, 2
s_lshl_b32 s{S_T1}, s{S_T1}, 10
s_add_u32 s{S_T5}, s{S_T0}, s{S_T1}""")
ln_units([XA], [16], 2, 4, 41, 42, 44)
e(f"ds_write_b32 v{V_FLW}, v{V_ONE} offset:{F_LN}")
e(f"ds_write_b32 v{V_FLW}, v{V_ONE} offset:{F_WQ}")
stamp("lnA")
e("s_waitcnt vmcnt(0)")
for s in range(16):
    if s % 4 == 0:
        e("s_waitcnt lgkmcnt(6)")
    for i in range(2):
        e(f"ds_read_b64_tr_b16 {vr(WF+4*s+2*i,2)}, v3{off(s*1024 + i*128)}")
lds_spin(V_FLR, F_LN, 52, "v_cmp_ne_u32", 1)
stamp("bar1")
e(f"s_bitcmp1_b32 s{S_J}, 2\ns_cbranch_scc1 L_kv_v")
def kv_tile(isv):
    lq = Queue("lgkmcnt")
    def xr(s):
        e(f"ds_read_b128 {vr(XF+4*s,4)}, v53{off(s*4*X_STR)}")
        lq.issue(s)
    for s in range(8):
        xr(s)
    for s in range(16):
        if s + 8 < 16:
            xr(s + 8)
        elif s == 8:
            e("ds_read_b128 v[56:59], v55" if isv else "ds_read_b32 v56, v54")
            lq.issue("rs")
        lq.wait(s)
        if isv:
            mf16(KA, XF + 4 * s, WF + 4 * s, KA if s else None)
        else:
            mf16(KA, WF + 4 * s, XF + 4 * s, KA if s else None)
    e("v_mov_b32 v62, 0\nv_mov_b32 v63, 0\ns_waitcnt lgkmcnt(0)\ns_nop 4")
    for k in range(4):
        e(f"v_mul_f32 v{KA+k}, v{KA+k}, v{56 + (k if isv else 0)}")
    e(f"""v_cvt_pk_bf16_f32 v60, v{KA}, v{KA+1}
v_cvt_pk_bf16_f32 v61, v{KA+2}, v{KA+3}
s_nop 1
v_permlane32_swap_b32 v60, v62
v_permlane32_swap_b32 v61, v63
s_mov_b32 exec_hi, 0
buffer_store_dwordx4 v[60:63], v1, {sr(SRD_WS,4)}, s{S_T5} offen sc1
s_mov_b32 exec_hi, -1""")
kv_tile(0)
e("s_branch L_kv_done\nL_kv_v:")
kv_tile(1)
e("L_kv_done:")
stamp("kvst")
e(f"""v_mov_b32 v52, 0
v_mov_b32 v53, {L_FLG + F_TAG}
s_lshl_b32 s{S_T5}, s{S_J}, {OPT['fsh']}
s_add_u32 s{S_T5}, s{S_T5}, s{S_FLB}
L_tag:
buffer_load_dwordx2 v[54:55], v52, {sr(SRD_DBG,4)}, 0 offen sc1
s_waitcnt vmcnt(0)
v_cmp_eq_u32 vcc, 0, v54
s_nop 0""")
retry("L_tag", 2)
e(f"""s_mov_b64 exec, 1
buffer_store_dwordx2 v[54:55], v52, {sr(SRD_WS,4)}, s{S_T5} offen sc1
s_mov_b64 exec, -1
ds_write_b64 v53, v[54:55]
ds_write_b32 v{V_FLR}, v{V_ONE} offset:{F_KVS}""")
stamp("kvfl")
lds_spin(V_FLR, F_WQ, 52, "v_cmp_ne_u32", 1)
e("s_branch L_wq2")
e("L_h123:")
ln_units([XA], [0], 2, 4, 41, 42, 44)
e(f"ds_write_b32 v{V_FLW}, v{V_ONE} offset:{F_LN}")
stamp("lnA")
lds_spin(V_FLR, F_XIS, 52, "v_cmp_ne_u32", 1)
e(f"s_mov_b32 s{S_T5}, s{S_RING}\nL_wq:")
for k in range(16):
    e(f"s_add_u32 m0, s{S_T5}, {k*1024}\ns_nop 0\nbuffer_load_dwordx4 v6, {sr(SRD_W,4)}, s{S_SOFF} offen lds\ns_add_u32 s{S_SOFF}, s{S_SOFF}, 16384")
e(f"s_sub_u32 s{S_SOFF}, s{S_SOFF}, {32*16384}\ns_cmp_eq_u32 s{S_T5}, 16384\ns_mov_b32 s{S_T5}, 0\ns_cbranch_scc1 L_wq\ns_waitcnt vmcnt(0)\nds_write_b32 v{V_FLW}, v{V_ONE} offset:{F_WQ}\nL_wq2:")
tr_addr(7, 3, 9)
V_XR = 252
e(f"""v_mul_u32_u24 v{V_XR}, {X_STR}, v3
v_and_b32 v3, 31, v0
v_lshl_add_u32 v{V_XR}, v3, 4, v{V_XR}
v_add_u32 v{V_XR}, {L_X}, v{V_XR}
v_lshlrev_b32 v4, 2, v3
v_add_u32 v1, s{S_RING}, v7
v_xor_b32 v2, 0x4000, v1
s_lshr_b32 s{S_T1}, s{S_HW}, 1
s_mul_i32 s{S_T0}, s{S_T1}, {32*X_STR + 512}
v_add_u32 v5, s{S_T0}, v{V_XR}
s_mul_i32 s{S_T0}, s{S_T1}, {512 - 32*X_STR}
s_add_u32 s{S_T0}, s{S_T0}, {32*X_STR}
v_add_u32 v3, s{S_T0}, v{V_XR}
v_and_b32 v48, 15, v0
v_min_u32 v48, 11, v48
v_lshlrev_b32 v48, 2, v48
v_add_u32 v48, {L_FLG}, v48
""")
srd(SRD_W, P_W1, 512 * 2752)
if OPT["pf_w1"] == 1:
    w1_prefetch(48, 49, 250)
QA, QB, QO, QACC = 72, 8, 24, 200
for k in range(16):
    if k % 4 == 0 and k:
        e("s_waitcnt lgkmcnt(4)")
    for i in range(2):
        e(f"ds_read_b64_tr_b16 {vr(QA+4*k+2*i,2)}, v1{off(k*1024 + i*256)}")
lds_spin(48, F_LN, 52, "v_cmp_ne_u32", 1)
stamp("ln")
lq = Queue("lgkmcnt")
def q_reads(s):
    if s >= 16:
        for i in range(2):
            e(f"ds_read_b64_tr_b16 {vr(QO+4*(s % 4)+2*i,2)}, v2{off((s-16)*1024 + i*256)}")
            lq.issue()
    e(f"ds_read_b128 {vr(QB+4*(s % 4),4)}, v{5 if s < 16 else 3}{off((s % 16)*2*X_STR)}")
    lq.issue(s)
for s in range(3):
    q_reads(s)
for s in range(32):
    if s + 3 < 32:
        q_reads(s + 3)
    elif s == 29:
        e(f"s_lshr_b32 s{S_T1}, s{S_HW}, 1\ns_lshl_b32 s{S_T0}, s{S_T1}, 7\ns_add_u32 s{S_T0}, s{S_T0}, {L_RSTD}\nv_add_u32 v1, s{S_T0}, v4\nds_read_b32 v44, v1")
        lq.issue()
    lq.wait(s)
    mf32(QACC, QA + 4 * s if s < 16 else QO + 4 * (s % 4), QB + 4 * (s % 4), QACC if s else None)
e(f"""s_lshl_b32 s{S_T0}, s{S_HW}, 11
s_add_u32 s{S_T0}, s{S_T0}, {L_Q}
v_lshl_add_u32 v1, v0, 4, s{S_T0}
s_waitcnt lgkmcnt(0)
v_mul_f32 v44, {hex(f2u(0.25*LOG2E))}, v44
v_mov_b32 v45, v44
s_nop 5""")
for hl in range(2):
    for k in range(4):
        e(f"v_pk_mul_f32 {vr(QACC+8*hl+2*k,2)}, {vr(QACC+8*hl+2*k,2)}, v[44:45]")
    for k in range(4):
        e(f"v_cvt_pk_bf16_f32 v{8+4*hl+k}, v{QACC+8*hl+2*k}, v{QACC+8*hl+2*k+1}")
    e(f"ds_write_b128 v1, {vr(8+4*hl,4)}{off(hl*1024)}")
e(f"ds_write_b32 v{V_FLW}, v{V_ONE} offset:{F_Q}")
stamp("qd")

V_WA, V_WB, V_TR, V_L16, VXR = 1, 2, 3, 251, 56
e(f"""s_mul_i32 s{S_T0}, s{S_J}, 5
s_min_u32 s{S_T1}, s{S_J}, 3
s_add_u32 s{S_T0}, s{S_T0}, s{S_T1}
s_add_u32 s{S_TA}, s{S_T0}, s{S_HW}
s_lshr_b32 s{S_T1}, s{S_HW}, 1
s_add_u32 s{S_TB}, s{S_T0}, s{S_T1}
s_add_u32 s{S_TB}, s{S_TB}, 4
s_mul_i32 s{S_T1}, s{S_T1}, s{S_J}
s_cmp_lt_u32 s{S_T1}, 3
s_cselect_b32 s{S_TB}, s{S_TB}, 0x100000
s_mul_i32 s{S_RING}, s{S_HW}, {H_STR}
v_add_u32 v{V_TR}, s{S_RING}, v7
v_lshrrev_b32 v5, 2, v0
v_mul_u32_u24 v5, 2752, v5
v_and_b32 v7, 3, v0
v_lshl_add_u32 v5, v7, 4, v5
s_lshl_b32 s{S_T0}, s{S_TA}, 6
v_add_u32 v{V_WA}, s{S_T0}, v5
s_lshl_b32 s{S_T0}, s{S_TB}, 6
v_add_u32 v{V_WB}, s{S_T0}, v5
v_lshlrev_b32 v{V_L16}, 4, v0
s_mul_i32 s{S_SOFF}, s{S_GL}, {64*2752}
s_and_b32 s{S_T1}, s{S_HW}, 1
s_lshl_b32 s{S_T2}, s{S_T1}, 9
s_xor_b32 s{S_T3}, s{S_T2}, 512""")
for k in range(8):
    e(f"s_add_u32 s{S_T0}, s{S_GL}, {k}\ns_and_b32 s{S_T0}, s{S_T0}, 7\ns_mul_i32 s{S_T0}, s{S_T0}, {8*X_STR}")
    e(f"s_add_u32 s{S_T4}, s{S_T0}, s{S_T2}\nv_add_u32 v{VXR+k}, s{S_T4}, v{V_XR}\ns_add_u32 s{S_T4}, s{S_T0}, s{S_T3}\nv_add_u32 v{VXR+8+k}, s{S_T4}, v{V_XR}")
e(f"""s_lshl_b32 s{S_T0}, s{S_G}, 16
s_lshl_b32 s{S_T2}, s{S_J}, 12
s_add_u32 s{S_T0}, s{S_T0}, s{S_T2}
s_lshl_b32 s{S_T2}, s{S_HW}, 10
s_add_u32 s{S_T0}, s{S_T0}, s{S_T2}
s_add_u32 s{S_U+4}, s{S_T0}, {hex(WS_O)}
s_add_u32 s{S_U+5}, s{S_U+4}, 32768""")
srd(SRD_B, P_W2, 1376 * 1024)
srd(SRD_C, P_WO, 512 * 1024)
e(f"""v_lshrrev_b32 v249, 1, v0
v_lshlrev_b32 v249, 10, v249
v_and_b32 v13, 1, v0
v_lshl_add_u32 v249, v13, 6, v249
s_lshl_b32 s{S_T0}, s{S_J}, 7
s_lshl_b32 s{S_T1}, s{S_GL}, 2
s_add_u32 s{S_T1}, s{S_T1}, s{S_HW}
s_mul_i32 s{S_T2}, s{S_T1}, {43*1024}
s_add_u32 s{S_T2}, s{S_T2}, s{S_T0}
s_add_u32 s{S_T3}, s{S_T2}, {11*1024}
s_lshl_b32 s{S_T1}, s{S_T1}, 14
s_add_u32 s{S_T1}, s{S_T1}, s{S_T0}
s_setprio 0""")
lds_spin(V_FLR, F_Q, 14, "v_cmp_ne_u32", 1, prio=(2, 0))
if OPT["f1wait"]:
    lds_spin(V_FLR, F_KVIS, 14, "v_cmp_ne_u32", 1, sleep=2, prio=(2, 0))
stamp("f1go")
F1A = [200, 216, 232]
FR = [8, 24, 40]
vq, lq = Queue("vmcnt"), Queue("lgkmcnt")
def f1_dma(s):
    for c in range(2):
        e(f"s_add_u32 m0, s{S_RING}, {(s % 6)*2048 + c*1024}\ns_nop 0\nbuffer_load_dwordx4 v{V_WA+c}, {sr(SRD_W,4)}, s{S_SOFF} offen lds")
        vq.issue(("w", s))
    e(f"s_add_u32 s{S_SOFF}, s{S_SOFF}, {16*2752}")
    if s % 4 == 3:
        e(f"s_cmp_ge_u32 s{S_SOFF}, s{SRD_W+2}\ns_cselect_b32 s{S_SOFF}, 0, s{S_SOFF}")
def f1_reads(s, part):
    f = FR[s % 3]
    if part < 2:
        if part == 0:
            vq.wait(("w", s))
        for i in range(2):
            e(f"ds_read_b64_tr_b16 {vr(f+4*part+2*i,2)}, v{V_TR}{off((s % 6)*2048 + part*1024 + i*256)}")
            lq.issue()
    else:
        for b in range(2):
            e(f"ds_read_b128 {vr(f+8+4*b,4)}, v{VXR+8*b+s//4}{off((s % 4)*2*X_STR)}")
            lq.issue(("r", s))
for s in range(6):
    f1_dma(s)
for s in range(2):
    for part in range(3):
        f1_reads(s, part)
for s in range(32):
    lq.wait(("r", s))
    f = FR[s % 3]
    for part, (a, b) in enumerate(((f, f + 8), (f, f + 12), (f + 4, f + 8))):
        mf32(F1A[part], a, b, F1A[part] if s else None)
        if s + 2 < 32:
            f1_reads(s + 2, part)
    if s + 6 < 32:
        f1_dma(s + 6)
    if s % 4 == 3: stamp(f"s{s}")
    if s == 26 and OPT["pf_w2"]:
        e(f"""s_mov_b32 exec_hi, 0
buffer_load_dword v250, v249, {sr(SRD_C,4)}, s{S_T1} offen
s_mov_b32 exec_hi, -1
buffer_load_dword v250, v249, {sr(SRD_B,4)}, s{S_T2} offen
buffer_load_dword v250, v249, {sr(SRD_B,4)}, s{S_T3} offen""")
        vq.issue(); vq.issue(); vq.issue()
stamp("g1")
e(f"""s_setprio 2
s_and_b32 s{S_T1}, s{S_HW}, 1
s_lshl_b32 s{S_T2}, s{S_T1}, 7
s_add_u32 s{S_T2}, s{S_T2}, {L_RSTD}
v_add_u32 v5, s{S_T2}, v4
v_xor_b32 v7, 0x80, v5
ds_read_b32 v44, v5
ds_read_b32 v46, v7
ds_read_b32 v52, v5 offset:256
ds_read_b32 v54, v7 offset:256
ds_write_b32 v{V_FLW}, v{V_ONE} offset:{F_G1}
s_mul_i32 s{S_T0}, s{S_G}, {H_GRP}
s_add_u32 s{S_T0}, s{S_T0}, {hex(WS_H)}
s_add_u32 s{SRD_A}, s{P_WS}, s{S_T0}
s_addc_u32 s{SRD_A+1}, s{P_WS+1}, 0
s_mov_b32 s{SRD_A+2}, {H_GRP}
s_mov_b32 s{SRD_A+3}, 0x20000
s_lshl_b32 s{S_T1}, s{S_T1}, 10
s_lshl_b32 s{S_T2}, s{S_TA}, 12
s_add_u32 s{S_U}, s{S_T2}, s{S_T1}
s_xor_b32 s{S_U+1}, s{S_U}, 1024
s_lshl_b32 s{S_T2}, s{S_TB}, 12
s_add_u32 s{S_U+2}, s{S_T2}, s{S_T1}
v_mov_b32 v56, -1
v_mov_b32 v57, -1
v_mov_b32 v58, -1
v_mov_b32 v59, -1
buffer_store_dwordx4 v[56:59], v{V_L16}, {sr(SRD_WS,4)}, s{S_U+4} offen sc1
buffer_store_dwordx4 v[56:59], v{V_L16}, {sr(SRD_WS,4)}, s{S_U+5} offen sc1
s_waitcnt lgkmcnt(0)
v_mul_f32 v44, {hex(f2u(-LOG2E))}, v44
v_mul_f32 v46, {hex(f2u(-LOG2E))}, v46
v_mov_b32 v53, v52
v_mov_b32 v55, v54
v_mov_b32 v45, v44
v_mov_b32 v47, v46""")
for ti in range(3):
    if ti == 2:
        e(f"s_cmp_ge_u32 s{S_TB}, 43\ns_cbranch_scc1 L_silu_done")
    for u in range(2):
        A, T, C, R = F1A[ti] + 8 * u, 8, 44 + 2 * (ti == 1), 16 + 4 * (2 * ti + u)
        for k in range(4):
            e(f"v_pk_mul_f32 {vr(T+2*k,2)}, {vr(A+2*k,2)}, {vr(C,2)}")
        for k in range(8):
            e(f"v_exp_f32 v{T+k}, v{T+k}")
        for k in range(4):
            e(f"v_pk_fma_f32 {vr(T+2*k,2)}, {vr(T+2*k,2)}, {vr(C+8,2)}, {vr(C+8,2)}")
        for k in range(8):
            e(f"v_rcp_f32 v{T+k}, v{T+k}")
        for k in range(4):
            e(f"v_pk_mul_f32 {vr(T+2*k,2)}, {vr(T+2*k,2)}, {vr(A+2*k,2)}")
        for k in range(4):
            e(f"v_cvt_pk_bf16_f32 v{R+k}, v{T+2*k}, v{T+2*k+1}")
        e(f"buffer_store_dwordx4 {vr(R,4)}, v{V_L16}, {sr(SRD_A,4)}, s{S_U+ti} offen{off(u*2048)} sc1")
e("L_silu_done:")
stamp("epi")

srd(SRD_OUT, P_OUT, 2048 * 1024)
ACC, F2B, F2A, TA, XR = 8, 200, 232, 72, 240
HD = 4
V_WO, V_TT = 248, 249
V_S0, V_S1, V_HF = 1, 2, 5
tr_addr(V_TR, 7, 8)
e(f"""v_add_u32 v{V_TR}, s{S_RING}, v{V_TR}
s_lshl_b32 s{S_T0}, s{S_J}, 7
v_add_u32 v{V_S0}, s{S_T0}, v6
v_add_u32 v{V_S1}, 64, v{V_S0}
v_lshlrev_b32 v{V_HF}, 3, v4
s_lshl_b32 s{S_T5}, s{S_J}, 2
s_add_u32 s{S_T5}, s{S_T5}, s{S_HW}
s_lshl_b32 s{S_T5}, s{S_T5}, 5
s_add_u32 s{S_FLB}, s{S_FLB}, {FL_H}
s_add_u32 s{S_T5}, s{S_T5}, s{S_FLB}
v_mov_b32 v12, 0
s_and_b32 s{S_T0}, s{S_HW}, 1
s_lshl_b32 s{S_T0}, s{S_T0}, 6
v_add_u32 v{V_WO}, s{S_T0}, v{V_S0}
v_and_b32 v13, 3, v0
v_lshlrev_b32 v{V_TT}, 4, v13
v_bfe_u32 v13, v0, 2, 2
v_lshl_add_u32 v{V_TT}, v13, 6, v{V_TT}
v_bfe_u32 v13, v0, 4, 1
v_lshl_add_u32 v{V_TT}, v13, 8, v{V_TT}
v_lshl_add_u32 v{V_TT}, v7, 10, v{V_TT}
v_add_u32 v{V_TT}, s{S_RING}, v{V_TT}""")
read_tag(13, 14)
e("s_setprio 0")
def pair_dma(srdreg, slot):
    for c in range(2):
        e(f"s_add_u32 m0, s{S_RING}, {slot*2048 + c*1024}\ns_nop 0\nbuffer_load_dwordx4 v{V_S0+c}, {sr(srdreg,4)}, s{S_SOFF} offen lds")
def pair_reads(dst, slot):
    for c in range(2):
        for i in range(2):
            e(f"ds_read_b64_tr_b16 {vr(dst+4*c+2*i,2)}, v{V_TR}{off(slot*2048 + c*1024 + i*512)}")
vq = Queue("vmcnt")
def wo_dma(u):
    hh, s_ = divmod(u, 4)
    for p in range(2):
        e(f"s_add_u32 m0, s{S_RING}, {(u % 6)*2048 + p*1024}\ns_mov_b32 s{S_SOFF}, {(8*s_ + 4*p + hh)*16384}\nbuffer_load_dwordx4 v{V_WO}, {sr(SRD_C,4)}, s{S_SOFF} offen lds")
        vq.issue(u)
for u in range(6):
    wo_dma(u)
e(f"s_waitcnt vmcnt(12)\ns_mov_b64 exec, 1\nbuffer_store_dwordx2 v[14:15], v12, {sr(SRD_WS,4)}, s{S_T5} offen sc1\ns_mov_b64 exec, -1")
vq.issue()
stamp("hfl")
for u in range(16):
    vq.wait(u)
    for ee in range(2):
        for i in range(2):
            e(f"ds_read_b64_tr_b16 {vr(TA+8*u+4*ee+2*i,2)}, v{V_TT}{off((u % 6)*2048 + i*512 + ee*8)}")
    if u:
        e("s_waitcnt lgkmcnt(4)")
        if u + 5 < 16:
            wo_dma(u + 5)
e("s_waitcnt lgkmcnt(0)")
stamp("wo")
e(f"""s_lshl_b32 s{S_T3}, s{S_J}, 1
s_add_u32 s{S_T3}, s{S_T3}, s{S_GL}
s_and_b32 s{S_T3}, s{S_T3}, 7
s_mul_i32 s{S_T3}, s{S_T3}, 11
s_lshr_b32 s{S_T3}, s{S_T3}, 2
s_mul_i32 s{S_T2}, s{S_HW}, 22
s_add_u32 s{S_T3}, s{S_T3}, s{S_T2}
s_lshl_b32 s{S_SOFF}, s{S_T3}, 14
s_lshl_b32 s{S_STEP}, s{S_T3}, 11
s_lshl_b32 s{S_U}, s{S_T2}, 14
s_add_u32 s{S_U+1}, s{S_U}, {22*16384}
s_lshl_b32 s{S_U+2}, s{S_T2}, 11
s_add_u32 s{S_U+3}, s{S_U+2}, {22*2048}""")
vq, lq = Queue("vmcnt"), Queue("lgkmcnt")
def f2_dma(s):
    pair_dma(SRD_B, s % 6)
    vq.issue(); vq.issue(("w", s))
    e(f"s_add_u32 s{S_SOFF}, s{S_SOFF}, 16384\ns_cmp_ge_u32 s{S_SOFF}, s{S_U+1}\ns_cselect_b32 s{S_SOFF}, s{S_U}, s{S_SOFF}")
def f2_h(s):
    for c in range(2):
        e(f"buffer_load_dwordx4 {vr(F2B+8*(s % HD)+4*c,4)}, v{V_L16}, {sr(SRD_A,4)}, s{S_STEP} offen{off(1024*c)} sc1")
        vq.issue(("h", s))
    e(f"s_add_u32 s{S_STEP}, s{S_STEP}, 2048\ns_cmp_ge_u32 s{S_STEP}, s{S_U+3}\ns_cselect_b32 s{S_STEP}, s{S_U+2}, s{S_STEP}")
def f2_reads(s, c):
    for i in range(2):
        e(f"ds_read_b64_tr_b16 {vr(F2A+8*(s % 2)+4*c+2*i,2)}, v{V_TR}{off((s % 6)*2048 + c*1024 + i*512)}")
        lq.issue(("r", s))
for s in range(6):
    f2_dma(s)
glb_spin(V_HF, f"s{S_FLB}", 8, sleep=4, prio=(2, 0))
stamp("hok")
for s in range(HD):
    f2_h(s)
f2_reads(0, 0)
f2_reads(0, 1)
for s in range(22):
    need = vq.left(("h", s))
    if s + 1 < 22:
        need = min(need, vq.left(("w", s + 1)))
    e(f"s_waitcnt vmcnt({need}) lgkmcnt(0)")
    f, bb = F2A + 8 * (s % 2), F2B + 8 * (s % HD)
    for u in range(4):
        mf32(ACC + 16 * u, f + 4 * (u & 1), bb + 4 * (u >> 1), ACC + 16 * u if s else None)
        if u < 2 and s + 1 < 22:
            f2_reads(s + 1, u)
    if s + HD < 22:
        f2_h(s + HD)
    if s + 6 < 22:
        f2_dma(s + 6)
stamp("f2")

PC, RT, RL, OB = 24, 200, 232, 236
V_PART, V_LS, V_LSP, V_DW, V_DR, V_OUT, V_TB = 1, 2, 4, 5, 6, 7, 248
S_OB = SRD_W
e(f"""s_setprio 2
s_and_b32 s{S_T0}, s{S_HW}, 1
s_lshl_b32 s{S_T0}, s{S_T0}, 6
v_add_u32 v{V_LS}, {L_LS}, v4
v_and_b32 v{RT}, 3, v0
v_lshlrev_b32 v{V_LSP}, 7, v{RT}
v_add_u32 v{V_LSP}, {L_LS}, v{V_LSP}
v_bfe_u32 v{RT}, v0, 4, 1
v_lshlrev_b32 v{V_TB}, 9, v{RT}
v_lshrrev_b32 v{RT}, 5, v0
v_lshl_add_u32 v{V_TB}, v{RT}, 12, v{V_TB}
v_and_b32 v{RT}, 15, v0
v_lshrrev_b32 v{RT+1}, 4, v0
v_lshlrev_b32 v{V_OUT}, 10, v{RT}
v_lshl_add_u32 v{V_OUT}, v{RT+1}, 4, v{V_OUT}
s_lshr_b32 s{S_T1}, s{S_HW}, 1
s_lshl_b32 s{S_T2}, s{S_T1}, 4
v_add_u32 v{RT}, s{S_T2}, v{RT}
v_lshl_add_u32 v{V_TB}, v{RT}, 4, v{V_TB}
v_lshlrev_b32 v{V_DR}, 4, v{RT}
v_lshl_add_u32 v{V_DR}, v{RT+1}, 10, v{V_DR}
s_lshl_b32 s{S_T2}, s{S_T0}, 6
s_add_u32 s{S_T2}, s{S_T2}, {L_DUMP}
v_add_u32 v{V_DR}, s{S_T2}, v{V_DR}
s_lshl_b32 s{S_T2}, s{S_HW}, 13
s_add_u32 s{S_T2}, s{S_T2}, {L_DUMP}
v_add_u32 v{V_DW}, s{S_T2}, v{V_L16}
s_lshl_b32 s{S_T2}, s{S_HW}, 11
s_add_u32 s{S_T2}, s{S_T2}, {L_P1}
v_add_u32 v{V_PART}, s{S_T2}, v{V_L16}
s_lshl_b32 s{S_T2}, s{S_HW}, 9
v_add_u32 v{V_LS}, s{S_T2}, v{V_LS}
v_add_u32 v{V_LSP}, s{S_T2}, v{V_LSP}
s_lshl_b32 s{S_T2}, s{S_G}, 2
s_add_u32 s{S_T2}, s{S_T2}, s{S_T1}
s_lshl_b32 s{S_T2}, s{S_T2}, 14
s_lshl_b32 s{S_T1}, s{S_J}, 7
s_add_u32 s{S_T2}, s{S_T2}, s{S_T1}
s_add_u32 s{S_U}, s{S_T2}, s{S_T0}
s_add_u32 s{S_U+1}, s{S_U}, 32768
s_lshl_b32 s{S_T2}, s{S_G}, 16
s_add_u32 s{S_OB}, s{S_T2}, {hex(WS_O)}
s_add_u32 s{S_OB+1}, s{S_OB}, 8192
s_add_u32 s{S_OB+2}, s{S_OB}, 16384
s_add_u32 s{S_OB+3}, s{S_OB}, 24576
s_mov_b32 s{S_IT}, 0
s_setprio 0""")
for tb in range(2):
    e(f"buffer_load_dwordx4 {vr(XR+4*tb,4)}, v{V_OUT}, {sr(SRD_X,4)}, s{S_U+tb} offen")

def reduce_piece(vp, po, vl, lo):
    for w in range(4):
        e(f"ds_read_b32 v{RL+w}, v{vl}{off(lo + w*128)}")
    for w in range(4):
        for h in range(2):
            e(f"ds_read_b128 {vr(RT+8*w+4*h,4)}, v{vp}{off(po + w*8192 + h*1024)}")
def reduce_math(extra):
    e(f"s_waitcnt lgkmcnt({8 + extra})")
    e(f"v_add_f32 v{RL}, v{RL}, v{RL+1}\nv_add_f32 v{RL+2}, v{RL+2}, v{RL+3}\nv_add_f32 v{RL}, v{RL}, v{RL+2}\nv_rcp_f32 v{RL+2}, v{RL}")
    e(f"s_waitcnt lgkmcnt({4 + extra})")
    for k in range(4):
        e(f"v_pk_add_f32 {vr(RT+2*k,2)}, {vr(RT+2*k,2)}, {vr(RT+8+2*k,2)}")
    e(f"v_mov_b32 v{RL+3}, v{RL+2}\ns_waitcnt lgkmcnt(0)")
    for k in range(4):
        e(f"v_pk_add_f32 {vr(RT+16+2*k,2)}, {vr(RT+16+2*k,2)}, {vr(RT+24+2*k,2)}")
    for k in range(4):
        e(f"v_pk_add_f32 {vr(RT+2*k,2)}, {vr(RT+2*k,2)}, {vr(RT+16+2*k,2)}")
    for k in range(4):
        e(f"v_pk_mul_f32 {vr(RT+2*k,2)}, {vr(RT+2*k,2)}, {vr(RL+2,2)}")
    for k in range(4):
        e(f"v_cvt_pk_bf16_f32 v{OB+k}, v{RT+2*k}, v{RT+2*k+1}")
def duty(half, sleep):
    bad, done = label("bad"), label("dutydone")
    lds_spin(V_LSP, half * 2048, RL, "v_cmp_eq_u32", -1, sleep=sleep, prio=(2, 0))
    reduce_piece(V_PART, half * (L_P2 - L_P1), V_LS, half * 2048)
    e(f"ds_read_b32 v250, v{V_FLR} offset:{F_SLOW}\ns_setprio 2")
    reduce_math(1)
    lo, hi = f2u(2.0**-32), f2u(2.0**48)
    for k in range(4):
        e(f"v_dot2_f32_bf16 v{RL+1}, v{OB+k}, s{S_C11}, {'v%d' % (RL+1) if k else 0}")
    e(f"""v_subrev_u32 v{RL+3}, {hex(lo)}, v{RL}
v_cmp_lt_u32 vcc, {hex(hi-lo)}, v{RL+3}
v_cmp_ne_u32 {sr(S_T0+1,2)}, 0, v250
v_mov_b32 v{RL+3}, 0x207
v_cmp_class_f32 {sr(S_EX,2)}, v{RL+1}, v{RL+3}
s_or_b64 vcc, vcc, {sr(S_T0+1,2)}
s_nop 0
s_or_b64 vcc, vcc, {sr(S_EX,2)}""")
    if OPT["force_slow"] and half == OPT["force_slow"] - 1:
        e("s_mov_b64 vcc, -1")
    if half == 0:
        e("s_waitcnt vmcnt(0)")
    e(f"s_cbranch_vccnz {bad}")
    e(f"buffer_store_dwordx4 {vr(OB,4)}, v{V_L16}, {sr(SRD_WS,4)}, s{S_U+4+half} offen sc1")
    e(f"ds_write_b32 v{V_FLW}, v{V_ONE} offset:{F_DUTY + 16*half}\n{done}:\ns_setprio 0")
    with outofline():
        e(f"{bad}:\nds_write_b32 v{V_FLR}, v{V_ONE} offset:{F_SLOW}\ns_branch {done}")
def load_valid(loads, sleep):
    top = label("ld")
    e(f"{top}:")
    for d, va, so, o in loads:
        e(f"buffer_load_dwordx4 {vr(d,4)}, v{va}, {sr(SRD_WS,4)}, s{so} offen{off(o)} sc1")
    for n, (d, va, so, o) in enumerate(loads):
        e(f"s_waitcnt vmcnt({len(loads)-1-n})")
        if n == 0: e("s_setprio 2")
        e(f"v_max3_u32 v250, v{d}, v{d+3}, v250" if n else f"v_max_u32 v250, v{d}, v{d+3}")
    e("v_cmp_eq_u32 vcc, -1, v250\ns_setprio 0")
    retry(top, sleep)
def exchange(tb, flag):
    e("s_nop 7")
    for ct in range(2):
        for a in range(4):
            e(f"ds_write_b128 v{V_DW}, {vr(ACC+32*tb+16*ct+4*a,4)}{off(ct*4096 + a*1024)}")
    e(f"ds_write_b32 v{V_FLW}, v{V_ONE} offset:{flag}")
    if tb == 0: stamp("e3")
    lds_spin(V_FLR, flag, RL, "v_cmp_ne_u32", 1, sleep=1, prio=(2, 0))
    if tb == 0: stamp("e4")
    for w in range(4):
        for h in range(2):
            e(f"ds_read_b128 {vr(RT+8*w+4*h,4)}, v{V_DR}{off(w*8192 + h*512)}")
    e("s_waitcnt lgkmcnt(4)\ns_setprio 2")
    for k in range(4):
        e(f"v_pk_add_f32 {vr(RT+2*k,2)}, {vr(RT+2*k,2)}, {vr(RT+8+2*k,2)}")
    e("s_waitcnt lgkmcnt(0)")
    for k in range(4):
        e(f"v_pk_add_f32 {vr(RT+16+2*k,2)}, {vr(RT+16+2*k,2)}, {vr(RT+24+2*k,2)}")
    for k in range(4):
        e(f"v_pk_add_f32 {vr(RT+2*k,2)}, {vr(RT+2*k,2)}, {vr(RT+16+2*k,2)}")
    for k in range(4):
        e(f"v_dot2_f32_bf16 v{ACC+8*tb+2*k}, v{XR+4*tb+k}, s{S_C10}, v{RT+2*k}")
        e(f"v_dot2_f32_bf16 v{ACC+8*tb+2*k+1}, v{XR+4*tb+k}, s{S_C01}, v{RT+2*k+1}")
    e("s_setprio 0")

def consume(tb, heads, sleep):
    load_valid([(PC + 16 * n + 4 * s_, V_TB, S_OB + s_, hh * 1024) for n, hh in enumerate(heads) for s_ in range(4)], sleep)
    for n, hh in enumerate(heads):
        for s_ in range(4):
            for ee in range(2):
                c = ACC + 8 * tb + 4 * ee
                mf16(c, TA + 32 * hh + 8 * s_ + 4 * ee, PC + 16 * n + 4 * s_, c)
def store_out(tb):
    e("s_nop 6\ns_setprio 2" if tb == 0 else "s_nop 6")
    for k in range(4):
        e(f"v_cvt_pk_bf16_f32 v{XR+4*tb+k}, v{ACC+8*tb+2*k}, v{ACC+8*tb+2*k+1}")
    e(f"buffer_store_dwordx4 {vr(XR+4*tb,4)}, v{V_OUT}, {sr(SRD_OUT,4)}, s{S_U+tb} offen")
def try_duty(limit, blocking):
    skip = label("noduty")
    e(f"s_add_u32 s{S_T0}, s{S_HW}, s{S_IT}\ns_cmp_lt_u32 s{S_T0}, {limit}\ns_cbranch_scc0 {skip}")
    if not blocking:
        e(f"ds_read_b32 v{RL}, v{V_LSP} offset:2048\ns_waitcnt lgkmcnt(0)\ns_setprio 2\nv_cmp_eq_u32 vcc, -1, v{RL}\ns_setprio 0\ns_cbranch_vccnz {skip}")
    e(f"s_call_b64 {sr(S_U+2,2)}, L_duty1\n{skip}:")
with outofline():
    e("L_duty1:")
    duty(1, 2)
    e(f"s_mov_b32 s{S_IT}, 4\ns_setpc_b64 {sr(S_U+2,2)}")

stamp("e0")
duty(0, 2)
stamp("e1")
try_duty(3, False)
stamp("e2")
exchange(0, F_D0)
stamp("e5")
e(f"ds_write_b32 v{V_FLW}, v{V_ONE} offset:{F_R0}")
lds_spin(V_FLR, F_R0, RL, "v_cmp_ne_u32", 1, sleep=1, prio=(2, 0))
exchange(1, F_D1)
stamp("d0")
try_duty(3, False)
consume(0, [0, 1, 2], 8)
consume(0, [3], 8)
store_out(0)
e("s_setprio 0")
for k in range(4):
    e(f"s_add_u32 s{S_OB+k}, s{S_OB+k}, 32768")
stamp("tb0")
try_duty(3, False)
try_duty(2, True)
consume(1, [0, 1], 8)
try_duty(3, True)
consume(1, [2], 8)
e(f"s_setprio 2\nv_mov_b32 v{V_DW}, {L_FLG + F_DUTY + 28}\nv_mov_b32 v{V_DR}, {L_FLG + F_SLOW}\ns_setprio 0")
stamp("pre")
e(f"s_cmp_eq_u32 s{S_HW}, 3\ns_cbranch_scc0 L_wait7")
duty(1, 0)
e("L_have7:")
with outofline():
    e(f"L_wait7:\nds_read_b32 v{RL}, v{V_DW}\nds_read_b32 v{RL+1}, v{V_DR}\ns_waitcnt lgkmcnt(0)\ns_setprio 2\nv_or_b32 v{RL}, v{RL}, v{RL+1}\nv_cmp_ne_u32 vcc, 1, v{RL}\ns_setprio 0")
    e("s_cbranch_vccz L_have7\ns_sub_u32 s3, s3, 1\ns_cbranch_scc1 L_exit\ns_sleep 2\ns_branch L_wait7")
stamp("fbar")
consume(1, [3], 0)
store_out(1)
e("s_branch L_fin" if OPT["stamps"] or OPT["hold"] != -1 else "s_endpgm")

e(".p2align 6\nL_afront:")
stamp("karg")
e(f"s_lshl_b32 s{S_T0}, s{S_W}, 3\ns_or_b32 s{S_T0}, s{S_T0}, s2\ns_cmp_lt_u32 s{S_T0}, 8\ns_cbranch_scc0 L_notag")
srd(SRD_DBG, P_DBG, 256)
e(f"""s_memrealtime {sr(S_T0+1,2)}
v_mov_b32 v46, 0
v_mov_b32 v47, 0
s_waitcnt lgkmcnt(0)
s_or_b32 s{S_T0+1}, s{S_T0+1}, 1
v_mov_b32 v44, s{S_T0+1}
v_mov_b32 v45, s{S_T0+2}
s_mov_b64 exec, 1
buffer_atomic_cmpswap_x2 v[44:47], v46, {sr(SRD_DBG,4)}, 0 offen sc1
s_mov_b64 exec, -1
L_notag:
s_barrier""")
if OPT["pf_wq"]:
    srd(SRD_W, P_WQ, 512 * 1024)
    e(f"""v_lshrrev_b32 v6, 3, v0
v_lshlrev_b32 v6, 10, v6
v_and_b32 v7, 7, v0
v_lshl_add_u32 v6, v7, 6, v6
s_lshl_b32 s{S_T0}, s{S_C}, 2
s_add_u32 s{S_T0}, s{S_T0}, s{S_W}
s_lshl_b32 s{S_T2}, s{S_T0}, 7
s_lshl_b32 s{S_T0}, s{S_T0}, 12
s_lshr_b32 s{S_T1}, s{S_J}, 2
s_lshl_b32 s{S_T1}, s{S_T1}, 9
s_add_u32 s{S_T0}, s{S_T0}, s{S_T1}
s_bitcmp1_b32 s{S_J}, 2
s_cselect_b32 s{SRD_A}, s{P_WV}, s{P_WK}
s_cselect_b32 s{SRD_A+1}, s{P_WV+1}, s{P_WK+1}
s_mov_b32 s{SRD_A+2}, 16384
s_mov_b32 s{SRD_A+3}, 0x20000
s_mov_b64 exec, 3
buffer_load_dword v71, v6, {sr(SRD_A,4)}, s{S_T2} offen
s_mov_b32 exec_lo, -1
buffer_load_dword v71, v6, {sr(SRD_W,4)}, s{S_T0} offen
s_mov_b32 exec_hi, -1""")
common_setup()
e(f"""v_and_b32 v7, 3, v0
v_lshlrev_b32 v7, 2, v7
v_add_u32 v7, {L_FLG}, v7
v_lshlrev_b32 v3, 4, v0
v_mov_b32 v48, -1
v_mov_b32 v49, -1
v_mov_b32 v50, -1
v_mov_b32 v51, -1
s_lshl_b32 s{S_T0}, s{S_W}, 10
s_add_u32 s{S_T0}, s{S_T0}, {L_LS}
v_add_u32 v6, s{S_T0}, v3
ds_write_b128 v6, v[48:51]
v_mov_b32 v42, 0
s_mov_b32 exec_lo, 0x00110000
s_mov_b32 exec_hi, 0x00110000
v_mov_b32 v42, s{S_C11}
s_mov_b64 exec, -1
v_mov_b32 v43, v42""")
for i in range(0, 128, 2):
    e(f"v_mov_b64 {vr(VV+i,2)}, v[42:43]")
for u in range(3):
    e(f"""s_add_u32 s{S_T0}, s{S_T3}, {u+1}
s_and_b32 s{S_T0}, s{S_T0}, 3
s_add_u32 s{S_U+u}, s{S_T4}, s{S_T0}
s_lshl_b32 s{S_U+u}, s{S_U+u}, 14
s_lshl_b32 s{S_T1}, s{S_T0}, 8
s_add_u32 s{S_T1}, s{S_T1}, {L_X}
v_add_u32 v{200+u}, s{S_T1}, v2
s_lshl_b32 s{S_T1}, s{S_T0}, 6
s_add_u32 s{S_T1}, s{S_T1}, {L_RSTD}
v_add_u32 v{204+u}, s{S_T1}, v4""")
e(f"s_lshl_b32 s{S_T2}, s{S_W}, 2\ns_add_u32 s{S_T2}, s{S_T2}, {L_FLG}\nv_mov_b32 v253, s{S_T2}\nv_mov_b32 v255, 1")
stamp("aset")
lds_spin(7, F_WKV, 3, "v_cmp_ne_u32", 1)
if OPT["pf_w1"] == 2:
    srd(SRD_W, P_W1, 512 * 2752)
    w1_prefetch(70, 69, 71)
for u in range(3):
    for i in range(4):
        e(f"buffer_load_dwordx4 {vr(8+16*u+4*i,4)}, v1, {sr(SRD_X,4)}, s{S_U+u} offen{off(256*i)}")
e(f"ds_write_b32 v253, v255 offset:{F_XIS}")
ln_units([8, 24, 40], [8, 4, 0], 200, 204, 56, 60, 64)
e(f"ds_write_b32 v253, v255 offset:{F_LNA}")
e(f"""v_lshlrev_b32 v1, 4, v0
v_lshrrev_b32 v3, 3, v0
v_lshlrev_b32 v3, 11, v3
v_and_b32 v8, 7, v0
v_lshl_add_u32 v3, v8, {OPT['fsh']}, v3
v_and_b32 v4, 15, v0
v_lshlrev_b32 v4, 4, v4
v_lshrrev_b32 v9, 5, v0
v_lshl_add_u32 v4, v9, 8, v4
v_bfe_u32 v9, v0, 4, 1
v_lshl_add_u32 v2, v9, 9, v4
s_lshl_b32 s{S_T2}, s{S_W}, 13
s_add_u32 s{S_T2}, s{S_T2}, {L_P1}
v_add_u32 v5, s{S_T2}, v1
v_and_b32 v6, 31, v0
s_lshl_b32 s{S_T2}, s{S_W}, 7
s_add_u32 s{S_T2}, s{S_T2}, {L_LS}
v_lshl_add_u32 v6, v6, 2, s{S_T2}
v_add_u32 v252, {L_Q}, v1
s_lshl_b32 s{S_T0}, s{S_W}, 15
s_lshl_b32 s{S_T1}, s{S_W}, 14
s_add_u32 s{S_T1}, s{S_T1}, {hex(WS_FL)}
s_mov_b32 s{S_EX}, 0x0000ffff
s_mov_b32 s{S_EX+1}, 0x0000ffff""")
stamp("lnB")
lds_spin(7, F_KVS, 8, "v_cmp_ne_u32", 1)
read_tag(10, 8)
if OPT["pdl"]:
    e(f"s_sleep {OPT['pdl']}")
glb_spin(3, f"s{S_T1}", 8, sleep=OPT["psl"])
stamp("flags")
vq = Queue("vmcnt")
for b in range(16):
    e(f"s_add_u32 s{S_T2}, s{S_C}, {b}\ns_and_b32 s{S_T2}, s{S_T2}, 15\ns_lshl_b32 s{S_T2}, s{S_T2}, 11\ns_add_u32 s{S_T2}, s{S_T2}, s{S_T0}")
    e(f"buffer_load_dwordx4 {vr(VK+4*b,4)}, v2, {sr(SRD_WS,4)}, s{S_T2} offen sc1")
    vq.issue(("K", b))
    e(f"s_mov_b64 exec, {sr(S_EX,2)}")
    for i in range(2):
        e(f"buffer_load_dwordx4 {vr(VV+8*b+4*i,4)}, v4, {sr(SRD_WS,4)}, s{S_T2} offen{off(1024+512*i)} sc1")
        vq.issue(("V", b))
    e("s_mov_b64 exec, -1")
e(f"ds_write_b32 v253, v255 offset:{F_KVIS}")
stamp("kvis")
lds_spin(7, F_Q, 3, "v_cmp_ne_u32", 1)
e(f"ds_read_b128 {vr(VQ,4)}, v252\ns_setprio 1\ns_waitcnt vmcnt({vq.left(('K', 0))}) lgkmcnt(0)")
stamp("go")
mf32(SA, VK, VQ)
e("s_nop 11")

ORDER = "e0 d7 a e1 e2 e3 b e4 e5 c0 c1 Q e6 e7 c2 e8 c3 e9 e10 e11 c4 e12 e13 c5 e14 e15 c6".split()
def flush(t):
    o = (t % 4) * 2048 + (t // 4) * (L_P2 - L_P1)
    return [f"ds_write_b128 v5, {vr(VO,4)}{off(o)}", f"ds_write_b128 v5, {vr(VO+4,4)}{off(o+1024)}",
            f"ds_write_b32 v6, v{VO+8}{off(t*512)}"]
for i in range(128):
    t, b = divmod(i, 16)
    S, T = (SA, SB) if i % 2 == 0 else (SB, SA)
    pb = (b - 1) % 16
    after = {}
    if t == 0:
        after["b"] = [f"s_waitcnt vmcnt({vq.left(('K', b+1)) if b < 15 else 0})"]
    if b == 14 and t < 7:
        after["Q"] = [f"ds_read_b128 {vr(VQ,4)}, v252{off((t+1)*1024)}"]
    if b == 15 and t < 7:
        after["a"] = ["s_waitcnt lgkmcnt(0)"]
    if b == 0 and t > 0:
        fl = flush(t - 1)
        after["e11"], after["e12"], after["e14"] = [fl[0]], [fl[1]], [fl[2]]
    if t == 4 and b == 6:
        after["a"] = [f"ds_read_b32 v3, v7 offset:{F_G1}"]
    if t == 4 and b == 7:
        after["a"] = ["s_waitcnt lgkmcnt(0)"]
        after["e7"] = ["v_cmp_ne_u32 vcc, 1, v3"]
        after["e8"] = ["s_cbranch_vccnz L_g1slow", "L_g1ok:"]
    for tok in ORDER:
        k = tok[0]
        if k == "e":
            n = int(tok[1:]); e(f"v_exp_f32 v{S+n}, v{S+n}")
        elif k == "c":
            n = int(tok[1:]); e(f"v_cvt_pk_bf16_f32 v{S+(n//4)*8+n%4}, v{S+2*n}, v{S+2*n+1}")
        elif k == "d":
            if i: e(f"v_cvt_pk_bf16_f32 v{T+11}, v{T+14}, v{T+15}")
        elif k == "a":
            if i: mf32(VO, VV + 8 * pb, T, None if b == 1 else VO)
        elif k == "b":
            if i: mf32(VO, VV + 8 * pb + 4, T + 8, VO)
        elif k == "Q":
            if i < 127:
                mf32(T, VK + 4 * ((b + 1) % 16), VQ)
        for x in after.get(tok, []):
            e(x)
    if b == 15:
        stamp(f"p{t}")
with outofline():
    e("L_g1slow:")
    lds_spin(7, F_G1, 3, "v_cmp_ne_u32", 1, sleep=1)
    e("s_branch L_g1ok")
e(f"v_cvt_pk_bf16_f32 v{SB+11}, v{SB+14}, v{SB+15}")
mf32(VO, VV + 8 * 15, SB, VO)
e("s_nop 0")
mf32(VO, VV + 8 * 15 + 4, SB + 8, VO)
e("s_nop 11")
for x in flush(7):
    e(x)
stamp("fbar")
e(f"""s_setprio 0
v_and_b32 v2, 7, v0
v_lshlrev_b32 v2, 2, v2
v_add_u32 v2, {L_FLG}, v2
L_status:
s_sleep 4
ds_read_b32 v3, v2 offset:{F_DUTY}
ds_read_b32 v4, v7 offset:{F_SLOW}
s_waitcnt lgkmcnt(0)
v_cmp_ne_u32 vcc, 0, v4
s_nop 0
s_cbranch_vccnz L_slow
v_cmp_ne_u32 vcc, 1, v3
s_nop 0""")
retry("L_status", 0)
e("L_fin:")
if OPT["hold"] == "end":
    e("s_waitcnt vmcnt(0)")
    stamp("end")
if OPT["stamps"]:
    e(f"s_waitcnt vmcnt(0)\ns_memtime {sr(S_STMP,2)}\ns_waitcnt lgkmcnt(0)")
    e(f"s_lshl_b32 s{S_T0}, s2, 3\ns_add_u32 s{S_T0}, s{S_T0}, s{S_W}\ns_lshl_b32 s{S_T0}, s{S_T0}, 6\ns_add_u32 s{S_T0}, s{S_T0}, {hex(WS_ST)}")
    for k in range(10):
        e(f"v_mov_b32 v{8+k}, s{S_ST0+k}")
    e(f"v_mov_b32 v18, s{S_STMP}\ns_memrealtime {sr(S_STMP,2)}\ns_waitcnt lgkmcnt(0)\nv_mov_b32 v19, s{S_STMP}\nv_mov_b32 v1, 0\ns_mov_b64 exec, 1")
    for k in range(3):
        e(f"buffer_store_dwordx4 {vr(8+4*k,4)}, v1, {sr(SRD_WS,4)}, s{S_T0} offen{off(16*k)}")
e("L_exit:\ns_endpgm")
out += tail_code
tail_code.clear()
e("L_code_end:")

def wave_sync():
    e(f"s_add_u32 s{S_T4}, s{S_T4}, 1\nv_mov_b32 v3, s{S_T4}\nds_write_b32 v253, v3 offset:{F_AS}")
    lds_spin(7, F_AS, 3, "v_cmp_gt_u32", f"s{S_T4}", sleep=1)
e(f"""L_slow:
s_lshl_b32 s{S_T0}, s{S_W}, 8
s_add_u32 s{S_T0}, s{S_T0}, {L_MB}
v_lshl_add_u32 v2, v0, 2, s{S_T0}
v_and_b32 v4, 31, v0
v_lshlrev_b32 v4, 2, v4
v_add_u32 v4, {L_MB}, v4
v_add_u32 v6, {L_SL - L_LS}, v6
v_add_u32 v254, {L_P1}, v1
s_lshl_b32 s{S_T2}, s{S_G}, 16
s_lshl_b32 s{S_T3}, s{S_J}, 12
s_add_u32 s{S_T2}, s{S_T2}, s{S_T3}
s_add_u32 s{S_T2}, s{S_T2}, {hex(WS_O)}
s_mov_b32 s{S_IT}, 0
s_mov_b32 s{S_T4}, 0
L_slow_loop:
ds_read_b128 {vr(VQ,4)}, v252
v_mov_b32 v3, 0xff800000
s_waitcnt lgkmcnt(0)
v_add_u32 v252, 1024, v252""")
for b in range(16):
    mf32(SA, VK + 4 * b, VQ)
    e("s_nop 11")
    for k in range(8):
        e(f"v_max3_f32 v3, v3, v{SA+2*k}, v{SA+2*k+1}")
e("ds_write_b32 v2, v3")
wave_sync()
for k in range(8):
    e(f"ds_read_b32 v{SA+k}, v4{off(128*k)}")
e("s_waitcnt lgkmcnt(0)")
e(f"v_max3_f32 v3, v{SA}, v{SA+1}, v{SA+2}\nv_max3_f32 v3, v3, v{SA+3}, v{SA+4}\nv_max3_f32 v3, v3, v{SA+5}, v{SA+6}\nv_max_f32 v3, v3, v{SA+7}")
for k in range(16):
    e(f"v_sub_f32 v{SB+k}, 0, v3")
e("s_nop 1")
for b in range(16):
    mf32(SA, VK + 4 * b, VQ, SB)
    e("s_nop 11")
    for k in range(16):
        e(f"v_exp_f32 v{SA+k}, v{SA+k}")
    for n in range(8):
        e(f"v_cvt_pk_bf16_f32 v{SA+(n//4)*8+n%4}, v{SA+2*n}, v{SA+2*n+1}")
    e("s_nop 1")
    mf32(VO, VV + 8 * b, SA, VO if b else None)
    mf32(VO, VV + 8 * b + 4, SA + 8, VO)
e("s_nop 11")
for x in flush(0):
    e(x)
wave_sync()
e(f"s_cmp_eq_u32 s{S_W}, 0\ns_cbranch_scc0 L_slow_next")
reduce_piece(254, 0, 6, 0)
reduce_math(0)
for k in range(4):
    e(f"v_min_u32 v{OB+k}, -2, v{OB+k}")
e(f"""s_lshr_b32 s{S_T0}, s{S_IT}, 2
s_lshl_b32 s{S_T0}, s{S_T0}, 15
s_and_b32 s{S_T1}, s{S_IT}, 3
s_lshl_b32 s{S_T1}, s{S_T1}, 10
s_add_u32 s{S_T0}, s{S_T0}, s{S_T1}
s_add_u32 s{S_T0}, s{S_T0}, s{S_T2}
buffer_store_dwordx4 {vr(OB,4)}, v1, {sr(SRD_WS,4)}, s{S_T0} offen sc1
s_waitcnt vmcnt(0)
L_slow_next:
s_add_u32 s{S_IT}, s{S_IT}, 1
s_cmp_lt_u32 s{S_IT}, 8
s_cbranch_scc1 L_slow_loop
s_branch L_fin""")
out += tail_code

e(f""".section .rodata,"a"
.p2align 6
.amdhsa_kernel {NAME}_kernel
.amdhsa_next_free_vgpr 256
.amdhsa_next_free_sgpr 102
.amdhsa_accum_offset 256
.amdhsa_group_segment_fixed_size 0
.amdhsa_kernarg_size 88
.amdhsa_user_sgpr_count 2
.amdhsa_user_sgpr_kernarg_segment_ptr 1
.amdhsa_system_sgpr_workgroup_id_x 1
.end_amdhsa_kernel""")
open(sys.argv[1], "w").write("\n".join(out) + "\n")
```

```python
import sys, struct

NAME = "parallel_sum__grouped_kv_mqa__dense_activation_silu__prompt"
OPT = dict(hold=-1, holdT=6000, stamps=0, rt=0, force_slow=0, pf_code=1, pf_wq=1, pf_w1=0, pf_w2=1, f1wait=1, psl=2, pdl=10, fsh=7, chain=0, warm=0, pf_at=0, pf_mall=0, pd0=0)
for a in sys.argv[2:]:
    k, v = a.split("=")
    OPT[k] = int(v) if v.lstrip("-").isdigit() else v
SITES = ["start"] + (OPT["stamps"].split(",") if OPT["stamps"] else [])
assert len(SITES) <= 9

def f2u(x):
    return struct.unpack("<I", struct.pack("<f", x))[0]
LOG2E = 1.4426950408889634

WS_KV = 0x0
WS_O = 0x40000
WS_H = 0x300000
WS_FL = 0xE00000
FL_H = 1024
WS_ST = 0xF00000
WS_SIZE = 0x1000000
H_GRP = 86 * 2048

H_STR = 12288
L_P1 = 49152
L_WKV = 65536
L_X = 81920
X_STR = 1040
L_P2 = L_X
L_DUMP = L_X + 32768
L_Q = L_X + 64 * X_STR
L_M = L_Q + 8192
L_LS = L_M
L_RSTD = L_M + 4096
L_FLG = L_M + 4608
L_MB = L_M + 5120
L_SL = L_M + 6144
LDS_BYTES = 163840
F_LN, F_LNA, F_WQ, F_Q, F_KVIS, F_G1, F_D0, F_PZ, F_D1, F_DUTY, F_SLOW, F_AS, F_WKV, F_XIS, F_KVS, F_TAG = 0, 16, 32, 48, 64, 80, 96, 112, 128, 144, 176, 192, 208, 224, 240, 256
assert L_SL + 512 <= LDS_BYTES and L_DUMP + 32768 <= L_Q

S_W, S_G, S_J, S_GL = 4, 5, 6, 7
SRD_X, SRD_WS = 8, 12
P_X, P_WQ, P_WK, P_WV, P_WO, P_BX, P_W1, P_W2 = 16, 18, 20, 22, 24, 26, 28, 30
P_OUT, P_DBG, P_WS = 32, 34, 36
S_TA, S_TB = 38, 39
S_TAG = P_BX
SRD_W, SRD_DBG, SRD_A, SRD_B, SRD_C, SRD_OUT = 40, 44, 48, 52, 56, 60
S_STEP, S_SOFF, S_RING, S_FLB = 64, 65, 66, 67
S_C10, S_C01, S_C11 = 68, 69, 70
S_T0, S_T1, S_T2, S_T3, S_T4, S_T5 = 71, 72, 73, 74, 75, 76
S_C = 77
S_EX = 78
S_U = 80
S_HW, S_IT = 88, 89
S_STMP = 90
S_ST0 = 92

VK, VV, SA, SB, VO, VQ = 8, 72, 200, 216, 232, 248

out, tail_code = [], []
cur = [out]
def e(s):
    for l in s.split("\n"):
        l = l.strip()
        if l:
            cur[0].append(l if l.endswith(":") or l.startswith(".") else "    " + l)
class outofline:
    def __enter__(self):
        self.prev, cur[0] = cur[0], []
    def __exit__(self, *a):
        tail_code.extend(cur[0]); cur[0] = self.prev

def vr(a, n=1):
    return f"v{a}" if n == 1 else f"v[{a}:{a+n-1}]"
def sr(a, n=1):
    return f"s{a}" if n == 1 else f"s[{a}:{a+n-1}]"
def mf32(d, a, b, c=None):
    e(f"v_mfma_f32_32x32x16_bf16 {vr(d,16)}, {vr(a,4)}, {vr(b,4)}, {vr(c,16) if c is not None else 0}")
def mf16(d, a, b, c=None):
    e(f"v_mfma_f32_16x16x32_bf16 {vr(d,4)}, {vr(a,4)}, {vr(b,4)}, {vr(c,4) if c is not None else 0}")
def srd(d, p, n):
    e(f"s_mov_b32 s{d}, s{p}\ns_mov_b32 s{d+1}, s{p+1}\ns_mov_b32 s{d+2}, {hex(n)}\ns_mov_b32 s{d+3}, 0x20000")
def off(n):
    return f" offset:{n}" if n else ""
uid = [0]
def label(p):
    uid[0] += 1
    return f"L_{p}_{uid[0]}"
def stamp(k):
    if OPT["hold"] == k:
        lb = label("hold")
        e(f"{lb}:\ns_memrealtime {sr(S_STMP,2)}\ns_waitcnt lgkmcnt(0)\ns_sub_u32 s{S_STMP}, s{S_STMP}, s{S_ST0+9}\ns_cmp_lt_u32 s{S_STMP}, {OPT['holdT']}\ns_cbranch_scc1 {lb}")
    if OPT["stamps"] and k in SITES:
        e(f"s_mem{'real' if OPT['rt'] else ''}time {sr(S_STMP,2)}\ns_waitcnt lgkmcnt(0)\ns_mov_b32 s{S_ST0+SITES.index(k)}, s{S_STMP}")

class Queue:
    def __init__(self, kind):
        self.kind, self.n, self.tags = kind, 0, {}
    def issue(self, tag=None):
        self.n += 1
        if tag is not None:
            self.tags[tag] = self.n
    def left(self, tag):
        return self.n - self.tags[tag]
    def wait(self, tag):
        e(f"s_waitcnt {self.kind}({min(self.left(tag), 63 if self.kind == 'vmcnt' else 15)})")

def retry(top, sleep, hook=None):
    stub = label("retry")
    e(f"s_cbranch_vccnz {stub}")
    with outofline():
        e(f"{stub}:\ns_sub_u32 s3, s3, 1\ns_cbranch_scc1 L_exit")
        if hook: hook()
        if sleep: e(f"s_sleep {sleep}")
        e(f"s_branch {top}")

def lds_spin(vaddr, offset, vtmp, cmp, ref, sleep=0, prio=None):
    top = label("spin")
    e(f"{top}:\nds_read_b32 v{vtmp}, v{vaddr}{off(offset)}\ns_waitcnt lgkmcnt(0)")
    if prio: e(f"s_setprio {prio[0]}")
    e(f"{cmp} vcc, {ref}, v{vtmp}")
    e(f"s_setprio {prio[1]}" if prio else "s_nop 0")
    retry(top, sleep)

def glb_spin(vaddr, soff, vtmp, sleep=2, prio=None):
    top = label("poll")
    e(f"{top}:\nbuffer_load_dwordx2 {vr(vtmp,2)}, v{vaddr}, {sr(SRD_WS,4)}, {soff} offen sc1\ns_waitcnt vmcnt(0)")
    if prio: e(f"s_setprio {prio[0]}")
    e(f"v_cmp_ne_u64 vcc, {sr(S_TAG,2)}, {vr(vtmp,2)}")
    e(f"s_setprio {prio[1]}" if prio else "s_nop 0")
    retry(top, sleep)

def read_tag(va, vt):
    e(f"""v_mov_b32 v{va}, {L_FLG + F_TAG}
ds_read_b64 {vr(vt,2)}, v{va}
s_waitcnt lgkmcnt(0)
v_readfirstlane_b32 s{S_TAG}, v{vt}
v_readfirstlane_b32 s{S_TAG+1}, v{vt+1}""")

def tr_addr(dst, tmp, half_shift):
    e(f"""v_and_b32 v{dst}, 3, v0
v_lshlrev_b32 v{dst}, 3, v{dst}
v_bfe_u32 v{tmp}, v0, 2, 2
v_lshl_add_u32 v{dst}, v{tmp}, 6, v{dst}
v_bfe_u32 v{tmp}, v0, 4, 1
v_lshl_add_u32 v{dst}, v{tmp}, 5, v{dst}
v_lshrrev_b32 v{tmp}, 5, v0
v_lshl_add_u32 v{dst}, v{tmp}, {half_shift}, v{dst}""")

def dpp_sum(regs):
    for r in (8, 4, 2, 1):
        for a in regs:
            e(f"v_add_f32_dpp v{a}, v{a}, v{a} row_ror:{r} row_mask:0xf bank_mask:0xf")
        if len(regs) < 3 and r != 1:
            e(f"s_nop {2 - len(regs)}")

def ln_units(X, waits, vwr, vst, A, B, T):
    n = len(X)
    for u in range(n):
        e(f"s_waitcnt vmcnt({waits[u]})")
        if u == 0:
            stamp("xarr")
        for i in range(16):
            e(f"v_dot2_f32_bf16 v{A+u}, v{X[u]+i}, s{S_C11}, {'v%d' % (A+u) if i else 0}")
    e(f"s_nop {3 - n}")
    dpp_sum([A + u for u in range(n)])
    for u in range(n):
        e(f"v_mul_f32 v{A+u}, {hex(f2u(-1.0/512))}, v{A+u}")
    for u in range(n):
        for gi in range(4):
            for k in range(4):
                e(f"v_dot2_f32_bf16 v{T+2*k}, v{X[u]+4*gi+k}, s{S_C10}, v{A+u}")
                e(f"v_dot2_f32_bf16 v{T+2*k+1}, v{X[u]+4*gi+k}, s{S_C01}, v{A+u}")
            for k in range(4):
                e(f"v_cvt_pk_bf16_f32 v{X[u]+4*gi+k}, v{T+2*k}, v{T+2*k+1}")
            e(f"ds_write_b128 v{vwr+u}, {vr(X[u]+4*gi,4)}{off(gi*16*X_STR)}")
            for k in range(4):
                e(f"v_dot2_f32_bf16 v{B+u}, v{X[u]+4*gi+k}, v{X[u]+4*gi+k}, {'v%d' % (B+u) if gi or k else 0}")
    e(f"s_nop {3 - n}")
    dpp_sum([B + u for u in range(n)])
    for u in range(n):
        e(f"v_mov_b32 v{A+u}, {hex(f2u(1e-5))}\nv_fmac_f32 v{A+u}, {hex(f2u(1.0/512))}, v{B+u}")
    for u in range(n):
        e(f"v_rsq_f32 v{B+u}, v{A+u}")
    e("s_waitcnt lgkmcnt(6)")
    for u in range(n):
        e(f"v_mul_f32 v{A+u}, v{A+u}, v{B+u}")
        e(f"ds_write_b32 v{vst+u}, v{B+u}\nds_write_b32 v{vst+u}, v{A+u} offset:256")

def w1_prefetch(va, vt, vd):
    e(f"""v_lshrrev_b32 v{va}, 5, v0
v_mul_u32_u24 v{va}, 2752, v{va}
v_and_b32 v{vt}, 31, v0
v_min_u32 v{vt}, 22, v{vt}
v_lshl_add_u32 v{va}, v{vt}, 6, v{va}""")
    e(f"""s_lshl_b32 s{S_T0}, s{S_C}, 2
s_add_u32 s{S_T0}, s{S_T0}, s{S_HW}
s_mul_i32 s{S_T0}, s{S_T0}, {4*2752}
s_lshr_b32 s{S_T2}, s{S_J}, 2
s_mul_i32 s{S_T2}, s{S_T2}, {20*64}
s_add_u32 s{S_T0}, s{S_T0}, s{S_T2}
s_add_u32 s{S_T2}, s{S_T0}, {2*2752}
buffer_load_dword v{vd}, v{va}, {sr(SRD_W,4)}, s{S_T0} offen
buffer_load_dword v{vd}, v{va}, {sr(SRD_W,4)}, s{S_T2} offen""")

HDR = open("cdna_kernels/" + NAME + ".s.ref").read().split("\n")
out += [l for l in HDR if l.startswith(";") and "@launch" not in l]
out.append(f"; @launch grid=(256,1,1) block=(512,1,1) lds={LDS_BYTES}")
e(f'.amdgcn_target "amdgcn-amd-amdhsa--gfx950"\n.text\n.globl {NAME}_kernel\n.p2align 8\n.type {NAME}_kernel,@function')
e(f"{NAME}_kernel:")

e("s_cmp_ge_u32 s2, 256\ns_cbranch_scc1 L_exit")
if OPT["stamps"] or OPT["hold"] != -1:
    e(f"s_memrealtime {sr(S_STMP,2)}\ns_waitcnt lgkmcnt(0)\ns_mov_b32 s{S_ST0+9}, s{S_STMP}")
    stamp("start")
    for k in range(1, 9):
        e(f"s_mov_b32 s{S_ST0+k}, s{S_ST0}")
e(f"""s_load_dwordx16 s[16:31], s[0:1], 0
s_load_dwordx4 s[32:35], s[0:1], 64
s_load_dwordx2 s[36:37], s[0:1], 80
v_lshrrev_b32 v1, 6, v0
v_and_b32 v0, 63, v0
s_lshr_b32 s{S_C}, s2, 3
v_readfirstlane_b32 s{S_W}, v1""")
if OPT["pf_code"]:
    e(f"""s_getpc_b64 {sr(S_T0+1,2)}
L_pc:
v_lshl_add_u32 v1, s{S_C}, 3, v1
v_mul_u32_u24 v1, 192, v1
v_min_u32 v2, 2, v0
v_lshl_add_u32 v1, v2, 6, v1
v_min_u32 v1, L_code_end-L_pc-4, v1
global_load_dword v71, v1, {sr(S_T0+1,2)}""")
e(f"""v_mov_b32 v3, 0
v_lshlrev_b32 v2, 2, v0
v_add_u32 v2, {L_FLG}, v2
ds_write2st64_b32 v2, v3, v3 offset1:1
s_and_b32 s{S_GL}, s{S_C}, 7
s_bfe_u32 s{S_T0}, s2, 0x20001
s_lshl_b32 s{S_T0}, s{S_T0}, 3
s_add_u32 s{S_G}, s{S_T0}, s{S_GL}
s_lshr_b32 s{S_T3}, s{S_C}, 3
s_and_b32 s{S_T0}, s2, 1
s_lshl_b32 s{S_T0}, s{S_T0}, 2
s_add_u32 s{S_J}, s{S_T3}, s{S_T0}
s_and_b32 s{S_HW}, s{S_W}, 3
v_lshrrev_b32 v4, 4, v0
v_and_b32 v5, 15, v0
s_lshl_b32 s{S_T0}, s{S_HW}, 2
v_add_u32 v4, s{S_T0}, v4
v_lshlrev_b32 v1, 10, v4
v_lshl_add_u32 v1, v5, 4, v1
s_lshl_b32 s{S_T4}, s{S_G}, 2
s_add_u32 s{S_SOFF}, s{S_T4}, s{S_T3}
s_lshl_b32 s{S_SOFF}, s{S_SOFF}, 14
s_mov_b32 s{SRD_X+2}, {hex(2048*1024)}
s_mov_b32 s{SRD_X+3}, 0x20000
s_mov_b32 s3, 0x40000
s_waitcnt lgkmcnt(0)""")
if OPT["chain"]:
    srd(SRD_A, OPT["chain"], 1 << 20)
    e(f"s_lshl_b32 s{S_T0}, s2, 12\nv_mov_b32 v2, 0")
    for k in range(32):
        e(f"buffer_load_dword v3, v2, {sr(SRD_A,4)}, s{S_T0} offen offset:{k*128}\ns_waitcnt vmcnt(0)")
e(f"""s_cmp_lt_u32 s{S_W}, 4
s_mov_b32 s{SRD_X}, s{P_X}
s_mov_b32 s{SRD_X+1}, s{P_X+1}
s_cbranch_scc1 L_afront""")

def common_setup():
    srd(SRD_WS, P_WS, WS_SIZE)
    srd(SRD_DBG, P_DBG, 256)
    e(f"""s_lshl_b32 s{S_FLB}, s{S_G}, 11
s_add_u32 s{S_FLB}, s{S_FLB}, {hex(WS_FL)}
s_mov_b32 s{S_C10}, 0x00003f80
s_mov_b32 s{S_C01}, 0x3f800000
s_mov_b32 s{S_C11}, 0x3f803f80
v_mul_u32_u24 v2, {X_STR}, v5
v_lshl_add_u32 v2, v4, 4, v2
v_lshlrev_b32 v4, 2, v4""")

XA = 8
stamp("karg")
for i in range(4):
    e(f"buffer_load_dwordx4 {vr(XA+4*i,4)}, v1, {sr(SRD_X,4)}, s{S_SOFF} offen{off(256*i)}")
e("s_barrier\ns_setprio 2")
common_setup()
srd(SRD_W, P_WQ, 512 * 1024)
V_FLW, V_FLR, V_ONE = 253, 254, 255
e(f"""s_lshl_b32 s{S_T0}, s{S_T3}, 8
s_add_u32 s{S_T0}, s{S_T0}, {L_X}
v_add_u32 v2, s{S_T0}, v2
s_lshl_b32 s{S_T0}, s{S_T3}, 6
s_add_u32 s{S_T0}, s{S_T0}, {L_RSTD}
v_add_u32 v4, s{S_T0}, v4
s_lshl_b32 s{S_T0}, s{S_HW}, 2
s_add_u32 s{S_T0}, s{S_T0}, {L_FLG}
v_mov_b32 v{V_FLW}, s{S_T0}
v_and_b32 v7, 3, v0
v_lshlrev_b32 v{V_FLR}, 2, v7
v_add_u32 v{V_FLR}, {L_FLG}, v{V_FLR}
v_mov_b32 v{V_ONE}, 1
v_lshrrev_b32 v6, 2, v0
v_lshlrev_b32 v6, 10, v6
v_lshl_add_u32 v6, v7, 4, v6
s_and_b32 s{S_T0}, s{S_HW}, 1
s_lshl_b32 s{S_RING}, s{S_T0}, 15
s_lshl_b32 s{S_T0}, s{S_T0}, 6
s_lshl_b32 s{S_T1}, s{S_J}, 7
s_add_u32 s{S_T0}, s{S_T0}, s{S_T1}
s_lshr_b32 s{S_T1}, s{S_HW}, 1
s_lshl_b32 s{S_T2}, s{S_T1}, 18
s_add_u32 s{S_SOFF}, s{S_T0}, s{S_T2}
s_lshl_b32 s{S_T1}, s{S_T1}, 14
s_add_u32 s{S_RING}, s{S_RING}, s{S_T1}
s_cmp_eq_u32 s{S_W}, 4
s_cbranch_scc0 L_h123""")
WF, XF, KA = 72, 136, 200
e(f"""s_bitcmp1_b32 s{S_J}, 2
s_cselect_b32 s{SRD_A}, s{P_WV}, s{P_WK}
s_cselect_b32 s{SRD_A+1}, s{P_WV+1}, s{P_WK+1}
s_mov_b32 s{SRD_A+2}, 16384
s_mov_b32 s{SRD_A+3}, 0x20000
v_lshlrev_b32 v1, 4, v0""")
for i in range(4):
    e(f"s_mov_b32 m0, {L_WKV + i*4096}\ns_mov_b32 s{S_T0}, {i*4096}")
    for k in range(4):
        e(f"buffer_load_dwordx4 v1, {sr(SRD_A,4)}, s{S_T0} offen{off(1024*k)} lds")
e(f"""ds_write_b32 v{V_FLR}, v{V_ONE} offset:{F_WKV}
v_lshlrev_b32 v3, 3, v7
v_bfe_u32 v52, v0, 2, 2
v_lshl_add_u32 v3, v52, 5, v3
v_lshrrev_b32 v52, 4, v0
v_lshl_add_u32 v3, v52, 8, v3
v_add_u32 v3, {L_WKV}, v3
v_mul_u32_u24 v53, {X_STR}, v52
v_lshl_add_u32 v53, v5, 4, v53
s_lshl_b32 s{S_T0}, s{S_T3}, 8
s_add_u32 s{S_T0}, s{S_T0}, {L_X}
v_add_u32 v53, s{S_T0}, v53
s_lshl_b32 s{S_T0}, s{S_T3}, 6
s_add_u32 s{S_T0}, s{S_T0}, {L_RSTD}
v_lshl_add_u32 v54, v5, 2, s{S_T0}
v_lshl_add_u32 v55, v52, 4, s{S_T0}
s_lshl_b32 s{S_T0}, s{S_G}, 12
s_lshr_b32 s{S_T1}, s{S_T3}, 1
s_lshl_b32 s{S_T1}, s{S_T1}, 11
s_add_u32 s{S_T0}, s{S_T0}, s{S_T1}
s_and_b32 s{S_T1}, s{S_T3}, 1
s_lshl_b32 s{S_T1}, s{S_T1}, 9
s_add_u32 s{S_T0}, s{S_T0}, s{S_T1}
s_lshr_b32 s{S_T1}, s{S_J}, 2
s_lshl_b32 s{S_T1}, s{S_T1}, 10
s_add_u32 s{S_T5}, s{S_T0}, s{S_T1}""")
ln_units([XA], [16], 2, 4, 41, 42, 44)
e(f"ds_write_b32 v{V_FLW}, v{V_ONE} offset:{F_LN}")
e(f"ds_write_b32 v{V_FLW}, v{V_ONE} offset:{F_WQ}")
stamp("lnA")
e("s_waitcnt vmcnt(0)")
for s in range(16):
    if s % 4 == 0:
        e("s_waitcnt lgkmcnt(6)")
    for i in range(2):
        e(f"ds_read_b64_tr_b16 {vr(WF+4*s+2*i,2)}, v3{off(s*1024 + i*128)}")
lds_spin(V_FLR, F_LN, 52, "v_cmp_ne_u32", 1)
stamp("bar1")
e(f"s_bitcmp1_b32 s{S_J}, 2\ns_cbranch_scc1 L_kv_v")
def kv_tile(isv):
    lq = Queue("lgkmcnt")
    def xr(s):
        e(f"ds_read_b128 {vr(XF+4*s,4)}, v53{off(s*4*X_STR)}")
        lq.issue(s)
    for s in range(8):
        xr(s)
    for s in range(16):
        if s + 8 < 16:
            xr(s + 8)
        elif s == 8:
            e("ds_read_b128 v[56:59], v55" if isv else "ds_read_b32 v56, v54")
            lq.issue("rs")
        lq.wait(s)
        if isv:
            mf16(KA, XF + 4 * s, WF + 4 * s, KA if s else None)
        else:
            mf16(KA, WF + 4 * s, XF + 4 * s, KA if s else None)
    e("v_mov_b32 v62, 0\nv_mov_b32 v63, 0\ns_waitcnt lgkmcnt(0)\ns_nop 4")
    for k in range(4):
        e(f"v_mul_f32 v{KA+k}, v{KA+k}, v{56 + (k if isv else 0)}")
    e(f"""v_cvt_pk_bf16_f32 v60, v{KA}, v{KA+1}
v_cvt_pk_bf16_f32 v61, v{KA+2}, v{KA+3}
s_nop 1
v_permlane32_swap_b32 v60, v62
v_permlane32_swap_b32 v61, v63
s_mov_b32 exec_hi, 0
buffer_store_dwordx4 v[60:63], v1, {sr(SRD_WS,4)}, s{S_T5} offen sc1
s_mov_b32 exec_hi, -1""")
kv_tile(0)
e("s_branch L_kv_done\nL_kv_v:")
kv_tile(1)
e("L_kv_done:")
stamp("kvst")
e(f"""v_mov_b32 v52, 0
v_mov_b32 v53, {L_FLG + F_TAG}
s_lshl_b32 s{S_T5}, s{S_J}, {OPT['fsh']}
s_add_u32 s{S_T5}, s{S_T5}, s{S_FLB}
L_tag:
buffer_load_dwordx2 v[54:55], v52, {sr(SRD_DBG,4)}, 0 offen sc1
s_waitcnt vmcnt(0)
v_cmp_eq_u32 vcc, 0, v54
s_nop 0""")
retry("L_tag", 2)
e(f"""s_mov_b64 exec, 1
buffer_store_dwordx2 v[54:55], v52, {sr(SRD_WS,4)}, s{S_T5} offen sc1
s_mov_b64 exec, -1
ds_write_b64 v53, v[54:55]
ds_write_b32 v{V_FLR}, v{V_ONE} offset:{F_KVS}""")
stamp("kvfl")
lds_spin(V_FLR, F_WQ, 52, "v_cmp_ne_u32", 1)
e("s_branch L_wq2")
e("L_h123:")
ln_units([XA], [0], 2, 4, 41, 42, 44)
e(f"ds_write_b32 v{V_FLW}, v{V_ONE} offset:{F_LN}")
stamp("lnA")
lds_spin(V_FLR, F_XIS, 52, "v_cmp_ne_u32", 1)
e(f"s_mov_b32 s{S_T5}, s{S_RING}\nL_wq:")
for k in range(16):
    e(f"s_add_u32 m0, s{S_T5}, {k*1024}\ns_nop 0\nbuffer_load_dwordx4 v6, {sr(SRD_W,4)}, s{S_SOFF} offen lds\ns_add_u32 s{S_SOFF}, s{S_SOFF}, 16384")
e(f"s_sub_u32 s{S_SOFF}, s{S_SOFF}, {32*16384}\ns_cmp_eq_u32 s{S_T5}, 16384\ns_mov_b32 s{S_T5}, 0\ns_cbranch_scc1 L_wq\ns_waitcnt vmcnt(0)\nds_write_b32 v{V_FLW}, v{V_ONE} offset:{F_WQ}\nL_wq2:")
tr_addr(7, 3, 9)
V_XR = 252
e(f"""v_mul_u32_u24 v{V_XR}, {X_STR}, v3
v_and_b32 v3, 31, v0
v_lshl_add_u32 v{V_XR}, v3, 4, v{V_XR}
v_add_u32 v{V_XR}, {L_X}, v{V_XR}
v_lshlrev_b32 v4, 2, v3
v_add_u32 v1, s{S_RING}, v7
v_xor_b32 v2, 0x4000, v1
s_lshr_b32 s{S_T1}, s{S_HW}, 1
s_mul_i32 s{S_T0}, s{S_T1}, {32*X_STR + 512}
v_add_u32 v5, s{S_T0}, v{V_XR}
s_mul_i32 s{S_T0}, s{S_T1}, {512 - 32*X_STR}
s_add_u32 s{S_T0}, s{S_T0}, {32*X_STR}
v_add_u32 v3, s{S_T0}, v{V_XR}
v_and_b32 v48, 15, v0
v_min_u32 v48, 11, v48
v_lshlrev_b32 v48, 2, v48
v_add_u32 v48, {L_FLG}, v48
""")
srd(SRD_W, P_W1, 512 * 2752)
if OPT["pf_w1"] == 1:
    w1_prefetch(48, 49, 250)
QA, QB, QO, QACC = 72, 8, 24, 200
for k in range(16):
    if k % 4 == 0 and k:
        e("s_waitcnt lgkmcnt(4)")
    for i in range(2):
        e(f"ds_read_b64_tr_b16 {vr(QA+4*k+2*i,2)}, v1{off(k*1024 + i*256)}")
lds_spin(48, F_LN, 52, "v_cmp_ne_u32", 1)
stamp("ln")
lq = Queue("lgkmcnt")
def q_reads(s):
    if s >= 16:
        for i in range(2):
            e(f"ds_read_b64_tr_b16 {vr(QO+4*(s % 4)+2*i,2)}, v2{off((s-16)*1024 + i*256)}")
            lq.issue()
    e(f"ds_read_b128 {vr(QB+4*(s % 4),4)}, v{5 if s < 16 else 3}{off((s % 16)*2*X_STR)}")
    lq.issue(s)
for s in range(3):
    q_reads(s)
for s in range(32):
    if s + 3 < 32:
        q_reads(s + 3)
    elif s == 29:
        e(f"s_lshr_b32 s{S_T1}, s{S_HW}, 1\ns_lshl_b32 s{S_T0}, s{S_T1}, 7\ns_add_u32 s{S_T0}, s{S_T0}, {L_RSTD}\nv_add_u32 v1, s{S_T0}, v4\nds_read_b32 v44, v1")
        lq.issue()
    lq.wait(s)
    mf32(QACC, QA + 4 * s if s < 16 else QO + 4 * (s % 4), QB + 4 * (s % 4), QACC if s else None)
e(f"""s_lshl_b32 s{S_T0}, s{S_HW}, 11
s_add_u32 s{S_T0}, s{S_T0}, {L_Q}
v_lshl_add_u32 v1, v0, 4, s{S_T0}
s_waitcnt lgkmcnt(0)
v_mul_f32 v44, {hex(f2u(0.25*LOG2E))}, v44
v_mov_b32 v45, v44
s_nop 5""")
for hl in range(2):
    for k in range(4):
        e(f"v_pk_mul_f32 {vr(QACC+8*hl+2*k,2)}, {vr(QACC+8*hl+2*k,2)}, v[44:45]")
    for k in range(4):
        e(f"v_cvt_pk_bf16_f32 v{8+4*hl+k}, v{QACC+8*hl+2*k}, v{QACC+8*hl+2*k+1}")
    e(f"ds_write_b128 v1, {vr(8+4*hl,4)}{off(hl*1024)}")
e(f"ds_write_b32 v{V_FLW}, v{V_ONE} offset:{F_Q}")
stamp("qd")

V_S0, V_PART, V_TR2, V_LS, V_DW0, V_DW1, V_DR0 = 1, 2, 3, 4, 5, 6, 7
V_DR1, V_OUT, V_TMP, V_L16, V_TB = 248, 249, 250, 251, 252
V_WO, V_TT, V_HF = 60, 61, 62
V_WA, V_WB, V_TR, V_PF, VXR, V_CS, V_NEG, V_TAG = 72, 73, 74, 75, 76, 92, 100, 104
S_OB, S_PC, S_XO, S_CLS, S_RET, S_BLK = 16, 20, 22, 18 + 6, 0, 2
t0, t1, t2, t3 = 24, 25, 26, 27
e(f"""s_mul_i32 s{S_T0}, s{S_J}, 5
s_min_u32 s{S_T1}, s{S_J}, 3
s_add_u32 s{S_T0}, s{S_T0}, s{S_T1}
s_add_u32 s{S_TA}, s{S_T0}, s{S_HW}
s_lshr_b32 s{S_T5}, s{S_HW}, 1
s_add_u32 s{S_TB}, s{S_T0}, s{S_T5}
s_add_u32 s{S_TB}, s{S_TB}, 4
s_mul_i32 s{S_T1}, s{S_T5}, s{S_J}
s_cmp_lt_u32 s{S_T1}, 3
s_cselect_b32 s{S_TB}, s{S_TB}, 0x100000
s_mul_i32 s{S_RING}, s{S_HW}, {H_STR}
s_and_b32 s{S_T4}, s{S_HW}, 1
s_lshl_b32 s{S_T0}, s{S_T4}, 7
s_add_u32 s{S_T0}, s{S_T0}, {L_RSTD}
v_add_u32 v{t0}, s{S_T0}, v4
v_xor_b32 v{t1}, 0x80, v{t0}
ds_read_b32 v{V_CS}, v{t0}
ds_read_b32 v{V_CS+2}, v{t1}
ds_read_b32 v{V_CS+4}, v{t0} offset:256
ds_read_b32 v{V_CS+6}, v{t1} offset:256
v_add_u32 v{V_TR}, s{S_RING}, v7
v_lshrrev_b32 v{t3}, 5, v0
v_lshlrev_b32 v{t0}, 8, v{t3}
v_sub_u32 v{V_TR2}, v{V_TR}, v{t0}
v_lshlrev_b32 v{V_HF}, 3, v4
s_lshl_b32 s{S_T0}, s{S_HW}, 9
s_add_u32 s{S_T0}, s{S_T0}, {L_LS}
v_add_u32 v{V_LS}, s{S_T0}, v4
s_lshl_b32 s{S_T0}, s{S_J}, 7
v_add_u32 v{V_S0}, s{S_T0}, v6
s_lshl_b32 s{S_T1}, s{S_T4}, 6
v_add_u32 v{V_WO}, s{S_T1}, v{V_S0}
v_lshrrev_b32 v{t0}, 2, v0
v_mul_u32_u24 v{t0}, 2752, v{t0}
v_and_b32 v{t1}, 3, v0
v_lshl_add_u32 v{t0}, v{t1}, 4, v{t0}
s_lshl_b32 s{S_T2}, s{S_TA}, 6
v_add_u32 v{V_WA}, s{S_T2}, v{t0}
s_lshl_b32 s{S_T2}, s{S_TB}, 6
v_add_u32 v{V_WB}, s{S_T2}, v{t0}
v_lshlrev_b32 v{V_TT}, 4, v{t1}
v_bfe_u32 v{t1}, v0, 2, 2
v_lshl_add_u32 v{V_TT}, v{t1}, 6, v{V_TT}
v_bfe_u32 v{t2}, v0, 4, 1
v_lshl_add_u32 v{V_TT}, v{t2}, 8, v{V_TT}
v_lshl_add_u32 v{V_TT}, v{t3}, 10, v{V_TT}
v_add_u32 v{V_TT}, s{S_RING}, v{V_TT}
v_lshlrev_b32 v{V_L16}, 4, v0
s_lshl_b32 s{S_T2}, s{S_T4}, 9
s_xor_b32 s{S_T3}, s{S_T2}, 512""")
for k in range(8):
    e(f"s_add_u32 s{S_U}, s{S_GL}, {k}\ns_and_b32 s{S_U}, s{S_U}, 7\ns_mul_i32 s{S_U}, s{S_U}, {8*X_STR}")
    e(f"s_add_u32 s{S_U+1}, s{S_U}, s{S_T2}\nv_add_u32 v{VXR+k}, s{S_U+1}, v{V_XR}\ns_add_u32 s{S_U+1}, s{S_U}, s{S_T3}\nv_add_u32 v{VXR+8+k}, s{S_U+1}, v{V_XR}")
srd(SRD_B, P_W2, 1376 * 1024)
srd(SRD_C, P_WO, 512 * 1024)
srd(SRD_OUT, P_OUT, 2048 * 1024)
e(f"""v_lshlrev_b32 v{V_TB}, 9, v{t2}
v_lshl_add_u32 v{V_TB}, v{t3}, 12, v{V_TB}
v_and_b32 v{t0}, 15, v0
v_lshrrev_b32 v{t1}, 4, v0
v_lshlrev_b32 v{V_OUT}, 10, v{t0}
v_lshl_add_u32 v{V_OUT}, v{t1}, 4, v{V_OUT}
s_lshl_b32 s{S_T2}, s{S_T5}, 4
v_add_u32 v{t0}, s{S_T2}, v{t0}
v_lshl_add_u32 v{V_TB}, v{t0}, 4, v{V_TB}
v_lshlrev_b32 v{V_DR1}, 4, v{t0}
v_lshl_add_u32 v{V_DR1}, v{t1}, 10, v{V_DR1}
s_lshl_b32 s{S_T2}, s{S_T4}, 12
v_add_u32 v{V_DR1}, s{S_T2}, v{V_DR1}
v_add_u32 v{V_DR0}, {L_DUMP}, v{V_DR1}
v_add_u32 v{V_DW1}, s{S_RING}, v{V_L16}
s_lshl_b32 s{S_T2}, s{S_HW}, 13
s_add_u32 s{S_T2}, s{S_T2}, {L_DUMP}
v_add_u32 v{V_DW0}, s{S_T2}, v{V_L16}
s_lshl_b32 s{S_T2}, s{S_HW}, 11
s_add_u32 s{S_T2}, s{S_T2}, {L_P1}
v_add_u32 v{V_PART}, s{S_T2}, v{V_L16}
v_lshrrev_b32 v{V_PF}, 1, v0
v_lshlrev_b32 v{V_PF}, 10, v{V_PF}
v_and_b32 v{t0}, 1, v0
v_lshl_add_u32 v{V_PF}, v{t0}, 6, v{V_PF}
v_and_b32 v{V_NEG}, 3, v0
v_lshlrev_b32 v{V_NEG}, 7, v{V_NEG}
v_add_u32 v{V_NEG}, {L_LS}, v{V_NEG}
v_mov_b32 v{V_TAG+2}, 0
s_lshl_b32 s{S_T2}, s{S_G}, 2
s_add_u32 s{S_T2}, s{S_T2}, s{S_T5}
s_lshl_b32 s{S_T2}, s{S_T2}, 14
s_add_u32 s{S_T2}, s{S_T2}, s{S_T0}
s_add_u32 s{S_XO}, s{S_T2}, s{S_T1}
s_add_u32 s{S_XO+1}, s{S_XO}, 32768
s_lshl_b32 s{S_T2}, s{S_G}, 16
s_add_u32 s{S_OB}, s{S_T2}, {hex(WS_O)}
s_add_u32 s{S_OB+1}, s{S_OB}, 8192
s_add_u32 s{S_OB+2}, s{S_OB}, 16384
s_add_u32 s{S_OB+3}, s{S_OB}, 24576
s_lshl_b32 s{S_T2}, s{S_J}, 2
s_add_u32 s{S_T2}, s{S_T2}, s{S_HW}
s_lshl_b32 s{S_T3}, s{S_T2}, 10
s_add_u32 s{S_PC}, s{S_OB}, s{S_T3}
s_add_u32 s{S_PC+1}, s{S_PC}, 32768
s_add_u32 s{S_FLB}, s{S_FLB}, {FL_H}
s_lshl_b32 s{S_T2}, s{S_T2}, 5
s_add_u32 s{S_U+7}, s{S_T2}, s{S_FLB}
s_mul_i32 s{S_T2}, s{S_G}, {H_GRP}
s_add_u32 s{S_T2}, s{S_T2}, {hex(WS_H)}
s_add_u32 s{SRD_A}, s{P_WS}, s{S_T2}
s_addc_u32 s{SRD_A+1}, s{P_WS+1}, 0
s_mov_b32 s{SRD_A+2}, {H_GRP}
s_mov_b32 s{SRD_A+3}, 0x20000
s_lshl_b32 s{S_T3}, s{S_T4}, 10
s_lshl_b32 s{S_T2}, s{S_TA}, 12
s_add_u32 s{S_U+4}, s{S_T2}, s{S_T3}
s_xor_b32 s{S_U+5}, s{S_U+4}, 1024
s_lshl_b32 s{S_T2}, s{S_TB}, 12
s_add_u32 s{S_U+6}, s{S_T2}, s{S_T3}
s_movk_i32 s{S_CLS}, 0x207
s_mov_b32 s{S_IT}, 0
s_mul_i32 s{S_SOFF}, s{S_GL}, {64*2752}
s_lshl_b32 s{S_T1}, s{S_GL}, 2
s_add_u32 s{S_T1}, s{S_T1}, s{S_HW}
s_mul_i32 s{S_T2}, s{S_T1}, {43*1024}
s_add_u32 s{S_T2}, s{S_T2}, s{S_T0}
s_add_u32 s{S_T3}, s{S_T2}, {11*1024}
s_lshl_b32 s{S_T1}, s{S_T1}, 14
s_add_u32 s{S_T1}, s{S_T1}, s{S_T0}
s_waitcnt lgkmcnt(0)
v_mul_f32 v{V_CS}, {hex(f2u(-LOG2E))}, v{V_CS}
v_mul_f32 v{V_CS+2}, {hex(f2u(-LOG2E))}, v{V_CS+2}""")
for k in range(4):
    e(f"v_mov_b32 v{V_CS+2*k+1}, v{V_CS+2*k}")
lds_spin(V_FLR, F_Q, t0, "v_cmp_ne_u32", 1)
read_tag(t0, V_TAG)
e("s_setprio 0")
if OPT["f1wait"] == 1:
    lds_spin(V_FLR, F_KVIS, t0, "v_cmp_ne_u32", 1, sleep=2, prio=(2, 0))
stamp("f1go")

F1A = [200, 216, 232]
FR = [8, 24, 40]
vq, lq = Queue("vmcnt"), Queue("lgkmcnt")
def f1_dma(s):
    for c in range(2):
        e(f"s_add_u32 m0, s{S_RING}, {(s % 6)*2048 + c*1024}\ns_nop 0\nbuffer_load_dwordx4 v{V_WA+c}, {sr(SRD_W,4)}, s{S_SOFF} offen lds")
        vq.issue(("w", s))
    e(f"s_add_u32 s{S_SOFF}, s{S_SOFF}, {16*2752}")
    if s % 4 == 3:
        e(f"s_cmp_ge_u32 s{S_SOFF}, s{SRD_W+2}\ns_cselect_b32 s{S_SOFF}, 0, s{S_SOFF}")
def f1_reads(s, part):
    f = FR[s % 3]
    if part < 2:
        if part == 0:
            vq.wait(("w", s))
        for i in range(2):
            e(f"ds_read_b64_tr_b16 {vr(f+4*part+2*i,2)}, v{V_TR}{off((s % 6)*2048 + part*1024 + i*256)}")
            lq.issue()
    else:
        for b in range(2):
            e(f"ds_read_b128 {vr(f+8+4*b,4)}, v{VXR+8*b+s//4}{off((s % 4)*2*X_STR)}")
            lq.issue(("r", s))
for s in range(6):
    f1_dma(s)
if OPT["f1wait"] == 2:
    lds_spin(V_FLR, F_KVIS, t0, "v_cmp_ne_u32", 1, sleep=2, prio=(2, 0))
for s in range(2):
    for part in range(3):
        f1_reads(s, part)
for s in range(32):
    lq.wait(("r", s))
    f = FR[s % 3]
    for part, (a, b) in enumerate(((f, f + 8), (f, f + 12), (f + 4, f + 8))):
        mf32(F1A[part], a, b, F1A[part] if s else None)
        if s + 2 < 32:
            f1_reads(s + 2, part)
    if s + 6 < 32:
        f1_dma(s + 6)
    if s % 4 == 3: stamp(f"s{s}")
    if s == OPT["pf_at"]:
        if OPT["pf_w2"]:
            e(f"""s_mov_b32 exec_hi, 0
buffer_load_dword v{V_TMP}, v{V_PF}, {sr(SRD_C,4)}, s{S_T1} offen
s_mov_b32 exec_hi, -1
buffer_load_dword v{V_TMP}, v{V_PF}, {sr(SRD_B,4)}, s{S_T2} offen
buffer_load_dword v{V_TMP}, v{V_PF}, {sr(SRD_B,4)}, s{S_T3} offen""")
            vq.issue(); vq.issue(); vq.issue()
stamp("g1")
e(f"ds_write_b32 v{V_FLW}, v{V_ONE} offset:{F_G1}\ns_setprio 2\ns_nop 8")
for ti in range(3):
    if ti == 2:
        e(f"s_cmp_ge_u32 s{S_TB}, 43\ns_cbranch_scc1 L_silu_done")
    for u in range(2):
        A, T, C, R = F1A[ti] + 8 * u, 8, V_CS + 2 * (ti == 1), 16 + 4 * (2 * ti + u)
        for k in range(4):
            e(f"v_pk_mul_f32 {vr(T+2*k,2)}, {vr(A+2*k,2)}, {vr(C,2)}")
        for k in range(8):
            e(f"v_exp_f32 v{T+k}, v{T+k}")
        for k in range(4):
            e(f"v_pk_fma_f32 {vr(T+2*k,2)}, {vr(T+2*k,2)}, {vr(C+4,2)}, {vr(C+4,2)}")
        for k in range(8):
            e(f"v_rcp_f32 v{T+k}, v{T+k}")
        for k in range(4):
            e(f"v_pk_mul_f32 {vr(T+2*k,2)}, {vr(T+2*k,2)}, {vr(A+2*k,2)}")
        for k in range(4):
            e(f"v_cvt_pk_bf16_f32 v{R+k}, v{T+2*k}, v{T+2*k+1}")
        e(f"buffer_store_dwordx4 {vr(R,4)}, v{V_L16}, {sr(SRD_A,4)}, s{S_U+4+ti} offen{off(u*2048)} sc1")
e("L_silu_done:\ns_setprio 0")
stamp("epi")

ACC, F2B, F2A, TA, XR = 8, 200, 232, 72, 240
PC, RT, RL, OB = 24, 200, 232, 236
def reduce_piece(vp, vl):
    for w in range(4):
        e(f"ds_read_b32 v{RL+w}, v{vl}{off(w*128)}")
    for w in range(4):
        for h in range(2):
            e(f"ds_read_b128 {vr(RT+8*w+4*h,4)}, v{vp}{off(w*8192 + h*1024)}")
def reduce_math(extra):
    e(f"v_add_f32 v{RL}, v{RL}, v{RL+1}\nv_add_f32 v{RL+2}, v{RL+2}, v{RL+3}\nv_add_f32 v{RL}, v{RL}, v{RL+2}\nv_rcp_f32 v{RL+2}, v{RL}")
    e(f"s_waitcnt lgkmcnt({4 + extra})")
    for k in range(4):
        e(f"v_pk_add_f32 {vr(RT+2*k,2)}, {vr(RT+2*k,2)}, {vr(RT+8+2*k,2)}")
    e(f"v_mov_b32 v{RL+3}, v{RL+2}\ns_waitcnt lgkmcnt(0)")
    for k in range(4):
        e(f"v_pk_add_f32 {vr(RT+16+2*k,2)}, {vr(RT+16+2*k,2)}, {vr(RT+24+2*k,2)}")
    for k in range(4):
        e(f"v_pk_add_f32 {vr(RT+2*k,2)}, {vr(RT+2*k,2)}, {vr(RT+16+2*k,2)}")
    for k in range(4):
        e(f"v_pk_mul_f32 {vr(RT+2*k,2)}, {vr(RT+2*k,2)}, {vr(RL+2,2)}")
    for k in range(4):
        e(f"v_cvt_pk_bf16_f32 v{OB+k}, v{RT+2*k}, v{RT+2*k+1}")
with outofline():
    lo, hi = f2u(2.0**-32), f2u(2.0**48)
    e(f"""L_duty_no:
s_setprio 0
s_waitcnt lgkmcnt(0)
s_cmp_eq_u32 s{S_BLK}, 0
s_cbranch_scc1 L_duty_ret
s_sub_u32 s3, s3, 1
s_cbranch_scc1 L_exit
s_cmp_eq_u32 s{S_BLK}, 1
s_cbranch_scc1 L_duty
s_sleep 6
L_duty:""")
    reduce_piece(V_PART, V_LS)
    e(f"""ds_read_b32 v{V_TMP}, v{V_FLR} offset:{F_SLOW}
s_waitcnt lgkmcnt(9)
s_setprio 2
v_max3_u32 v{OB}, v{RL}, v{RL+1}, v{RL+2}
v_max_u32 v{OB}, v{OB}, v{RL+3}
v_cmp_eq_u32 vcc, -1, v{OB}
s_nop 0
s_cbranch_vccnz L_duty_no""")
    reduce_math(1)
    for k in range(4):
        e(f"v_dot2_f32_bf16 v{RL+1}, v{OB+k}, s{S_C11}, {'v%d' % (RL+1) if k else 0}")
    e(f"""v_subrev_u32 v{RL+3}, {hex(lo)}, v{RL}
v_cmp_lt_u32 vcc, {hex(hi-lo)}, v{RL+3}
v_cmp_ne_u32 {sr(S_T0+1,2)}, 0, v{V_TMP}
s_add_u32 s{S_IT}, s{S_IT}, 1
v_cmp_class_f32 {sr(S_EX,2)}, v{RL+1}, s{S_CLS}
s_or_b64 vcc, vcc, {sr(S_T0+1,2)}
s_nop 0
s_or_b64 vcc, vcc, {sr(S_EX,2)}""")
    if OPT["force_slow"]:
        e(f"s_cmp_eq_u32 s{S_IT}, {OPT['force_slow']}\ns_cselect_b64 vcc, -1, vcc")
    e(f"""s_cbranch_vccnz L_duty_bad
buffer_store_dwordx4 {vr(OB,4)}, v{V_L16}, {sr(SRD_WS,4)}, s{S_PC} offen sc1
v_mov_b32 v{V_TMP}, s{S_IT}
ds_write_b32 v{V_FLW}, v{V_TMP} offset:{F_DUTY}
L_duty_next:
v_add_u32 v{V_PART}, {L_P2 - L_P1}, v{V_PART}
v_add_u32 v{V_LS}, 2048, v{V_LS}
s_mov_b32 s{S_PC}, s{S_PC+1}
s_setprio 0
L_duty_ret:
s_setpc_b64 {sr(S_RET,2)}
L_duty_bad:
ds_write_b32 v{V_FLR}, v{V_ONE} offset:{F_SLOW}
s_branch L_duty_next""")
def duty(upto, mode):
    skip = label("noduty")
    e(f"s_lshl_b32 s{S_T0}, s{S_IT}, 2\ns_add_u32 s{S_T0}, s{S_T0}, s{S_HW}\ns_mov_b32 s{S_BLK}, {mode}\ns_cmp_lt_u32 s{S_T0}, {upto}\ns_cbranch_scc0 {skip}")
    e(f"s_call_b64 {sr(S_RET,2)}, L_duty\n{skip}:")

HD = 4
vq = Queue("vmcnt")
def wo_dma(u):
    hh, s_ = divmod(u, 4)
    for p in range(2):
        e(f"s_add_u32 m0, s{S_RING}, {(u % 6)*2048 + p*1024}\ns_mov_b32 s{S_SOFF}, {(8*s_ + 4*p + hh)*16384}\nbuffer_load_dwordx4 v{V_WO}, {sr(SRD_C,4)}, s{S_SOFF} offen lds")
        vq.issue(u)
for u in range(6):
    wo_dma(u)
lds_spin(V_NEG, 0, V_NEG + 1, "v_cmp_eq_u32", -1, sleep=2, prio=(2, 0))
e(f"""s_waitcnt vmcnt(12)
s_mov_b64 exec, 1
buffer_store_dwordx2 {vr(V_TAG,2)}, v{V_TAG+2}, {sr(SRD_WS,4)}, s{S_U+7} offen sc1
s_mov_b64 exec, -1""")
vq.issue()
stamp("hfl")
for u in range(16):
    vq.wait(u)
    for ee in range(2):
        for i in range(2):
            e(f"ds_read_b64_tr_b16 {vr(TA+8*u+4*ee+2*i,2)}, v{V_TT}{off((u % 6)*2048 + i*512 + ee*8)}")
    if u:
        e("s_waitcnt lgkmcnt(4)")
        if u + 5 < 16:
            wo_dma(u + 5)
e(f"""s_lshl_b32 s{S_T3}, s{S_J}, 1
s_add_u32 s{S_T3}, s{S_T3}, s{S_GL}
s_and_b32 s{S_T3}, s{S_T3}, 7
s_mul_i32 s{S_T3}, s{S_T3}, 11
s_lshr_b32 s{S_T3}, s{S_T3}, 2
s_mul_i32 s{S_T2}, s{S_HW}, 22
s_add_u32 s{S_T3}, s{S_T3}, s{S_T2}
s_lshl_b32 s{S_SOFF}, s{S_T3}, 14
s_lshl_b32 s{S_STEP}, s{S_T3}, 11
s_lshl_b32 s{S_U}, s{S_T2}, 14
s_add_u32 s{S_U+1}, s{S_U}, {22*16384}
s_lshl_b32 s{S_U+2}, s{S_T2}, 11
s_add_u32 s{S_U+3}, s{S_U+2}, {22*2048}
buffer_load_dwordx2 v[8:9], v{V_HF}, {sr(SRD_WS,4)}, s{S_FLB} offen sc1
s_waitcnt lgkmcnt(0)""")
stamp("wo")
vq, lq = Queue("vmcnt"), Queue("lgkmcnt")
def f2_dma(s):
    e(f"s_add_u32 m0, s{S_RING}, {(s % 6)*2048}\ns_nop 0\nbuffer_load_dwordx4 v{V_S0}, {sr(SRD_B,4)}, s{S_SOFF} offen lds")
    e(f"s_add_u32 m0, s{S_RING}, {(s % 6)*2048 + 1024 - 64}\ns_add_u32 s{S_T4}, s{S_SOFF}, 16384\nbuffer_load_dwordx4 v{V_S0}, {sr(SRD_B,4)}, s{S_SOFF} offen offset:64 lds")
    vq.issue(); vq.issue(("w", s))
    e(f"s_cmp_ge_u32 s{S_T4}, s{S_U+1}\ns_cselect_b32 s{S_SOFF}, s{S_U}, s{S_T4}")
def f2_h(s):
    for c in range(2):
        e(f"buffer_load_dwordx4 {vr(F2B+8*(s % HD)+4*c,4)}, v{V_L16}, {sr(SRD_A,4)}, s{S_STEP} offen{off(1024*c)} sc1")
        vq.issue(("h", s))
    e(f"s_add_u32 s{S_STEP}, s{S_STEP}, 2048\ns_cmp_ge_u32 s{S_STEP}, s{S_U+3}\ns_cselect_b32 s{S_STEP}, s{S_U+2}, s{S_STEP}")
def f2_reads(s, c):
    for i in range(2):
        e(f"ds_read_b64_tr_b16 {vr(F2A+8*(s % 2)+4*c+2*i,2)}, v{V_TR2}{off((s % 6)*2048 + c*1024 + i*512)}")
        lq.issue(("r", s))
for s in range(6):
    f2_dma(s)
duty(4, 0)
e(f"s_waitcnt vmcnt(12)\ns_setprio 2\nv_cmp_ne_u64 vcc, {sr(S_TAG,2)}, v[8:9]\ns_setprio 0\ns_cbranch_vccnz L_hslow\nL_hok:")
with outofline():
    e("L_hslow:")
    glb_spin(V_HF, f"s{S_FLB}", 8, sleep=4, prio=(2, 0))
    e("s_branch L_hok")
stamp("hok")
for s in range(HD):
    f2_h(s)
vq.wait(("w", 0))
f2_reads(0, 0)
f2_reads(0, 1)
for s in range(22):
    need = vq.left(("h", s))
    if s + 1 < 22:
        need = min(need, vq.left(("w", s + 1)))
    e(f"s_waitcnt vmcnt({need}) lgkmcnt(0)")
    f, bb = F2A + 8 * (s % 2), F2B + 8 * (s % HD)
    for u in range(4):
        mf32(ACC + 16 * u, f + 4 * (u & 1), bb + 4 * (u >> 1), ACC + 16 * u if s else None)
        if u < 2 and s + 1 < 22:
            f2_reads(s + 1, u)
    if s + HD < 22:
        f2_h(s + HD)
    if s + 6 < 22:
        f2_dma(s + 6)
stamp("f2")

def piece_loads(heads):
    for n, hh in enumerate(heads):
        for s_ in range(4):
            e(f"buffer_load_dwordx4 {vr(PC+16*n+4*s_,4)}, v{V_TB}, {sr(SRD_WS,4)}, s{S_OB+s_} offen{off(hh*1024)} sc1")
def consume(tb, heads, sleep, issued=False):
    top, chk, n4 = label("ld"), label("chk"), 4 * len(heads)
    if issued:
        with outofline():
            e(f"{top}:")
            piece_loads(heads)
            e(f"s_branch {chk}")
    else:
        e(f"{top}:")
        piece_loads(heads)
    e(f"{chk}:")
    for n in range(n4):
        d = PC + 4 * n
        e(f"s_waitcnt vmcnt({n4-1-n})")
        if n == 0: e("s_setprio 2")
        e(f"v_max3_u32 v{V_TMP}, v{d}, v{d+3}, v{V_TMP}" if n else f"v_max_u32 v{V_TMP}, v{d}, v{d+3}")
    e(f"v_cmp_eq_u32 vcc, -1, v{V_TMP}\ns_setprio 0")
    retry(top, sleep, (lambda: duty(8, 0)) if sleep else None)
    for n, hh in enumerate(heads):
        for s_ in range(4):
            for ee in range(2):
                c = ACC + 8 * tb + 4 * ee
                mf16(c, TA + 32 * hh + 8 * s_ + 4 * ee, PC + 16 * n + 4 * s_, c)
def store_out(tb):
    e("s_nop 5\ns_setprio 2")
    for k in range(4):
        e(f"v_cvt_pk_bf16_f32 v{XR+4*tb+k}, v{ACC+8*tb+2*k}, v{ACC+8*tb+2*k+1}")
    e(f"buffer_store_dwordx4 {vr(XR+4*tb,4)}, v{V_OUT}, {sr(SRD_OUT,4)}, s{S_XO+tb} offen")

duty(4, 2)
duty(8, 0)
e("s_nop 7")
for tb in range(2):
    e(f"buffer_load_dwordx4 {vr(XR+4*tb,4)}, v{V_OUT}, {sr(SRD_X,4)}, s{S_XO+tb} offen")
for tb in range(2):
    if tb:
        e("s_waitcnt lgkmcnt(6)")
    for ct in range(2):
        for a in range(4):
            e(f"ds_write_b128 v{(V_DW0, V_DW1)[tb]}, {vr(ACC+32*tb+16*ct+4*a,4)}{off(ct*4096 + a*1024)}")
e(f"ds_write_b32 v{V_FLW}, v{V_ONE} offset:{F_D0}\ns_waitcnt lgkmcnt(0)")
piece_loads([0, 1, 2])
lds_spin(V_FLR, F_D0, RL, "v_cmp_ne_u32", 1, sleep=1, prio=(2, 0))
for tb in range(2):
    for w in range(4):
        for h in range(2):
            e(f"ds_read_b128 {vr(RT+8*w+4*h,4)}, v{(V_DR0, V_DR1)[tb]}{off(w*(8192, H_STR)[tb] + h*512)}")
    e("s_waitcnt vmcnt(12) lgkmcnt(4)\ns_setprio 2")
    for k in range(4):
        e(f"v_pk_add_f32 {vr(RT+2*k,2)}, {vr(RT+2*k,2)}, {vr(RT+8+2*k,2)}")
    e("s_waitcnt lgkmcnt(0)")
    for k in range(4):
        e(f"v_pk_add_f32 {vr(RT+16+2*k,2)}, {vr(RT+16+2*k,2)}, {vr(RT+24+2*k,2)}")
    for k in range(4):
        e(f"v_pk_add_f32 {vr(RT+2*k,2)}, {vr(RT+2*k,2)}, {vr(RT+16+2*k,2)}")
    for k in range(4):
        e(f"v_dot2_f32_bf16 v{ACC+8*tb+2*k}, v{XR+4*tb+k}, s{S_C10}, v{RT+2*k}")
        e(f"v_dot2_f32_bf16 v{ACC+8*tb+2*k+1}, v{XR+4*tb+k}, s{S_C01}, v{RT+2*k+1}")
    e("s_setprio 0")
stamp("d0")
consume(0, [0, 1, 2], 8, issued=True)
duty(8, 0)
consume(0, [3], 6)
store_out(0)
e("s_setprio 0")
for k in range(4):
    e(f"s_add_u32 s{S_OB+k}, s{S_OB+k}, 32768")
stamp("tb0")
def wait_duties(mask, sleep, hook):
    top = label("wd")
    e(f"""{top}:
ds_read_b32 v{RL}, v{V_FLR} offset:{F_DUTY}
ds_read_b32 v{RL+1}, v{V_FLR} offset:{F_SLOW}
s_waitcnt lgkmcnt(0)
s_setprio 2
v_lshl_or_b32 v{RL}, v{RL+1}, 1, v{RL}
v_cmp_gt_u32 vcc, 2, v{RL}
s_setprio 0
s_nop 0
s_and_b64 vcc, vcc, {mask}""")
    retry(top, sleep, hook)
duty(7, 2)
wait_duties(7, 4, None)
consume(1, [0, 1, 2], 4)
stamp("pre")
duty(8, 1)
wait_duties(8, 1, None)
stamp("fbar")
consume(1, [3], 0)
store_out(1)
e("s_branch L_fin" if OPT["stamps"] or OPT["hold"] != -1 else "s_endpgm")

e(".p2align 6\nL_afront:")
stamp("karg")
e(f"s_lshl_b32 s{S_T0}, s{S_W}, 3\ns_or_b32 s{S_T0}, s{S_T0}, s2\ns_cmp_lt_u32 s{S_T0}, 8\ns_cbranch_scc0 L_notag")
srd(SRD_DBG, P_DBG, 256)
e(f"""s_memrealtime {sr(S_T0+1,2)}
v_mov_b32 v46, 0
v_mov_b32 v47, 0
s_waitcnt lgkmcnt(0)
s_or_b32 s{S_T0+1}, s{S_T0+1}, 1
v_mov_b32 v44, s{S_T0+1}
v_mov_b32 v45, s{S_T0+2}
s_mov_b64 exec, 1
buffer_atomic_cmpswap_x2 v[44:47], v46, {sr(SRD_DBG,4)}, 0 offen sc1
s_mov_b64 exec, -1
L_notag:
s_barrier""")
if OPT["pf_wq"]:
    srd(SRD_W, P_WQ, 512 * 1024)
    e(f"""v_lshrrev_b32 v6, 3, v0
v_lshlrev_b32 v6, 10, v6
v_and_b32 v7, 7, v0
v_lshl_add_u32 v6, v7, 6, v6
s_lshl_b32 s{S_T0}, s{S_C}, 2
s_add_u32 s{S_T0}, s{S_T0}, s{S_W}
s_lshl_b32 s{S_T2}, s{S_T0}, 7
s_lshl_b32 s{S_T0}, s{S_T0}, 12
s_lshr_b32 s{S_T1}, s{S_J}, 2
s_lshl_b32 s{S_T1}, s{S_T1}, 9
s_add_u32 s{S_T0}, s{S_T0}, s{S_T1}
s_bitcmp1_b32 s{S_J}, 2
s_cselect_b32 s{SRD_A}, s{P_WV}, s{P_WK}
s_cselect_b32 s{SRD_A+1}, s{P_WV+1}, s{P_WK+1}
s_mov_b32 s{SRD_A+2}, 16384
s_mov_b32 s{SRD_A+3}, 0x20000
s_mov_b64 exec, 3
buffer_load_dword v71, v6, {sr(SRD_A,4)}, s{S_T2} offen
s_mov_b32 exec_lo, -1
buffer_load_dword v71, v6, {sr(SRD_W,4)}, s{S_T0} offen
s_mov_b32 exec_hi, -1""")
if OPT["pf_mall"]:
    srd(SRD_W, P_W1, 512 * 2752)
    e(f"v_min_u32 v6, 21, v0\nv_lshlrev_b32 v6, 6, v6\ns_lshl_b32 s{S_T0}, s2, 2\ns_add_u32 s{S_T0}, s{S_T0}, s{S_W}\ns_mul_i32 s{S_T1}, s{S_T0}, 1408")
    e(f"buffer_load_dword v71, v6, {sr(SRD_W,4)}, s{S_T1} offen")
    if OPT["pf_mall"] > 1:
        srd(SRD_B, P_W2, 1376 * 1024)
        srd(SRD_C, P_WO, 512 * 1024)
        e(f"buffer_load_dword v71, v6, {sr(SRD_B,4)}, s{S_T1} offen\ns_lshl_b32 s{S_T1}, s{S_T0}, 9\ns_mov_b64 exec, 0xff\nbuffer_load_dword v71, v6, {sr(SRD_C,4)}, s{S_T1} offen\ns_mov_b64 exec, -1")
common_setup()
e(f"""v_and_b32 v7, 3, v0
v_lshlrev_b32 v7, 2, v7
v_add_u32 v7, {L_FLG}, v7
v_lshlrev_b32 v3, 4, v0
v_mov_b32 v48, -1
v_mov_b32 v49, -1
v_mov_b32 v50, -1
v_mov_b32 v51, -1
s_lshl_b32 s{S_T0}, s{S_W}, 10
s_add_u32 s{S_T0}, s{S_T0}, {L_LS}
v_add_u32 v6, s{S_T0}, v3
ds_write_b128 v6, v[48:51]
v_mov_b32 v42, 0
s_mov_b32 exec_lo, 0x00110000
s_mov_b32 exec_hi, 0x00110000
v_mov_b32 v42, s{S_C11}
s_mov_b64 exec, -1
v_mov_b32 v43, v42""")
for i in range(0, 128, 2):
    e(f"v_mov_b64 {vr(VV+i,2)}, v[42:43]")
for u in range(3):
    e(f"""s_add_u32 s{S_T0}, s{S_T3}, {u+1}
s_and_b32 s{S_T0}, s{S_T0}, 3
s_add_u32 s{S_U+u}, s{S_T4}, s{S_T0}
s_lshl_b32 s{S_U+u}, s{S_U+u}, 14
s_lshl_b32 s{S_T1}, s{S_T0}, 8
s_add_u32 s{S_T1}, s{S_T1}, {L_X}
v_add_u32 v{200+u}, s{S_T1}, v2
s_lshl_b32 s{S_T1}, s{S_T0}, 6
s_add_u32 s{S_T1}, s{S_T1}, {L_RSTD}
v_add_u32 v{204+u}, s{S_T1}, v4""")
e(f"s_lshl_b32 s{S_T2}, s{S_W}, 2\ns_add_u32 s{S_T2}, s{S_T2}, {L_FLG}\nv_mov_b32 v253, s{S_T2}\nv_mov_b32 v255, 1")
stamp("aset")
lds_spin(7, F_WKV, 3, "v_cmp_ne_u32", 1)
if OPT["pf_w1"] == 2:
    srd(SRD_W, P_W1, 512 * 2752)
    w1_prefetch(70, 69, 71)
for u in range(3):
    for i in range(4):
        e(f"buffer_load_dwordx4 {vr(8+16*u+4*i,4)}, v1, {sr(SRD_X,4)}, s{S_U+u} offen{off(256*i)}")
e(f"ds_write_b32 v253, v255 offset:{F_XIS}")
ln_units([8, 24, 40], [8, 4, 0], 200, 204, 56, 60, 64)
e(f"ds_write_b32 v253, v255 offset:{F_LNA}")
e(f"""v_lshlrev_b32 v1, 4, v0
v_lshrrev_b32 v3, 3, v0
v_lshlrev_b32 v3, 11, v3
v_and_b32 v8, 7, v0
v_lshl_add_u32 v3, v8, {OPT['fsh']}, v3
v_and_b32 v4, 15, v0
v_lshlrev_b32 v4, 4, v4
v_lshrrev_b32 v9, 5, v0
v_lshl_add_u32 v4, v9, 8, v4
v_bfe_u32 v9, v0, 4, 1
v_lshl_add_u32 v2, v9, 9, v4
s_lshl_b32 s{S_T2}, s{S_W}, 13
s_add_u32 s{S_T2}, s{S_T2}, {L_P1}
v_add_u32 v5, s{S_T2}, v1
v_and_b32 v6, 31, v0
s_lshl_b32 s{S_T2}, s{S_W}, 7
s_add_u32 s{S_T2}, s{S_T2}, {L_LS}
v_lshl_add_u32 v6, v6, 2, s{S_T2}
v_add_u32 v252, {L_Q}, v1
s_lshl_b32 s{S_T0}, s{S_W}, 15
s_lshl_b32 s{S_T1}, s{S_W}, 14
s_add_u32 s{S_T1}, s{S_T1}, {hex(WS_FL)}
s_mov_b32 s{S_EX}, 0x0000ffff
s_mov_b32 s{S_EX+1}, 0x0000ffff
v_mov_b32 v{VO}, -1
v_mov_b32 v{VO+1}, -1
v_mov_b32 v{VO+2}, -1
v_mov_b32 v{VO+3}, -1
s_lshl_b32 s{S_T2}, s{S_G}, 4
s_add_u32 s{S_T2}, s{S_T2}, s{S_J}
s_lshl_b32 s{S_T2}, s{S_T2}, 2
s_add_u32 s{S_T2}, s{S_T2}, s{S_W}
s_lshl_b32 s{S_T2}, s{S_T2}, 10
s_add_u32 s{S_U}, s{S_T2}, {hex(WS_O)}
s_add_u32 s{S_U+1}, s{S_U}, 32768""")
stamp("lnB")
lds_spin(7, F_KVS, 8, "v_cmp_ne_u32", 1)
read_tag(10, 8)
if OPT["pf_w1"] == 3:
    if OPT["pd0"]:
        e(f"s_sleep {OPT['pd0']}")
    srd(SRD_W, P_W1, 512 * 2752)
    e(f"s_mov_b32 s{S_T5}, s{S_T0}")
    w1_prefetch(16, 17, 18)
    e(f"s_mov_b32 s{S_T0}, s{S_T5}")
if OPT["pdl"]:
    e(f"s_sleep {OPT['pdl']}")
e(f"s_lshl_b32 s{S_T2}, s{S_C}, 10\ns_add_u32 s{S_T2}, s{S_T2}, s{S_T0}\nL_kvpoll:\nbuffer_load_dwordx2 v[8:9], v3, {sr(SRD_WS,4)}, s{S_T1} offen sc1")
if OPT["warm"]:
    e(f"buffer_load_dwordx4 v[12:15], v1, {sr(SRD_WS,4)}, s{S_T2} offen sc1")
e(f"s_waitcnt vmcnt({OPT['warm']})\nv_cmp_ne_u64 vcc, {sr(S_TAG,2)}, v[8:9]\ns_nop 0")
retry("L_kvpoll", OPT["psl"])
stamp("flags")
vq = Queue("vmcnt")
for b in range(16):
    e(f"s_add_u32 s{S_T2}, s{S_C}, {b}\ns_and_b32 s{S_T2}, s{S_T2}, 15\ns_lshl_b32 s{S_T2}, s{S_T2}, 11\ns_add_u32 s{S_T2}, s{S_T2}, s{S_T0}")
    e(f"buffer_load_dwordx4 {vr(VK+4*b,4)}, v2, {sr(SRD_WS,4)}, s{S_T2} offen sc1")
    vq.issue(("K", b))
    e(f"s_mov_b64 exec, {sr(S_EX,2)}")
    for i in range(2):
        e(f"buffer_load_dwordx4 {vr(VV+8*b+4*i,4)}, v4, {sr(SRD_WS,4)}, s{S_T2} offen{off(1024+512*i)} sc1")
        vq.issue(("V", b))
    e("s_mov_b64 exec, -1")
for k in range(2):
    e(f"buffer_store_dwordx4 {vr(VO,4)}, v1, {sr(SRD_WS,4)}, s{S_U+k} offen sc1")
    vq.issue()
e(f"ds_write_b32 v253, v255 offset:{F_KVIS}")
stamp("kvis")
lds_spin(7, F_Q, 3, "v_cmp_ne_u32", 1)
e(f"ds_read_b128 {vr(VQ,4)}, v252\ns_setprio 1\ns_waitcnt vmcnt({vq.left(('K', 0))}) lgkmcnt(0)")
stamp("go")
mf32(SA, VK, VQ)
e("s_nop 11")

ORDER = "e0 d7 a e1 e2 e3 b e4 e5 c0 c1 Q e6 e7 c2 e8 c3 e9 e10 e11 c4 e12 e13 c5 e14 e15 c6".split()
def flush(t):
    o = (t % 4) * 2048 + (t // 4) * (L_P2 - L_P1)
    return [f"ds_write_b128 v5, {vr(VO,4)}{off(o)}", f"ds_write_b128 v5, {vr(VO+4,4)}{off(o+1024)}",
            f"ds_write_b32 v6, v{VO+8}{off(t*512)}"]
for i in range(128):
    t, b = divmod(i, 16)
    S, T = (SA, SB) if i % 2 == 0 else (SB, SA)
    pb = (b - 1) % 16
    after = {}
    if t == 0:
        after["b"] = [f"s_waitcnt vmcnt({vq.left(('K', b+1)) if b < 15 else 0})"]
    if b == 14 and t < 7:
        after["Q"] = [f"ds_read_b128 {vr(VQ,4)}, v252{off((t+1)*1024)}"]
    if b == 15 and t < 7:
        after["a"] = ["s_waitcnt lgkmcnt(0)"]
    if b == 0 and t > 0:
        fl = flush(t - 1)
        after["e11"], after["e12"], after["e14"] = [fl[0]], [fl[1]], [fl[2]]
    if t == 4 and b == 6:
        after["a"] = [f"ds_read_b32 v3, v7 offset:{F_G1}"]
    if t == 4 and b == 7:
        after["a"] = ["s_waitcnt lgkmcnt(0)"]
        after["e7"] = ["v_cmp_ne_u32 vcc, 1, v3"]
        after["e8"] = ["s_cbranch_vccnz L_g1slow", "L_g1ok:"]
    for tok in ORDER:
        k = tok[0]
        if k == "e":
            n = int(tok[1:]); e(f"v_exp_f32 v{S+n}, v{S+n}")
        elif k == "c":
            n = int(tok[1:]); e(f"v_cvt_pk_bf16_f32 v{S+(n//4)*8+n%4}, v{S+2*n}, v{S+2*n+1}")
        elif k == "d":
            if i: e(f"v_cvt_pk_bf16_f32 v{T+11}, v{T+14}, v{T+15}")
        elif k == "a":
            if i: mf32(VO, VV + 8 * pb, T, None if b == 1 else VO)
        elif k == "b":
            if i: mf32(VO, VV + 8 * pb + 4, T + 8, VO)
        elif k == "Q":
            if i < 127:
                mf32(T, VK + 4 * ((b + 1) % 16), VQ)
        for x in after.get(tok, []):
            e(x)
    if b == 15:
        stamp(f"p{t}")
with outofline():
    e("L_g1slow:")
    lds_spin(7, F_G1, 3, "v_cmp_ne_u32", 1, sleep=1)
    e("s_branch L_g1ok")
e(f"v_cvt_pk_bf16_f32 v{SB+11}, v{SB+14}, v{SB+15}")
mf32(VO, VV + 8 * 15, SB, VO)
e("s_nop 0")
mf32(VO, VV + 8 * 15 + 4, SB + 8, VO)
e("s_nop 11")
for x in flush(7):
    e(x)
stamp("fbar")
e(f"""s_setprio 0
L_status:
s_sleep 4
ds_read_b32 v3, v7 offset:{F_DUTY}
ds_read_b32 v4, v7 offset:{F_SLOW}
s_waitcnt lgkmcnt(0)
v_cmp_ne_u32 vcc, 0, v4
s_nop 0
s_cbranch_vccnz L_slow
v_cmp_ne_u32 vcc, 2, v3
s_nop 0""")
retry("L_status", 0)
e("L_fin:")
if OPT["hold"] == "end":
    e("s_waitcnt vmcnt(0)")
    stamp("end")
if OPT["stamps"]:
    e(f"s_waitcnt vmcnt(0)\ns_memtime {sr(S_STMP,2)}\ns_waitcnt lgkmcnt(0)")
    e(f"s_lshl_b32 s{S_T0}, s{S_G}, 3\ns_add_u32 s{S_T0}, s{S_T0}, s{S_J}\ns_lshl_b32 s{S_T0}, s{S_T0}, 3\ns_add_u32 s{S_T0}, s{S_T0}, s{S_W}\ns_lshl_b32 s{S_T0}, s{S_T0}, 6\ns_add_u32 s{S_T0}, s{S_T0}, {hex(WS_ST)}")
    for k in range(10):
        e(f"v_mov_b32 v{8+k}, s{S_ST0+k}")
    e(f"v_mov_b32 v18, s{S_STMP}\ns_memrealtime {sr(S_STMP,2)}\ns_waitcnt lgkmcnt(0)\nv_mov_b32 v19, s{S_STMP}\nv_mov_b32 v1, 0\ns_mov_b64 exec, 1")
    for k in range(3):
        e(f"buffer_store_dwordx4 {vr(8+4*k,4)}, v1, {sr(SRD_WS,4)}, s{S_T0} offen{off(16*k)}")
e("L_exit:\ns_endpgm")
out += tail_code
tail_code.clear()
e("L_code_end:")

def wave_sync():
    e(f"s_add_u32 s{S_T4}, s{S_T4}, 1\nv_mov_b32 v3, s{S_T4}\nds_write_b32 v253, v3 offset:{F_AS}")
    lds_spin(7, F_AS, 3, "v_cmp_gt_u32", f"s{S_T4}", sleep=1)
e("L_slow:")
e(f"""s_lshl_b32 s{S_T0}, s{S_W}, 8
s_add_u32 s{S_T0}, s{S_T0}, {L_MB}
v_lshl_add_u32 v2, v0, 2, s{S_T0}
v_and_b32 v4, 31, v0
v_lshlrev_b32 v4, 2, v4
v_add_u32 v4, {L_MB}, v4
v_add_u32 v6, {L_SL - L_LS}, v6
v_add_u32 v254, {L_P1}, v1
s_lshl_b32 s{S_T2}, s{S_G}, 16
s_lshl_b32 s{S_T3}, s{S_J}, 12
s_add_u32 s{S_T2}, s{S_T2}, s{S_T3}
s_add_u32 s{S_T2}, s{S_T2}, {hex(WS_O)}
s_mov_b32 s{S_IT}, 0
s_mov_b32 s{S_T4}, 0
L_slow_loop:
ds_read_b128 {vr(VQ,4)}, v252
v_mov_b32 v3, 0xff800000
s_waitcnt lgkmcnt(0)
v_add_u32 v252, 1024, v252""")
for b in range(16):
    mf32(SA, VK + 4 * b, VQ)
    e("s_nop 11")
    for k in range(8):
        e(f"v_max3_f32 v3, v3, v{SA+2*k}, v{SA+2*k+1}")
e("ds_write_b32 v2, v3")
wave_sync()
for k in range(8):
    e(f"ds_read_b32 v{SA+k}, v4{off(128*k)}")
e("s_waitcnt lgkmcnt(0)")
e(f"v_max3_f32 v3, v{SA}, v{SA+1}, v{SA+2}\nv_max3_f32 v3, v3, v{SA+3}, v{SA+4}\nv_max3_f32 v3, v3, v{SA+5}, v{SA+6}\nv_max_f32 v3, v3, v{SA+7}")
for k in range(16):
    e(f"v_sub_f32 v{SB+k}, 0, v3")
e("s_nop 1")
for b in range(16):
    mf32(SA, VK + 4 * b, VQ, SB)
    e("s_nop 11")
    for k in range(16):
        e(f"v_exp_f32 v{SA+k}, v{SA+k}")
    for n in range(8):
        e(f"v_cvt_pk_bf16_f32 v{SA+(n//4)*8+n%4}, v{SA+2*n}, v{SA+2*n+1}")
    e("s_nop 1")
    mf32(VO, VV + 8 * b, SA, VO if b else None)
    mf32(VO, VV + 8 * b + 4, SA + 8, VO)
e("s_nop 11")
for x in flush(0):
    e(x)
wave_sync()
e(f"s_cmp_eq_u32 s{S_W}, 0\ns_cbranch_scc0 L_slow_next")
reduce_piece(254, 6)
e("s_waitcnt lgkmcnt(8)")
reduce_math(0)
for k in range(4):
    e(f"v_min_u32 v{OB+k}, -2, v{OB+k}")
e(f"""s_lshr_b32 s{S_T0}, s{S_IT}, 2
s_lshl_b32 s{S_T0}, s{S_T0}, 15
s_and_b32 s{S_T1}, s{S_IT}, 3
s_lshl_b32 s{S_T1}, s{S_T1}, 10
s_add_u32 s{S_T0}, s{S_T0}, s{S_T1}
s_add_u32 s{S_T0}, s{S_T0}, s{S_T2}
buffer_store_dwordx4 {vr(OB,4)}, v1, {sr(SRD_WS,4)}, s{S_T0} offen sc1
s_waitcnt vmcnt(0)
L_slow_next:
s_add_u32 s{S_IT}, s{S_IT}, 1
s_cmp_lt_u32 s{S_IT}, 8
s_cbranch_scc1 L_slow_loop
s_branch L_fin""")
out += tail_code

e(f""".section .rodata,"a"
.p2align 6
.amdhsa_kernel {NAME}_kernel
.amdhsa_next_free_vgpr 256
.amdhsa_next_free_sgpr 102
.amdhsa_accum_offset 256
.amdhsa_group_segment_fixed_size 0
.amdhsa_kernarg_size 88
.amdhsa_user_sgpr_count 2
.amdhsa_user_sgpr_kernarg_segment_ptr 1
.amdhsa_system_sgpr_workgroup_id_x 1
.end_amdhsa_kernel""")
open(sys.argv[1], "w").write("\n".join(out) + "\n")
```

```python
import sys, struct

NAME = "parallel_sum__grouped_kv_mqa__dense_activation_silu__prompt"
OPT = dict(hold=-1, holdT=6000, stamps=0, rt=0, force_slow=0, pf_code=1, pf_wq=1, pf_w1=0, pf_w2=1, f1wait=1, psl=0, pdl=0, fsh=7, chain=0, warm=0, pf_at=20, pf_mall=0, nb0=6, mask=1, kvlead=1, gate=1, pgate=0, csl=4, t6dl=12, t7dl=12, t7sl=0, flip=0, d1=8, hsl=8, hp1=0, hp2=0, pfa=0, dtry=3, mallw=1, pf1=6)
for a in sys.argv[2:]:
    k, v = a.split("=")
    OPT[k] = int(v) if v.lstrip("-").isdigit() else v
SITES = ["start"] + (OPT["stamps"].split(",") if OPT["stamps"] else [])
assert len(SITES) <= 9

def f2u(x):
    return struct.unpack("<I", struct.pack("<f", x))[0]
LOG2E = 1.4426950408889634

WS_KV = 0x0
WS_O = 0x40000
WS_H = 0x300000
WS_FL = 0xE00000
FL_H = 1024
WS_ST = 0xF00000
WS_SIZE = 0x1000000
H_GRP = 86 * 2048

H_STR = 12288
L_P1 = 49152
L_WKV = 65536
L_X = 81920
X_STR = 1040
L_P2 = L_X
L_DUMP = L_X + 32768
L_Q = L_X + 64 * X_STR
L_M = L_Q + 8192
L_LS = L_M
L_RSTD = L_M + 4096
L_FLG = L_M + 4608
L_MB = L_M + 5120
L_SL = L_M + 6144
LDS_BYTES = 163840
F_LN2, F_LNA, F_WQ, F_Q, F_KVIS, F_G1, F_D0, F_PZ, F_LN, F_DUTY, F_SLOW, F_AS, F_LNP, F_KVST, F_KVOK, F_TAG = 0, 16, 32, 48, 64, 80, 96, 112, 128, 144, 176, 192, 208, 224, 240, 256
F_WOS, F_WOR = 272, 288
assert L_SL + 512 <= LDS_BYTES and L_DUMP + 32768 <= L_Q

S_W, S_G, S_J, S_GL = 4, 5, 6, 7
SRD_X, SRD_WS = 8, 12
P_X, P_WQ, P_WK, P_WV, P_WO, P_BX, P_W1, P_W2 = 16, 18, 20, 22, 24, 26, 28, 30
P_OUT, P_DBG, P_WS = 32, 34, 36
S_TA, S_TB = 38, 39
S_TAG = P_BX
SRD_W, SRD_DBG, SRD_A, SRD_B, SRD_C, SRD_OUT = 40, 44, 48, 52, 56, 60
S_STEP, S_SOFF, S_RING, S_FLB = 64, 65, 66, 67
S_C10, S_C01, S_C11 = 68, 69, 70
S_T0, S_T1, S_T2, S_T3, S_T4, S_T5 = 71, 72, 73, 74, 75, 76
S_C = 77
S_EX = 78
S_U = 80
S_HW, S_IT = 88, 89
S_STMP = 90
S_ST0 = 92

VK, VV, SA, SB, VO, VQ = 8, 72, 200, 216, 232, 248

out, tail_code = [], []
cur = [out]
def e(s):
    for l in s.split("\n"):
        l = l.strip()
        if l:
            cur[0].append(l if l.endswith(":") or l.startswith(".") else "    " + l)
class outofline:
    def __enter__(self):
        self.prev, cur[0] = cur[0], []
    def __exit__(self, *a):
        tail_code.extend(cur[0]); cur[0] = self.prev

def vr(a, n=1):
    return f"v{a}" if n == 1 else f"v[{a}:{a+n-1}]"
def sr(a, n=1):
    return f"s{a}" if n == 1 else f"s[{a}:{a+n-1}]"
def mf32(d, a, b, c=None):
    e(f"v_mfma_f32_32x32x16_bf16 {vr(d,16)}, {vr(a,4)}, {vr(b,4)}, {vr(c,16) if c is not None else 0}")
def mf16(d, a, b, c=None):
    e(f"v_mfma_f32_16x16x32_bf16 {vr(d,4)}, {vr(a,4)}, {vr(b,4)}, {vr(c,4) if c is not None else 0}")
def srd(d, p, n):
    e(f"s_mov_b32 s{d}, s{p}\ns_mov_b32 s{d+1}, s{p+1}\ns_mov_b32 s{d+2}, {hex(n)}\ns_mov_b32 s{d+3}, 0x20000")
def off(n):
    return f" offset:{n}" if n else ""
uid = [0]
def label(p):
    uid[0] += 1
    return f"L_{p}_{uid[0]}"
def stamp(k):
    if OPT["hold"] == k:
        lb = label("hold")
        e(f"{lb}:\ns_memrealtime {sr(S_STMP,2)}\ns_waitcnt lgkmcnt(0)\ns_sub_u32 s{S_STMP}, s{S_STMP}, s{S_ST0+9}\ns_cmp_lt_u32 s{S_STMP}, {OPT['holdT']}\ns_cbranch_scc1 {lb}")
    if OPT["stamps"] and k in SITES:
        e(f"s_mem{'real' if OPT['rt'] else ''}time {sr(S_STMP,2)}\ns_waitcnt lgkmcnt(0)\ns_mov_b32 s{S_ST0+SITES.index(k)}, s{S_STMP}")

class Queue:
    def __init__(self, kind):
        self.kind, self.n, self.tags = kind, 0, {}
    def issue(self, tag=None):
        self.n += 1
        if tag is not None:
            self.tags[tag] = self.n
    def left(self, tag):
        return self.n - self.tags[tag]
    def wait(self, tag):
        e(f"s_waitcnt {self.kind}({min(self.left(tag), 63 if self.kind == 'vmcnt' else 15)})")

def retry(top, sleep, hook=None):
    stub = label("retry")
    e(f"s_cbranch_vccnz {stub}")
    with outofline():
        e(f"{stub}:\ns_sub_u32 s3, s3, 1\ns_cbranch_scc1 L_exit")
        if hook: hook()
        if sleep: e(f"s_sleep {sleep}")
        e(f"s_branch {top}")

def lds_spin(vaddr, offset, vtmp, cmp, ref, sleep=0, prio=None):
    top = label("spin")
    e(f"{top}:\nds_read_b32 v{vtmp}, v{vaddr}{off(offset)}\ns_waitcnt lgkmcnt(0)")
    if prio: e(f"s_setprio {prio[0]}")
    e(f"{cmp} vcc, {ref}, v{vtmp}")
    e(f"s_setprio {prio[1]}" if prio else "s_nop 0")
    retry(top, sleep)

def glb_spin(vaddr, soff, vtmp, sleep=2, prio=None):
    top = label("poll")
    e(f"{top}:\nbuffer_load_dwordx2 {vr(vtmp,2)}, v{vaddr}, {sr(SRD_WS,4)}, {soff} offen sc1\ns_waitcnt vmcnt(0)")
    if prio: e(f"s_setprio {prio[0]}")
    e(f"v_cmp_ne_u64 vcc, {sr(S_TAG,2)}, {vr(vtmp,2)}")
    e(f"s_setprio {prio[1]}" if prio else "s_nop 0")
    retry(top, sleep)

def read_tag(va, vt):
    e(f"""v_mov_b32 v{va}, {L_FLG + F_TAG}
ds_read_b64 {vr(vt,2)}, v{va}
s_waitcnt lgkmcnt(0)
v_readfirstlane_b32 s{S_TAG}, v{vt}
v_readfirstlane_b32 s{S_TAG+1}, v{vt+1}""")

def tr_addr(dst, tmp, half_shift):
    e(f"""v_and_b32 v{dst}, 3, v0
v_lshlrev_b32 v{dst}, 3, v{dst}
v_bfe_u32 v{tmp}, v0, 2, 2
v_lshl_add_u32 v{dst}, v{tmp}, 6, v{dst}
v_bfe_u32 v{tmp}, v0, 4, 1
v_lshl_add_u32 v{dst}, v{tmp}, 5, v{dst}
v_lshrrev_b32 v{tmp}, 5, v0
v_lshl_add_u32 v{dst}, v{tmp}, {half_shift}, v{dst}""")

def dpp_sum(regs):
    for r in (8, 4, 2, 1):
        for a in regs:
            e(f"v_add_f32_dpp v{a}, v{a}, v{a} row_ror:{r} row_mask:0xf bank_mask:0xf")
        if len(regs) < 3 and r != 1:
            e(f"s_nop {2 - len(regs)}")

def ln_centre(X, waits, vwr, A, B, T):
    n = len(X)
    for u in range(n):
        e(f"s_waitcnt vmcnt({waits[u]})")
        if u == 0:
            stamp("xarr" if B is None else "xarrB")
        for i in range(16):
            e(f"v_dot2_f32_bf16 v{A+u}, v{X[u]+i}, s{S_C11}, {'v%d' % (A+u) if i else 0}")
    if n < 4: e(f"s_nop {3 - n}")
    dpp_sum([A + u for u in range(n)])
    for u in range(n):
        e(f"v_mul_f32 v{A+u}, {hex(f2u(-1.0/512))}, v{A+u}")
    for u in range(n):
        for gi in range(4):
            for k in range(4):
                e(f"v_dot2_f32_bf16 v{T+2*k}, v{X[u]+4*gi+k}, s{S_C10}, v{A+u}")
                e(f"v_dot2_f32_bf16 v{T+2*k+1}, v{X[u]+4*gi+k}, s{S_C01}, v{A+u}")
            for k in range(4):
                e(f"v_cvt_pk_bf16_f32 v{X[u]+4*gi+k}, v{T+2*k}, v{T+2*k+1}")
            if gi == 0 and u >= 2:
                e("s_waitcnt lgkmcnt(6)")
            e(f"ds_write_b128 v{vwr+u}, {vr(X[u]+4*gi,4)}{off(gi*16*X_STR)}")
            if B is not None:
                for k in range(4):
                    e(f"v_dot2_f32_bf16 v{B+u}, v{X[u]+4*gi+k}, v{X[u]+4*gi+k}, {'v%d' % (B+u) if gi or k else 0}")
def ln_var(X, B):
    for i in range(16):
        e(f"v_dot2_f32_bf16 v{B}, v{X+i}, v{X+i}, {'v%d' % B if i else 0}")
def ln_stats(n, vst, A, B):
    if n < 4: e(f"s_nop {3 - n}")
    dpp_sum([B + u for u in range(n)])
    for u in range(n):
        e(f"v_mov_b32 v{A+u}, {hex(f2u(1e-5))}\nv_fmac_f32 v{A+u}, {hex(f2u(1.0/512))}, v{B+u}")
    for u in range(n):
        e(f"v_rsq_f32 v{B+u}, v{A+u}")
    e("s_waitcnt lgkmcnt(5)")
    for u in range(n):
        e(f"v_mul_f32 v{A+u}, v{A+u}, v{B+u}")
        e(f"ds_write_b32 v{vst+u}, v{B+u}\nds_write_b32 v{vst+u}, v{A+u} offset:256")

def w1_prefetch(va, vt, vd):
    e(f"""v_lshrrev_b32 v{va}, 5, v0
v_mul_u32_u24 v{va}, 2752, v{va}
v_and_b32 v{vt}, 31, v0
v_min_u32 v{vt}, 22, v{vt}
v_lshl_add_u32 v{va}, v{vt}, 6, v{va}""")
    e(f"""s_lshl_b32 s{S_T0}, s{S_C}, 2
s_add_u32 s{S_T0}, s{S_T0}, s{S_HW}
s_mul_i32 s{S_T0}, s{S_T0}, {4*2752}
s_lshr_b32 s{S_T2}, s{S_J}, 2
s_mul_i32 s{S_T2}, s{S_T2}, {20*64}
s_add_u32 s{S_T0}, s{S_T0}, s{S_T2}
s_add_u32 s{S_T2}, s{S_T0}, {2*2752}
buffer_load_dword v{vd}, v{va}, {sr(SRD_W,4)}, s{S_T0} offen
buffer_load_dword v{vd}, v{va}, {sr(SRD_W,4)}, s{S_T2} offen""")

HDR = open("cdna_kernels/" + NAME + ".s.ref").read().split("\n")
out += [l for l in HDR if l.startswith(";") and "@launch" not in l]
out.append(f"; @launch grid=(256,1,1) block=(512,1,1) lds={LDS_BYTES}")
e(f'.amdgcn_target "amdgcn-amd-amdhsa--gfx950"\n.text\n.globl {NAME}_kernel\n.p2align 8\n.type {NAME}_kernel,@function')
e(f"{NAME}_kernel:")

e("s_cmp_ge_u32 s2, 256\ns_cbranch_scc1 L_exit")
if OPT["stamps"] or OPT["hold"] != -1:
    e(f"s_memrealtime {sr(S_STMP,2)}\ns_waitcnt lgkmcnt(0)\ns_mov_b32 s{S_ST0+9}, s{S_STMP}")
    stamp("start")
    for k in range(1, 9):
        e(f"s_mov_b32 s{S_ST0+k}, s{S_ST0}")
e(f"""s_load_dwordx16 s[16:31], s[0:1], 0
s_load_dwordx4 s[32:35], s[0:1], 64
s_load_dwordx2 s[36:37], s[0:1], 80
v_lshrrev_b32 v2, 6, v0
v_bfe_u32 v4, v0, 4, 4
s_lshr_b32 s{S_C}, s2, 3
v_readfirstlane_b32 s{S_W}, v2
v_and_b32 v5, 15, v0
v_and_b32 v0, 63, v0""")
if OPT["pf_code"]:
    e(f"""s_getpc_b64 {sr(S_T0+1,2)}
L_pc:
v_lshl_add_u32 v2, s{S_C}, 3, v2
v_and_b32 v3, 3, v0
v_lshl_add_u32 v2, v2, 2, v3
v_lshlrev_b32 v2, 6, v2
v_min_u32 v2, L_code_end-L_pc-4, v2
global_load_dword v247, v2, {sr(S_T0+1,2)}""")
e(f"""s_and_b32 s{S_GL}, s{S_C}, 7
s_bfe_u32 s{S_T0}, s2, 0x20001
s_lshl3_add_u32 s{S_G}, s{S_T0}, s{S_GL}
s_lshr_b32 s{S_T3}, s{S_C}, 3
s_lshl2_add_u32 s{S_SOFF}, s{S_G}, s{S_T3}
s_lshl_b32 s{S_SOFF}, s{S_SOFF}, 14
v_lshlrev_b32 v1, 10, v4
v_lshl_add_u32 v1, v5, 4, v1
s_mov_b32 s{SRD_X+2}, {hex(2048*1024)}
s_mov_b32 s{SRD_X+3}, 0x20000
s_cmp_lt_u32 s{S_W}, 4
s_waitcnt lgkmcnt(0)
s_mov_b64 {sr(SRD_X,2)}, {sr(P_X,2)}
s_cbranch_scc1 L_a0""")
XA = 8
stamp("karg")
for i in range(4):
    e(f"buffer_load_dwordx4 {vr(XA+4*i,4)}, v1, {sr(SRD_X,4)}, s{S_SOFF} offen{off(256*i)}")
e(f"""s_branch L_hfront
L_a0:
s_cmp_eq_u32 s{S_W}, 0
s_cbranch_scc0 L_afront
s_bitcmp1_b32 s2, 0
s_cselect_b64 {sr(SRD_A,2)}, {sr(P_WV,2)}, {sr(P_WK,2)}
s_mov_b32 s{SRD_A+2}, 16384
s_mov_b32 s{SRD_A+3}, 0x20000
v_lshlrev_b32 v3, 4, v0""")
for i in range(4):
    e(f"s_mov_b32 m0, {L_WKV + i*4096}\ns_movk_i32 s{S_T0}, {i*4096}")
    for k in range(4):
        e(f"buffer_load_dwordx4 v3, {sr(SRD_A,4)}, s{S_T0} offen{off(1024*k)} lds")
e("s_branch L_afront")

V_FLW, V_FLR, V_ONE = 253, 254, 255
V_WR, V_ST = 200, 204
def common_setup():
    srd(SRD_WS, P_WS, WS_SIZE)
    srd(SRD_DBG, P_DBG, 256)
    e(f"""s_and_b32 s{S_T0}, s2, 1
s_lshl2_add_u32 s{S_J}, s{S_T0}, s{S_T3}
s_and_b32 s{S_HW}, s{S_W}, 3
s_mov_b32 s3, 0x40000
s_lshl_b32 s{S_FLB}, s{S_G}, 11
s_add_u32 s{S_FLB}, s{S_FLB}, {hex(WS_FL)}
s_mov_b32 s{S_C10}, 0x00003f80
s_mov_b32 s{S_C01}, 0x3f800000
s_mov_b32 s{S_C11}, 0x3f803f80
v_mul_u32_u24 v2, {X_STR}, v5
v_lshl_add_u32 v2, v4, 4, v2
v_lshlrev_b32 v4, 2, v4
s_lshl2_add_u32 s{S_T0}, s{S_HW}, {L_FLG}
v_mov_b32 v{V_FLW}, s{S_T0}
v_and_b32 v7, 3, v0
v_lshlrev_b32 v{V_FLR}, 2, v7
v_add_u32 v{V_FLR}, {L_FLG}, v{V_FLR}
v_mov_b32 v{V_ONE}, 1""")
def unit_addr(slot, dq):
    e(f"""s_add_u32 s{S_T0}, s{S_T3}, {dq}
s_and_b32 s{S_T0}, s{S_T0}, 3
s_lshl2_add_u32 s{S_U+slot}, s{S_G}, s{S_T0}
s_lshl_b32 s{S_U+slot}, s{S_U+slot}, 14
s_lshl_b32 s{S_T1}, s{S_T0}, 8
s_add_u32 s{S_T1}, s{S_T1}, {L_X}
v_add_u32 v{V_WR+slot}, s{S_T1}, v2
s_lshl_b32 s{S_T1}, s{S_T0}, 6
s_add_u32 s{S_T1}, s{S_T1}, {L_RSTD}
v_add_u32 v{V_ST+slot}, s{S_T1}, v4""")
def unit_loads(X, slot, va=1):
    for i in range(4):
        e(f"buffer_load_dwordx4 {vr(X+4*i,4)}, v{va}, {sr(SRD_X,4)}, s{S_U+slot} offen{off(256*i)}")
def wq_prefetch(va, vt, vd):
    e(f"""v_lshrrev_b32 v{va}, 3, v0
v_lshlrev_b32 v{va}, 10, v{va}
v_and_b32 v{vt}, 7, v0
v_lshl_add_u32 v{va}, v{vt}, 6, v{va}
s_lshl2_add_u32 s{S_T0}, s{S_C}, s{S_HW}
s_lshl_b32 s{S_T0}, s{S_T0}, 12
s_and_b32 s{S_T1}, s{S_J}, 4
s_lshl_b32 s{S_T1}, s{S_T1}, 7
s_add_u32 s{S_T0}, s{S_T0}, s{S_T1}
s_mov_b32 exec_hi, 0
buffer_load_dword v{vd}, v{va}, {sr(SRD_W,4)}, s{S_T0} offen
s_mov_b32 exec_hi, -1""")

e("L_hfront:\ns_setprio 2")
common_setup()
srd(SRD_W, P_WQ, 512 * 1024)
unit_addr(1, 1)
unit_loads(24, 1)
e("s_barrier")
unit_addr(0, 0)
e(f"""v_lshrrev_b32 v6, 2, v0
v_lshlrev_b32 v6, 10, v6
v_lshl_add_u32 v6, v7, 4, v6
s_and_b32 s{S_T0}, s{S_HW}, 1
s_lshl_b32 s{S_RING}, s{S_T0}, 15
s_lshl_b32 s{S_T0}, s{S_T0}, 6
s_lshl_b32 s{S_T1}, s{S_J}, 7
s_add_u32 s{S_T0}, s{S_T0}, s{S_T1}
s_lshr_b32 s{S_T1}, s{S_HW}, 1
s_lshl_b32 s{S_T2}, s{S_T1}, 18
s_add_u32 s{S_SOFF}, s{S_T0}, s{S_T2}
s_lshl_b32 s{S_T1}, s{S_T1}, 14
s_add_u32 s{S_RING}, s{S_RING}, s{S_T1}""")
ln_centre([XA], [4], V_WR, 56, None, 60)
e(f"ds_write_b32 v{V_FLW}, v{V_ONE} offset:{F_LNP}")
stamp("lnA")
ln_var(XA, 57)
ln_stats(1, V_ST, 56, 57)
e(f"ds_write_b32 v{V_FLW}, v{V_ONE} offset:{F_LN}")
ln_centre([24], [0], V_WR + 1, 56, 57, 60)
ln_stats(1, V_ST + 1, 56, 57)
e(f"ds_write_b32 v{V_FLW}, v{V_ONE} offset:{F_LN2}\ns_setprio 0")
stamp("lnB")
if OPT["gate"]:
    lds_spin(V_FLR, F_KVST, 52, "v_cmp_ne_u32", 1, sleep=1)
for k in range(16):
    e(f"s_add_u32 m0, s{S_RING}, {k*1024}\ns_nop 0\nbuffer_load_dwordx4 v6, {sr(SRD_W,4)}, s{S_SOFF} offen lds\ns_add_u32 s{S_SOFF}, s{S_SOFF}, 16384")
tr_addr(7, 3, 9)
V_XR = 252
e(f"""v_mul_u32_u24 v{V_XR}, {X_STR}, v3
v_and_b32 v3, 31, v0
v_lshl_add_u32 v{V_XR}, v3, 4, v{V_XR}
v_add_u32 v{V_XR}, {L_X}, v{V_XR}
v_lshlrev_b32 v4, 2, v3
v_add_u32 v1, s{S_RING}, v7
v_xor_b32 v2, 0x4000, v1
s_lshr_b32 s{S_T1}, s{S_HW}, 1
s_mul_i32 s{S_T0}, s{S_T1}, {32*X_STR + 512}
v_add_u32 v5, s{S_T0}, v{V_XR}
s_mul_i32 s{S_T0}, s{S_T1}, {512 - 32*X_STR}
s_add_u32 s{S_T0}, s{S_T0}, {32*X_STR}
v_add_u32 v3, s{S_T0}, v{V_XR}
v_and_b32 v48, 15, v0
v_min_u32 v48, 11, v48
v_lshlrev_b32 v48, 2, v48
v_add_u32 v48, {L_FLG}, v48""")
srd(SRD_W, P_W1, 512 * 2752)
QA, QB, QO, QACC = 72, 8, 24, 200
for k in range(16):
    if k % 4 == 0:
        e(f"s_waitcnt vmcnt({12 - k}) lgkmcnt(4)")
        if k == 12:
            e(f"ds_write_b32 v{V_FLW}, v{V_ONE} offset:{F_WQ}")
    for i in range(2):
        e(f"ds_read_b64_tr_b16 {vr(QA+4*k+2*i,2)}, v1{off(k*1024 + i*256)}")
lds_spin(48, F_LN2, 52, "v_cmp_ne_u32", 1, sleep=1)
e("s_setprio 2")
stamp("ln")
lq = Queue("lgkmcnt")
def q_reads(s):
    if s >= 16:
        for i in range(2):
            e(f"ds_read_b64_tr_b16 {vr(QO+4*(s % 4)+2*i,2)}, v2{off((s-16)*1024 + i*256)}")
            lq.issue()
    e(f"ds_read_b128 {vr(QB+4*(s % 4),4)}, v{5 if s < 16 else 3}{off((s % 16)*2*X_STR)}")
    lq.issue(s)
for s in range(3):
    q_reads(s)
for s in range(32):
    if s + 3 < 32:
        q_reads(s + 3)
    elif s == 29:
        e(f"s_lshr_b32 s{S_T1}, s{S_HW}, 1\ns_lshl_b32 s{S_T0}, s{S_T1}, 7\ns_add_u32 s{S_T0}, s{S_T0}, {L_RSTD}\nv_add_u32 v1, s{S_T0}, v4\nds_read_b32 v44, v1")
        lq.issue()
    lq.wait(s)
    mf32(QACC, QA + 4 * s if s < 16 else QO + 4 * (s % 4), QB + 4 * (s % 4), QACC if s else None)
e(f"""s_lshl_b32 s{S_T0}, s{S_HW}, 11
s_add_u32 s{S_T0}, s{S_T0}, {L_Q}
v_lshl_add_u32 v1, v0, 4, s{S_T0}
s_waitcnt lgkmcnt(0)
v_mul_f32 v44, {hex(f2u(0.25*LOG2E))}, v44
v_mov_b32 v45, v44
s_nop 5""")
for hl in range(2):
    for k in range(4):
        e(f"v_pk_mul_f32 {vr(QACC+8*hl+2*k,2)}, {vr(QACC+8*hl+2*k,2)}, v[44:45]")
    for k in range(4):
        e(f"v_cvt_pk_bf16_f32 v{8+4*hl+k}, v{QACC+8*hl+2*k}, v{QACC+8*hl+2*k+1}")
    e(f"ds_write_b128 v1, {vr(8+4*hl,4)}{off(hl*1024)}")
e(f"ds_write_b32 v{V_FLW}, v{V_ONE} offset:{F_Q}")
stamp("qd")

V_S0, V_PART, V_TR2, V_LS, V_DW0, V_DW1, V_DR0 = 1, 2, 3, 4, 5, 6, 7
V_DR1, V_OUT, V_TMP, V_L16, V_TB = 248, 249, 250, 251, 252
V_WO, V_TT, V_HF = 60, 61, 62
V_WA, V_WB, V_TR, V_PF, VXR, V_CS, V_NEG, V_TAG = 72, 73, 74, 75, 76, 92, 100, 64
S_OB, S_PC, S_XO, S_CLS, S_RET, S_BLK = 16, 20, 22, 18 + 6, 0, 2
t0, t1, t2, t3 = 24, 25, 26, 27
e(f"""s_xor_b32 s{S_T4}, s{S_J}, {4 * OPT['flip']}
s_mul_i32 s{S_T0}, s{S_T4}, 7
s_lshl1_add_u32 s{S_T0}, s{S_HW}, s{S_T0}
s_lshl2_add_u32 s{S_T1}, s{S_T4}, s{S_HW}
s_add_u32 s{S_T2}, s{S_T1}, 11
s_cmp_lt_u32 s{S_HW}, 3
s_cselect_b32 s{S_TB}, 2, 1
s_cmp_eq_u32 s{S_T1}, 14
s_cselect_b32 s{S_TB}, 1, s{S_TB}
s_min_u32 s{S_T0}, s{S_T0}, 26
s_cmp_lt_u32 s{S_T4}, 4
s_cselect_b32 s{S_TA}, s{S_T0}, s{S_T2}
s_cselect_b32 s{S_TB}, s{S_TB}, 1
s_lshr_b32 s{S_T5}, s{S_HW}, 1
s_mul_i32 s{S_RING}, s{S_HW}, {H_STR}
s_and_b32 s{S_T4}, s{S_HW}, 1
v_add_u32 v{t0}, {L_RSTD}, v4
ds_read_b32 v{V_CS}, v{t0}
ds_read_b32 v{V_CS+2}, v{t0} offset:128
ds_read_b32 v{V_CS+4}, v{t0} offset:256
ds_read_b32 v{V_CS+6}, v{t0} offset:384
v_add_u32 v{V_TR}, s{S_RING}, v7
v_lshrrev_b32 v{t3}, 5, v0
v_lshlrev_b32 v{t0}, 8, v{t3}
v_sub_u32 v{V_TR2}, v{V_TR}, v{t0}
v_lshlrev_b32 v{V_HF}, 3, v4
s_lshl_b32 s{S_T0}, s{S_HW}, 9
s_add_u32 s{S_T0}, s{S_T0}, {L_LS}
v_add_u32 v{V_LS}, s{S_T0}, v4
s_lshl_b32 s{S_T0}, s{S_J}, 7
v_add_u32 v{V_S0}, s{S_T0}, v6
s_lshl_b32 s{S_T1}, s{S_T4}, 6
v_add_u32 v{V_WO}, s{S_T1}, v{V_S0}
v_lshrrev_b32 v{t0}, 2, v0
v_mul_u32_u24 v{t0}, 2752, v{t0}
v_and_b32 v{t1}, 3, v0
v_lshl_add_u32 v{t0}, v{t1}, 4, v{t0}
s_lshl_b32 s{S_T2}, s{S_TA}, 6
v_add_u32 v{V_WA}, s{S_T2}, v{t0}
v_lshlrev_b32 v{V_TT}, 4, v{t1}
v_bfe_u32 v{t1}, v0, 2, 2
v_lshl_add_u32 v{V_TT}, v{t1}, 6, v{V_TT}
v_bfe_u32 v{t2}, v0, 4, 1
v_lshl_add_u32 v{V_TT}, v{t2}, 8, v{V_TT}
v_lshl_add_u32 v{V_TT}, v{t3}, 10, v{V_TT}
s_cmp_eq_u32 s{S_T4}, 0
s_cselect_b32 s{S_T2}, {L_DUMP}, 0
v_add_u32 v{V_TT}, s{S_T2}, v{V_TT}
v_lshlrev_b32 v{V_L16}, 4, v0""")
for k in range(8):
    e(f"s_add_u32 s{S_U}, s{S_GL}, {k}\ns_and_b32 s{S_U}, s{S_U}, 7\ns_mul_i32 s{S_U}, s{S_U}, {8*X_STR}")
    e(f"v_add_u32 v{VXR+k}, s{S_U}, v{V_XR}")
srd(SRD_B, P_W2, 1376 * 1024)
srd(SRD_C, P_WO, 512 * 1024)
srd(SRD_OUT, P_OUT, 2048 * 1024)
e(f"""v_lshlrev_b32 v{V_TB}, 9, v{t2}
v_lshl_add_u32 v{V_TB}, v{t3}, 12, v{V_TB}
v_and_b32 v{t0}, 15, v0
v_lshrrev_b32 v{t1}, 4, v0
v_lshlrev_b32 v{V_OUT}, 10, v{t0}
v_lshl_add_u32 v{V_OUT}, v{t1}, 4, v{V_OUT}
s_lshl_b32 s{S_T2}, s{S_T5}, 4
v_add_u32 v{t0}, s{S_T2}, v{t0}
v_lshl_add_u32 v{V_TB}, v{t0}, 4, v{V_TB}
v_lshlrev_b32 v{V_DR1}, 4, v{t0}
v_lshl_add_u32 v{V_DR1}, v{t1}, 10, v{V_DR1}
s_lshl_b32 s{S_T2}, s{S_T4}, 12
v_add_u32 v{V_DR1}, s{S_T2}, v{V_DR1}
v_add_u32 v{V_DR0}, {L_DUMP}, v{V_DR1}
v_add_u32 v{V_DW1}, s{S_RING}, v{V_L16}
s_lshl_b32 s{S_T2}, s{S_HW}, 13
s_add_u32 s{S_T2}, s{S_T2}, {L_DUMP}
v_add_u32 v{V_DW0}, s{S_T2}, v{V_L16}
s_lshl_b32 s{S_T2}, s{S_HW}, 11
s_add_u32 s{S_T2}, s{S_T2}, {L_P1}
v_add_u32 v{V_PART}, s{S_T2}, v{V_L16}
v_lshrrev_b32 v{V_PF}, 1, v0
v_lshlrev_b32 v{V_PF}, 10, v{V_PF}
v_and_b32 v{t0}, 1, v0
v_lshl_add_u32 v{V_PF}, v{t0}, 6, v{V_PF}
v_mov_b32 v{V_NEG}, -1
v_mov_b32 v{V_NEG+1}, -1
v_mov_b32 v{V_NEG+2}, -1
v_mov_b32 v{V_NEG+3}, -1
v_mov_b32 v{V_TAG+2}, 0
s_lshl_b32 s{S_T2}, s{S_G}, 2
s_add_u32 s{S_T2}, s{S_T2}, s{S_T5}
s_lshl_b32 s{S_T2}, s{S_T2}, 14
s_add_u32 s{S_T2}, s{S_T2}, s{S_T0}
s_add_u32 s{S_XO}, s{S_T2}, s{S_T1}
s_add_u32 s{S_XO+1}, s{S_XO}, 32768
s_lshl_b32 s{S_T2}, s{S_G}, 16
s_add_u32 s{S_OB}, s{S_T2}, {hex(WS_O)}
s_add_u32 s{S_OB+1}, s{S_OB}, 8192
s_add_u32 s{S_OB+2}, s{S_OB}, 16384
s_add_u32 s{S_OB+3}, s{S_OB}, 24576
s_lshl_b32 s{S_T2}, s{S_J}, 2
s_add_u32 s{S_T2}, s{S_T2}, s{S_HW}
s_lshl_b32 s{S_T3}, s{S_T2}, 10
s_add_u32 s{S_PC}, s{S_OB}, s{S_T3}
s_add_u32 s{S_PC+1}, s{S_PC}, 32768
s_add_u32 s{S_FLB}, s{S_FLB}, {FL_H}
s_lshl_b32 s{S_T2}, s{S_T2}, 5
s_add_u32 s{S_U+7}, s{S_T2}, s{S_FLB}
s_mul_i32 s{S_T2}, s{S_G}, {H_GRP}
s_add_u32 s{S_T2}, s{S_T2}, {hex(WS_H)}
s_add_u32 s{SRD_A}, s{P_WS}, s{S_T2}
s_addc_u32 s{SRD_A+1}, s{P_WS+1}, 0
s_mov_b32 s{SRD_A+2}, {H_GRP}
s_mov_b32 s{SRD_A+3}, 0x20000
s_lshl_b32 s{S_U+4}, s{S_TA}, 12
s_add_u32 s{S_U+5}, s{S_U+4}, 4096
s_movk_i32 s{S_CLS}, 0x207
s_mov_b32 s{S_IT}, 0
s_mul_i32 s{S_SOFF}, s{S_GL}, {64*2752}
s_lshl_b32 s{S_T1}, s{S_GL}, 2
s_add_u32 s{S_T1}, s{S_T1}, s{S_HW}
s_mul_i32 s{S_T2}, s{S_T1}, {43*1024}
s_add_u32 s{S_T2}, s{S_T2}, s{S_T0}
s_add_u32 s{S_T3}, s{S_T2}, {11*1024}
s_lshl_b32 s{S_T1}, s{S_T1}, 14
s_add_u32 s{S_T1}, s{S_T1}, s{S_T0}
s_waitcnt lgkmcnt(0)
v_mul_f32 v{V_CS}, {hex(f2u(-LOG2E))}, v{V_CS}
v_mul_f32 v{V_CS+2}, {hex(f2u(-LOG2E))}, v{V_CS+2}""")
for k in range(4):
    e(f"v_mov_b32 v{V_CS+2*k+1}, v{V_CS+2*k}")
lds_spin(V_FLR, F_Q, t0, "v_cmp_ne_u32", 1)
lds_spin(V_FLR, F_KVOK, t0, "v_cmp_ne_u32", 1, sleep=1)
read_tag(t0, V_TAG)
e("s_setprio 0")
if OPT["f1wait"] == 1:
    lds_spin(V_FLR, F_KVIS, t0, "v_cmp_ne_u32", 1, sleep=2, prio=(2, 0))
stamp("f1go")

F1A = 184
FR = [8, 24, 40]
def late_prefetch():
    e(f"""s_mov_b32 exec_hi, 0
buffer_load_dword v{V_TMP}, v{V_PF}, {sr(SRD_C,4)}, s{S_T1} offen
s_mov_b32 exec_hi, -1
buffer_load_dword v{V_TMP}, v{V_PF}, {sr(SRD_B,4)}, s{S_T2} offen
buffer_load_dword v{V_TMP}, v{V_PF}, {sr(SRD_B,4)}, s{S_T3} offen""")
def ffn1(nt):
    vq, lq = Queue("vmcnt"), Queue("lgkmcnt")
    D = 6 if nt == 2 else OPT["d1"]
    def dma(s):
        e(f"s_add_u32 m0, s{S_RING}, {(s % D)*1024*nt}\ns_add_u32 s{S_T4}, s{S_SOFF}, {16*2752}\nbuffer_load_dwordx4 v{V_WA}, {sr(SRD_W,4)}, s{S_SOFF} offen lds")
        vq.issue(("w", s))
        if nt == 2:
            e(f"s_add_u32 m0, s{S_RING}, {(s % D)*2048 + 1024 - 64}\ns_cmp_ge_u32 s{S_T4}, s{SRD_W+2}\nbuffer_load_dwordx4 v{V_WA}, {sr(SRD_W,4)}, s{S_SOFF} offen offset:64 lds")
            vq.issue(("w", s))
        else:
            e(f"s_cmp_ge_u32 s{S_T4}, s{SRD_W+2}")
        e(f"s_cselect_b32 s{S_SOFF}, 0, s{S_T4}")
    def reads(s, part):
        f = FR[s % 3]
        if part == 0:
            for b in range(2):
                e(f"ds_read_b128 {vr(f+8+4*b,4)}, v{VXR+s//4}{off((s % 4)*2*X_STR + b*512)}")
                lq.issue()
        elif part <= nt:
            if part == 1:
                vq.wait(("w", s))
            for i in range(2):
                e(f"ds_read_b64_tr_b16 {vr(f+4*(part-1)+2*i,2)}, v{V_TR}{off((s % D)*1024*nt + (part-1)*1024 + i*256)}")
                lq.issue(("r", s))
    for s in range(D):
        dma(s)
    for s in range(2):
        for part in range(3):
            reads(s, part)
    for s in range(32):
        lq.wait(("r", s))
        f = FR[s % 3]
        for u in range(2 * nt):
            mf32(F1A + 16 * u, f + 4 * (u >> 1), f + 8 + 4 * (u & 1), F1A + 16 * u if s else None)
            if s + 2 < 32:
                reads(s + 2, u)
        if s + D < 32:
            dma(s + D)
        stamp(f"s{s}")
        if not OPT["pf_w2"]:
            pass
        elif nt == 2 or not OPT["mallw"]:
            if s == OPT["pf_at"]:
                late_prefetch()
                vq.issue(); vq.issue(); vq.issue()
        elif s in (OPT["pf1"], 31):
            skip = label("nopf")
            e(f"s_cmp_lt_u32 s{S_TA}, 27\ns_cbranch_scc{1 if s < 31 else 0} {skip}")
            if s < 31:
                for k in range(1, 4):
                    e(f"s_xor_b32 s{S_T0+k}, s{S_T0+k}, 512")
                late_prefetch()
                for k in range(1, 4):
                    e(f"s_xor_b32 s{S_T0+k}, s{S_T0+k}, 512")
            late_prefetch()
            e(f"{skip}:")
e(f"s_cmp_eq_u32 s{S_TB}, 2\ns_cbranch_scc0 L_f1one")
if OPT["hp1"]:
    e("s_setprio 2")
ffn1(2)
e("L_f1done:")
with outofline():
    e("L_f1one:")
    ffn1(1)
    e("s_branch L_f1done")
stamp("g1")
for k in range(2):
    e(f"buffer_store_dwordx4 {vr(V_NEG,4)}, v{V_L16}, {sr(SRD_WS,4)}, s{S_PC+k} offen sc1")
e(f"ds_write_b32 v{V_FLW}, v{V_ONE} offset:{F_G1}\ns_setprio 2\ns_nop 6")
for ti in range(2):
    e(f"s_cmp_eq_u32 s{S_TB}, 1\ns_cbranch_scc1 L_silu_done" if ti else "s_nop 1")
    for tb in range(2):
        for u in range(2):
            A, T, C, R = F1A + 32 * ti + 16 * tb + 8 * u, 8, V_CS + 2 * tb, 16 + 4 * (4 * ti + 2 * tb + u)
            for k in range(4):
                e(f"v_pk_mul_f32 {vr(T+2*k,2)}, {vr(A+2*k,2)}, {vr(C,2)}")
            for k in range(8):
                e(f"v_exp_f32 v{T+k}, v{T+k}")
            for k in range(4):
                e(f"v_pk_fma_f32 {vr(T+2*k,2)}, {vr(T+2*k,2)}, {vr(C+4,2)}, {vr(C+4,2)}")
            for k in range(8):
                e(f"v_rcp_f32 v{T+k}, v{T+k}")
            for k in range(4):
                e(f"v_pk_mul_f32 {vr(T+2*k,2)}, {vr(T+2*k,2)}, {vr(A+2*k,2)}")
            for k in range(4):
                e(f"v_cvt_pk_bf16_f32 v{R+k}, v{T+2*k}, v{T+2*k+1}")
            e(f"buffer_store_dwordx4 {vr(R,4)}, v{V_L16}, {sr(SRD_A,4)}, s{S_U+4+ti} offen{off(u*2048 + tb*1024)} sc1")
e("L_silu_done:\ns_setprio 0")
stamp("epi")

ACC, F2B, F2A, TA, XR = 8, 200, 232, 72, 240
PC, RT, RL, OB = 24, 200, 232, 236
def reduce_piece(vp, vl):
    for w in range(4):
        e(f"ds_read_b32 v{RL+w}, v{vl}{off(w*128)}")
    for w in range(4):
        for h in range(2):
            e(f"ds_read_b128 {vr(RT+8*w+4*h,4)}, v{vp}{off(w*8192 + h*1024)}")
def reduce_math(extra):
    e(f"v_add_f32 v{RL}, v{RL}, v{RL+1}\nv_add_f32 v{RL+2}, v{RL+2}, v{RL+3}\nv_add_f32 v{RL}, v{RL}, v{RL+2}\nv_rcp_f32 v{RL+2}, v{RL}")
    e(f"s_waitcnt lgkmcnt({4 + extra})")
    for k in range(4):
        e(f"v_pk_add_f32 {vr(RT+2*k,2)}, {vr(RT+2*k,2)}, {vr(RT+8+2*k,2)}")
    e(f"v_mov_b32 v{RL+3}, v{RL+2}\ns_waitcnt lgkmcnt(0)")
    for k in range(4):
        e(f"v_pk_add_f32 {vr(RT+16+2*k,2)}, {vr(RT+16+2*k,2)}, {vr(RT+24+2*k,2)}")
    for k in range(4):
        e(f"v_pk_add_f32 {vr(RT+2*k,2)}, {vr(RT+2*k,2)}, {vr(RT+16+2*k,2)}")
    for k in range(4):
        e(f"v_pk_mul_f32 {vr(RT+2*k,2)}, {vr(RT+2*k,2)}, {vr(RL+2,2)}")
    for k in range(4):
        e(f"v_cvt_pk_bf16_f32 v{OB+k}, v{RT+2*k}, v{RT+2*k+1}")
with outofline():
    lo, hi = f2u(2.0**-32), f2u(2.0**48)
    e(f"""L_duty_no:
s_setprio 0
s_waitcnt lgkmcnt(0)
s_cmp_eq_u32 s{S_BLK}, 0
s_cbranch_scc1 L_duty_ret
s_sub_u32 s3, s3, 1
s_cbranch_scc1 L_exit
s_cmp_eq_u32 s{S_BLK}, 1
s_cbranch_scc1 L_duty
s_sleep 6
L_duty:""")
    reduce_piece(V_PART, V_LS)
    e(f"""ds_read_b32 v{V_TMP}, v{V_FLR} offset:{F_SLOW}
s_waitcnt lgkmcnt(9)
s_setprio 2
v_max3_u32 v{OB}, v{RL}, v{RL+1}, v{RL+2}
v_max_u32 v{OB}, v{OB}, v{RL+3}
v_cmp_eq_u32 vcc, -1, v{OB}
s_nop 0
s_cbranch_vccnz L_duty_no""")
    reduce_math(1)
    for k in range(4):
        e(f"v_dot2_f32_bf16 v{RL+1}, v{OB+k}, s{S_C11}, {'v%d' % (RL+1) if k else 0}")
    e(f"""v_subrev_u32 v{RL+3}, {hex(lo)}, v{RL}
v_cmp_lt_u32 vcc, {hex(hi-lo)}, v{RL+3}
v_cmp_ne_u32 {sr(S_T0+1,2)}, 0, v{V_TMP}
s_add_u32 s{S_IT}, s{S_IT}, 1
v_cmp_class_f32 {sr(S_EX,2)}, v{RL+1}, s{S_CLS}
s_or_b64 vcc, vcc, {sr(S_T0+1,2)}
s_nop 0
s_or_b64 vcc, vcc, {sr(S_EX,2)}""")
    if OPT["force_slow"]:
        e(f"s_cmp_eq_u32 s{S_IT}, {OPT['force_slow']}\ns_cselect_b64 vcc, -1, vcc")
    e(f"""s_cbranch_vccnz L_duty_bad
buffer_store_dwordx4 {vr(OB,4)}, v{V_L16}, {sr(SRD_WS,4)}, s{S_PC} offen sc1
v_mov_b32 v{V_TMP}, s{S_IT}
s_mov_b64 exec, 1
ds_max_u32 v{V_FLW}, v{V_TMP} offset:{F_DUTY}
s_mov_b64 exec, -1
L_duty_next:
v_add_u32 v{V_PART}, {L_P2 - L_P1}, v{V_PART}
v_add_u32 v{V_LS}, 2048, v{V_LS}
s_mov_b32 s{S_PC}, s{S_PC+1}
s_setprio 0
L_duty_ret:
s_setpc_b64 {sr(S_RET,2)}
L_duty_bad:
ds_write_b32 v{V_FLR}, v{V_ONE} offset:{F_SLOW}
s_branch L_duty_next""")
def duty(upto, mode):
    skip = label("noduty")
    e(f"s_lshl_b32 s{S_T0}, s{S_IT}, 2\ns_add_u32 s{S_T0}, s{S_T0}, s{S_HW}\ns_mov_b32 s{S_BLK}, {mode}\ns_cmp_lt_u32 s{S_T0}, {upto}\ns_cbranch_scc0 {skip}")
    e(f"s_call_b64 {sr(S_RET,2)}, L_duty\n{skip}:")

HD = 4
e(f"""s_waitcnt vmcnt(0)
s_mov_b64 exec, 1
buffer_store_dwordx2 {vr(V_TAG,2)}, v{V_TAG+2}, {sr(SRD_WS,4)}, s{S_U+7} offen sc1
s_mov_b64 exec, -1
ds_write_b32 v{V_FLW}, v{V_ONE} offset:{F_PZ}""")
stamp("hfl")
e(f"s_cmp_eq_u32 s{S_HW}, 3\ns_cbranch_scc1 L_wostage\nL_wostaged:")
with outofline():
    e("L_wostage:")
    lds_spin(V_FLR, F_G1, V_TMP, "v_cmp_ne_u32", 1, sleep=2, prio=(2, 0))
    for u in range(16):
        hh, s_ = divmod(u, 4)
        for p in range(2):
            e(f"s_mov_b32 m0, {L_DUMP + u*2048 + p*1024}\ns_mov_b32 s{S_SOFF}, {(8*s_ + 4*p + hh)*16384}\nbuffer_load_dwordx4 v{V_S0}, {sr(SRD_C,4)}, s{S_SOFF} offen lds")
            e(f"s_mov_b32 m0, {u*2048 + p*1024}\ns_waitcnt vmcnt(40)\nbuffer_load_dwordx4 v{V_WO}, {sr(SRD_C,4)}, s{S_SOFF} offen lds")
    e(f"s_waitcnt vmcnt(0)\nds_write_b32 v{V_FLR}, v{V_ONE} offset:{F_WOS}\ns_branch L_wostaged")
lds_spin(V_FLR, F_WOS, V_TMP, "v_cmp_ne_u32", 1, sleep=2, prio=(2, 0))
for u in range(16):
    if u >= 2:
        e("s_waitcnt lgkmcnt(8)")
    for ee in range(2):
        for i in range(2):
            e(f"ds_read_b64_tr_b16 {vr(TA+8*u+4*ee+2*i,2)}, v{V_TT}{off(u*2048 + i*512 + ee*8)}")
e(f"""s_lshl_b32 s{S_T3}, s{S_J}, 1
s_add_u32 s{S_T3}, s{S_T3}, s{S_GL}
s_and_b32 s{S_T3}, s{S_T3}, 7
s_mul_i32 s{S_T3}, s{S_T3}, 11
s_lshr_b32 s{S_T3}, s{S_T3}, 2
s_mul_i32 s{S_T2}, s{S_HW}, 22
s_add_u32 s{S_T3}, s{S_T3}, s{S_T2}
s_lshl_b32 s{S_SOFF}, s{S_T3}, 14
s_lshl_b32 s{S_STEP}, s{S_T3}, 11
s_lshl_b32 s{S_U}, s{S_T2}, 14
s_add_u32 s{S_U+1}, s{S_U}, {22*16384}
s_lshl_b32 s{S_U+2}, s{S_T2}, 11
s_add_u32 s{S_U+3}, s{S_U+2}, {22*2048}
buffer_load_dwordx2 v[8:9], v{V_HF}, {sr(SRD_WS,4)}, s{S_FLB} offen sc1
s_waitcnt lgkmcnt(0)
ds_write_b32 v{V_FLW}, v{V_ONE} offset:{F_WOR}""")
stamp("wo")
lds_spin(V_FLR, F_WOR, V_TMP, "v_cmp_ne_u32", 1, sleep=1, prio=(2, 0))
vq, lq = Queue("vmcnt"), Queue("lgkmcnt")
def f2_dma(s):
    e(f"s_add_u32 m0, s{S_RING}, {(s % 6)*2048}\ns_nop 0\nbuffer_load_dwordx4 v{V_S0}, {sr(SRD_B,4)}, s{S_SOFF} offen lds")
    e(f"s_add_u32 m0, s{S_RING}, {(s % 6)*2048 + 1024 - 64}\ns_add_u32 s{S_T4}, s{S_SOFF}, 16384\nbuffer_load_dwordx4 v{V_S0}, {sr(SRD_B,4)}, s{S_SOFF} offen offset:64 lds")
    vq.issue(); vq.issue(("w", s))
    e(f"s_cmp_ge_u32 s{S_T4}, s{S_U+1}\ns_cselect_b32 s{S_SOFF}, s{S_U}, s{S_T4}")
def f2_h(s):
    for c in range(2):
        e(f"buffer_load_dwordx4 {vr(F2B+8*(s % HD)+4*c,4)}, v{V_L16}, {sr(SRD_A,4)}, s{S_STEP} offen{off(1024*c)} sc1")
        vq.issue(("h", s))
    e(f"s_add_u32 s{S_STEP}, s{S_STEP}, 2048\ns_cmp_ge_u32 s{S_STEP}, s{S_U+3}\ns_cselect_b32 s{S_STEP}, s{S_U+2}, s{S_STEP}")
def f2_reads(s, c):
    for i in range(2):
        e(f"ds_read_b64_tr_b16 {vr(F2A+8*(s % 2)+4*c+2*i,2)}, v{V_TR2}{off((s % 6)*2048 + c*1024 + i*512)}")
        lq.issue(("r", s))
for s in range(6):
    f2_dma(s)
duty(4, 0)
e(f"s_waitcnt vmcnt(12)\ns_setprio 2\nv_cmp_ne_u64 vcc, {sr(S_TAG,2)}, v[8:9]\ns_setprio 0\ns_cbranch_vccnz L_hslow\nL_hok:")
with outofline():
    e("L_hslow:")
    glb_spin(V_HF, f"s{S_FLB}", 8, sleep=OPT["hsl"], prio=(2, 0))
    e("s_branch L_hok")
stamp("hok")
if OPT["hp2"]:
    e("s_setprio 2")
for s in range(HD):
    f2_h(s)
vq.wait(("w", 0))
f2_reads(0, 0)
f2_reads(0, 1)
for s in range(22):
    need = vq.left(("h", s))
    if s + 1 < 22:
        need = min(need, vq.left(("w", s + 1)))
    e(f"s_waitcnt vmcnt({need}) lgkmcnt(0)")
    f, bb = F2A + 8 * (s % 2), F2B + 8 * (s % HD)
    for u in range(4):
        mf32(ACC + 16 * u, f + 4 * (u & 1), bb + 4 * (u >> 1), ACC + 16 * u if s else None)
        if u < 2 and s + 1 < 22:
            f2_reads(s + 1, u)
    if s + HD < 22:
        f2_h(s + HD)
    if s + 6 < 22:
        f2_dma(s + 6)
    stamp(f"h{s}")
stamp("f2")

SLOT = [0, 1, 2, 0, 0, 1, 2, 0]
def piece_loads(t):
    for s_ in range(4):
        e(f"buffer_load_dwordx4 {vr(PC+16*SLOT[t]+4*s_,4)}, v{V_TB}, {sr(SRD_WS,4)}, s{(S_OB, S_U)[t // 4]+s_} offen{off((t % 4)*1024)} sc1")
def wait_duty(mask, sleep):
    top = label("wd")
    e(f"""{top}:
ds_read_b32 v{RL}, v{V_FLR} offset:{F_DUTY}
ds_read_b32 v{RL+1}, v{V_FLR} offset:{F_SLOW}
s_waitcnt lgkmcnt(0)
s_setprio 2
v_lshl_or_b32 v{RL}, v{RL+1}, 1, v{RL}
v_cmp_gt_u32 vcc, 2, v{RL}
s_setprio 0
s_nop 0
s_mov_b32 s{S_T5}, vcc_lo
s_and_b64 vcc, vcc, {mask}""")
    if mask:
        retry(top, sleep)
def consume(t, younger, sleep):
    chk, again = label("chk"), label("again")
    e(f"{chk}:")
    for n in range(4):
        d = PC + 16 * SLOT[t] + 4 * n
        e(f"s_waitcnt vmcnt({younger + 3 - n})")
        if n == 0: e("s_setprio 2")
        e(f"v_max3_u32 v{V_TMP}, v{d}, v{d+3}, v{V_TMP}" if n else f"v_max_u32 v{V_TMP}, v{d}, v{d+3}")
    e(f"v_cmp_eq_u32 vcc, -1, v{V_TMP}\ns_setprio 0\ns_cbranch_vccnz {again}")
    with outofline():
        e(f"{again}:\ns_sub_u32 s3, s3, 1\ns_cbranch_scc1 L_exit")
        if sleep:
            e(f"s_sleep {sleep}")
        piece_loads(t)
        if younger:
            e("s_waitcnt vmcnt(0)")
        e(f"s_branch {chk}")
    for s_ in range(4):
        for ee in range(2):
            c = ACC + 8 * (t // 4) + 4 * ee
            mf16(c, TA + 32 * (t % 4) + 8 * s_ + 4 * ee, PC + 16 * SLOT[t] + 4 * s_, c)
def store_out(tb):
    e("s_nop 5\ns_setprio 2")
    for k in range(4):
        e(f"v_cvt_pk_bf16_f32 v{XR+4*tb+k}, v{ACC+8*tb+2*k}, v{ACC+8*tb+2*k+1}")
    e(f"buffer_store_dwordx4 {vr(XR+4*tb,4)}, v{V_OUT}, {sr(SRD_OUT,4)}, s{S_XO+tb} offen")

duty(4, 2)
if OPT["dtry"] & 1:
    duty(7, 0)
e("s_nop 7")
for tb in range(2):
    e(f"buffer_load_dwordx4 {vr(XR+4*tb,4)}, v{V_OUT}, {sr(SRD_X,4)}, s{S_XO+tb} offen")
for tb in range(2):
    if tb:
        e("s_waitcnt lgkmcnt(6)")
    for ct in range(2):
        for a in range(4):
            e(f"ds_write_b128 v{(V_DW0, V_DW1)[tb]}, {vr(ACC+32*tb+16*ct+4*a,4)}{off(ct*4096 + a*1024)}")
e(f"ds_write_b32 v{V_FLW}, v{V_ONE} offset:{F_D0}\ns_waitcnt lgkmcnt(0)")
for k in range(4):
    e(f"s_add_u32 s{S_U+k}, s{S_OB+k}, 32768")
for t in range(3):
    piece_loads(t)
lds_spin(V_FLR, F_D0, RL, "v_cmp_ne_u32", 1, sleep=1, prio=(2, 0))
for tb in range(2):
    for w in range(4):
        for h in range(2):
            e(f"ds_read_b128 {vr(RT+8*w+4*h,4)}, v{(V_DR0, V_DR1)[tb]}{off(w*(8192, H_STR)[tb] + h*512)}")
    e("s_waitcnt vmcnt(12) lgkmcnt(4)\ns_setprio 2")
    for k in range(4):
        e(f"v_pk_add_f32 {vr(RT+2*k,2)}, {vr(RT+2*k,2)}, {vr(RT+8+2*k,2)}")
    e("s_waitcnt lgkmcnt(0)")
    for k in range(4):
        e(f"v_pk_add_f32 {vr(RT+16+2*k,2)}, {vr(RT+16+2*k,2)}, {vr(RT+24+2*k,2)}")
    for k in range(4):
        e(f"v_pk_add_f32 {vr(RT+2*k,2)}, {vr(RT+2*k,2)}, {vr(RT+16+2*k,2)}")
    for k in range(4):
        e(f"v_dot2_f32_bf16 v{ACC+8*tb+2*k}, v{XR+4*tb+k}, s{S_C10}, v{RT+2*k}")
        e(f"v_dot2_f32_bf16 v{ACC+8*tb+2*k+1}, v{XR+4*tb+k}, s{S_C01}, v{RT+2*k+1}")
    e("s_setprio 0")
stamp("d0")
if OPT["dtry"] & 2:
    duty(7, 0)
consume(0, 8, OPT["csl"])
piece_loads(3)
consume(1, 8, OPT["csl"])
consume(2, 4, OPT["csl"])
wait_duty(0, 0)
e(f"s_bitcmp1_b32 s{S_T5}, s{S_HW}\ns_cselect_b32 s{S_IT}, s{S_IT}, 2")
consume(3, 0, OPT["csl"])
store_out(0)
e("s_setprio 0")
stamp("tb0")
duty(7, 2)
wait_duty(7, 4)
piece_loads(4)
piece_loads(5)
e(f"s_bitcmp1_b32 s{S_T5}, 3\ns_cbranch_scc1 L_no6")
piece_loads(6)
e("L_no6:")
consume(4, 4, OPT["csl"])
e(f"s_bitcmp1_b32 s{S_T5}, 3\ns_cbranch_scc1 L_no7")
piece_loads(7)
e("L_no7:")
consume(5, 0, OPT["csl"])
stamp("pre")
e(f"s_bitcmp1_b32 s{S_T5}, 3\ns_cbranch_scc0 L_have7")
wait_duty(8, 2)
piece_loads(6)
if OPT["t7dl"]:
    e(f"s_sleep {OPT['t7dl']}")
piece_loads(7)
e("L_have7:")
consume(6, 4, 0)
consume(7, 0, OPT["t7sl"])
stamp("fbar")
store_out(1)
e("s_branch L_fin" if OPT["stamps"] or OPT["hold"] != -1 else "s_endpgm")

S_KO = 40
def a_setup():
    e(f"""v_lshlrev_b32 v1, 4, v0
v_and_b32 v4, 15, v0
v_lshlrev_b32 v4, 4, v4
v_lshrrev_b32 v6, 5, v0
v_lshl_add_u32 v4, v6, 8, v4
v_bfe_u32 v6, v0, 4, 1
v_lshl_add_u32 v2, v6, 9, v4
s_lshl_b32 s{S_T2}, s{S_W}, 13
s_add_u32 s{S_T2}, s{S_T2}, {L_P1}
v_add_u32 v5, s{S_T2}, v1
v_and_b32 v6, 31, v0
s_lshl_b32 s{S_T2}, s{S_W}, 7
s_add_u32 s{S_T2}, s{S_T2}, {L_LS}
v_lshl_add_u32 v6, v6, 2, s{S_T2}
v_mov_b32 v7, v{V_FLR}
v_add_u32 v252, {L_Q}, v1
s_lshl_b32 s{S_T0}, s{S_W}, 15
s_mov_b32 s{S_EX}, 0x0000ffff
s_mov_b32 s{S_EX+1}, 0x0000ffff
s_lshl_b32 s{S_T2}, s{S_W}, 11
s_add_u32 s{S_XO}, s{S_T2}, {L_P2}
s_mul_i32 s{S_T2}, s{S_W}, 384
s_add_u32 s{S_XO+1}, s{S_T2}, 2048
s_lshl4_add_u32 s{S_T2}, s{S_G}, s{S_J}
s_lshl2_add_u32 s{S_T2}, s{S_T2}, s{S_W}
s_lshl_b32 s{S_T2}, s{S_T2}, 10
s_add_u32 s{S_PC}, s{S_T2}, {hex(WS_O)}
s_add_u32 s{S_PC+1}, s{S_PC}, 32768
s_movk_i32 s{S_CLS}, 0x207""")
    for b in range(16):
        e(f"s_add_u32 s{S_T2}, s{S_C}, {b}\ns_and_b32 s{S_T2}, s{S_T2}, 15\ns_lshl_b32 s{S_T2}, s{S_T2}, 11\ns_add_u32 s{S_KO+b}, s{S_T2}, s{S_T0}")
e(".p2align 6\nL_afront:")
stamp("karg")
common_setup()
e(f"""s_lshl_b32 s{S_T0}, s{S_W}, 3
s_xor_b32 s{S_T0}, s{S_T0}, 8
s_or_b32 s{S_T0}, s{S_T0}, s2
s_cmp_lt_u32 s{S_T0}, 8
s_cbranch_scc0 L_notag
s_memrealtime {sr(S_T0+1,2)}
v_mov_b32 v46, 0
v_mov_b32 v47, 0
s_waitcnt lgkmcnt(0)
s_or_b32 s{S_T0+1}, s{S_T0+1}, 1
v_mov_b32 v44, s{S_T0+1}
v_mov_b32 v45, s{S_T0+2}
s_mov_b64 exec, 1
buffer_atomic_cmpswap_x2 v[44:47], v46, {sr(SRD_DBG,4)}, 0 offen sc1
s_mov_b64 exec, -1
L_notag:
v_lshlrev_b32 v3, 4, v0
v_mov_b32 v48, -1
v_mov_b32 v49, -1
v_mov_b32 v50, -1
v_mov_b32 v51, -1
s_lshl_b32 s{S_T0}, s{S_W}, 10
s_add_u32 s{S_T0}, s{S_T0}, {L_LS}
v_add_u32 v6, s{S_T0}, v3
ds_write_b128 v6, v[48:51]
v_mov_b32 v52, 0
v_lshlrev_b32 v6, 2, v0
v_add_u32 v6, {L_FLG}, v6
ds_write2st64_b32 v6, v52, v52 offset1:1""")
unit_addr(0, 2)
unit_addr(1, 3)
e(f"s_cmp_eq_u32 s{S_W}, 0\ns_cbranch_scc1 L_kv")
def v_init():
    e(f"""v_mov_b32 v42, 0
s_mov_b32 exec_lo, 0x00110000
s_mov_b32 exec_hi, 0x00110000
v_mov_b32 v42, s{S_C11}
s_mov_b64 exec, -1
v_mov_b32 v43, v42""")
    for i in range(0, 128, 2):
        e(f"v_mov_b64 {vr(VV+i,2)}, v[42:43]")
v_init()
e("v_mov_b32 v226, v1")
a_setup()
srd(SRD_OUT, P_WQ, 512 * 1024)
e(f"""v_lshrrev_b32 v224, 3, v0
v_lshlrev_b32 v224, 10, v224
v_and_b32 v225, 7, v0
v_lshl_add_u32 v224, v225, 6, v224
s_lshl1_add_u32 s{S_T0}, s{S_C}, s{S_W}
s_sub_u32 s{S_T0}, s{S_T0}, 2
s_lshl_b32 s{S_T0}, s{S_T0}, 13
s_and_b32 s{S_T1}, s{S_J}, 4
s_lshl_b32 s{S_T1}, s{S_T1}, 7
s_add_u32 s{S_T0}, s{S_T0}, s{S_T1}
s_cmp_eq_u32 s{S_W}, 1
s_cselect_b32 s{S_T0}, 0x1000000, s{S_T0}""")
stamp("aset")
e("s_waitcnt lgkmcnt(0)\ns_barrier")
unit_loads(8, 0, 226)
unit_loads(24, 1, 226)
if OPT["pf_wq"]:
    e(f"buffer_load_dword v225, v224, {sr(SRD_OUT,4)}, s{S_T0} offen")
stamp("xis")
ln_centre([8, 24], [4 + OPT["pf_wq"], OPT["pf_wq"]], V_WR, 56, 58, 60)
ln_stats(2, V_ST, 56, 58)
e(f"ds_write_b32 v{V_FLW}, v{V_ONE} offset:{F_LNA}")
stamp("lnB")
lds_spin(7, F_KVOK, 8, "v_cmp_ne_u32", 1)
e("s_branch L_kvok")
WF, XF, KA = 72, 136, 208
e("L_kv:\ns_setprio 3")
e(f"""v_lshlrev_b32 v43, 3, v7
v_bfe_u32 v42, v0, 2, 2
v_lshl_add_u32 v43, v42, 5, v43
v_lshrrev_b32 v42, 4, v0
v_lshl_add_u32 v43, v42, 8, v43
v_add_u32 v43, {L_WKV}, v43
v_mul_u32_u24 v44, {X_STR}, v42
v_lshl_add_u32 v44, v5, 4, v44
s_lshl_b32 s{S_T0}, s{S_T3}, 8
s_add_u32 s{S_T0}, s{S_T0}, {L_X}
v_add_u32 v44, s{S_T0}, v44
s_lshl_b32 s{S_T0}, s{S_T3}, 6
s_add_u32 s{S_T0}, s{S_T0}, {L_RSTD}
v_lshl_add_u32 v45, v5, 2, s{S_T0}
v_lshl_add_u32 v46, v42, 4, s{S_T0}
v_mov_b32 v47, {L_FLG + F_TAG}
s_lshr_b32 s{S_T1}, s{S_T3}, 1
s_lshl1_add_u32 s{S_T0}, s{S_G}, s{S_T1}
s_lshr_b32 s{S_T1}, s{S_J}, 2
s_lshl1_add_u32 s{S_T0}, s{S_T0}, s{S_T1}
s_and_b32 s{S_T1}, s{S_T3}, 1
s_lshl1_add_u32 s{S_T0}, s{S_T0}, s{S_T1}
s_lshl_b32 s{S_T5}, s{S_T0}, 9
s_lshl_b32 s{S_T4}, s{S_J}, {OPT['fsh']}
s_add_u32 s{S_T4}, s{S_T4}, s{S_FLB}
s_waitcnt lgkmcnt(0)
s_barrier""")
unit_loads(8, 0)
unit_loads(24, 1)
for s in range(16):
    if s % 4 == 0:
        e(f"s_waitcnt vmcnt({20 - s}) lgkmcnt(6)")
        if s == 0: stamp("wkv")
    for i in range(2):
        e(f"ds_read_b64_tr_b16 {vr(WF+4*s+2*i,2)}, v43{off(s*1024 + i*128)}")
stamp("trd")
e(f"s_bitcmp1_b32 s{S_J}, 2\ns_cbranch_scc1 L_kv_v")
def kv_tile(isv):
    lq = Queue("lgkmcnt")
    rs, ok = label("rs"), label("rsok")
    rd = f"ds_read_b32 v53, v{V_FLR} offset:{F_LN}\n" + ("ds_read_b128 v[68:71], v46" if isv else "ds_read_b32 v68, v45")
    top = label("lnp")
    e(f"{top}:\ns_sub_u32 s3, s3, 1\ns_cbranch_scc1 L_exit\nds_read_b32 v53, v{V_FLR} offset:{F_LNP}\ns_waitcnt lgkmcnt(0)\nv_cmp_ne_u32 vcc, 1, v53\ns_nop 0\ns_cbranch_vccnz {top}")
    stamp("bar1")
    def xr(s):
        e(f"ds_read_b128 {vr(XF+4*s,4)}, v44{off(s*4*X_STR)}")
        lq.issue(s)
    for s in range(8):
        xr(s)
    for s in range(16):
        if s + 8 < 16:
            xr(s + 8)
        elif s == 12:
            e(rd)
            lq.issue(); lq.issue()
        lq.wait(s)
        if isv:
            mf16(KA, XF + 4 * s, WF + 4 * s, KA if s else None)
        else:
            mf16(KA, WF + 4 * s, XF + 4 * s, KA if s else None)
    e(f"{ok}:\ns_waitcnt lgkmcnt(0)\nv_cmp_ne_u32 vcc, 1, v53\ns_nop 4\ns_cbranch_vccnz {rs}")
    with outofline():
        e(f"{rs}:\ns_sub_u32 s3, s3, 1\ns_cbranch_scc1 L_exit\n{rd}\ns_branch {ok}")
    for k in range(4):
        e(f"v_mul_f32 v{KA+k}, v{KA+k}, v{68 + (k if isv else 0)}")
    e(f"""v_cvt_pk_bf16_f32 v48, v{KA}, v{KA+1}
v_cvt_pk_bf16_f32 v49, v{KA+2}, v{KA+3}
s_nop 1
v_permlane32_swap_b32 v48, v50
v_permlane32_swap_b32 v49, v51
s_mov_b32 exec_hi, 0
buffer_store_dwordx4 v[48:51], v3, {sr(SRD_WS,4)}, s{S_T5} offen sc1
s_mov_b32 exec_hi, -1""")
kv_tile(0)
e("s_branch L_kv_done\nL_kv_v:")
kv_tile(1)
e("L_kv_done:")
stamp("kvst")
e(f"buffer_load_dwordx2 v[54:55], v52, {sr(SRD_DBG,4)}, 0 offen sc1")
e(f"ds_write_b32 v{V_FLR}, v{V_ONE} offset:{F_KVST}")
ln_centre([8], [6], V_WR, 56, 58, 60)
v_init()
e(f"""L_tagchk:
s_waitcnt vmcnt(0)
v_cmp_eq_u32 vcc, 0, v54
s_nop 0
s_cbranch_vccnz L_tag
s_mov_b64 exec, 1
buffer_store_dwordx2 v[54:55], v52, {sr(SRD_WS,4)}, s{S_T4} offen sc1
s_mov_b64 exec, -1""")
with outofline():
    e(f"L_tag:\ns_sub_u32 s3, s3, 1\ns_cbranch_scc1 L_exit\ns_sleep 2\nbuffer_load_dwordx2 v[54:55], v52, {sr(SRD_DBG,4)}, 0 offen sc1\ns_branch L_tagchk")
stamp("kvfl")
ln_centre([24], [1], V_WR + 1, 57, 59, 60)
ln_stats(2, V_ST, 56, 58)
e(f"ds_write_b32 v{V_FLW}, v{V_ONE} offset:{F_LNA}")
stamp("lnB")
e(f"""ds_write_b64 v47, v[54:55]
v_readfirstlane_b32 s{S_TAG}, v54
v_readfirstlane_b32 s{S_TAG+1}, v55
s_setprio 0""")
a_setup()
e(f"""v_lshrrev_b32 v3, 3, v0
v_lshlrev_b32 v3, 11, v3
v_and_b32 v8, 7, v0
v_lshl_add_u32 v3, v8, {OPT['fsh']}, v3""")
for k in range(4):
    e(f"s_mov_b32 s{S_U+k}, {hex(WS_FL + k*16384)}")
if OPT["pgate"]:
    lds_spin(7, F_WQ, 8, "v_cmp_ne_u32", 1)
if OPT["pdl"]:
    e(f"s_sleep {OPT['pdl']}")
e("L_kvpoll:")
for k in range(4):
    e(f"buffer_load_dwordx2 {vr(8+2*k,2)}, v3, {sr(SRD_WS,4)}, s{S_U+k} offen sc1")
for k in range(4):
    e(f"s_waitcnt vmcnt({3-k})\nv_cmp_ne_u64 {'vcc' if k == 0 else sr(S_U+2+2*k,2)}, {sr(S_TAG,2)}, {vr(8+2*k,2)}")
e(f"s_or_b64 vcc, vcc, {sr(S_U+4,2)}\ns_or_b64 vcc, vcc, {sr(S_U+6,2)}\ns_or_b64 vcc, vcc, {sr(S_U+8,2)}")
retry("L_kvpoll", OPT["psl"], (lambda: e("s_mov_b64 exec, vcc")) if OPT["mask"] else None)
e(f"s_mov_b64 exec, -1\nds_write_b32 v7, v255 offset:{F_KVOK}\nL_kvok:")
stamp("flags")
if OPT["pfa"]:
    srd(SRD_OUT, P_W1, 512 * 2752)
    e(f"""s_xor_b32 s{S_T2}, s{S_J}, {4 * OPT['flip']}
s_cmp_lt_u32 s{S_T2}, 4
s_cselect_b32 s{S_T2}, 26, 15
s_cselect_b32 s{S_T3}, 0, {27*64}
v_lshrrev_b32 v{VO}, 5, v0
v_mul_u32_u24 v{VO}, 2752, v{VO}
v_and_b32 v{VO+1}, 31, v0
v_min_u32 v{VO+1}, s{S_T2}, v{VO+1}
v_lshl_add_u32 v{VO}, v{VO+1}, 6, v{VO}
s_lshl2_add_u32 s{S_T2}, s{S_C}, s{S_W}
s_mul_i32 s{S_T2}, s{S_T2}, {4*2752}
s_add_u32 s{S_U+4}, s{S_T2}, s{S_T3}
s_add_u32 s{S_U+5}, s{S_U+4}, {2*2752}""")
vq = Queue("vmcnt")
NB0 = OPT["nb0"]
def k_load(b):
    vq.issue(("K", b))
    return [f"buffer_load_dwordx4 {vr(VK+4*b,4)}, v2, {sr(SRD_WS,4)}, s{S_KO+b} offen sc1"]
def v_load(b):
    vq.issue(); vq.issue(("V", b))
    return ([f"s_mov_b64 exec, {sr(S_EX,2)}"]
            + [f"buffer_load_dwordx4 {vr(VV+8*b+4*i,4)}, v4, {sr(SRD_WS,4)}, s{S_KO+b} offen{off(1024+512*i)} sc1" for i in range(2)]
            + ["s_mov_b64 exec, -1"])
for b in range(NB0):
    e("\n".join(k_load(b) + v_load(b)))
if OPT["pfa"]:
    for k in range(2):
        e(f"buffer_load_dword v254, v{VO}, {sr(SRD_OUT,4)}, s{S_U+4+k} offen")
        vq.issue()
if NB0 == 16:
    e(f"ds_write_b32 v253, v255 offset:{F_KVIS}")
stamp("kvis")
lds_spin(7, F_Q, 3, "v_cmp_ne_u32", 1)
e(f"ds_read_b128 {vr(VQ,4)}, v252\ns_setprio 1\ns_waitcnt vmcnt({vq.left(('K', 0))}) lgkmcnt(0)")
stamp("go")
mf32(SA, VK, VQ)
e("s_nop 11")

ORDER = "e0 d7 a e1 e2 e3 b e4 e5 c0 c1 Q e6 e7 c2 e8 c3 e9 e10 e11 c4 e12 e13 c5 e14 e15 c6".split()
def flush(t):
    o = (t % 4) * 2048 + (t // 4) * (L_P2 - L_P1)
    return [f"ds_write_b128 v5, {vr(VO,4)}{off(o)}", f"ds_write_b128 v5, {vr(VO+4,4)}{off(o+1024)}",
            f"ds_write_b32 v6, v{VO+8}{off(t*512)}"]
for i in range(128):
    t, b = divmod(i, 16)
    S, T = (SA, SB) if i % 2 == 0 else (SB, SA)
    pb = (b - 1) % 16
    after = {}
    if t == 0:
        if b + NB0 < 16:
            after["a"] = k_load(b + NB0)
        after["b"] = [f"s_waitcnt vmcnt({min(vq.left(('K', b+1)), vq.left(('V', b))) if b < 15 else 0})"]
        if b + NB0 < 16:
            after["Q"] = v_load(b + NB0)
        if b + NB0 == 16 - OPT["kvlead"] and NB0 < 16:
            after["e9"] = [f"ds_write_b32 v253, v255 offset:{F_KVIS}"]
    if b == 14 and t < 7:
        after["Q"] = [f"ds_read_b128 {vr(VQ,4)}, v252{off((t+1)*1024)}"]
    if b == 15 and t < 7:
        after["a"] = ["s_waitcnt lgkmcnt(0)"]
    if b == 0 and t > 0:
        fl = flush(t - 1)
        after["e11"], after["e12"], after["e14"] = [fl[0]], [fl[1]], [fl[2]]
    if i == 126:
        after["a"] = [f"ds_read_b32 v3, v253 offset:{F_DUTY}"]
    if t == 4 and b == 6:
        after["a"] = [f"ds_read_b32 v3, v7 offset:{F_G1}"]
    if t == 4 and b == 7:
        after["a"] = ["s_waitcnt lgkmcnt(0)"]
        after["e7"] = ["v_cmp_ne_u32 vcc, 1, v3"]
        after["e8"] = ["s_cbranch_vccnz L_g1slow", "L_g1ok:"]
    for tok in ORDER:
        k = tok[0]
        if k == "e":
            n = int(tok[1:]); e(f"v_exp_f32 v{S+n}, v{S+n}")
        elif k == "c":
            n = int(tok[1:]); e(f"v_cvt_pk_bf16_f32 v{S+(n//4)*8+n%4}, v{S+2*n}, v{S+2*n+1}")
        elif k == "d":
            if i: e(f"v_cvt_pk_bf16_f32 v{T+11}, v{T+14}, v{T+15}")
        elif k == "a":
            if i: mf32(VO, VV + 8 * pb, T, None if b == 1 else VO)
        elif k == "b":
            if i: mf32(VO, VV + 8 * pb + 4, T + 8, VO)
        elif k == "Q":
            if i < 127:
                mf32(T, VK + 4 * ((b + 1) % 16), VQ)
        for x in after.get(tok, []):
            e(x)
    if b == 15:
        stamp(f"p{t}")
with outofline():
    e("L_g1slow:")
    lds_spin(7, F_G1, 3, "v_cmp_ne_u32", 1, sleep=1)
    e("s_branch L_g1ok")
e(f"v_cvt_pk_bf16_f32 v{SB+11}, v{SB+14}, v{SB+15}")
mf32(VO, VV + 8 * 15, SB, VO)
e("s_nop 0")
mf32(VO, VV + 8 * 15 + 4, SB + 8, VO)
e(f"""s_waitcnt lgkmcnt(0)
v_readfirstlane_b32 s{S_IT}, v3
v_mov_b32 v{V_L16}, v1
v_mov_b32 v{V_FLR}, v7
v_add_u32 v{V_PART}, s{S_XO}, v1
v_add_u32 v{V_LS}, s{S_XO+1}, v6
s_mov_b32 s{S_BLK}, 1
s_cmp_eq_u32 s{S_IT}, 1
s_nop 3""")
for x in flush(7):
    e(x)
stamp("fbar")
e(f"""s_cbranch_scc0 L_aduty
s_mov_b32 s{S_PC}, s{S_PC+1}
s_call_b64 {sr(S_RET,2)}, L_duty
L_aduty_done:""")
with outofline():
    e(f"L_aduty:\ns_cmp_eq_u32 s{S_IT}, 0\ns_cbranch_scc0 L_aduty_done")
    lds_spin(7, F_PZ, 3, "v_cmp_ne_u32", 1, sleep=4)
    e(f"""v_subrev_u32 v{V_PART}, {L_P2 - L_P1}, v{V_PART}
v_subrev_u32 v{V_LS}, 2048, v{V_LS}
s_call_b64 {sr(S_RET,2)}, L_duty
s_call_b64 {sr(S_RET,2)}, L_duty
s_branch L_aduty_done""")
stamp("adone")
e(f"""s_setprio 0
L_status:
s_sleep 4
ds_read_b32 v3, v7 offset:{F_DUTY}
ds_read_b32 v4, v7 offset:{F_SLOW}
s_waitcnt lgkmcnt(0)
v_cmp_ne_u32 vcc, 0, v4
s_nop 0
s_cbranch_vccnz L_slow
v_cmp_ne_u32 vcc, 2, v3
s_nop 0""")
retry("L_status", 0)
e("L_fin:")
if OPT["hold"] == "end":
    e("s_waitcnt vmcnt(0)")
    stamp("end")
if OPT["stamps"]:
    e(f"s_waitcnt vmcnt(0)\ns_memtime {sr(S_STMP,2)}\ns_waitcnt lgkmcnt(0)")
    e(f"s_lshl_b32 s{S_T0}, s{S_G}, 3\ns_add_u32 s{S_T0}, s{S_T0}, s{S_J}\ns_lshl_b32 s{S_T0}, s{S_T0}, 3\ns_add_u32 s{S_T0}, s{S_T0}, s{S_W}\ns_lshl_b32 s{S_T0}, s{S_T0}, 6\ns_add_u32 s{S_T0}, s{S_T0}, {hex(WS_ST)}")
    for k in range(10):
        e(f"v_mov_b32 v{8+k}, s{S_ST0+k}")
    e(f"v_mov_b32 v18, s{S_STMP}\ns_memrealtime {sr(S_STMP,2)}\ns_waitcnt lgkmcnt(0)\nv_mov_b32 v19, s{S_STMP}\nv_mov_b32 v1, 0\ns_mov_b64 exec, 1")
    for k in range(3):
        e(f"buffer_store_dwordx4 {vr(8+4*k,4)}, v1, {sr(SRD_WS,4)}, s{S_T0} offen{off(16*k)}")
e("L_exit:\ns_endpgm")
out += tail_code
tail_code.clear()
e("L_code_end:")

def wave_sync():
    e(f"s_add_u32 s{S_T4}, s{S_T4}, 1\nv_mov_b32 v3, s{S_T4}\nds_write_b32 v253, v3 offset:{F_AS}")
    lds_spin(7, F_AS, 3, "v_cmp_gt_u32", f"s{S_T4}", sleep=1)
e("L_slow:")
lds_spin(7, F_PZ, 3, "v_cmp_ne_u32", 1, sleep=4)
e(f"""s_lshl_b32 s{S_T0}, s{S_W}, 8
s_add_u32 s{S_T0}, s{S_T0}, {L_MB}
v_lshl_add_u32 v2, v0, 2, s{S_T0}
v_and_b32 v4, 31, v0
v_lshlrev_b32 v4, 2, v4
v_add_u32 v4, {L_MB}, v4
v_add_u32 v6, {L_SL - L_LS}, v6
v_add_u32 v254, {L_P1}, v1
s_lshl_b32 s{S_T2}, s{S_G}, 16
s_lshl_b32 s{S_T3}, s{S_J}, 12
s_add_u32 s{S_T2}, s{S_T2}, s{S_T3}
s_add_u32 s{S_T2}, s{S_T2}, {hex(WS_O)}
s_mov_b32 s{S_IT}, 0
s_mov_b32 s{S_T4}, 0
L_slow_loop:
ds_read_b128 {vr(VQ,4)}, v252
v_mov_b32 v3, 0xff800000
s_waitcnt lgkmcnt(0)
v_add_u32 v252, 1024, v252""")
for b in range(16):
    mf32(SA, VK + 4 * b, VQ)
    e("s_nop 11")
    for k in range(8):
        e(f"v_max3_f32 v3, v3, v{SA+2*k}, v{SA+2*k+1}")
e("ds_write_b32 v2, v3")
wave_sync()
for k in range(8):
    e(f"ds_read_b32 v{SA+k}, v4{off(128*k)}")
e("s_waitcnt lgkmcnt(0)")
e(f"v_max3_f32 v3, v{SA}, v{SA+1}, v{SA+2}\nv_max3_f32 v3, v3, v{SA+3}, v{SA+4}\nv_max3_f32 v3, v3, v{SA+5}, v{SA+6}\nv_max_f32 v3, v3, v{SA+7}")
for k in range(16):
    e(f"v_sub_f32 v{SB+k}, 0, v3")
e("s_nop 1")
for b in range(16):
    mf32(SA, VK + 4 * b, VQ, SB)
    e("s_nop 11")
    for k in range(16):
        e(f"v_exp_f32 v{SA+k}, v{SA+k}")
    for n in range(8):
        e(f"v_cvt_pk_bf16_f32 v{SA+(n//4)*8+n%4}, v{SA+2*n}, v{SA+2*n+1}")
    e("s_nop 1")
    mf32(VO, VV + 8 * b, SA, VO if b else None)
    mf32(VO, VV + 8 * b + 4, SA + 8, VO)
e("s_nop 11")
for x in flush(0):
    e(x)
wave_sync()
e(f"s_cmp_eq_u32 s{S_W}, 0\ns_cbranch_scc0 L_slow_next")
reduce_piece(254, 6)
e("s_waitcnt lgkmcnt(8)")
reduce_math(0)
for k in range(4):
    e(f"v_min_u32 v{OB+k}, -2, v{OB+k}")
e(f"""s_lshr_b32 s{S_T0}, s{S_IT}, 2
s_lshl_b32 s{S_T0}, s{S_T0}, 15
s_and_b32 s{S_T1}, s{S_IT}, 3
s_lshl_b32 s{S_T1}, s{S_T1}, 10
s_add_u32 s{S_T0}, s{S_T0}, s{S_T1}
s_add_u32 s{S_T0}, s{S_T0}, s{S_T2}
buffer_store_dwordx4 {vr(OB,4)}, v1, {sr(SRD_WS,4)}, s{S_T0} offen sc1
s_waitcnt vmcnt(0)
L_slow_next:
s_add_u32 s{S_IT}, s{S_IT}, 1
s_cmp_lt_u32 s{S_IT}, 8
s_cbranch_scc1 L_slow_loop
s_branch L_fin""")
out += tail_code

e(f""".section .rodata,"a"
.p2align 6
.amdhsa_kernel {NAME}_kernel
.amdhsa_next_free_vgpr 256
.amdhsa_next_free_sgpr 102
.amdhsa_accum_offset 256
.amdhsa_group_segment_fixed_size 0
.amdhsa_kernarg_size 88
.amdhsa_user_sgpr_count 2
.amdhsa_user_sgpr_kernarg_segment_ptr 1
.amdhsa_system_sgpr_workgroup_id_x 1
.end_amdhsa_kernel""")
open(sys.argv[1], "w").write("\n".join(out) + "\n")
```

```python
import sys, struct

NAME = "parallel_sum__grouped_kv_mqa__dense_activation_silu__prompt"
OPT = dict(hold=-1, holdT=6000, stamps=0, rt=0, force_slow=0, pf_code=1, pf_wq=1, pf_w1=0, pf_w2=1, f1wait=1, psl=0, pdl=0, fsh=6, chain=0, warm=0, pf_at=20, pf_mall=0, nb0=6, mask=1, kvlead=1, gate=1, pgate=1, csl=4, t6dl=12, t7dl=4, t7sl=0, flip=0, d1=8, hsl=8, hp1=0, hp2=0, pfa=0, dtry=3, mallw=1, pf1=6, pw=0, p0=3, npre=16, g2=3, g1h=4, g1l=4, eb=1, x0late=0, inl=1, defer=1, perm=0)
for a in sys.argv[2:]:
    k, v = a.split("=")
    OPT[k] = int(v) if v.lstrip("-").isdigit() else v
SITES = ["start"] + (OPT["stamps"].split(",") if OPT["stamps"] else [])
assert len(SITES) <= 9

def f2u(x):
    return struct.unpack("<I", struct.pack("<f", x))[0]
LOG2E = 1.4426950408889634

WS_KV = 0x0
WS_O = 0x40000
WS_H = 0x300000
WS_FL = 0xE00000
FL_H = 1024
WS_ST = 0xF00000
WS_SIZE = 0x1000000
H_GRP = 86 * 2048

H_STR = 12288
L_P1 = 49152
L_WKV = 65536
L_X = 81920
X_STR = 1040
L_P2 = L_X
L_DUMP = L_X + 32768
L_Q = L_X + 64 * X_STR
L_M = L_Q + 8192
L_LS = L_M
L_RSTD = L_M + 4096
L_FLG = L_M + 4608
L_MB = L_M + 5120
L_SL = L_M + 6144
LDS_BYTES = 163840
F_LN2, F_LNA, F_WQ, F_Q, F_KVIS, F_G1, F_D0, F_PZ, F_LN, F_DUTY, F_SLOW, F_AS, F_LNP, F_KVST, F_KVOK, F_TAG = 0, 16, 32, 48, 64, 80, 96, 112, 128, 144, 176, 192, 208, 224, 240, 256
F_WOS, F_WOR, F_KVS = 272, 288, 304
assert L_SL + 512 <= LDS_BYTES and L_DUMP + 32768 <= L_Q

S_W, S_G, S_J, S_GL = 4, 5, 6, 7
SRD_X, SRD_WS = 8, 12
P_X, P_WQ, P_WK, P_WV, P_WO, P_BX, P_W1, P_W2 = 16, 18, 20, 22, 24, 26, 28, 30
P_OUT, P_DBG, P_WS = 32, 34, 36
S_TA, S_TB = 38, 39
S_TAG = P_BX
SRD_W, SRD_DBG, SRD_A, SRD_B, SRD_C, SRD_OUT = 40, 44, 48, 52, 56, 60
S_STEP, S_SOFF, S_RING, S_FLB = 64, 65, 66, 67
S_C10, S_C01, S_C11 = 68, 69, 70
S_T0, S_T1, S_T2, S_T3, S_T4, S_T5 = 71, 72, 73, 74, 75, 76
S_C = 77
S_EX = 78
S_U = 80
S_HW, S_IT = 88, 89
S_STMP = 90
S_ST0 = 92

VK, VV, SA, SB, VO, VQ = 8, 72, 200, 216, 232, 248

out, tail_code = [], []
cur = [out]
def e(s):
    for l in s.split("\n"):
        l = l.strip()
        if l:
            cur[0].append(l if l.endswith(":") or l.startswith(".") else "    " + l)
class outofline:
    def __enter__(self):
        self.prev, cur[0] = cur[0], []
    def __exit__(self, *a):
        tail_code.extend(cur[0]); cur[0] = self.prev

def vr(a, n=1):
    return f"v{a}" if n == 1 else f"v[{a}:{a+n-1}]"
def sr(a, n=1):
    return f"s{a}" if n == 1 else f"s[{a}:{a+n-1}]"
def mf32(d, a, b, c=None):
    e(f"v_mfma_f32_32x32x16_bf16 {vr(d,16)}, {vr(a,4)}, {vr(b,4)}, {vr(c,16) if c is not None else 0}")
def mf16(d, a, b, c=None):
    e(f"v_mfma_f32_16x16x32_bf16 {vr(d,4)}, {vr(a,4)}, {vr(b,4)}, {vr(c,4) if c is not None else 0}")
def srd(d, p, n):
    e(f"s_mov_b32 s{d}, s{p}\ns_mov_b32 s{d+1}, s{p+1}\ns_mov_b32 s{d+2}, {hex(n)}\ns_mov_b32 s{d+3}, 0x20000")
def off(n):
    return f" offset:{n}" if n else ""
uid = [0]
def label(p):
    uid[0] += 1
    return f"L_{p}_{uid[0]}"
def stamp(k):
    if OPT["hold"] == k:
        lb = label("hold")
        e(f"{lb}:\ns_memrealtime {sr(S_STMP,2)}\ns_waitcnt lgkmcnt(0)\ns_sub_u32 s{S_STMP}, s{S_STMP}, s{S_ST0+9}\ns_cmp_lt_u32 s{S_STMP}, {OPT['holdT']}\ns_cbranch_scc1 {lb}")
    if OPT["stamps"] and k in SITES:
        e(f"s_mem{'real' if OPT['rt'] else ''}time {sr(S_STMP,2)}\ns_waitcnt lgkmcnt(0)\ns_mov_b32 s{S_ST0+SITES.index(k)}, s{S_STMP}")

class Queue:
    def __init__(self, kind):
        self.kind, self.n, self.tags = kind, 0, {}
    def issue(self, tag=None):
        self.n += 1
        if tag is not None:
            self.tags[tag] = self.n
    def left(self, tag):
        return self.n - self.tags[tag]
    def wait(self, tag):
        e(f"s_waitcnt {self.kind}({min(self.left(tag), 63 if self.kind == 'vmcnt' else 15)})")

def retry(top, sleep, hook=None):
    stub = label("retry")
    e(f"s_cbranch_vccnz {stub}")
    with outofline():
        e(f"{stub}:\ns_sub_u32 s3, s3, 1\ns_cbranch_scc1 L_exit")
        if hook: hook()
        if sleep: e(f"s_sleep {sleep}")
        e(f"s_branch {top}")

def lds_spin(vaddr, offset, vtmp, cmp, ref, sleep=0, prio=None):
    top = label("spin")
    e(f"{top}:\nds_read_b32 v{vtmp}, v{vaddr}{off(offset)}\ns_waitcnt lgkmcnt(0)")
    if prio: e(f"s_setprio {prio[0]}")
    e(f"{cmp} vcc, {ref}, v{vtmp}")
    e(f"s_setprio {prio[1]}" if prio else "s_nop 0")
    retry(top, sleep)

def glb_spin(vaddr, soff, vtmp, sleep=2, prio=None):
    top = label("poll")
    e(f"{top}:\nbuffer_load_dwordx2 {vr(vtmp,2)}, v{vaddr}, {sr(SRD_WS,4)}, {soff} offen sc1\ns_waitcnt vmcnt(0)")
    if prio: e(f"s_setprio {prio[0]}")
    e(f"v_cmp_ne_u64 vcc, {sr(S_TAG,2)}, {vr(vtmp,2)}")
    e(f"s_setprio {prio[1]}" if prio else "s_nop 0")
    retry(top, sleep)

def read_tag(va, vt):
    e(f"""v_mov_b32 v{va}, {L_FLG + F_TAG}
ds_read_b64 {vr(vt,2)}, v{va}
s_waitcnt lgkmcnt(0)
v_readfirstlane_b32 s{S_TAG}, v{vt}
v_readfirstlane_b32 s{S_TAG+1}, v{vt+1}""")

def tr_addr(dst, tmp, half_shift):
    e(f"""v_and_b32 v{dst}, 3, v0
v_lshlrev_b32 v{dst}, 3, v{dst}
v_bfe_u32 v{tmp}, v0, 2, 2
v_lshl_add_u32 v{dst}, v{tmp}, 6, v{dst}
v_bfe_u32 v{tmp}, v0, 4, 1
v_lshl_add_u32 v{dst}, v{tmp}, 5, v{dst}
v_lshrrev_b32 v{tmp}, 5, v0
v_lshl_add_u32 v{dst}, v{tmp}, {half_shift}, v{dst}""")

def dpp_sum(regs):
    for r in (8, 4, 2, 1):
        for a in regs:
            e(f"v_add_f32_dpp v{a}, v{a}, v{a} row_ror:{r} row_mask:0xf bank_mask:0xf")
        if len(regs) < 3 and r != 1:
            e(f"s_nop {2 - len(regs)}")

def ln_centre(X, waits, vwr, A, B, T):
    n = len(X)
    for u in range(n):
        e(f"s_waitcnt vmcnt({waits[u]})")
        if u == 0:
            stamp("xarr" if B is None else "xarrB")
        for i in range(16):
            e(f"v_dot2_f32_bf16 v{A+u}, v{X[u]+i}, s{S_C11}, {'v%d' % (A+u) if i else 0}")
    if n < 4: e(f"s_nop {3 - n}")
    dpp_sum([A + u for u in range(n)])
    for u in range(n):
        e(f"v_mul_f32 v{A+u}, {hex(f2u(-1.0/512))}, v{A+u}")
    for u in range(n):
        for gi in range(4):
            for k in range(4):
                e(f"v_dot2_f32_bf16 v{T+2*k}, v{X[u]+4*gi+k}, s{S_C10}, v{A+u}")
                e(f"v_dot2_f32_bf16 v{T+2*k+1}, v{X[u]+4*gi+k}, s{S_C01}, v{A+u}")
            for k in range(4):
                e(f"v_cvt_pk_bf16_f32 v{X[u]+4*gi+k}, v{T+2*k}, v{T+2*k+1}")
            if gi == 0 and u >= 2:
                e("s_waitcnt lgkmcnt(6)")
            e(f"ds_write_b128 v{vwr+u}, {vr(X[u]+4*gi,4)}{off(gi*16*X_STR)}")
            if B is not None:
                for k in range(4):
                    e(f"v_dot2_f32_bf16 v{B+u}, v{X[u]+4*gi+k}, v{X[u]+4*gi+k}, {'v%d' % (B+u) if gi or k else 0}")
def ln_var(X, B):
    for i in range(16):
        e(f"v_dot2_f32_bf16 v{B}, v{X+i}, v{X+i}, {'v%d' % B if i else 0}")
def ln_stats(n, vst, A, B):
    if n < 4: e(f"s_nop {3 - n}")
    dpp_sum([B + u for u in range(n)])
    for u in range(n):
        e(f"v_mov_b32 v{A+u}, {hex(f2u(1e-5))}\nv_fmac_f32 v{A+u}, {hex(f2u(1.0/512))}, v{B+u}")
    for u in range(n):
        e(f"v_rsq_f32 v{B+u}, v{A+u}")
    e("s_waitcnt lgkmcnt(5)")
    for u in range(n):
        e(f"v_mul_f32 v{A+u}, v{A+u}, v{B+u}")
        e(f"ds_write_b32 v{vst+u}, v{B+u}\nds_write_b32 v{vst+u}, v{A+u} offset:256")

def w1_prefetch(va, vt, vd):
    e(f"""v_lshrrev_b32 v{va}, 5, v0
v_mul_u32_u24 v{va}, 2752, v{va}
v_and_b32 v{vt}, 31, v0
v_min_u32 v{vt}, 22, v{vt}
v_lshl_add_u32 v{va}, v{vt}, 6, v{va}""")
    e(f"""s_lshl_b32 s{S_T0}, s{S_C}, 2
s_add_u32 s{S_T0}, s{S_T0}, s{S_HW}
s_mul_i32 s{S_T0}, s{S_T0}, {4*2752}
s_lshr_b32 s{S_T2}, s{S_J}, 2
s_mul_i32 s{S_T2}, s{S_T2}, {20*64}
s_add_u32 s{S_T0}, s{S_T0}, s{S_T2}
s_add_u32 s{S_T2}, s{S_T0}, {2*2752}
buffer_load_dword v{vd}, v{va}, {sr(SRD_W,4)}, s{S_T0} offen
buffer_load_dword v{vd}, v{va}, {sr(SRD_W,4)}, s{S_T2} offen""")

HDR = open("cdna_kernels/" + NAME + ".s.ref").read().split("\n")
out += [l for l in HDR if l.startswith(";") and "@launch" not in l]
out.append(f"; @launch grid=(256,1,1) block=(512,1,1) lds={LDS_BYTES}")
e(f'.amdgcn_target "amdgcn-amd-amdhsa--gfx950"\n.text\n.globl {NAME}_kernel\n.p2align 8\n.type {NAME}_kernel,@function')
e(f"{NAME}_kernel:")

e("s_cmp_ge_u32 s2, 256\ns_cbranch_scc1 L_exit")
if OPT["stamps"] or OPT["hold"] != -1:
    e(f"s_memrealtime {sr(S_STMP,2)}\ns_waitcnt lgkmcnt(0)\ns_mov_b32 s{S_ST0+9}, s{S_STMP}")
    stamp("start")
    for k in range(1, 9):
        e(f"s_mov_b32 s{S_ST0+k}, s{S_ST0}")
e(f"""s_load_dwordx16 s[16:31], s[0:1], 0
s_load_dwordx4 s[32:35], s[0:1], 64
s_load_dwordx2 s[36:37], s[0:1], 80
v_lshrrev_b32 v2, 6, v0
v_bfe_u32 v4, v0, 4, 4
s_lshr_b32 s{S_C}, s2, 3
v_readfirstlane_b32 s{S_W}, v2
v_and_b32 v5, 15, v0
v_and_b32 v0, 63, v0""")
if OPT["pf_code"]:
    e(f"""s_getpc_b64 {sr(S_T0+1,2)}
L_pc:
v_lshl_add_u32 v2, s{S_C}, 3, v2
v_and_b32 v3, 3, v0
v_lshl_add_u32 v2, v2, 2, v3
v_lshlrev_b32 v2, 6, v2
v_min_u32 v2, L_code_end-L_pc-4, v2
global_load_dword v247, v2, {sr(S_T0+1,2)}""")
e(f"""s_and_b32 s{S_GL}, s{S_C}, 7
s_bfe_u32 s{S_T0}, s2, 0x20001
s_lshl3_add_u32 s{S_G}, s{S_T0}, s{S_GL}
s_lshr_b32 s{S_T3}, s{S_C}, 3
s_lshl2_add_u32 s{S_SOFF}, s{S_G}, s{S_T3}
s_lshl_b32 s{S_SOFF}, s{S_SOFF}, 14
v_lshlrev_b32 v1, 10, v4
v_lshl_add_u32 v1, v5, 4, v1
s_mov_b32 s{SRD_X+2}, {hex(2048*1024)}
s_mov_b32 s{SRD_X+3}, 0x20000
s_cmp_lt_u32 s{S_W}, 4
s_waitcnt lgkmcnt(0)
s_mov_b64 {sr(SRD_X,2)}, {sr(P_X,2)}
s_cbranch_scc1 L_a0""")
XA = 8
stamp("karg")
for i in range(4):
    e(f"buffer_load_dwordx4 {vr(XA+4*i,4)}, v1, {sr(SRD_X,4)}, s{S_SOFF} offen{off(256*i)}")
e(f"""s_branch L_hfront
L_a0:
s_bitcmp1_b32 s2, 0
s_cselect_b64 {sr(SRD_A,2)}, {sr(P_WV,2)}, {sr(P_WK,2)}
s_cselect_b32 s{S_T1}, 512, 0
s_mov_b32 s{SRD_A+2}, 16384
s_mov_b32 s{SRD_A+3}, 0x20000
s_cmp_eq_u32 s{S_W}, 0
s_cbranch_scc0 {'L_a1' if OPT['pf_wq'] == 2 else 'L_afront'}
v_lshlrev_b32 v3, 4, v0""")
for i in range(4):
    e(f"s_mov_b32 m0, {L_WKV + i*4096}\ns_movk_i32 s{S_T0}, {i*4096}")
    for k in range(4):
        e(f"buffer_load_dwordx4 v3, {sr(SRD_A,4)}, s{S_T0} offen{off(1024*k)} lds")
e("s_branch L_afront")
if OPT["pf_wq"] == 2:
    e(f"""L_a1:
v_lshrrev_b32 v3, 3, v0
v_and_b32 v2, 7, v0
v_lshlrev_b32 v2, 6, v2
s_lshl1_add_u32 s{S_T0}, s{S_C}, s{S_W}
s_sub_u32 s{S_T0}, s{S_T0}, 2
s_lshl_b32 s{S_T0}, s{S_T0}, 13
s_add_u32 s{S_T0}, s{S_T0}, s{S_T1}
s_lshl_b32 s{S_T1}, s{S_C}, 9
s_cmp_eq_u32 s{S_W}, 1
s_cselect_b32 s{S_T0}, s{S_T1}, s{S_T0}
s_cselect_b32 s{S_T1}, 0, 0x400
s_cselect_b64 {sr(SRD_A,2)}, {sr(SRD_A,2)}, {sr(P_WQ,2)}
s_cselect_b32 s{SRD_A+2}, s{SRD_A+2}, {hex(512*1024)}
v_mad_u32_u24 v2, v3, s{S_T1}, v2
buffer_load_dword v246, v2, {sr(SRD_A,4)}, s{S_T0} offen
s_branch L_afront""")

V_FLW, V_FLR, V_ONE = 253, 254, 255
V_WR, V_ST = 200, 204
def common_setup():
    srd(SRD_WS, P_WS, WS_SIZE)
    srd(SRD_DBG, P_DBG, 256)
    e(f"""s_and_b32 s{S_T0}, s2, 1
s_lshl2_add_u32 s{S_J}, s{S_T0}, s{S_T3}
s_and_b32 s{S_HW}, s{S_W}, 3
s_mov_b32 s3, 0x40000
s_lshl_b32 s{S_FLB}, s{S_G}, 11
s_add_u32 s{S_FLB}, s{S_FLB}, {hex(WS_FL)}
s_mov_b32 s{S_C10}, 0x00003f80
s_mov_b32 s{S_C01}, 0x3f800000
s_mov_b32 s{S_C11}, 0x3f803f80
v_mul_u32_u24 v2, {X_STR}, v5
v_lshl_add_u32 v2, v4, 4, v2
v_lshlrev_b32 v4, 2, v4
s_lshl2_add_u32 s{S_T0}, s{S_HW}, {L_FLG}
v_mov_b32 v{V_FLW}, s{S_T0}
v_and_b32 v7, 3, v0
v_lshlrev_b32 v{V_FLR}, 2, v7
v_add_u32 v{V_FLR}, {L_FLG}, v{V_FLR}
v_mov_b32 v{V_ONE}, 1""")
def unit_addr(slot, dq):
    e(f"""s_add_u32 s{S_T0}, s{S_T3}, {dq}
s_and_b32 s{S_T0}, s{S_T0}, 3
s_lshl2_add_u32 s{S_U+slot}, s{S_G}, s{S_T0}
s_lshl_b32 s{S_U+slot}, s{S_U+slot}, 14
s_lshl_b32 s{S_T1}, s{S_T0}, 8
s_add_u32 s{S_T1}, s{S_T1}, {L_X}
v_add_u32 v{V_WR+slot}, s{S_T1}, v2
s_lshl_b32 s{S_T1}, s{S_T0}, 6
s_add_u32 s{S_T1}, s{S_T1}, {L_RSTD}
v_add_u32 v{V_ST+slot}, s{S_T1}, v4""")
def unit_loads(X, slot, va=1):
    for i in range(4):
        e(f"buffer_load_dwordx4 {vr(X+4*i,4)}, v{va}, {sr(SRD_X,4)}, s{S_U+slot} offen{off(256*i)}")
def wq_prefetch(va, vt, vd):
    e(f"""v_lshrrev_b32 v{va}, 3, v0
v_lshlrev_b32 v{va}, 10, v{va}
v_and_b32 v{vt}, 7, v0
v_lshl_add_u32 v{va}, v{vt}, 6, v{va}
s_lshl2_add_u32 s{S_T0}, s{S_C}, s{S_HW}
s_lshl_b32 s{S_T0}, s{S_T0}, 12
s_and_b32 s{S_T1}, s{S_J}, 4
s_lshl_b32 s{S_T1}, s{S_T1}, 7
s_add_u32 s{S_T0}, s{S_T0}, s{S_T1}
s_mov_b32 exec_hi, 0
buffer_load_dword v{vd}, v{va}, {sr(SRD_W,4)}, s{S_T0} offen
s_mov_b32 exec_hi, -1""")

e("L_hfront:\ns_setprio 2")
common_setup()
srd(SRD_W, P_WQ, 512 * 1024)
unit_addr(1, 1)
if OPT["eb"]:
    e(f"v_mov_b32 v52, 0\nv_lshlrev_b32 v6, 2, v0\nv_add_u32 v6, {L_FLG}, v6\nds_write2st64_b32 v6, v52, v52 offset1:1\ns_waitcnt lgkmcnt(0)\ns_barrier")
if OPT["eb"] < 2:
    unit_loads(24, 1)
if not OPT["eb"]:
    e("s_barrier")
unit_addr(0, 0)
e(f"""v_lshrrev_b32 v6, 2, v0
v_lshlrev_b32 v6, 10, v6
v_lshl_add_u32 v6, v7, 4, v6
s_and_b32 s{S_T0}, s{S_HW}, 1
s_lshl_b32 s{S_RING}, s{S_T0}, 15
s_lshl_b32 s{S_T0}, s{S_J}, 7
s_lshl_b32 s{S_T2}, s{S_HW}, 17
s_add_u32 s{S_SOFF}, s{S_T0}, s{S_T2}
s_lshl_b32 s{S_T5}, s{S_HW}, 13
s_lshr_b32 s{S_T1}, s{S_HW}, 1
s_lshl_b32 s{S_T1}, s{S_T1}, 14
s_add_u32 s{S_RING}, s{S_RING}, s{S_T1}""")
if OPT["eb"] == 2:
    e("s_waitcnt vmcnt(0)")
    unit_loads(24, 1)
ln_centre([XA], [4], V_WR, 56, None, 60)
e(f"ds_write_b32 v{V_FLW}, v{V_ONE} offset:{F_LNP}")
stamp("lnA")
ln_var(XA, 57)
ln_stats(1, V_ST, 56, 57)
e(f"ds_write_b32 v{V_FLW}, v{V_ONE} offset:{F_LN}")
ln_centre([24], [0], V_WR + 1, 56, 57, 60)
ln_stats(1, V_ST + 1, 56, 57)
e(f"ds_write_b32 v{V_FLW}, v{V_ONE} offset:{F_LN2}\ns_setprio 0")
stamp("lnB")
if OPT["gate"]:
    lds_spin(V_FLR, F_KVST, 52, "v_cmp_ne_u32", 1, sleep=1)
for k in range(8):
    e(f"s_add_u32 m0, s{S_T5}, {k*1024}\ns_nop 0\nbuffer_load_dwordx4 v6, {sr(SRD_W,4)}, s{S_SOFF} offen lds")
    e(f"s_add_u32 m0, s{S_T5}, {32768 + k*1024 - 64}\ns_nop 0\nbuffer_load_dwordx4 v6, {sr(SRD_W,4)}, s{S_SOFF} offen offset:64 lds\ns_add_u32 s{S_SOFF}, s{S_SOFF}, 16384")
tr_addr(7, 3, 9)
V_XR = 252
e(f"""v_mul_u32_u24 v{V_XR}, {X_STR}, v3
v_and_b32 v3, 31, v0
v_lshl_add_u32 v{V_XR}, v3, 4, v{V_XR}
v_add_u32 v{V_XR}, {L_X}, v{V_XR}
v_lshlrev_b32 v4, 2, v3
v_add_u32 v1, s{S_RING}, v7
v_xor_b32 v2, 0x4000, v1
s_lshr_b32 s{S_T1}, s{S_HW}, 1
s_mul_i32 s{S_T0}, s{S_T1}, {32*X_STR + 512}
v_add_u32 v5, s{S_T0}, v{V_XR}
s_mul_i32 s{S_T0}, s{S_T1}, {512 - 32*X_STR}
s_add_u32 s{S_T0}, s{S_T0}, {32*X_STR}
v_add_u32 v3, s{S_T0}, v{V_XR}
v_and_b32 v48, 15, v0
v_min_u32 v48, 11, v48
v_lshlrev_b32 v48, 2, v48
v_add_u32 v48, {L_FLG}, v48""")
srd(SRD_W, P_W1, 512 * 2752)
QA, QB, QO, QACC = 72, 8, 24, 200
e(f"s_waitcnt vmcnt(0)\nds_write_b32 v{V_FLW}, v{V_ONE} offset:{F_WQ}")
lds_spin(V_FLR, F_WQ, 52, "v_cmp_ne_u32", 1)
stamp("wq")
for k in range(OPT["npre"]):
    if k % 4 == 0 and k:
        e("s_waitcnt lgkmcnt(4)")
    for i in range(2):
        e(f"ds_read_b64_tr_b16 {vr(QA+4*k+2*i,2)}, v1{off(k*1024 + i*256)}")
lds_spin(48, F_LN2, 52, "v_cmp_ne_u32", 1, sleep=1)
e("s_setprio 2")
stamp("ln")
lq = Queue("lgkmcnt")
def q_reads(s):
    if s >= OPT["npre"]:
        for i in range(2):
            e(f"ds_read_b64_tr_b16 {vr(QO+4*(s % 4)+2*i,2)}, v{1 if s < 16 else 2}{off((s % 16)*1024 + i*256)}")
            lq.issue()
    e(f"ds_read_b128 {vr(QB+4*(s % 4),4)}, v{5 if s < 16 else 3}{off((s % 16)*2*X_STR)}")
    lq.issue(s)
for s in range(3):
    q_reads(s)
for s in range(32):
    if s + 3 < 32:
        q_reads(s + 3)
    elif s == 29:
        e(f"s_lshr_b32 s{S_T1}, s{S_HW}, 1\ns_lshl_b32 s{S_T0}, s{S_T1}, 7\ns_add_u32 s{S_T0}, s{S_T0}, {L_RSTD}\nv_add_u32 v1, s{S_T0}, v4\nds_read_b32 v44, v1")
        lq.issue()
    lq.wait(s)
    mf32(QACC, QA + 4 * s if s < OPT["npre"] else QO + 4 * (s % 4), QB + 4 * (s % 4), QACC if s else None)
e(f"""s_lshl_b32 s{S_T0}, s{S_HW}, 11
s_add_u32 s{S_T0}, s{S_T0}, {L_Q}
v_lshl_add_u32 v1, v0, 4, s{S_T0}
s_waitcnt lgkmcnt(0)
v_mul_f32 v44, {hex(f2u(0.25*LOG2E))}, v44
v_mov_b32 v45, v44
s_nop 5""")
for hl in range(2):
    for k in range(4):
        e(f"v_pk_mul_f32 {vr(QACC+8*hl+2*k,2)}, {vr(QACC+8*hl+2*k,2)}, v[44:45]")
    for k in range(4):
        e(f"v_cvt_pk_bf16_f32 v{8+4*hl+k}, v{QACC+8*hl+2*k}, v{QACC+8*hl+2*k+1}")
    e(f"ds_write_b128 v1, {vr(8+4*hl,4)}{off(hl*1024)}")
e(f"ds_write_b32 v{V_FLW}, v{V_ONE} offset:{F_Q}")
stamp("qd")

V_S0, V_PART, V_TR2, V_LS, V_DW0, V_DW1, V_DR0 = 1, 2, 3, 4, 5, 6, 7
V_DR1, V_OUT, V_TMP, V_L16, V_TB = 248, 249, 250, 251, 252
V_WO, V_TT, V_HF = 60, 61, 62
V_WA, V_WB, V_TR, V_PF, VXR, V_CS, V_NEG, V_TAG = 72, 73, 74, 75, 76, 92, 100, 64
S_OB, S_PC, S_XO, S_CLS, S_RET, S_BLK = 16, 20, 22, 18 + 6, 0, 2
t0, t1, t2, t3 = 24, 25, 26, 27
e(f"""s_xor_b32 s{S_T4}, s{S_J}, {4 * OPT['flip']}
s_mul_i32 s{S_T0}, s{S_T4}, 7
s_lshl1_add_u32 s{S_T0}, s{S_HW}, s{S_T0}
s_lshl2_add_u32 s{S_T1}, s{S_T4}, s{S_HW}
s_add_u32 s{S_T2}, s{S_T1}, 11
s_cmp_lt_u32 s{S_HW}, 3
s_cselect_b32 s{S_TB}, 2, 1
s_cmp_eq_u32 s{S_T1}, 14
s_cselect_b32 s{S_TB}, 1, s{S_TB}
s_min_u32 s{S_T0}, s{S_T0}, 26
s_cmp_lt_u32 s{S_T4}, 4
s_cselect_b32 s{S_TA}, s{S_T0}, s{S_T2}
s_cselect_b32 s{S_TB}, s{S_TB}, 1
s_lshr_b32 s{S_T5}, s{S_HW}, 1
s_mul_i32 s{S_RING}, s{S_HW}, {H_STR}
s_and_b32 s{S_T4}, s{S_HW}, 1
v_add_u32 v{t0}, {L_RSTD}, v4
ds_read_b32 v{V_CS}, v{t0}
ds_read_b32 v{V_CS+2}, v{t0} offset:128
ds_read_b32 v{V_CS+4}, v{t0} offset:256
ds_read_b32 v{V_CS+6}, v{t0} offset:384
v_add_u32 v{V_TR}, s{S_RING}, v7
v_lshrrev_b32 v{t3}, 5, v0
v_lshlrev_b32 v{t0}, 8, v{t3}
v_sub_u32 v{V_TR2}, v{V_TR}, v{t0}
v_lshlrev_b32 v{V_HF}, 3, v4
s_lshl_b32 s{S_T0}, s{S_HW}, 9
s_add_u32 s{S_T0}, s{S_T0}, {L_LS}
v_add_u32 v{V_LS}, s{S_T0}, v4
s_lshl_b32 s{S_T0}, s{S_J}, 7
v_add_u32 v{V_S0}, s{S_T0}, v6
s_lshl_b32 s{S_T1}, s{S_T4}, 6
v_add_u32 v{V_WO}, s{S_T1}, v{V_S0}
v_lshrrev_b32 v{t0}, 2, v0
v_mul_u32_u24 v{t0}, 2752, v{t0}
v_and_b32 v{t1}, 3, v0
v_lshl_add_u32 v{t0}, v{t1}, 4, v{t0}
s_lshl_b32 s{S_T2}, s{S_TA}, 6
v_add_u32 v{V_WA}, s{S_T2}, v{t0}
v_lshlrev_b32 v{V_TT}, 4, v{t1}
v_bfe_u32 v{t1}, v0, 2, 2
v_lshl_add_u32 v{V_TT}, v{t1}, 6, v{V_TT}
v_bfe_u32 v{t2}, v0, 4, 1
v_lshl_add_u32 v{V_TT}, v{t2}, 8, v{V_TT}
v_lshl_add_u32 v{V_TT}, v{t3}, 10, v{V_TT}
s_cmp_eq_u32 s{S_T4}, 0
s_cselect_b32 s{S_T2}, {L_DUMP}, 0
v_add_u32 v{V_TT}, s{S_T2}, v{V_TT}
v_lshlrev_b32 v{V_L16}, 4, v0""")
for k in range(8):
    e(f"s_add_u32 s{S_U}, s{S_GL}, {k}\ns_and_b32 s{S_U}, s{S_U}, 7\ns_mul_i32 s{S_U}, s{S_U}, {8*X_STR}")
    e(f"v_add_u32 v{VXR+k}, s{S_U}, v{V_XR}")
srd(SRD_B, P_W2, 1376 * 1024)
srd(SRD_C, P_WO, 512 * 1024)
srd(SRD_OUT, P_OUT, 2048 * 1024)
e(f"""v_lshlrev_b32 v{V_TB}, 9, v{t2}
v_lshl_add_u32 v{V_TB}, v{t3}, 12, v{V_TB}
v_and_b32 v{t0}, 15, v0
v_lshrrev_b32 v{t1}, 4, v0
v_lshlrev_b32 v{V_OUT}, 10, v{t0}
v_lshl_add_u32 v{V_OUT}, v{t1}, 4, v{V_OUT}
s_lshl_b32 s{S_T2}, s{S_T5}, 4
v_add_u32 v{t0}, s{S_T2}, v{t0}
v_lshl_add_u32 v{V_TB}, v{t0}, 4, v{V_TB}
v_lshlrev_b32 v{V_DR1}, 4, v{t0}
v_lshl_add_u32 v{V_DR1}, v{t1}, 10, v{V_DR1}
s_lshl_b32 s{S_T2}, s{S_T4}, 12
v_add_u32 v{V_DR1}, s{S_T2}, v{V_DR1}
v_add_u32 v{V_DR0}, {L_DUMP}, v{V_DR1}
v_add_u32 v{V_DW1}, s{S_RING}, v{V_L16}
s_lshl_b32 s{S_T2}, s{S_HW}, 13
s_add_u32 s{S_T2}, s{S_T2}, {L_DUMP}
v_add_u32 v{V_DW0}, s{S_T2}, v{V_L16}
s_lshl_b32 s{S_T2}, s{S_HW}, 11
s_add_u32 s{S_T2}, s{S_T2}, {L_P1}
v_add_u32 v{V_PART}, s{S_T2}, v{V_L16}
v_lshrrev_b32 v{V_PF}, 1, v0
v_lshlrev_b32 v{V_PF}, 10, v{V_PF}
v_and_b32 v{t0}, 1, v0
v_lshl_add_u32 v{V_PF}, v{t0}, 6, v{V_PF}
v_mov_b32 v{V_NEG}, -1
v_mov_b32 v{V_NEG+1}, -1
v_mov_b32 v{V_NEG+2}, -1
v_mov_b32 v{V_NEG+3}, -1
v_mov_b32 v{V_TAG+2}, 0
s_lshl_b32 s{S_T2}, s{S_G}, 2
s_add_u32 s{S_T2}, s{S_T2}, s{S_T5}
s_lshl_b32 s{S_T2}, s{S_T2}, 14
s_add_u32 s{S_T2}, s{S_T2}, s{S_T0}
s_add_u32 s{S_XO}, s{S_T2}, s{S_T1}
s_add_u32 s{S_XO+1}, s{S_XO}, 32768
s_lshl_b32 s{S_T2}, s{S_G}, 16
s_add_u32 s{S_OB}, s{S_T2}, {hex(WS_O)}
s_add_u32 s{S_OB+1}, s{S_OB}, 8192
s_add_u32 s{S_OB+2}, s{S_OB}, 16384
s_add_u32 s{S_OB+3}, s{S_OB}, 24576
s_lshl_b32 s{S_T2}, s{S_J}, 2
s_add_u32 s{S_T2}, s{S_T2}, s{S_HW}
s_lshl_b32 s{S_T3}, s{S_T2}, 10
s_add_u32 s{S_PC}, s{S_OB}, s{S_T3}
s_add_u32 s{S_PC+1}, s{S_PC}, 32768
s_add_u32 s{S_FLB}, s{S_FLB}, {FL_H}
s_lshl_b32 s{S_T2}, s{S_T2}, 5
s_add_u32 s{S_U+7}, s{S_T2}, s{S_FLB}
s_mul_i32 s{S_T2}, s{S_G}, {H_GRP}
s_add_u32 s{S_T2}, s{S_T2}, {hex(WS_H)}
s_add_u32 s{SRD_A}, s{P_WS}, s{S_T2}
s_addc_u32 s{SRD_A+1}, s{P_WS+1}, 0
s_mov_b32 s{SRD_A+2}, {H_GRP}
s_mov_b32 s{SRD_A+3}, 0x20000
s_lshl_b32 s{S_U+4}, s{S_TA}, 12
s_add_u32 s{S_U+5}, s{S_U+4}, 4096
s_movk_i32 s{S_CLS}, 0x207
s_mov_b32 s{S_IT}, 0
s_mul_i32 s{S_SOFF}, s{S_GL}, {64*2752}
s_lshl_b32 s{S_T1}, s{S_GL}, 2
s_add_u32 s{S_T1}, s{S_T1}, s{S_HW}
s_mul_i32 s{S_T2}, s{S_T1}, {43*1024}
s_add_u32 s{S_T2}, s{S_T2}, s{S_T0}
s_add_u32 s{S_T3}, s{S_T2}, {11*1024}
s_lshl_b32 s{S_T1}, s{S_T1}, 14
s_add_u32 s{S_T1}, s{S_T1}, s{S_T0}
s_waitcnt lgkmcnt(0)
v_mul_f32 v{V_CS}, {hex(f2u(-LOG2E))}, v{V_CS}
v_mul_f32 v{V_CS+2}, {hex(f2u(-LOG2E))}, v{V_CS+2}""")
for k in range(4):
    e(f"v_mov_b32 v{V_CS+2*k+1}, v{V_CS+2*k}")
lds_spin(V_FLR, F_Q, t0, "v_cmp_ne_u32", 1)
lds_spin(V_FLR, F_KVOK, t0, "v_cmp_ne_u32", 1, sleep=1)
read_tag(t0, V_TAG)
e("s_setprio 0")
if OPT["f1wait"] == 1:
    lds_spin(V_FLR, F_KVIS, t0, "v_cmp_ne_u32", 1, sleep=2, prio=(2, 0))
stamp("f1go")

F1A = 184
FR = [8, 24, 40]
def late_prefetch():
    e(f"""s_mov_b32 exec_hi, 0
buffer_load_dword v{V_TMP}, v{V_PF}, {sr(SRD_C,4)}, s{S_T1} offen
s_mov_b32 exec_hi, -1
buffer_load_dword v{V_TMP}, v{V_PF}, {sr(SRD_B,4)}, s{S_T2} offen
buffer_load_dword v{V_TMP}, v{V_PF}, {sr(SRD_B,4)}, s{S_T3} offen""")
def ffn1(nt):
    vq, lq = Queue("vmcnt"), Queue("lgkmcnt")
    D = 6 if nt == 2 else OPT["d1"]
    def dma(s):
        e(f"s_add_u32 m0, s{S_RING}, {(s % D)*1024*nt}\ns_add_u32 s{S_T4}, s{S_SOFF}, {16*2752}\nbuffer_load_dwordx4 v{V_WA}, {sr(SRD_W,4)}, s{S_SOFF} offen lds")
        vq.issue(("w", s))
        if nt == 2:
            e(f"s_add_u32 m0, s{S_RING}, {(s % D)*2048 + 1024 - 64}\ns_cmp_ge_u32 s{S_T4}, s{SRD_W+2}\nbuffer_load_dwordx4 v{V_WA}, {sr(SRD_W,4)}, s{S_SOFF} offen offset:64 lds")
            vq.issue(("w", s))
        else:
            e(f"s_cmp_ge_u32 s{S_T4}, s{SRD_W+2}")
        e(f"s_cselect_b32 s{S_SOFF}, 0, s{S_T4}")
    NR, NM, G = 2 + 2 * nt, 2 * nt, OPT["g1h"] if nt == 2 else OPT["g1l"]
    def read1(k):
        s, r = divmod(k, NR)
        f = 108 + 16 * (s % 4)
        if r < 2:
            e(f"ds_read_b128 {vr(f+8+4*r,4)}, v{VXR+s//4}{off((s % 4)*2*X_STR + r*512)}")
        else:
            if r == 2:
                vq.wait(("w", s))
            e(f"ds_read_b64_tr_b16 {vr(f+2*(r-2),2)}, v{V_TR}{off((s % D)*1024*nt + ((r-2)//2)*1024 + (r % 2)*256)}")
        lq.issue(("r", s))
    for s in range(D):
        dma(s)
    nr, nd = 0, D
    while nr < (2 if nt == 2 else 3) * NR:
        read1(nr); nr += 1
    for m in range(32 * NM):
        s, u = divmod(m, NM)
        f = 108 + 16 * (s % 4)
        if m % G == 0:
            ls = (min(m + G, 32 * NM) - 1) // NM
            assert nr >= (ls + 1) * NR, (nt, m, nr)
            lq.wait(("r", ls))
            done = (ls + 1) * NR
        mf32(F1A + 16 * u, f + 4 * (u >> 1), f + 8 + 4 * (u & 1), F1A + 16 * u if s else None)
        end = m % G == G - 1
        n = 0
        while nr < 32 * NR and nr // NR - 4 <= (m - NM + 1) // NM and nr - done < 12 and (end or n < 2):
            read1(nr); nr += 1; n += 1
        if end:
            while nd < 32 and nd - D <= ls:
                dma(nd); nd += 1
        if u != NM - 1:
            continue
        stamp(f"s{s}")
        if not OPT["pf_w2"]:
            pass
        elif nt == 2 or not OPT["mallw"]:
            if s == OPT["pf_at"]:
                late_prefetch()
                vq.issue(); vq.issue(); vq.issue()
        elif s in (OPT["pf1"], 31):
            skip = label("nopf")
            e(f"s_cmp_lt_u32 s{S_TA}, 27\ns_cbranch_scc{1 if s < 31 else 0} {skip}")
            if s < 31:
                for k in range(1, 4):
                    e(f"s_xor_b32 s{S_T0+k}, s{S_T0+k}, 512")
                late_prefetch()
                for k in range(1, 4):
                    e(f"s_xor_b32 s{S_T0+k}, s{S_T0+k}, 512")
            late_prefetch()
            e(f"{skip}:")
e(f"s_cmp_eq_u32 s{S_TB}, 2\ns_cbranch_scc0 L_f1one")
if OPT["hp1"]:
    e("s_setprio 2")
ffn1(2)
e("L_f1done:")
with outofline():
    e("L_f1one:")
    ffn1(1)
    e("s_branch L_f1done")
stamp("g1")
for k in range(2):
    e(f"buffer_store_dwordx4 {vr(V_NEG,4)}, v{V_L16}, {sr(SRD_WS,4)}, s{S_PC+k} offen sc1")
e(f"ds_write_b32 v{V_FLW}, v{V_ONE} offset:{F_G1}\ns_setprio 2\ns_nop 6")
for ti in range(2):
    e(f"s_cmp_eq_u32 s{S_TB}, 1\ns_cbranch_scc1 L_silu_done" if ti else "s_nop 1")
    for tb in range(2):
        for u in range(2):
            A, T, C, R = F1A + 32 * ti + 16 * tb + 8 * u, 8, V_CS + 2 * tb, 16 + 4 * (4 * ti + 2 * tb + u)
            for k in range(4):
                e(f"v_pk_mul_f32 {vr(T+2*k,2)}, {vr(A+2*k,2)}, {vr(C,2)}")
            for k in range(8):
                e(f"v_exp_f32 v{T+k}, v{T+k}")
            for k in range(4):
                e(f"v_pk_fma_f32 {vr(T+2*k,2)}, {vr(T+2*k,2)}, {vr(C+4,2)}, {vr(C+4,2)}")
            for k in range(8):
                e(f"v_rcp_f32 v{T+k}, v{T+k}")
            for k in range(4):
                e(f"v_pk_mul_f32 {vr(T+2*k,2)}, {vr(T+2*k,2)}, {vr(A+2*k,2)}")
            for k in range(4):
                e(f"v_cvt_pk_bf16_f32 v{R+k}, v{T+2*k}, v{T+2*k+1}")
            e(f"buffer_store_dwordx4 {vr(R,4)}, v{V_L16}, {sr(SRD_A,4)}, s{S_U+4+ti} offen{off(u*2048 + tb*1024)} sc1")
e("L_silu_done:\ns_setprio 0")
stamp("epi")

ACC, F2B, F2A, TA, XR = 8, 200, 232, 72, 240
PC, RT, RL, OB = 24, 200, 232, 236
def reduce_piece(vp, vl):
    for w in range(4):
        e(f"ds_read_b32 v{RL+w}, v{vl}{off(w*128)}")
    for w in range(4):
        for h in range(2):
            e(f"ds_read_b128 {vr(RT+8*w+4*h,4)}, v{vp}{off(w*8192 + h*1024)}")
def reduce_math(extra):
    e(f"v_add_f32 v{RL}, v{RL}, v{RL+1}\nv_add_f32 v{RL+2}, v{RL+2}, v{RL+3}\nv_add_f32 v{RL}, v{RL}, v{RL+2}\nv_rcp_f32 v{RL+2}, v{RL}")
    e(f"s_waitcnt lgkmcnt({4 + extra})")
    for k in range(4):
        e(f"v_pk_add_f32 {vr(RT+2*k,2)}, {vr(RT+2*k,2)}, {vr(RT+8+2*k,2)}")
    e(f"v_mov_b32 v{RL+3}, v{RL+2}\ns_waitcnt lgkmcnt(0)")
    for k in range(4):
        e(f"v_pk_add_f32 {vr(RT+16+2*k,2)}, {vr(RT+16+2*k,2)}, {vr(RT+24+2*k,2)}")
    for k in range(4):
        e(f"v_pk_add_f32 {vr(RT+2*k,2)}, {vr(RT+2*k,2)}, {vr(RT+16+2*k,2)}")
    for k in range(4):
        e(f"v_pk_mul_f32 {vr(RT+2*k,2)}, {vr(RT+2*k,2)}, {vr(RL+2,2)}")
    for k in range(4):
        e(f"v_cvt_pk_bf16_f32 v{OB+k}, v{RT+2*k}, v{RT+2*k+1}")
duty_code = []
class dutyblock(outofline):
    def __exit__(self, *a):
        duty_code.extend(cur[0]); cur[0] = self.prev
with dutyblock():
    lo, hi = f2u(2.0**-32), f2u(2.0**48)
    e("L_duty:")
    reduce_piece(V_PART, V_LS)
    e(f"""ds_read_b32 v{V_TMP}, v{V_FLR} offset:{F_SLOW}
s_waitcnt lgkmcnt(9)
s_setprio 2
v_max3_u32 v{OB}, v{RL}, v{RL+1}, v{RL+2}
v_max_u32 v{OB}, v{OB}, v{RL+3}
v_cmp_eq_u32 vcc, -1, v{OB}
s_nop 0
s_cbranch_vccnz L_duty_no""")
    reduce_math(1)
    for k in range(4):
        e(f"v_dot2_f32_bf16 v{RL+1}, v{OB+k}, s{S_C11}, {'v%d' % (RL+1) if k else 0}")
    e(f"""v_subrev_u32 v{RL+3}, {hex(lo)}, v{RL}
v_cmp_lt_u32 vcc, {hex(hi-lo)}, v{RL+3}
v_cmp_ne_u32 {sr(S_T0+1,2)}, 0, v{V_TMP}
s_add_u32 s{S_IT}, s{S_IT}, 1
v_cmp_class_f32 {sr(S_EX,2)}, v{RL+1}, s{S_CLS}
s_or_b64 vcc, vcc, {sr(S_T0+1,2)}
s_nop 0
s_or_b64 vcc, vcc, {sr(S_EX,2)}""")
    if OPT["force_slow"]:
        e(f"s_cmp_eq_u32 s{S_IT}, {OPT['force_slow']}\ns_cselect_b64 vcc, -1, vcc")
    e(f"""s_cbranch_vccnz L_duty_bad
buffer_store_dwordx4 {vr(OB,4)}, v{V_L16}, {sr(SRD_WS,4)}, s{S_PC} offen sc1
v_mov_b32 v{V_TMP}, s{S_IT}
s_mov_b64 exec, 1
ds_max_u32 v{V_FLW}, v{V_TMP} offset:{F_DUTY}
s_mov_b64 exec, -1
L_duty_next:
v_add_u32 v{V_PART}, {L_P2 - L_P1}, v{V_PART}
v_add_u32 v{V_LS}, 2048, v{V_LS}
s_mov_b32 s{S_PC}, s{S_PC+1}
s_setprio 0
L_duty_ret:
s_setpc_b64 {sr(S_RET,2)}
L_duty_no:
s_setprio 0
s_waitcnt lgkmcnt(0)
s_cmp_eq_u32 s{S_BLK}, 0
s_cbranch_scc1 L_duty_ret
s_sub_u32 s3, s3, 1
s_cbranch_scc1 L_exit
s_cmp_eq_u32 s{S_BLK}, 1
s_cbranch_scc1 L_duty
s_sleep 6
s_branch L_duty
L_duty_bad:
ds_write_b32 v{V_FLR}, v{V_ONE} offset:{F_SLOW}
s_branch L_duty_next""")
def duty(upto, mode):
    skip = label("noduty")
    e(f"s_lshl_b32 s{S_T0}, s{S_IT}, 2\ns_add_u32 s{S_T0}, s{S_T0}, s{S_HW}\ns_mov_b32 s{S_BLK}, {mode}\ns_cmp_lt_u32 s{S_T0}, {upto}\ns_cbranch_scc0 {skip}")
    e(f"s_call_b64 {sr(S_RET,2)}, L_duty\n{skip}:")

HD = 4
e(f"""s_waitcnt vmcnt(0)
s_mov_b64 exec, 1
buffer_store_dwordx2 {vr(V_TAG,2)}, v{V_TAG+2}, {sr(SRD_WS,4)}, s{S_U+7} offen sc1
s_mov_b64 exec, -1
ds_write_b32 v{V_FLW}, v{V_ONE} offset:{F_PZ}""")
stamp("hfl")
e(f"s_cmp_eq_u32 s{S_HW}, 3\ns_cbranch_scc1 L_wostage\nL_wostaged:")
with outofline():
    e("L_wostage:")
    lds_spin(V_FLR, F_G1, V_TMP, "v_cmp_ne_u32", 1, sleep=2, prio=(2, 0))
    for u in range(16):
        hh, s_ = divmod(u, 4)
        for p in range(2):
            e(f"s_mov_b32 m0, {L_DUMP + u*2048 + p*1024}\ns_mov_b32 s{S_SOFF}, {(8*s_ + 4*p + hh)*16384}\nbuffer_load_dwordx4 v{V_S0}, {sr(SRD_C,4)}, s{S_SOFF} offen lds")
            e(f"s_mov_b32 m0, {u*2048 + p*1024}\ns_waitcnt vmcnt(40)\nbuffer_load_dwordx4 v{V_WO}, {sr(SRD_C,4)}, s{S_SOFF} offen lds")
    e(f"s_waitcnt vmcnt(0)\nds_write_b32 v{V_FLR}, v{V_ONE} offset:{F_WOS}\ns_branch L_wostaged")
lds_spin(V_FLR, F_WOS, V_TMP, "v_cmp_ne_u32", 1, sleep=2, prio=(2, 0))
for u in range(16):
    if u >= 2:
        e("s_waitcnt lgkmcnt(8)")
    for ee in range(2):
        for i in range(2):
            e(f"ds_read_b64_tr_b16 {vr(TA+8*u+4*ee+2*i,2)}, v{V_TT}{off(u*2048 + i*512 + ee*8)}")
e(f"""s_lshl_b32 s{S_T3}, s{S_J}, 1
s_add_u32 s{S_T3}, s{S_T3}, s{S_GL}
s_and_b32 s{S_T3}, s{S_T3}, 7
s_mul_i32 s{S_T3}, s{S_T3}, 11
s_lshr_b32 s{S_T3}, s{S_T3}, 2
s_mul_i32 s{S_T2}, s{S_HW}, 22
s_add_u32 s{S_T3}, s{S_T3}, s{S_T2}
s_lshl_b32 s{S_SOFF}, s{S_T3}, 14
s_lshl_b32 s{S_STEP}, s{S_T3}, 11
s_lshl_b32 s{S_U}, s{S_T2}, 14
s_add_u32 s{S_U+1}, s{S_U}, {22*16384}
s_lshl_b32 s{S_U+2}, s{S_T2}, 11
s_add_u32 s{S_U+3}, s{S_U+2}, {22*2048}
buffer_load_dwordx2 v[8:9], v{V_HF}, {sr(SRD_WS,4)}, s{S_FLB} offen sc1
s_waitcnt lgkmcnt(0)
ds_write_b32 v{V_FLW}, v{V_ONE} offset:{F_WOR}""")
stamp("wo")
lds_spin(V_FLR, F_WOR, V_TMP, "v_cmp_ne_u32", 1, sleep=1, prio=(2, 0))
vq, lq = Queue("vmcnt"), Queue("lgkmcnt")
def f2_dma(s):
    e(f"s_add_u32 m0, s{S_RING}, {(s % 6)*2048}\ns_nop 0\nbuffer_load_dwordx4 v{V_S0}, {sr(SRD_B,4)}, s{S_SOFF} offen lds")
    e(f"s_add_u32 m0, s{S_RING}, {(s % 6)*2048 + 1024 - 64}\ns_add_u32 s{S_T4}, s{S_SOFF}, 16384\nbuffer_load_dwordx4 v{V_S0}, {sr(SRD_B,4)}, s{S_SOFF} offen offset:64 lds")
    vq.issue(); vq.issue(("w", s))
    e(f"s_cmp_ge_u32 s{S_T4}, s{S_U+1}\ns_cselect_b32 s{S_SOFF}, s{S_U}, s{S_T4}")
def f2_h(s):
    for c in range(2):
        e(f"buffer_load_dwordx4 {vr(F2B+8*(s % HD)+4*c,4)}, v{V_L16}, {sr(SRD_A,4)}, s{S_STEP} offen{off(1024*c)} sc1")
        vq.issue(("h", s))
    e(f"s_add_u32 s{S_STEP}, s{S_STEP}, 2048\ns_cmp_ge_u32 s{S_STEP}, s{S_U+3}\ns_cselect_b32 s{S_STEP}, s{S_U+2}, s{S_STEP}")
def f2_reads(s, c):
    for i in range(2):
        e(f"ds_read_b64_tr_b16 {vr(F2A+8*(s % 2)+4*c+2*i,2)}, v{V_TR2}{off((s % 6)*2048 + c*1024 + i*512)}")
        lq.issue(("r", s))
for s in range(6):
    f2_dma(s)
duty(4, 0)
e(f"s_waitcnt vmcnt(12)\ns_setprio 2\nv_cmp_ne_u64 vcc, {sr(S_TAG,2)}, v[8:9]\ns_setprio 0\ns_cbranch_vccnz L_hslow\nL_hok:")
with outofline():
    e("L_hslow:")
    glb_spin(V_HF, f"s{S_FLB}", 8, sleep=OPT["hsl"], prio=(2, 0))
    e("s_branch L_hok")
stamp("hok")
if OPT["hp2"]:
    e("s_setprio 2")
for s in range(HD):
    f2_h(s)
def f2_read1(k):
    s, c, i = k // 4, (k // 2) % 2, k % 2
    if k % 4 == 0:
        vq.wait(("w", s))
    e(f"ds_read_b64_tr_b16 {vr(F2A+8*(s % 2)+4*c+2*i,2)}, v{V_TR2}{off((s % 6)*2048 + c*1024 + i*512)}")
    lq.issue(("r", s, c))
G, nr, nh, nd = OPT["g2"], 0, HD, 6
while nr < 8:
    f2_read1(nr); nr += 1
for m in range(88):
    s, u = divmod(m, 4)
    c, tb = u >> 1, u & 1
    if m % G == 0:
        last = min(m + G, 88) - 1
        ls, lc = last // 4, (last % 4) >> 1
        e(f"s_waitcnt vmcnt({vq.left(('h', ls))}) lgkmcnt({lq.left(('r', ls, lc))})")
    mf32(ACC + 16 * c + 32 * tb, F2A + 8 * (s % 2) + 4 * c, F2B + 8 * (s % HD) + 4 * tb, ACC + 16 * c + 32 * tb if s else None)
    end = m % G == G - 1
    n = 0
    while nr < 88 and nr // 2 - 4 <= (m - 1) // 2 and (end or n < 2) and (end or nr % 4):
        f2_read1(nr); nr += 1; n += 1
    if end:
        while nh < 22 and nh - HD <= (m - 3) // 4:
            f2_h(nh); nh += 1
        while nd < 22 and nd - 6 <= (m - 2) // 4:
            f2_dma(nd); nd += 1
stamp("f2")

SLOT = [0, 1, 2, 0, 0, 1, 2, 0]
def piece_loads(t):
    for s_ in range(4):
        e(f"buffer_load_dwordx4 {vr(PC+16*SLOT[t]+4*s_,4)}, v{V_TB}, {sr(SRD_WS,4)}, s{(S_OB, S_U)[t // 4]+s_} offen{off((t % 4)*1024)} sc1")
def wait_duty(mask, sleep):
    top = label("wd")
    e(f"""{top}:
ds_read_b32 v{RL}, v{V_FLR} offset:{F_DUTY}
ds_read_b32 v{RL+1}, v{V_FLR} offset:{F_SLOW}
s_waitcnt lgkmcnt(0)
s_setprio 2
v_lshl_or_b32 v{RL}, v{RL+1}, 1, v{RL}
v_cmp_gt_u32 vcc, 2, v{RL}
s_setprio 0
s_nop 0
s_mov_b32 s{S_T5}, vcc_lo
s_and_b64 vcc, vcc, {mask}""")
    if mask:
        retry(top, sleep)
def consume(t, younger, sleep):
    chk, again = label("chk"), label("again")
    if t == 7 and OPT["inl"]:
        e(f"s_branch {chk}\n{again}:\ns_sub_u32 s3, s3, 1\ns_cbranch_scc1 L_exit")
        piece_loads(t)
    e(f"{chk}:")
    for n in range(4):
        d = PC + 16 * SLOT[t] + 4 * n
        e(f"s_waitcnt vmcnt({younger + 3 - n})")
        if n == 0: e("s_setprio 2")
        e(f"v_max3_u32 v{V_TMP}, v{d}, v{d+3}, v{V_TMP}" if n else f"v_max_u32 v{V_TMP}, v{d}, v{d+3}")
    e(f"v_cmp_eq_u32 vcc, -1, v{V_TMP}\ns_setprio 0\ns_cbranch_vccnz {again}")
    with outofline():
      if not (t == 7 and OPT["inl"]):
        e(f"{again}:\ns_sub_u32 s3, s3, 1\ns_cbranch_scc1 L_exit")
        if sleep:
            e(f"s_sleep {sleep}")
        piece_loads(t)
        if younger:
            e("s_waitcnt vmcnt(0)")
        e(f"s_branch {chk}")
    for s_ in range(4):
        for ee in range(2):
            c = ACC + 8 * (t // 4) + 4 * ee
            mf16(c, TA + 32 * (t % 4) + 8 * s_ + 4 * ee, PC + 16 * SLOT[t] + 4 * s_, c)
def store_out(tb):
    e("s_nop 5\ns_setprio 2")
    for k in range(4):
        e(f"v_cvt_pk_bf16_f32 v{XR+4*tb+k}, v{ACC+8*tb+2*k}, v{ACC+8*tb+2*k+1}")
    e(f"buffer_store_dwordx4 {vr(XR+4*tb,4)}, v{V_OUT}, {sr(SRD_OUT,4)}, s{S_XO+tb} offen")

duty(4, 2)
if OPT["dtry"] & 1:
    duty(7, 0)
e("s_nop 7")
for tb in range(2):
    e(f"buffer_load_dwordx4 {vr(XR+4*tb,4)}, v{V_OUT}, {sr(SRD_X,4)}, s{S_XO+tb} offen")
for tb in range(2):
    if tb:
        e("s_waitcnt lgkmcnt(6)")
    for ct in range(2):
        for a in range(4):
            e(f"ds_write_b128 v{(V_DW0, V_DW1)[tb]}, {vr(ACC+32*tb+16*ct+4*a,4)}{off(ct*4096 + a*1024)}")
e(f"ds_write_b32 v{V_FLW}, v{V_ONE} offset:{F_D0}\ns_waitcnt lgkmcnt(0)")
for k in range(4):
    e(f"s_add_u32 s{S_U+k}, s{S_OB+k}, 32768")
for t in range(3):
    piece_loads(t)
lds_spin(V_FLR, F_D0, RL, "v_cmp_ne_u32", 1, sleep=1, prio=(2, 0))
def exchange_sum(tb):
    for w in range(4):
        for h in range(2):
            e(f"ds_read_b128 {vr(RT+8*w+4*h,4)}, v{(V_DR0, V_DR1)[tb]}{off(w*(8192, H_STR)[tb] + h*512)}")
    e("s_waitcnt vmcnt(12) lgkmcnt(4)\ns_setprio 2")
    for k in range(4):
        e(f"v_pk_add_f32 {vr(RT+2*k,2)}, {vr(RT+2*k,2)}, {vr(RT+8+2*k,2)}")
    e("s_waitcnt lgkmcnt(0)")
    for k in range(4):
        e(f"v_pk_add_f32 {vr(RT+16+2*k,2)}, {vr(RT+16+2*k,2)}, {vr(RT+24+2*k,2)}")
    for k in range(4):
        e(f"v_pk_add_f32 {vr(RT+2*k,2)}, {vr(RT+2*k,2)}, {vr(RT+16+2*k,2)}")
    for k in range(4):
        e(f"v_dot2_f32_bf16 v{ACC+8*tb+2*k}, v{XR+4*tb+k}, s{S_C10}, v{RT+2*k}")
        e(f"v_dot2_f32_bf16 v{ACC+8*tb+2*k+1}, v{XR+4*tb+k}, s{S_C01}, v{RT+2*k+1}")
    e("s_setprio 0")
exchange_sum(0)
if not OPT["defer"]:
    exchange_sum(1)
stamp("d0")
if OPT["dtry"] & 2:
    duty(7, 0)
consume(0, 8, OPT["csl"])
piece_loads(3)
consume(1, 8, OPT["csl"])
consume(2, 4, OPT["csl"])
wait_duty(0, 0)
e(f"s_bitcmp1_b32 s{S_T5}, s{S_HW}\ns_cselect_b32 s{S_IT}, s{S_IT}, 2")
consume(3, 0, OPT["csl"])
store_out(0)
e("s_setprio 0")
stamp("tb0")
duty(7, 2)
wait_duty(7, 4)
piece_loads(4)
piece_loads(5)
if OPT["defer"]:
    stamp("pre")
    wait_duty(8, 2)
    piece_loads(6)
    exchange_sum(1)
    consume(4, 8, 0)
    consume(5, 4, 0)
    if OPT["t7dl"]:
        e(f"s_sleep {OPT['t7dl']}")
    piece_loads(7)
else:
    e(f"s_bitcmp1_b32 s{S_T5}, 3\ns_cbranch_scc1 L_no6")
    piece_loads(6)
    e("L_no6:")
    consume(4, 4, OPT["csl"])
    e(f"s_bitcmp1_b32 s{S_T5}, 3\ns_cbranch_scc1 L_no7")
    piece_loads(7)
    e("L_no7:")
    consume(5, 0, OPT["csl"])
    stamp("pre")
    e(f"s_bitcmp1_b32 s{S_T5}, 3\ns_cbranch_scc0 L_have7")
    wait_duty(8, 2)
    piece_loads(6)
    if OPT["t7dl"]:
        e(f"s_sleep {OPT['t7dl']}")
    piece_loads(7)
    e("L_have7:")
consume(6, 4, 0)
consume(7, 0, OPT["t7sl"])
stamp("fbar")
store_out(1)
e("s_branch L_fin" if OPT["stamps"] or OPT["hold"] != -1 else "s_endpgm")

S_KO = 40
def a_setup():
    e(f"""v_lshlrev_b32 v1, 4, v0
v_and_b32 v4, 15, v0
v_lshlrev_b32 v4, 4, v4
v_lshrrev_b32 v6, 5, v0
v_lshl_add_u32 v4, v6, 8, v4
v_bfe_u32 v6, v0, 4, 1
v_lshl_add_u32 v2, v6, 9, v4
s_lshl_b32 s{S_T2}, s{S_W}, 13
s_add_u32 s{S_T2}, s{S_T2}, {L_P1}
v_add_u32 v5, s{S_T2}, v1
v_and_b32 v6, 31, v0
s_lshl_b32 s{S_T2}, s{S_W}, 7
s_add_u32 s{S_T2}, s{S_T2}, {L_LS}
v_lshl_add_u32 v6, v6, 2, s{S_T2}
v_mov_b32 v7, v{V_FLR}
v_add_u32 v252, {L_Q}, v1
s_lshl_b32 s{S_T0}, s{S_W}, 15
s_mov_b32 s{S_EX}, 0x0000ffff
s_mov_b32 s{S_EX+1}, 0x0000ffff
s_lshl_b32 s{S_T2}, s{S_W}, 11
s_add_u32 s{S_XO}, s{S_T2}, {L_P2}
s_mul_i32 s{S_T2}, s{S_W}, 384
s_add_u32 s{S_XO+1}, s{S_T2}, 2048
s_lshl4_add_u32 s{S_T2}, s{S_G}, s{S_J}
s_lshl2_add_u32 s{S_T2}, s{S_T2}, s{S_W}
s_lshl_b32 s{S_T2}, s{S_T2}, 10
s_add_u32 s{S_PC}, s{S_T2}, {hex(WS_O)}
s_add_u32 s{S_PC+1}, s{S_PC}, 32768
s_movk_i32 s{S_CLS}, 0x207
s_mov_b32 s{S_TA}, 0x07060302""")
    for b in range(16):
        e(f"s_add_u32 s{S_T2}, s{S_C}, {b}\ns_and_b32 s{S_T2}, s{S_T2}, 15\ns_lshl_b32 s{S_T2}, s{S_T2}, 11\ns_add_u32 s{S_KO+b}, s{S_T2}, s{S_T0}")
e(".p2align 6\nL_afront:")
stamp("karg")
if OPT["eb"]:
    e("s_barrier")
common_setup()
e(f"""s_lshl_b32 s{S_T0}, s{S_W}, 3
s_xor_b32 s{S_T0}, s{S_T0}, 8
s_or_b32 s{S_T0}, s{S_T0}, s2
s_cmp_lt_u32 s{S_T0}, 8
s_cbranch_scc0 L_notag
s_memrealtime {sr(S_T0+1,2)}
v_mov_b32 v46, 0
v_mov_b32 v47, 0
s_waitcnt lgkmcnt(0)
s_or_b32 s{S_T0+1}, s{S_T0+1}, 1
v_mov_b32 v44, s{S_T0+1}
v_mov_b32 v45, s{S_T0+2}
s_mov_b64 exec, 1
buffer_atomic_cmpswap_x2 v[44:47], v46, {sr(SRD_DBG,4)}, 0 offen sc1
s_mov_b64 exec, -1
L_notag:
v_lshlrev_b32 v3, 4, v0
v_mov_b32 v48, -1
v_mov_b32 v49, -1
v_mov_b32 v50, -1
v_mov_b32 v51, -1
s_lshl_b32 s{S_T0}, s{S_W}, 10
s_add_u32 s{S_T0}, s{S_T0}, {L_LS}
v_add_u32 v6, s{S_T0}, v3
ds_write_b128 v6, v[48:51]
v_mov_b32 v52, 0""")
if not OPT["eb"]:
    e(f"v_lshlrev_b32 v6, 2, v0\nv_add_u32 v6, {L_FLG}, v6\nds_write2st64_b32 v6, v52, v52 offset1:1")
unit_addr(0, 2)
unit_addr(1, 3)
e(f"s_cmp_eq_u32 s{S_W}, 0\ns_cbranch_scc1 L_kv")
def v_init():
    e(f"""v_mov_b32 v42, 0
s_mov_b32 exec_lo, 0x00110000
s_mov_b32 exec_hi, 0x00110000
v_mov_b32 v42, s{S_C11}
s_mov_b64 exec, -1
v_mov_b32 v43, v42""")
    for i in range(0, 128, 2):
        e(f"v_mov_b64 {vr(VV+i,2)}, v[42:43]")
v_init()
e("v_mov_b32 v226, v1")
a_setup()
srd(SRD_OUT, P_WQ, 512 * 1024)
e(f"""v_lshrrev_b32 v224, 3, v0
v_lshlrev_b32 v224, 10, v224
v_and_b32 v225, 7, v0
v_lshl_add_u32 v224, v225, 6, v224
s_lshl1_add_u32 s{S_T0}, s{S_C}, s{S_W}
s_sub_u32 s{S_T0}, s{S_T0}, 2
s_lshl_b32 s{S_T0}, s{S_T0}, 13
s_and_b32 s{S_T1}, s{S_J}, 4
s_lshl_b32 s{S_T1}, s{S_T1}, 7
s_add_u32 s{S_T0}, s{S_T0}, s{S_T1}
s_cmp_eq_u32 s{S_W}, 1
s_cselect_b32 s{S_T0}, 0x1000000, s{S_T0}""")
stamp("aset")
if not OPT["eb"]:
    e("s_waitcnt lgkmcnt(0)\ns_barrier")
if OPT["pf_wq"] == 4:
    e(f"buffer_load_dword v225, v224, {sr(SRD_OUT,4)}, s{S_T0} offen")
unit_loads(8, 0, 226)
if OPT["pf_wq"] == 5:
    e(f"buffer_load_dword v225, v224, {sr(SRD_OUT,4)}, s{S_T0} offen")
unit_loads(24, 1, 226)
if OPT["pf_wq"] == 1:
    e(f"buffer_load_dword v225, v224, {sr(SRD_OUT,4)}, s{S_T0} offen")
stamp("xis")
ln_centre([8, 24], [4 + (OPT["pf_wq"] in (1, 5)), 0 + (OPT["pf_wq"] == 1)], V_WR, 56, 58, 60)
ln_stats(2, V_ST, 56, 58)
e(f"ds_write_b32 v{V_FLW}, v{V_ONE} offset:{F_LNA}")
stamp("lnB")
def kv_poll():
    e(f"""v_lshrrev_b32 v3, 3, v0
v_lshlrev_b32 v3, 11, v3
v_and_b32 v8, 7, v0
v_lshl_add_u32 v3, v8, {OPT['fsh']}, v3""")
    for k in range(4):
        e(f"s_mov_b32 s{S_U+k}, {hex(WS_FL + k*16384)}")
    if OPT["warm"]:
        e(f"s_lshl_b32 s{S_T2}, s{S_C}, 12\nv_lshl_add_u32 v17, v0, 6, s{S_T2}")
    if OPT["pw"]:
        lds_spin(7, F_KVS, 8, "v_cmp_ne_u32", 1, sleep=1)
        read_tag(10, 8)
    if OPT["pgate"]:
        lds_spin(7, F_WQ, 8, "v_cmp_ne_u32", 1)
    if OPT["pdl"]:
        e(f"s_sleep {OPT['pdl']}")
    e("L_kvpoll:")
    for k in range(4):
        e(f"buffer_load_dwordx2 {vr(8+2*k,2)}, v3, {sr(SRD_WS,4)}, s{S_U+k} offen sc1")
    if OPT["warm"]:
        e(f"s_mov_b64 {sr(S_T0+1,2)}, exec\ns_mov_b64 exec, -1\nbuffer_load_dword v16, v17, {sr(SRD_WS,4)}, 0 offen sc1\ns_mov_b64 exec, {sr(S_T0+1,2)}")
    for k in range(4):
        e(f"s_waitcnt vmcnt({3-k+OPT['warm']})\nv_cmp_ne_u64 {'vcc' if k == 0 else sr(S_U+2+2*k,2)}, {sr(S_TAG,2)}, {vr(8+2*k,2)}")
    e(f"s_or_b64 vcc, vcc, {sr(S_U+4,2)}\ns_or_b64 vcc, vcc, {sr(S_U+6,2)}\ns_or_b64 vcc, vcc, {sr(S_U+8,2)}")
    retry("L_kvpoll", OPT["psl"], (lambda: e("s_mov_b64 exec, vcc")) if OPT["mask"] else None)
    e(f"s_mov_b64 exec, -1\nds_write_b32 v7, v255 offset:{F_KVOK}")
if OPT["pw"]:
    e(f"s_cmp_eq_u32 s{S_W}, {OPT['pw']}\ns_cbranch_scc0 L_kvwait")
    kv_poll()
    e("s_branch L_kvok")
else:
    e("s_branch L_kvwait")
WF, XF, KA = 72, 136, 208
e("L_kv:\ns_setprio 3")
e(f"""v_lshlrev_b32 v43, 3, v7
v_bfe_u32 v42, v0, 2, 2
v_lshl_add_u32 v43, v42, 5, v43
v_lshrrev_b32 v42, 4, v0
v_lshl_add_u32 v43, v42, 8, v43
v_add_u32 v43, {L_WKV}, v43
v_mul_u32_u24 v44, {X_STR}, v42
v_lshl_add_u32 v44, v5, 4, v44
s_lshl_b32 s{S_T0}, s{S_T3}, 8
s_add_u32 s{S_T0}, s{S_T0}, {L_X}
v_add_u32 v44, s{S_T0}, v44
s_lshl_b32 s{S_T0}, s{S_T3}, 6
s_add_u32 s{S_T0}, s{S_T0}, {L_RSTD}
v_lshl_add_u32 v45, v5, 2, s{S_T0}
v_lshl_add_u32 v46, v42, 4, s{S_T0}
v_mov_b32 v47, {L_FLG + F_TAG}
s_lshr_b32 s{S_T1}, s{S_T3}, 1
s_lshl1_add_u32 s{S_T0}, s{S_G}, s{S_T1}
s_lshr_b32 s{S_T1}, s{S_J}, 2
s_lshl1_add_u32 s{S_T0}, s{S_T0}, s{S_T1}
s_and_b32 s{S_T1}, s{S_T3}, 1
s_lshl1_add_u32 s{S_T0}, s{S_T0}, s{S_T1}
s_lshl_b32 s{S_T5}, s{S_T0}, 9
s_lshl_b32 s{S_T4}, s{S_J}, {OPT['fsh']}
s_add_u32 s{S_T4}, s{S_T4}, s{S_FLB}""")
if not OPT["eb"]:
    e("s_waitcnt lgkmcnt(0)\ns_barrier")
if not OPT["x0late"]:
    unit_loads(8, 0)
    unit_loads(24, 1)
for s in range(16):
    if s % 4 == 0:
        e(f"s_waitcnt vmcnt({(12 if OPT['x0late'] else 20) - s}) lgkmcnt(6)")
        if s == 0: stamp("wkv")
    for i in range(2):
        e(f"ds_read_b64_tr_b16 {vr(WF+4*s+2*i,2)}, v43{off(s*1024 + i*128)}")
if OPT["x0late"]:
    unit_loads(8, 0)
    unit_loads(24, 1)
stamp("trd")
e(f"s_bitcmp1_b32 s{S_J}, 2\ns_cbranch_scc1 L_kv_v")
def kv_tile(isv):
    lq = Queue("lgkmcnt")
    rs, ok = label("rs"), label("rsok")
    rd = f"ds_read_b32 v53, v{V_FLR} offset:{F_LN}\n" + ("ds_read_b128 v[68:71], v46" if isv else "ds_read_b32 v68, v45")
    top = label("lnp")
    e(f"{top}:\ns_sub_u32 s3, s3, 1\ns_cbranch_scc1 L_exit\nds_read_b32 v53, v{V_FLR} offset:{F_LNP}\ns_waitcnt lgkmcnt(0)\nv_cmp_ne_u32 vcc, 1, v53\ns_nop 0\ns_cbranch_vccnz {top}")
    stamp("bar1")
    def xr(s):
        e(f"ds_read_b128 {vr(XF+4*s,4)}, v44{off(s*4*X_STR)}")
        lq.issue(s)
    for s in range(8):
        xr(s)
    for s in range(16):
        if s + 8 < 16:
            xr(s + 8)
        elif s == 12:
            e(rd)
            lq.issue(); lq.issue()
        lq.wait(s)
        if isv:
            mf16(KA, XF + 4 * s, WF + 4 * s, KA if s else None)
        else:
            mf16(KA, WF + 4 * s, XF + 4 * s, KA if s else None)
    e(f"{ok}:\ns_waitcnt lgkmcnt(0)\nv_cmp_ne_u32 vcc, 1, v53\ns_nop 4\ns_cbranch_vccnz {rs}")
    with outofline():
        e(f"{rs}:\ns_sub_u32 s3, s3, 1\ns_cbranch_scc1 L_exit\n{rd}\ns_branch {ok}")
    for k in range(4):
        e(f"v_mul_f32 v{KA+k}, v{KA+k}, v{68 + (k if isv else 0)}")
    e(f"""v_cvt_pk_bf16_f32 v48, v{KA}, v{KA+1}
v_cvt_pk_bf16_f32 v49, v{KA+2}, v{KA+3}
s_nop 1
v_permlane32_swap_b32 v48, v50
v_permlane32_swap_b32 v49, v51
s_mov_b32 exec_hi, 0
buffer_store_dwordx4 v[48:51], v3, {sr(SRD_WS,4)}, s{S_T5} offen sc1
s_mov_b32 exec_hi, -1""")
kv_tile(0)
e("s_branch L_kv_done\nL_kv_v:")
kv_tile(1)
e("L_kv_done:")
stamp("kvst")
e(f"buffer_load_dwordx2 v[54:55], v52, {sr(SRD_DBG,4)}, 0 offen sc1")
e(f"ds_write_b32 v{V_FLR}, v{V_ONE} offset:{F_KVST}\ns_setprio {OPT['p0']}")
ln_centre([8], [6], V_WR, 56, 58, 60)
v_init()
e(f"""L_tagchk:
s_waitcnt vmcnt(0)
v_cmp_eq_u32 vcc, 0, v54
s_nop 0
s_cbranch_vccnz L_tag
s_mov_b64 exec, 1
buffer_store_dwordx2 v[54:55], v52, {sr(SRD_WS,4)}, s{S_T4} offen sc1
s_mov_b64 exec, -1""")
with outofline():
    e(f"L_tag:\ns_sub_u32 s3, s3, 1\ns_cbranch_scc1 L_exit\ns_sleep 2\nbuffer_load_dwordx2 v[54:55], v52, {sr(SRD_DBG,4)}, 0 offen sc1\ns_branch L_tagchk")
e(f"ds_write_b64 v47, v[54:55]\nds_write_b32 v{V_FLR}, v{V_ONE} offset:{F_KVS}")
stamp("kvfl")
ln_centre([24], [1], V_WR + 1, 57, 59, 60)
ln_stats(2, V_ST, 56, 58)
e(f"ds_write_b32 v{V_FLW}, v{V_ONE} offset:{F_LNA}")
stamp("lnB")
e(f"""v_readfirstlane_b32 s{S_TAG}, v54
v_readfirstlane_b32 s{S_TAG+1}, v55
s_setprio 0""")
a_setup()
if not OPT["pw"]:
    kv_poll()
    e("s_branch L_kvok")
e(f"L_kvwait:\ns_sub_u32 s3, s3, 1\ns_cbranch_scc1 L_exit\nds_read_b32 v8, v7 offset:{F_KVOK}\ns_waitcnt lgkmcnt(0)\nv_cmp_ne_u32 vcc, 1, v8\ns_nop 0\ns_cbranch_vccnz L_kvwait\nL_kvok:")
stamp("flags")
if OPT["pfa"]:
    srd(SRD_OUT, P_W1, 512 * 2752)
    e(f"""s_xor_b32 s{S_T2}, s{S_J}, {4 * OPT['flip']}
s_cmp_lt_u32 s{S_T2}, 4
s_cselect_b32 s{S_T2}, 26, 15
s_cselect_b32 s{S_T3}, 0, {27*64}
v_lshrrev_b32 v{VO}, 5, v0
v_mul_u32_u24 v{VO}, 2752, v{VO}
v_and_b32 v{VO+1}, 31, v0
v_min_u32 v{VO+1}, s{S_T2}, v{VO+1}
v_lshl_add_u32 v{VO}, v{VO+1}, 6, v{VO}
s_lshl2_add_u32 s{S_T2}, s{S_C}, s{S_W}
s_mul_i32 s{S_T2}, s{S_T2}, {4*2752}
s_add_u32 s{S_U+4}, s{S_T2}, s{S_T3}
s_add_u32 s{S_U+5}, s{S_U+4}, {2*2752}""")
vq = Queue("vmcnt")
NB0 = OPT["nb0"]
def k_load(b):
    vq.issue(("K", b))
    return [f"buffer_load_dwordx4 {vr(VK+4*b,4)}, v2, {sr(SRD_WS,4)}, s{S_KO+b} offen sc1"]
def v_load(b):
    vq.issue(); vq.issue(("V", b))
    return ([f"s_mov_b64 exec, {sr(S_EX,2)}"]
            + [f"buffer_load_dwordx4 {vr(VV+8*b+4*i,4)}, v4, {sr(SRD_WS,4)}, s{S_KO+b} offen{off(1024+512*i)} sc1" for i in range(2)]
            + ["s_mov_b64 exec, -1"])
for b in range(NB0):
    e("\n".join(k_load(b) + v_load(b)))
if OPT["pfa"]:
    for k in range(2):
        e(f"buffer_load_dword v254, v{VO}, {sr(SRD_OUT,4)}, s{S_U+4+k} offen")
        vq.issue()
if NB0 == 16:
    e(f"ds_write_b32 v253, v255 offset:{F_KVIS}")
stamp("kvis")
lds_spin(7, F_Q, 3, "v_cmp_ne_u32", 1)
e(f"ds_read_b128 {vr(VQ,4)}, v252\ns_setprio 1\ns_waitcnt vmcnt({vq.left(('K', 0))}) lgkmcnt(0)")
stamp("go")
mf32(SA, VK, VQ)
e("s_nop 11")

ORDER = "e0 d7 a e1 e2 e3 b e4 e5 c0 c1 Q e6 e7 c2 e8 c3 e9 e10 e11 c4 e12 e13 c5 e14 e15 c6".split()
def pack(d, a):
    e(f"v_perm_b32 v{d}, v{a+1}, v{a}, s{S_TA}" if OPT["perm"] else f"v_cvt_pk_bf16_f32 v{d}, v{a}, v{a+1}")
def flush(t):
    o = (t % 4) * 2048 + (t // 4) * (L_P2 - L_P1)
    return [f"ds_write_b128 v5, {vr(VO,4)}{off(o)}", f"ds_write_b128 v5, {vr(VO+4,4)}{off(o+1024)}",
            f"ds_write_b32 v6, v{VO+8}{off(t*512)}"]
for i in range(128):
    t, b = divmod(i, 16)
    S, T = (SA, SB) if i % 2 == 0 else (SB, SA)
    pb = (b - 1) % 16
    after = {}
    if t == 0:
        if b + NB0 < 16:
            after["a"] = k_load(b + NB0)
        after["b"] = [f"s_waitcnt vmcnt({min(vq.left(('K', b+1)), vq.left(('V', b))) if b < 15 else 0})"]
        if b + NB0 < 16:
            after["Q"] = v_load(b + NB0)
        if b + NB0 == 16 - OPT["kvlead"] and NB0 < 16:
            after["e9"] = [f"ds_write_b32 v253, v255 offset:{F_KVIS}"]
    if b == 14 and t < 7:
        after["Q"] = [f"ds_read_b128 {vr(VQ,4)}, v252{off((t+1)*1024)}"]
    if b == 15 and t < 7:
        after["a"] = ["s_waitcnt lgkmcnt(0)"]
    if b == 0 and t > 0:
        fl = flush(t - 1)
        after["e11"], after["e12"], after["e14"] = [fl[0]], [fl[1]], [fl[2]]
    if i == 126:
        after["a"] = [f"ds_read_b32 v3, v253 offset:{F_DUTY}"]
    if t == 4 and b == 6:
        after["a"] = [f"ds_read_b32 v3, v7 offset:{F_G1}"]
    if t == 4 and b == 7:
        after["a"] = ["s_waitcnt lgkmcnt(0)"]
        after["e7"] = ["v_cmp_ne_u32 vcc, 1, v3"]
        after["e8"] = ["s_cbranch_vccnz L_g1slow", "L_g1ok:"]
    for tok in ORDER:
        k = tok[0]
        if k == "e":
            n = int(tok[1:]); e(f"v_exp_f32 v{S+n}, v{S+n}")
        elif k == "c":
            n = int(tok[1:]); pack(S+(n//4)*8+n%4, S+2*n)
        elif k == "d":
            if i: pack(T+11, T+14)
        elif k == "a":
            if i: mf32(VO, VV + 8 * pb, T, None if b == 1 else VO)
        elif k == "b":
            if i: mf32(VO, VV + 8 * pb + 4, T + 8, VO)
        elif k == "Q":
            if i < 127:
                mf32(T, VK + 4 * ((b + 1) % 16), VQ)
        for x in after.get(tok, []):
            e(x)
    if b == 15:
        stamp(f"p{t}")
with outofline():
    e("L_g1slow:")
    lds_spin(7, F_G1, 3, "v_cmp_ne_u32", 1, sleep=1)
    e("s_branch L_g1ok")
pack(SB+11, SB+14)
mf32(VO, VV + 8 * 15, SB, VO)
e("s_nop 0")
mf32(VO, VV + 8 * 15 + 4, SB + 8, VO)
e(f"""s_waitcnt lgkmcnt(0)
v_readfirstlane_b32 s{S_IT}, v3
v_mov_b32 v{V_L16}, v1
v_mov_b32 v{V_FLR}, v7
v_add_u32 v{V_PART}, s{S_XO}, v1
v_add_u32 v{V_LS}, s{S_XO+1}, v6
s_getpc_b64 {sr(S_RET,2)}
L_apc:
s_add_u32 s{S_RET}, s{S_RET}, L_aduty_done-L_apc
s_addc_u32 s{S_RET+1}, s{S_RET+1}, 0
s_mov_b32 s{S_BLK}, 1
s_cmp_eq_u32 s{S_IT}, 1
s_nop 0""")
for x in flush(7):
    e(x)
stamp("fbar")
e(f"""s_cbranch_scc0 L_aduty
s_mov_b32 s{S_PC}, s{S_PC+1}""")
cur[0].extend(duty_code)
e("L_aduty_done:")
with outofline():
    e(f"L_aduty:\ns_cmp_eq_u32 s{S_IT}, 0\ns_cbranch_scc0 L_aduty_done")
    lds_spin(7, F_PZ, 3, "v_cmp_ne_u32", 1, sleep=4)
    e(f"""v_subrev_u32 v{V_PART}, {L_P2 - L_P1}, v{V_PART}
v_subrev_u32 v{V_LS}, 2048, v{V_LS}
s_call_b64 {sr(S_RET,2)}, L_duty
s_call_b64 {sr(S_RET,2)}, L_duty
s_branch L_aduty_done""")
stamp("adone")
e(f"""s_setprio 0
L_status:
s_sleep 4
ds_read_b32 v3, v7 offset:{F_DUTY}
ds_read_b32 v4, v7 offset:{F_SLOW}
s_waitcnt lgkmcnt(0)
v_cmp_ne_u32 vcc, 0, v4
s_nop 0
s_cbranch_vccnz L_slow
v_cmp_ne_u32 vcc, 2, v3
s_nop 0""")
retry("L_status", 0)
e("L_fin:")
if OPT["hold"] == "end":
    e("s_waitcnt vmcnt(0)")
    stamp("end")
if OPT["stamps"]:
    e(f"s_waitcnt vmcnt(0)\ns_memtime {sr(S_STMP,2)}\ns_waitcnt lgkmcnt(0)")
    e(f"s_lshl_b32 s{S_T0}, s{S_G}, 3\ns_add_u32 s{S_T0}, s{S_T0}, s{S_J}\ns_lshl_b32 s{S_T0}, s{S_T0}, 3\ns_add_u32 s{S_T0}, s{S_T0}, s{S_W}\ns_lshl_b32 s{S_T0}, s{S_T0}, 6\ns_add_u32 s{S_T0}, s{S_T0}, {hex(WS_ST)}")
    for k in range(10):
        e(f"v_mov_b32 v{8+k}, s{S_ST0+k}")
    e(f"v_mov_b32 v18, s{S_STMP}\ns_memrealtime {sr(S_STMP,2)}\ns_waitcnt lgkmcnt(0)\nv_mov_b32 v19, s{S_STMP}\nv_mov_b32 v1, 0\ns_mov_b64 exec, 1")
    for k in range(3):
        e(f"buffer_store_dwordx4 {vr(8+4*k,4)}, v1, {sr(SRD_WS,4)}, s{S_T0} offen{off(16*k)}")
e("L_exit:\ns_endpgm")
out += tail_code
tail_code.clear()
e("L_code_end:")

def wave_sync():
    e(f"s_add_u32 s{S_T4}, s{S_T4}, 1\nv_mov_b32 v3, s{S_T4}\nds_write_b32 v253, v3 offset:{F_AS}")
    lds_spin(7, F_AS, 3, "v_cmp_gt_u32", f"s{S_T4}", sleep=1)
e("L_slow:")
lds_spin(7, F_PZ, 3, "v_cmp_ne_u32", 1, sleep=4)
e(f"""s_lshl_b32 s{S_T0}, s{S_W}, 8
s_add_u32 s{S_T0}, s{S_T0}, {L_MB}
v_lshl_add_u32 v2, v0, 2, s{S_T0}
v_and_b32 v4, 31, v0
v_lshlrev_b32 v4, 2, v4
v_add_u32 v4, {L_MB}, v4
v_add_u32 v6, {L_SL - L_LS}, v6
v_add_u32 v254, {L_P1}, v1
s_lshl_b32 s{S_T2}, s{S_G}, 16
s_lshl_b32 s{S_T3}, s{S_J}, 12
s_add_u32 s{S_T2}, s{S_T2}, s{S_T3}
s_add_u32 s{S_T2}, s{S_T2}, {hex(WS_O)}
s_mov_b32 s{S_IT}, 0
s_mov_b32 s{S_T4}, 0
L_slow_loop:
ds_read_b128 {vr(VQ,4)}, v252
v_mov_b32 v3, 0xff800000
s_waitcnt lgkmcnt(0)
v_add_u32 v252, 1024, v252""")
for b in range(16):
    mf32(SA, VK + 4 * b, VQ)
    e("s_nop 11")
    for k in range(8):
        e(f"v_max3_f32 v3, v3, v{SA+2*k}, v{SA+2*k+1}")
e("ds_write_b32 v2, v3")
wave_sync()
for k in range(8):
    e(f"ds_read_b32 v{SA+k}, v4{off(128*k)}")
e("s_waitcnt lgkmcnt(0)")
e(f"v_max3_f32 v3, v{SA}, v{SA+1}, v{SA+2}\nv_max3_f32 v3, v3, v{SA+3}, v{SA+4}\nv_max3_f32 v3, v3, v{SA+5}, v{SA+6}\nv_max_f32 v3, v3, v{SA+7}")
for k in range(16):
    e(f"v_sub_f32 v{SB+k}, 0, v3")
e("s_nop 1")
for b in range(16):
    mf32(SA, VK + 4 * b, VQ, SB)
    e("s_nop 11")
    for k in range(16):
        e(f"v_exp_f32 v{SA+k}, v{SA+k}")
    for n in range(8):
        e(f"v_cvt_pk_bf16_f32 v{SA+(n//4)*8+n%4}, v{SA+2*n}, v{SA+2*n+1}")
    e("s_nop 1")
    mf32(VO, VV + 8 * b, SA, VO if b else None)
    mf32(VO, VV + 8 * b + 4, SA + 8, VO)
e("s_nop 11")
for x in flush(0):
    e(x)
wave_sync()
e(f"s_cmp_eq_u32 s{S_W}, 0\ns_cbranch_scc0 L_slow_next")
reduce_piece(254, 6)
e("s_waitcnt lgkmcnt(8)")
reduce_math(0)
for k in range(4):
    e(f"v_min_u32 v{OB+k}, -2, v{OB+k}")
e(f"""s_lshr_b32 s{S_T0}, s{S_IT}, 2
s_lshl_b32 s{S_T0}, s{S_T0}, 15
s_and_b32 s{S_T1}, s{S_IT}, 3
s_lshl_b32 s{S_T1}, s{S_T1}, 10
s_add_u32 s{S_T0}, s{S_T0}, s{S_T1}
s_add_u32 s{S_T0}, s{S_T0}, s{S_T2}
buffer_store_dwordx4 {vr(OB,4)}, v1, {sr(SRD_WS,4)}, s{S_T0} offen sc1
s_waitcnt vmcnt(0)
L_slow_next:
s_add_u32 s{S_IT}, s{S_IT}, 1
s_cmp_lt_u32 s{S_IT}, 8
s_cbranch_scc1 L_slow_loop
s_branch L_fin""")
out += tail_code

e(f""".section .rodata,"a"
.p2align 6
.amdhsa_kernel {NAME}_kernel
.amdhsa_next_free_vgpr 256
.amdhsa_next_free_sgpr 102
.amdhsa_accum_offset 256
.amdhsa_group_segment_fixed_size 0
.amdhsa_kernarg_size 88
.amdhsa_user_sgpr_count 2
.amdhsa_user_sgpr_kernarg_segment_ptr 1
.amdhsa_system_sgpr_workgroup_id_x 1
.end_amdhsa_kernel""")
open(sys.argv[1], "w").write("\n".join(out) + "\n")
```

```python
import sys, struct

NAME = "parallel_sum__grouped_kv_mqa__dense_activation_silu__prompt"
OPT = dict(hold=-1, holdT=6000, stamps=0, rt=0, force_slow=0, pf_code=1, pf_wq=1, pf_w1=0, pf_w2=1, f1wait=1, psl=0, pdl=0, fsh=6, chain=0, warm=1, pf_at=20, pf_mall=0, nb0=6, mask=1, kvlead=1, gate=1, pgate=1, csl=4, t6dl=12, t7dl=4, t7sl=0, flip=0, d1=8, hsl=8, hp1=0, hp2=0, pfa=0, dtry=3, mallw=1, pf1=6, pw=0, p0=3, npre=16, g2=3, g1h=4, g1l=4, eb=1, x0late=0, inl=1, amp=0, osc=0, defer=1, perm=0)
for a in sys.argv[2:]:
    k, v = a.split("=")
    OPT[k] = int(v) if v.lstrip("-").isdigit() else v
SITES = ["start"] + (OPT["stamps"].split(",") if OPT["stamps"] else [])
assert len(SITES) <= 9

def f2u(x):
    return struct.unpack("<I", struct.pack("<f", x))[0]
LOG2E = 1.4426950408889634

WS_KV = 0x0
WS_O = 0x40000
WS_H = 0x300000
WS_FL = 0xE00000
FL_H = 1024
WS_ST = 0xF00000
WS_SIZE = 0x1000000
H_GRP = 86 * 2048

H_STR = 12288
L_P1 = 49152
L_WKV = 65536
L_X = 81920
X_STR = 1040
L_P2 = L_X
L_DUMP = L_X + 32768
L_Q = L_X + 64 * X_STR
L_M = L_Q + 8192
L_LS = L_M
L_RSTD = L_M + 4096
L_FLG = L_M + 4608
L_MB = L_M + 5120
L_SL = L_M + 6144
LDS_BYTES = 163840
F_LN2, F_LNA, F_WQ, F_Q, F_KVIS, F_G1, F_D0, F_PZ, F_LN, F_DUTY, F_SLOW, F_AS, F_LNP, F_KVST, F_KVOK, F_TAG = 0, 16, 32, 48, 64, 80, 96, 112, 128, 144, 176, 192, 208, 224, 240, 256
F_WOS, F_WOR, F_KVS = 272, 288, 304
assert L_SL + 512 <= LDS_BYTES and L_DUMP + 32768 <= L_Q

S_W, S_G, S_J, S_GL = 4, 5, 6, 7
SRD_X, SRD_WS = 8, 12
P_X, P_WQ, P_WK, P_WV, P_WO, P_BX, P_W1, P_W2 = 16, 18, 20, 22, 24, 26, 28, 30
P_OUT, P_DBG, P_WS = 32, 34, 36
S_TA, S_TB = 38, 39
S_TAG = P_BX
SRD_W, SRD_DBG, SRD_A, SRD_B, SRD_C, SRD_OUT = 40, 44, 48, 52, 56, 60
S_STEP, S_SOFF, S_RING, S_FLB = 64, 65, 66, 67
S_C10, S_C01, S_C11 = 68, 69, 70
S_T0, S_T1, S_T2, S_T3, S_T4, S_T5 = 71, 72, 73, 74, 75, 76
S_C = 77
S_EX = 78
S_U = 80
S_HW, S_IT = 88, 89
S_STMP = 90
S_ST0 = 92

VK, VV, SA, SB, VO, VQ = 8, 72, 200, 216, 232, 248

out, tail_code = [], []
cur = [out]
def e(s):
    for l in s.split("\n"):
        l = l.strip()
        if l:
            cur[0].append(l if l.endswith(":") or l.startswith(".") else "    " + l)
class outofline:
    def __enter__(self):
        self.prev, cur[0] = cur[0], []
    def __exit__(self, *a):
        tail_code.extend(cur[0]); cur[0] = self.prev

def vr(a, n=1):
    return f"v{a}" if n == 1 else f"v[{a}:{a+n-1}]"
def sr(a, n=1):
    return f"s{a}" if n == 1 else f"s[{a}:{a+n-1}]"
def mf32(d, a, b, c=None):
    e(f"v_mfma_f32_32x32x16_bf16 {vr(d,16)}, {vr(a,4)}, {vr(b,4)}, {vr(c,16) if c is not None else 0}")
def mf16(d, a, b, c=None):
    e(f"v_mfma_f32_16x16x32_bf16 {vr(d,4)}, {vr(a,4)}, {vr(b,4)}, {vr(c,4) if c is not None else 0}")
def srd(d, p, n):
    e(f"s_mov_b32 s{d}, s{p}\ns_mov_b32 s{d+1}, s{p+1}\ns_mov_b32 s{d+2}, {hex(n)}\ns_mov_b32 s{d+3}, 0x20000")
def off(n):
    return f" offset:{n}" if n else ""
uid = [0]
def label(p):
    uid[0] += 1
    return f"L_{p}_{uid[0]}"
def stamp(k):
    if OPT["amp"] == k:
        e(f"s_memrealtime {sr(S_STMP,2)}\ns_waitcnt lgkmcnt(0)\ns_mov_b32 s{S_ST0+8}, s{S_STMP}")
    if OPT["hold"] == k:
        lb = label("hold")
        e(f"{lb}:\ns_memrealtime {sr(S_STMP,2)}\ns_waitcnt lgkmcnt(0)\ns_sub_u32 s{S_STMP}, s{S_STMP}, s{S_ST0+9}\ns_cmp_lt_u32 s{S_STMP}, {OPT['holdT']}\ns_cbranch_scc1 {lb}")
    if OPT["stamps"] and k in SITES:
        e(f"s_mem{'real' if OPT['rt'] else ''}time {sr(S_STMP,2)}\ns_waitcnt lgkmcnt(0)\ns_mov_b32 s{S_ST0+SITES.index(k)}, s{S_STMP}")

class Queue:
    def __init__(self, kind):
        self.kind, self.n, self.tags = kind, 0, {}
    def issue(self, tag=None):
        self.n += 1
        if tag is not None:
            self.tags[tag] = self.n
    def left(self, tag):
        return self.n - self.tags[tag]
    def wait(self, tag):
        e(f"s_waitcnt {self.kind}({min(self.left(tag), 63 if self.kind == 'vmcnt' else 15)})")

def retry(top, sleep, hook=None):
    stub = label("retry")
    e(f"s_cbranch_vccnz {stub}")
    with outofline():
        e(f"{stub}:\ns_sub_u32 s3, s3, 1\ns_cbranch_scc1 L_exit")
        if hook: hook()
        if sleep: e(f"s_sleep {sleep}")
        e(f"s_branch {top}")

def lds_spin(vaddr, offset, vtmp, cmp, ref, sleep=0, prio=None):
    top = label("spin")
    e(f"{top}:\nds_read_b32 v{vtmp}, v{vaddr}{off(offset)}\ns_waitcnt lgkmcnt(0)")
    if prio: e(f"s_setprio {prio[0]}")
    e(f"{cmp} vcc, {ref}, v{vtmp}")
    e(f"s_setprio {prio[1]}" if prio else "s_nop 0")
    retry(top, sleep)

def glb_spin(vaddr, soff, vtmp, sleep=2, prio=None):
    top = label("poll")
    e(f"{top}:\nbuffer_load_dwordx2 {vr(vtmp,2)}, v{vaddr}, {sr(SRD_WS,4)}, {soff} offen sc1\ns_waitcnt vmcnt(0)")
    if prio: e(f"s_setprio {prio[0]}")
    e(f"v_cmp_ne_u64 vcc, {sr(S_TAG,2)}, {vr(vtmp,2)}")
    e(f"s_setprio {prio[1]}" if prio else "s_nop 0")
    retry(top, sleep)

def read_tag(va, vt):
    e(f"""v_mov_b32 v{va}, {L_FLG + F_TAG}
ds_read_b64 {vr(vt,2)}, v{va}
s_waitcnt lgkmcnt(0)
v_readfirstlane_b32 s{S_TAG}, v{vt}
v_readfirstlane_b32 s{S_TAG+1}, v{vt+1}""")

def tr_addr(dst, tmp, half_shift):
    e(f"""v_and_b32 v{dst}, 3, v0
v_lshlrev_b32 v{dst}, 3, v{dst}
v_bfe_u32 v{tmp}, v0, 2, 2
v_lshl_add_u32 v{dst}, v{tmp}, 6, v{dst}
v_bfe_u32 v{tmp}, v0, 4, 1
v_lshl_add_u32 v{dst}, v{tmp}, 5, v{dst}
v_lshrrev_b32 v{tmp}, 5, v0
v_lshl_add_u32 v{dst}, v{tmp}, {half_shift}, v{dst}""")

def dpp_sum(regs):
    for r in (8, 4, 2, 1):
        for a in regs:
            e(f"v_add_f32_dpp v{a}, v{a}, v{a} row_ror:{r} row_mask:0xf bank_mask:0xf")
        if len(regs) < 3 and r != 1:
            e(f"s_nop {2 - len(regs)}")

def ln_centre(X, waits, vwr, A, B, T):
    n = len(X)
    for u in range(n):
        e(f"s_waitcnt vmcnt({waits[u]})")
        if u == 0:
            stamp("xarr" if B is None else "xarrB")
        for i in range(16):
            e(f"v_dot2_f32_bf16 v{A+u}, v{X[u]+i}, s{S_C11}, {'v%d' % (A+u) if i else 0}")
    if n < 4: e(f"s_nop {3 - n}")
    dpp_sum([A + u for u in range(n)])
    for u in range(n):
        e(f"v_mul_f32 v{A+u}, {hex(f2u(-1.0/512))}, v{A+u}")
    for u in range(n):
        for gi in range(4):
            for k in range(4):
                e(f"v_dot2_f32_bf16 v{T+2*k}, v{X[u]+4*gi+k}, s{S_C10}, v{A+u}")
                e(f"v_dot2_f32_bf16 v{T+2*k+1}, v{X[u]+4*gi+k}, s{S_C01}, v{A+u}")
            for k in range(4):
                e(f"v_cvt_pk_bf16_f32 v{X[u]+4*gi+k}, v{T+2*k}, v{T+2*k+1}")
            if gi == 0 and u >= 2:
                e("s_waitcnt lgkmcnt(6)")
            e(f"ds_write_b128 v{vwr+u}, {vr(X[u]+4*gi,4)}{off(gi*16*X_STR)}")
            if B is not None:
                for k in range(4):
                    e(f"v_dot2_f32_bf16 v{B+u}, v{X[u]+4*gi+k}, v{X[u]+4*gi+k}, {'v%d' % (B+u) if gi or k else 0}")
def ln_var(X, B):
    for i in range(16):
        e(f"v_dot2_f32_bf16 v{B}, v{X+i}, v{X+i}, {'v%d' % B if i else 0}")
def ln_stats(n, vst, A, B):
    if n < 4: e(f"s_nop {3 - n}")
    dpp_sum([B + u for u in range(n)])
    for u in range(n):
        e(f"v_mov_b32 v{A+u}, {hex(f2u(1e-5))}\nv_fmac_f32 v{A+u}, {hex(f2u(1.0/512))}, v{B+u}")
    for u in range(n):
        e(f"v_rsq_f32 v{B+u}, v{A+u}")
    e("s_waitcnt lgkmcnt(5)")
    for u in range(n):
        e(f"v_mul_f32 v{A+u}, v{A+u}, v{B+u}")
        e(f"ds_write_b32 v{vst+u}, v{B+u}\nds_write_b32 v{vst+u}, v{A+u} offset:256")

def w1_prefetch(va, vt, vd):
    e(f"""v_lshrrev_b32 v{va}, 5, v0
v_mul_u32_u24 v{va}, 2752, v{va}
v_and_b32 v{vt}, 31, v0
v_min_u32 v{vt}, 22, v{vt}
v_lshl_add_u32 v{va}, v{vt}, 6, v{va}""")
    e(f"""s_lshl_b32 s{S_T0}, s{S_C}, 2
s_add_u32 s{S_T0}, s{S_T0}, s{S_HW}
s_mul_i32 s{S_T0}, s{S_T0}, {4*2752}
s_lshr_b32 s{S_T2}, s{S_J}, 2
s_mul_i32 s{S_T2}, s{S_T2}, {20*64}
s_add_u32 s{S_T0}, s{S_T0}, s{S_T2}
s_add_u32 s{S_T2}, s{S_T0}, {2*2752}
buffer_load_dword v{vd}, v{va}, {sr(SRD_W,4)}, s{S_T0} offen
buffer_load_dword v{vd}, v{va}, {sr(SRD_W,4)}, s{S_T2} offen""")

HDR = open("cdna_kernels/" + NAME + ".s.ref").read().split("\n")
out += [l for l in HDR if l.startswith(";") and "@launch" not in l]
out.append(f"; @launch grid=(256,1,1) block=(512,1,1) lds={LDS_BYTES}")
e(f'.amdgcn_target "amdgcn-amd-amdhsa--gfx950"\n.text\n.globl {NAME}_kernel\n.p2align 8\n.type {NAME}_kernel,@function')
e(f"{NAME}_kernel:")

e("s_cmp_ge_u32 s2, 256\ns_cbranch_scc1 L_exit")
if OPT["stamps"] or OPT["hold"] != -1:
    e(f"s_memrealtime {sr(S_STMP,2)}\ns_waitcnt lgkmcnt(0)\ns_mov_b32 s{S_ST0+9}, s{S_STMP}")
    stamp("start")
    for k in range(1, 9):
        e(f"s_mov_b32 s{S_ST0+k}, s{S_ST0}")
    if OPT["amp"]:
        e(f"s_mov_b32 s{S_ST0+8}, s{S_ST0+9}")
e(f"""s_load_dwordx16 s[16:31], s[0:1], 0
s_load_dwordx4 s[32:35], s[0:1], 64
s_load_dwordx2 s[36:37], s[0:1], 80
v_lshrrev_b32 v2, 6, v0
v_bfe_u32 v4, v0, 4, 4
s_lshr_b32 s{S_C}, s2, 3
v_readfirstlane_b32 s{S_W}, v2
v_and_b32 v5, 15, v0
v_and_b32 v0, 63, v0""")
if OPT["pf_code"]:
    e(f"""s_getpc_b64 {sr(S_T0+1,2)}
L_pc:
v_lshl_add_u32 v2, s{S_C}, 3, v2
v_and_b32 v3, 3, v0
v_lshl_add_u32 v2, v2, 2, v3
v_lshlrev_b32 v2, 6, v2
v_min_u32 v2, L_code_end-L_pc-4, v2
global_load_dword v247, v2, {sr(S_T0+1,2)}""")
e(f"""s_and_b32 s{S_GL}, s{S_C}, 7
s_bfe_u32 s{S_T0}, s2, 0x20001
s_lshl3_add_u32 s{S_G}, s{S_T0}, s{S_GL}
s_lshr_b32 s{S_T3}, s{S_C}, 3
s_lshl2_add_u32 s{S_SOFF}, s{S_G}, s{S_T3}
s_lshl_b32 s{S_SOFF}, s{S_SOFF}, 14
v_lshlrev_b32 v1, 10, v4
v_lshl_add_u32 v1, v5, 4, v1
s_mov_b32 s{SRD_X+2}, {hex(2048*1024)}
s_mov_b32 s{SRD_X+3}, 0x20000
s_cmp_lt_u32 s{S_W}, 4
s_waitcnt lgkmcnt(0)
s_mov_b64 {sr(SRD_X,2)}, {sr(P_X,2)}
s_cbranch_scc1 L_a0""")
XA = 8
stamp("karg")
for i in range(4):
    e(f"buffer_load_dwordx4 {vr(XA+4*i,4)}, v1, {sr(SRD_X,4)}, s{S_SOFF} offen{off(256*i)}")
e(f"""s_branch L_hfront
L_a0:
s_bitcmp1_b32 s2, 0
s_cselect_b64 {sr(SRD_A,2)}, {sr(P_WV,2)}, {sr(P_WK,2)}
s_cselect_b32 s{S_T1}, 512, 0
s_mov_b32 s{SRD_A+2}, 16384
s_mov_b32 s{SRD_A+3}, 0x20000
s_cmp_eq_u32 s{S_W}, 0
s_cbranch_scc0 {'L_a1' if OPT['pf_wq'] == 2 else 'L_afront'}
v_lshlrev_b32 v3, 4, v0""")
for i in range(4):
    e(f"s_mov_b32 m0, {L_WKV + i*4096}\ns_movk_i32 s{S_T0}, {i*4096}")
    for k in range(4):
        e(f"buffer_load_dwordx4 v3, {sr(SRD_A,4)}, s{S_T0} offen{off(1024*k)} lds")
e("s_branch L_afront")
if OPT["pf_wq"] == 2:
    e(f"""L_a1:
v_lshrrev_b32 v3, 3, v0
v_and_b32 v2, 7, v0
v_lshlrev_b32 v2, 6, v2
s_lshl1_add_u32 s{S_T0}, s{S_C}, s{S_W}
s_sub_u32 s{S_T0}, s{S_T0}, 2
s_lshl_b32 s{S_T0}, s{S_T0}, 13
s_add_u32 s{S_T0}, s{S_T0}, s{S_T1}
s_lshl_b32 s{S_T1}, s{S_C}, 9
s_cmp_eq_u32 s{S_W}, 1
s_cselect_b32 s{S_T0}, s{S_T1}, s{S_T0}
s_cselect_b32 s{S_T1}, 0, 0x400
s_cselect_b64 {sr(SRD_A,2)}, {sr(SRD_A,2)}, {sr(P_WQ,2)}
s_cselect_b32 s{SRD_A+2}, s{SRD_A+2}, {hex(512*1024)}
v_mad_u32_u24 v2, v3, s{S_T1}, v2
buffer_load_dword v246, v2, {sr(SRD_A,4)}, s{S_T0} offen
s_branch L_afront""")

V_FLW, V_FLR, V_ONE = 253, 254, 255
V_WR, V_ST = 200, 204
def common_setup():
    srd(SRD_WS, P_WS, WS_SIZE)
    srd(SRD_DBG, P_DBG, 256)
    e(f"""s_and_b32 s{S_T0}, s2, 1
s_lshl2_add_u32 s{S_J}, s{S_T0}, s{S_T3}
s_and_b32 s{S_HW}, s{S_W}, 3
s_mov_b32 s3, 0x40000
s_lshl_b32 s{S_FLB}, s{S_G}, 11
s_add_u32 s{S_FLB}, s{S_FLB}, {hex(WS_FL)}
s_mov_b32 s{S_C10}, 0x00003f80
s_mov_b32 s{S_C01}, 0x3f800000
s_mov_b32 s{S_C11}, 0x3f803f80
v_mul_u32_u24 v2, {X_STR}, v5
v_lshl_add_u32 v2, v4, 4, v2
v_lshlrev_b32 v4, 2, v4
s_lshl2_add_u32 s{S_T0}, s{S_HW}, {L_FLG}
v_mov_b32 v{V_FLW}, s{S_T0}
v_and_b32 v7, 3, v0
v_lshlrev_b32 v{V_FLR}, 2, v7
v_add_u32 v{V_FLR}, {L_FLG}, v{V_FLR}
v_mov_b32 v{V_ONE}, 1""")
def unit_addr(slot, dq):
    e(f"""s_add_u32 s{S_T0}, s{S_T3}, {dq}
s_and_b32 s{S_T0}, s{S_T0}, 3
s_lshl2_add_u32 s{S_U+slot}, s{S_G}, s{S_T0}
s_lshl_b32 s{S_U+slot}, s{S_U+slot}, 14
s_lshl_b32 s{S_T1}, s{S_T0}, 8
s_add_u32 s{S_T1}, s{S_T1}, {L_X}
v_add_u32 v{V_WR+slot}, s{S_T1}, v2
s_lshl_b32 s{S_T1}, s{S_T0}, 6
s_add_u32 s{S_T1}, s{S_T1}, {L_RSTD}
v_add_u32 v{V_ST+slot}, s{S_T1}, v4""")
def unit_loads(X, slot, va=1):
    for i in range(4):
        e(f"buffer_load_dwordx4 {vr(X+4*i,4)}, v{va}, {sr(SRD_X,4)}, s{S_U+slot} offen{off(256*i)}")
def wq_prefetch(va, vt, vd):
    e(f"""v_lshrrev_b32 v{va}, 3, v0
v_lshlrev_b32 v{va}, 10, v{va}
v_and_b32 v{vt}, 7, v0
v_lshl_add_u32 v{va}, v{vt}, 6, v{va}
s_lshl2_add_u32 s{S_T0}, s{S_C}, s{S_HW}
s_lshl_b32 s{S_T0}, s{S_T0}, 12
s_and_b32 s{S_T1}, s{S_J}, 4
s_lshl_b32 s{S_T1}, s{S_T1}, 7
s_add_u32 s{S_T0}, s{S_T0}, s{S_T1}
s_mov_b32 exec_hi, 0
buffer_load_dword v{vd}, v{va}, {sr(SRD_W,4)}, s{S_T0} offen
s_mov_b32 exec_hi, -1""")

e("L_hfront:\ns_setprio 2")
common_setup()
srd(SRD_W, P_WQ, 512 * 1024)
unit_addr(1, 1)
if OPT["eb"]:
    e(f"v_mov_b32 v52, 0\nv_lshlrev_b32 v6, 2, v0\nv_add_u32 v6, {L_FLG}, v6\nds_write2st64_b32 v6, v52, v52 offset1:1\ns_waitcnt lgkmcnt(0)\ns_barrier")
if OPT["eb"] < 2:
    unit_loads(24, 1)
if not OPT["eb"]:
    e("s_barrier")
unit_addr(0, 0)
e(f"""v_lshrrev_b32 v6, 2, v0
v_lshlrev_b32 v6, 10, v6
v_lshl_add_u32 v6, v7, 4, v6
s_and_b32 s{S_T0}, s{S_HW}, 1
s_lshl_b32 s{S_RING}, s{S_T0}, 15
s_lshl_b32 s{S_T0}, s{S_J}, 7
s_lshl_b32 s{S_T2}, s{S_HW}, 17
s_add_u32 s{S_SOFF}, s{S_T0}, s{S_T2}
s_lshl_b32 s{S_T5}, s{S_HW}, 13
s_lshr_b32 s{S_T1}, s{S_HW}, 1
s_lshl_b32 s{S_T1}, s{S_T1}, 14
s_add_u32 s{S_RING}, s{S_RING}, s{S_T1}""")
if OPT["eb"] == 2:
    e("s_waitcnt vmcnt(0)")
    unit_loads(24, 1)
ln_centre([XA], [4], V_WR, 56, None, 60)
e(f"ds_write_b32 v{V_FLW}, v{V_ONE} offset:{F_LNP}")
stamp("lnA")
ln_var(XA, 57)
ln_stats(1, V_ST, 56, 57)
e(f"ds_write_b32 v{V_FLW}, v{V_ONE} offset:{F_LN}")
ln_centre([24], [0], V_WR + 1, 56, 57, 60)
ln_stats(1, V_ST + 1, 56, 57)
e(f"ds_write_b32 v{V_FLW}, v{V_ONE} offset:{F_LN2}\ns_setprio 0")
stamp("lnB")
if OPT["gate"]:
    lds_spin(V_FLR, F_KVST, 52, "v_cmp_ne_u32", 1, sleep=1)
for k in range(8):
    e(f"s_add_u32 m0, s{S_T5}, {k*1024}\ns_nop 0\nbuffer_load_dwordx4 v6, {sr(SRD_W,4)}, s{S_SOFF} offen lds")
    e(f"s_add_u32 m0, s{S_T5}, {32768 + k*1024 - 64}\ns_nop 0\nbuffer_load_dwordx4 v6, {sr(SRD_W,4)}, s{S_SOFF} offen offset:64 lds\ns_add_u32 s{S_SOFF}, s{S_SOFF}, 16384")
tr_addr(7, 3, 9)
V_XR = 252
e(f"""v_mul_u32_u24 v{V_XR}, {X_STR}, v3
v_and_b32 v3, 31, v0
v_lshl_add_u32 v{V_XR}, v3, 4, v{V_XR}
v_add_u32 v{V_XR}, {L_X}, v{V_XR}
v_lshlrev_b32 v4, 2, v3
v_add_u32 v1, s{S_RING}, v7
v_xor_b32 v2, 0x4000, v1
s_lshr_b32 s{S_T1}, s{S_HW}, 1
s_mul_i32 s{S_T0}, s{S_T1}, {32*X_STR + 512}
v_add_u32 v5, s{S_T0}, v{V_XR}
s_mul_i32 s{S_T0}, s{S_T1}, {512 - 32*X_STR}
s_add_u32 s{S_T0}, s{S_T0}, {32*X_STR}
v_add_u32 v3, s{S_T0}, v{V_XR}
v_and_b32 v48, 15, v0
v_min_u32 v48, 11, v48
v_lshlrev_b32 v48, 2, v48
v_add_u32 v48, {L_FLG}, v48""")
srd(SRD_W, P_W1, 512 * 2752)
QA, QB, QO, QACC = 72, 8, 24, 200
e(f"s_waitcnt vmcnt(0)\nds_write_b32 v{V_FLW}, v{V_ONE} offset:{F_WQ}")
lds_spin(V_FLR, F_WQ, 52, "v_cmp_ne_u32", 1)
stamp("wq")
for k in range(OPT["npre"]):
    if k % 4 == 0 and k:
        e("s_waitcnt lgkmcnt(4)")
    for i in range(2):
        e(f"ds_read_b64_tr_b16 {vr(QA+4*k+2*i,2)}, v1{off(k*1024 + i*256)}")
lds_spin(48, F_LN2, 52, "v_cmp_ne_u32", 1, sleep=1)
e("s_setprio 2")
stamp("ln")
lq = Queue("lgkmcnt")
def q_reads(s):
    if s >= OPT["npre"]:
        for i in range(2):
            e(f"ds_read_b64_tr_b16 {vr(QO+4*(s % 4)+2*i,2)}, v{1 if s < 16 else 2}{off((s % 16)*1024 + i*256)}")
            lq.issue()
    e(f"ds_read_b128 {vr(QB+4*(s % 4),4)}, v{5 if s < 16 else 3}{off((s % 16)*2*X_STR)}")
    lq.issue(s)
for s in range(3):
    q_reads(s)
for s in range(32):
    if s + 3 < 32:
        q_reads(s + 3)
    elif s == 29:
        e(f"s_lshr_b32 s{S_T1}, s{S_HW}, 1\ns_lshl_b32 s{S_T0}, s{S_T1}, 7\ns_add_u32 s{S_T0}, s{S_T0}, {L_RSTD}\nv_add_u32 v1, s{S_T0}, v4\nds_read_b32 v44, v1")
        lq.issue()
    lq.wait(s)
    mf32(QACC, QA + 4 * s if s < OPT["npre"] else QO + 4 * (s % 4), QB + 4 * (s % 4), QACC if s else None)
e(f"""s_lshl_b32 s{S_T0}, s{S_HW}, 11
s_add_u32 s{S_T0}, s{S_T0}, {L_Q}
v_lshl_add_u32 v1, v0, 4, s{S_T0}
s_waitcnt lgkmcnt(0)
v_mul_f32 v44, {hex(f2u(0.25*LOG2E))}, v44
v_mov_b32 v45, v44
s_nop 5""")
for hl in range(2):
    for k in range(4):
        e(f"v_pk_mul_f32 {vr(QACC+8*hl+2*k,2)}, {vr(QACC+8*hl+2*k,2)}, v[44:45]")
    for k in range(4):
        e(f"v_cvt_pk_bf16_f32 v{8+4*hl+k}, v{QACC+8*hl+2*k}, v{QACC+8*hl+2*k+1}")
    e(f"ds_write_b128 v1, {vr(8+4*hl,4)}{off(hl*1024)}")
e(f"ds_write_b32 v{V_FLW}, v{V_ONE} offset:{F_Q}")
stamp("qd")

V_S0, V_PART, V_TR2, V_LS, V_DW0, V_DW1, V_DR0 = 1, 2, 3, 4, 5, 6, 7
V_DR1, V_OUT, V_TMP, V_L16, V_TB = 248, 249, 250, 251, 252
V_WO, V_TT, V_HF = 60, 61, 62
V_WA, V_WB, V_TR, V_PF, VXR, V_CS, V_NEG, V_TAG = 72, 73, 74, 75, 76, 92, 100, 64
S_OB, S_PC, S_XO, S_CLS, S_RET, S_BLK = 16, 20, 22, 18 + 6, 0, 2
t0, t1, t2, t3 = 24, 25, 26, 27
e(f"""s_xor_b32 s{S_T4}, s{S_J}, {4 * OPT['flip']}
s_mul_i32 s{S_T0}, s{S_T4}, 7
s_lshl1_add_u32 s{S_T0}, s{S_HW}, s{S_T0}
s_lshl2_add_u32 s{S_T1}, s{S_T4}, s{S_HW}
s_add_u32 s{S_T2}, s{S_T1}, 11
s_cmp_lt_u32 s{S_HW}, 3
s_cselect_b32 s{S_TB}, 2, 1
s_cmp_eq_u32 s{S_T1}, 14
s_cselect_b32 s{S_TB}, 1, s{S_TB}
s_min_u32 s{S_T0}, s{S_T0}, 26
s_cmp_lt_u32 s{S_T4}, 4
s_cselect_b32 s{S_TA}, s{S_T0}, s{S_T2}
s_cselect_b32 s{S_TB}, s{S_TB}, 1
s_lshr_b32 s{S_T5}, s{S_HW}, 1
s_mul_i32 s{S_RING}, s{S_HW}, {H_STR}
s_and_b32 s{S_T4}, s{S_HW}, 1
v_add_u32 v{t0}, {L_RSTD}, v4
ds_read_b32 v{V_CS}, v{t0}
ds_read_b32 v{V_CS+2}, v{t0} offset:128
ds_read_b32 v{V_CS+4}, v{t0} offset:256
ds_read_b32 v{V_CS+6}, v{t0} offset:384
v_add_u32 v{V_TR}, s{S_RING}, v7
v_lshrrev_b32 v{t3}, 5, v0
v_lshlrev_b32 v{t0}, 8, v{t3}
v_sub_u32 v{V_TR2}, v{V_TR}, v{t0}
v_lshlrev_b32 v{V_HF}, 3, v4
s_lshl_b32 s{S_T0}, s{S_HW}, 9
s_add_u32 s{S_T0}, s{S_T0}, {L_LS}
v_add_u32 v{V_LS}, s{S_T0}, v4
s_lshl_b32 s{S_T0}, s{S_J}, 7
v_add_u32 v{V_S0}, s{S_T0}, v6
s_lshl_b32 s{S_T1}, s{S_T4}, 6
v_add_u32 v{V_WO}, s{S_T1}, v{V_S0}
v_lshrrev_b32 v{t0}, 2, v0
v_mul_u32_u24 v{t0}, 2752, v{t0}
v_and_b32 v{t1}, 3, v0
v_lshl_add_u32 v{t0}, v{t1}, 4, v{t0}
s_lshl_b32 s{S_T2}, s{S_TA}, 6
v_add_u32 v{V_WA}, s{S_T2}, v{t0}
v_lshlrev_b32 v{V_TT}, 4, v{t1}
v_bfe_u32 v{t1}, v0, 2, 2
v_lshl_add_u32 v{V_TT}, v{t1}, 6, v{V_TT}
v_bfe_u32 v{t2}, v0, 4, 1
v_lshl_add_u32 v{V_TT}, v{t2}, 8, v{V_TT}
v_lshl_add_u32 v{V_TT}, v{t3}, 10, v{V_TT}
s_cmp_eq_u32 s{S_T4}, 0
s_cselect_b32 s{S_T2}, {L_DUMP}, 0
v_add_u32 v{V_TT}, s{S_T2}, v{V_TT}
v_lshlrev_b32 v{V_L16}, 4, v0""")
for k in range(8):
    e(f"s_add_u32 s{S_U}, s{S_GL}, {k}\ns_and_b32 s{S_U}, s{S_U}, 7\ns_mul_i32 s{S_U}, s{S_U}, {8*X_STR}")
    e(f"v_add_u32 v{VXR+k}, s{S_U}, v{V_XR}")
srd(SRD_B, P_W2, 1376 * 1024)
srd(SRD_C, P_WO, 512 * 1024)
srd(SRD_OUT, P_OUT, 2048 * 1024)
e(f"""v_lshlrev_b32 v{V_TB}, 9, v{t2}
v_lshl_add_u32 v{V_TB}, v{t3}, 12, v{V_TB}
v_and_b32 v{t0}, 15, v0
v_lshrrev_b32 v{t1}, 4, v0
v_lshlrev_b32 v{V_OUT}, 10, v{t0}
v_lshl_add_u32 v{V_OUT}, v{t1}, 4, v{V_OUT}
s_lshl_b32 s{S_T2}, s{S_T5}, 4
v_add_u32 v{t0}, s{S_T2}, v{t0}
v_lshl_add_u32 v{V_TB}, v{t0}, 4, v{V_TB}
v_lshlrev_b32 v{V_DR1}, 4, v{t0}
v_lshl_add_u32 v{V_DR1}, v{t1}, 10, v{V_DR1}
s_lshl_b32 s{S_T2}, s{S_T4}, 12
v_add_u32 v{V_DR1}, s{S_T2}, v{V_DR1}
v_add_u32 v{V_DR0}, {L_DUMP}, v{V_DR1}
v_add_u32 v{V_DW1}, s{S_RING}, v{V_L16}
s_lshl_b32 s{S_T2}, s{S_HW}, 13
s_add_u32 s{S_T2}, s{S_T2}, {L_DUMP}
v_add_u32 v{V_DW0}, s{S_T2}, v{V_L16}
s_lshl_b32 s{S_T2}, s{S_HW}, 11
s_add_u32 s{S_T2}, s{S_T2}, {L_P1}
v_add_u32 v{V_PART}, s{S_T2}, v{V_L16}
v_lshrrev_b32 v{V_PF}, 1, v0
v_lshlrev_b32 v{V_PF}, 10, v{V_PF}
v_and_b32 v{t0}, 1, v0
v_lshl_add_u32 v{V_PF}, v{t0}, 6, v{V_PF}
v_mov_b32 v{V_NEG}, -1
v_mov_b32 v{V_NEG+1}, -1
v_mov_b32 v{V_NEG+2}, -1
v_mov_b32 v{V_NEG+3}, -1
v_mov_b32 v{V_TAG+2}, 0
s_lshl_b32 s{S_T2}, s{S_G}, 2
s_add_u32 s{S_T2}, s{S_T2}, s{S_T5}
s_lshl_b32 s{S_T2}, s{S_T2}, 14
s_add_u32 s{S_T2}, s{S_T2}, s{S_T0}
s_add_u32 s{S_XO}, s{S_T2}, s{S_T1}
s_add_u32 s{S_XO+1}, s{S_XO}, 32768
s_lshl_b32 s{S_T2}, s{S_G}, 16
s_add_u32 s{S_OB}, s{S_T2}, {hex(WS_O)}
s_add_u32 s{S_OB+1}, s{S_OB}, 8192
s_add_u32 s{S_OB+2}, s{S_OB}, 16384
s_add_u32 s{S_OB+3}, s{S_OB}, 24576
s_lshl_b32 s{S_T2}, s{S_J}, 2
s_add_u32 s{S_T2}, s{S_T2}, s{S_HW}
s_lshl_b32 s{S_T3}, s{S_T2}, 10
s_add_u32 s{S_PC}, s{S_OB}, s{S_T3}
s_add_u32 s{S_PC+1}, s{S_PC}, 32768
s_add_u32 s{S_FLB}, s{S_FLB}, {FL_H}
s_lshl_b32 s{S_T2}, s{S_T2}, 5
s_add_u32 s{S_U+7}, s{S_T2}, s{S_FLB}
s_mul_i32 s{S_T2}, s{S_G}, {H_GRP}
s_add_u32 s{S_T2}, s{S_T2}, {hex(WS_H)}
s_add_u32 s{SRD_A}, s{P_WS}, s{S_T2}
s_addc_u32 s{SRD_A+1}, s{P_WS+1}, 0
s_mov_b32 s{SRD_A+2}, {H_GRP}
s_mov_b32 s{SRD_A+3}, 0x20000
s_lshl_b32 s{S_U+4}, s{S_TA}, 12
s_add_u32 s{S_U+5}, s{S_U+4}, 4096
s_movk_i32 s{S_CLS}, 0x207
s_mov_b32 s{S_IT}, 0
s_mul_i32 s{S_SOFF}, s{S_GL}, {64*2752}
s_lshl_b32 s{S_T1}, s{S_GL}, 2
s_add_u32 s{S_T1}, s{S_T1}, s{S_HW}
s_mul_i32 s{S_T2}, s{S_T1}, {43*1024}
s_add_u32 s{S_T2}, s{S_T2}, s{S_T0}
s_add_u32 s{S_T3}, s{S_T2}, {11*1024}
s_lshl_b32 s{S_T1}, s{S_T1}, 14
s_add_u32 s{S_T1}, s{S_T1}, s{S_T0}
s_waitcnt lgkmcnt(0)
v_mul_f32 v{V_CS}, {hex(f2u(-LOG2E))}, v{V_CS}
v_mul_f32 v{V_CS+2}, {hex(f2u(-LOG2E))}, v{V_CS+2}""")
for k in range(4):
    e(f"v_mov_b32 v{V_CS+2*k+1}, v{V_CS+2*k}")
lds_spin(V_FLR, F_Q, t0, "v_cmp_ne_u32", 1)
lds_spin(V_FLR, F_KVOK, t0, "v_cmp_ne_u32", 1, sleep=1)
read_tag(t0, V_TAG)
e("s_setprio 0")
if OPT["f1wait"] == 1:
    lds_spin(V_FLR, F_KVIS, t0, "v_cmp_ne_u32", 1, sleep=2, prio=(2, 0))
stamp("f1go")

F1A = 184
FR = [8, 24, 40]
def late_prefetch():
    e(f"""s_mov_b32 exec_hi, 0
buffer_load_dword v{V_TMP}, v{V_PF}, {sr(SRD_C,4)}, s{S_T1} offen
s_mov_b32 exec_hi, -1
buffer_load_dword v{V_TMP}, v{V_PF}, {sr(SRD_B,4)}, s{S_T2} offen
buffer_load_dword v{V_TMP}, v{V_PF}, {sr(SRD_B,4)}, s{S_T3} offen""")
def ffn1(nt):
    vq, lq = Queue("vmcnt"), Queue("lgkmcnt")
    D = 6 if nt == 2 else OPT["d1"]
    def dma(s):
        e(f"s_add_u32 m0, s{S_RING}, {(s % D)*1024*nt}\ns_add_u32 s{S_T4}, s{S_SOFF}, {16*2752}\nbuffer_load_dwordx4 v{V_WA}, {sr(SRD_W,4)}, s{S_SOFF} offen lds")
        vq.issue(("w", s))
        if nt == 2:
            e(f"s_add_u32 m0, s{S_RING}, {(s % D)*2048 + 1024 - 64}\ns_cmp_ge_u32 s{S_T4}, s{SRD_W+2}\nbuffer_load_dwordx4 v{V_WA}, {sr(SRD_W,4)}, s{S_SOFF} offen offset:64 lds")
            vq.issue(("w", s))
        else:
            e(f"s_cmp_ge_u32 s{S_T4}, s{SRD_W+2}")
        e(f"s_cselect_b32 s{S_SOFF}, 0, s{S_T4}")
    NR, NM, G = 2 + 2 * nt, 2 * nt, OPT["g1h"] if nt == 2 else OPT["g1l"]
    def read1(k):
        s, r = divmod(k, NR)
        f = 108 + 16 * (s % 4)
        if r < 2:
            e(f"ds_read_b128 {vr(f+8+4*r,4)}, v{VXR+s//4}{off((s % 4)*2*X_STR + r*512)}")
        else:
            if r == 2:
                vq.wait(("w", s))
            e(f"ds_read_b64_tr_b16 {vr(f+2*(r-2),2)}, v{V_TR}{off((s % D)*1024*nt + ((r-2)//2)*1024 + (r % 2)*256)}")
        lq.issue(("r", s))
    for s in range(D):
        dma(s)
    nr, nd = 0, D
    while nr < (2 if nt == 2 else 3) * NR:
        read1(nr); nr += 1
    for m in range(32 * NM):
        s, u = divmod(m, NM)
        f = 108 + 16 * (s % 4)
        if m % G == 0:
            ls = (min(m + G, 32 * NM) - 1) // NM
            assert nr >= (ls + 1) * NR, (nt, m, nr)
            lq.wait(("r", ls))
            done = (ls + 1) * NR
        mf32(F1A + 16 * u, f + 4 * (u >> 1), f + 8 + 4 * (u & 1), F1A + 16 * u if s else None)
        end = m % G == G - 1
        n = 0
        while nr < 32 * NR and nr // NR - 4 <= (m - NM + 1) // NM and nr - done < 12 and (end or n < 2):
            read1(nr); nr += 1; n += 1
        if end:
            while nd < 32 and nd - D <= ls:
                dma(nd); nd += 1
        if u != NM - 1:
            continue
        stamp(f"s{s}")
        if not OPT["pf_w2"]:
            pass
        elif nt == 2 or not OPT["mallw"]:
            if s == OPT["pf_at"]:
                late_prefetch()
                vq.issue(); vq.issue(); vq.issue()
        elif s in (OPT["pf1"], 31):
            skip = label("nopf")
            e(f"s_cmp_lt_u32 s{S_TA}, 27\ns_cbranch_scc{1 if s < 31 else 0} {skip}")
            if s < 31:
                for k in range(1, 4):
                    e(f"s_xor_b32 s{S_T0+k}, s{S_T0+k}, 512")
                late_prefetch()
                for k in range(1, 4):
                    e(f"s_xor_b32 s{S_T0+k}, s{S_T0+k}, 512")
            late_prefetch()
            e(f"{skip}:")
e(f"s_cmp_eq_u32 s{S_TB}, 2\ns_cbranch_scc0 L_f1one")
if OPT["hp1"]:
    e("s_setprio 2")
ffn1(2)
e("L_f1done:")
with outofline():
    e("L_f1one:")
    ffn1(1)
    e("s_branch L_f1done")
stamp("g1")
for k in range(2):
    e(f"buffer_store_dwordx4 {vr(V_NEG,4)}, v{V_L16}, {sr(SRD_WS,4)}, s{S_PC+k} offen sc1")
e(f"ds_write_b32 v{V_FLW}, v{V_ONE} offset:{F_G1}\ns_setprio 2\ns_nop 6")
for ti in range(2):
    e(f"s_cmp_eq_u32 s{S_TB}, 1\ns_cbranch_scc1 L_silu_done" if ti else "s_nop 1")
    for tb in range(2):
        for u in range(2):
            A, T, C, R = F1A + 32 * ti + 16 * tb + 8 * u, 8, V_CS + 2 * tb, 16 + 4 * (4 * ti + 2 * tb + u)
            for k in range(4):
                e(f"v_pk_mul_f32 {vr(T+2*k,2)}, {vr(A+2*k,2)}, {vr(C,2)}")
            for k in range(8):
                e(f"v_exp_f32 v{T+k}, v{T+k}")
            for k in range(4):
                e(f"v_pk_fma_f32 {vr(T+2*k,2)}, {vr(T+2*k,2)}, {vr(C+4,2)}, {vr(C+4,2)}")
            for k in range(8):
                e(f"v_rcp_f32 v{T+k}, v{T+k}")
            for k in range(4):
                e(f"v_pk_mul_f32 {vr(T+2*k,2)}, {vr(T+2*k,2)}, {vr(A+2*k,2)}")
            for k in range(4):
                e(f"v_cvt_pk_bf16_f32 v{R+k}, v{T+2*k}, v{T+2*k+1}")
            e(f"buffer_store_dwordx4 {vr(R,4)}, v{V_L16}, {sr(SRD_A,4)}, s{S_U+4+ti} offen{off(u*2048 + tb*1024)} sc1")
e("L_silu_done:\ns_setprio 0")
stamp("epi")

ACC, F2B, F2A, TA, XR = 8, 200, 232, 72, 240
PC, RT, RL, OB = 24, 200, 232, 236
def reduce_piece(vp, vl):
    for w in range(4):
        e(f"ds_read_b32 v{RL+w}, v{vl}{off(w*128)}")
    for w in range(4):
        for h in range(2):
            e(f"ds_read_b128 {vr(RT+8*w+4*h,4)}, v{vp}{off(w*8192 + h*1024)}")
def reduce_math(extra):
    e(f"v_add_f32 v{RL}, v{RL}, v{RL+1}\nv_add_f32 v{RL+2}, v{RL+2}, v{RL+3}\nv_add_f32 v{RL}, v{RL}, v{RL+2}\nv_rcp_f32 v{RL+2}, v{RL}")
    e(f"s_waitcnt lgkmcnt({4 + extra})")
    for k in range(4):
        e(f"v_pk_add_f32 {vr(RT+2*k,2)}, {vr(RT+2*k,2)}, {vr(RT+8+2*k,2)}")
    e(f"v_mov_b32 v{RL+3}, v{RL+2}\ns_waitcnt lgkmcnt(0)")
    for k in range(4):
        e(f"v_pk_add_f32 {vr(RT+16+2*k,2)}, {vr(RT+16+2*k,2)}, {vr(RT+24+2*k,2)}")
    for k in range(4):
        e(f"v_pk_add_f32 {vr(RT+2*k,2)}, {vr(RT+2*k,2)}, {vr(RT+16+2*k,2)}")
    for k in range(4):
        e(f"v_pk_mul_f32 {vr(RT+2*k,2)}, {vr(RT+2*k,2)}, {vr(RL+2,2)}")
    for k in range(4):
        e(f"v_cvt_pk_bf16_f32 v{OB+k}, v{RT+2*k}, v{RT+2*k+1}")
duty_code = []
class dutyblock(outofline):
    def __exit__(self, *a):
        duty_code.extend(cur[0]); cur[0] = self.prev
with dutyblock():
    lo, hi = f2u(2.0**-32), f2u(2.0**48)
    e("L_duty:")
    reduce_piece(V_PART, V_LS)
    e(f"""ds_read_b32 v{V_TMP}, v{V_FLR} offset:{F_SLOW}
s_waitcnt lgkmcnt(9)
s_setprio 2
v_max3_u32 v{OB}, v{RL}, v{RL+1}, v{RL+2}
v_max_u32 v{OB}, v{OB}, v{RL+3}
v_cmp_eq_u32 vcc, -1, v{OB}
s_nop 0
s_cbranch_vccnz L_duty_no""")
    reduce_math(1)
    for k in range(4):
        e(f"v_dot2_f32_bf16 v{RL+1}, v{OB+k}, s{S_C11}, {'v%d' % (RL+1) if k else 0}")
    e(f"""v_subrev_u32 v{RL+3}, {hex(lo)}, v{RL}
v_cmp_lt_u32 vcc, {hex(hi-lo)}, v{RL+3}
v_cmp_ne_u32 {sr(S_T0+1,2)}, 0, v{V_TMP}
s_add_u32 s{S_IT}, s{S_IT}, 1
v_cmp_class_f32 {sr(S_EX,2)}, v{RL+1}, s{S_CLS}
s_or_b64 vcc, vcc, {sr(S_T0+1,2)}
s_nop 0
s_or_b64 vcc, vcc, {sr(S_EX,2)}""")
    if OPT["force_slow"]:
        e(f"s_cmp_eq_u32 s{S_IT}, {OPT['force_slow']}\ns_cselect_b64 vcc, -1, vcc")
    e(f"""s_cbranch_vccnz L_duty_bad
buffer_store_dwordx4 {vr(OB,4)}, v{V_L16}, {sr(SRD_WS,4)}, s{S_PC} offen sc1
v_mov_b32 v{V_TMP}, s{S_IT}
s_mov_b64 exec, 1
ds_max_u32 v{V_FLW}, v{V_TMP} offset:{F_DUTY}
s_mov_b64 exec, -1
L_duty_next:
v_add_u32 v{V_PART}, {L_P2 - L_P1}, v{V_PART}
v_add_u32 v{V_LS}, 2048, v{V_LS}
s_mov_b32 s{S_PC}, s{S_PC+1}
s_setprio 0
L_duty_ret:
s_setpc_b64 {sr(S_RET,2)}
L_duty_no:
s_setprio 0
s_waitcnt lgkmcnt(0)
s_cmp_eq_u32 s{S_BLK}, 0
s_cbranch_scc1 L_duty_ret
s_sub_u32 s3, s3, 1
s_cbranch_scc1 L_exit
s_cmp_eq_u32 s{S_BLK}, 1
s_cbranch_scc1 L_duty
s_sleep 6
s_branch L_duty
L_duty_bad:
ds_write_b32 v{V_FLR}, v{V_ONE} offset:{F_SLOW}
s_branch L_duty_next""")
def duty(upto, mode):
    skip = label("noduty")
    e(f"s_lshl_b32 s{S_T0}, s{S_IT}, 2\ns_add_u32 s{S_T0}, s{S_T0}, s{S_HW}\ns_mov_b32 s{S_BLK}, {mode}\ns_cmp_lt_u32 s{S_T0}, {upto}\ns_cbranch_scc0 {skip}")
    e(f"s_call_b64 {sr(S_RET,2)}, L_duty\n{skip}:")

HD = 4
e(f"""s_waitcnt vmcnt(0)
s_mov_b64 exec, 1
buffer_store_dwordx2 {vr(V_TAG,2)}, v{V_TAG+2}, {sr(SRD_WS,4)}, s{S_U+7} offen sc1
s_mov_b64 exec, -1
ds_write_b32 v{V_FLW}, v{V_ONE} offset:{F_PZ}""")
stamp("hfl")
e(f"s_cmp_eq_u32 s{S_HW}, 3\ns_cbranch_scc1 L_wostage\nL_wostaged:")
with outofline():
    e("L_wostage:")
    lds_spin(V_FLR, F_G1, V_TMP, "v_cmp_ne_u32", 1, sleep=2, prio=(2, 0))
    for u in range(16):
        hh, s_ = divmod(u, 4)
        for p in range(2):
            e(f"s_mov_b32 m0, {L_DUMP + u*2048 + p*1024}\ns_mov_b32 s{S_SOFF}, {(8*s_ + 4*p + hh)*16384}\nbuffer_load_dwordx4 v{V_S0}, {sr(SRD_C,4)}, s{S_SOFF} offen lds")
            e(f"s_mov_b32 m0, {u*2048 + p*1024}\ns_waitcnt vmcnt(40)\nbuffer_load_dwordx4 v{V_WO}, {sr(SRD_C,4)}, s{S_SOFF} offen lds")
    e(f"s_waitcnt vmcnt(0)\nds_write_b32 v{V_FLR}, v{V_ONE} offset:{F_WOS}\ns_branch L_wostaged")
lds_spin(V_FLR, F_WOS, V_TMP, "v_cmp_ne_u32", 1, sleep=2, prio=(2, 0))
for u in range(16):
    if u >= 2:
        e("s_waitcnt lgkmcnt(8)")
    for ee in range(2):
        for i in range(2):
            e(f"ds_read_b64_tr_b16 {vr(TA+8*u+4*ee+2*i,2)}, v{V_TT}{off(u*2048 + i*512 + ee*8)}")
e(f"""s_lshl_b32 s{S_T3}, s{S_J}, 1
s_add_u32 s{S_T3}, s{S_T3}, s{S_GL}
s_and_b32 s{S_T3}, s{S_T3}, 7
s_mul_i32 s{S_T3}, s{S_T3}, 11
s_lshr_b32 s{S_T3}, s{S_T3}, 2
s_mul_i32 s{S_T2}, s{S_HW}, 22
s_add_u32 s{S_T3}, s{S_T3}, s{S_T2}
s_lshl_b32 s{S_SOFF}, s{S_T3}, 14
s_lshl_b32 s{S_STEP}, s{S_T3}, 11
s_lshl_b32 s{S_U}, s{S_T2}, 14
s_add_u32 s{S_U+1}, s{S_U}, {22*16384}
s_lshl_b32 s{S_U+2}, s{S_T2}, 11
s_add_u32 s{S_U+3}, s{S_U+2}, {22*2048}
buffer_load_dwordx2 v[8:9], v{V_HF}, {sr(SRD_WS,4)}, s{S_FLB} offen sc1
s_waitcnt lgkmcnt(0)
ds_write_b32 v{V_FLW}, v{V_ONE} offset:{F_WOR}""")
stamp("wo")
lds_spin(V_FLR, F_WOR, V_TMP, "v_cmp_ne_u32", 1, sleep=1, prio=(2, 0))
vq, lq = Queue("vmcnt"), Queue("lgkmcnt")
def f2_dma(s):
    e(f"s_add_u32 m0, s{S_RING}, {(s % 6)*2048}\ns_nop 0\nbuffer_load_dwordx4 v{V_S0}, {sr(SRD_B,4)}, s{S_SOFF} offen lds")
    e(f"s_add_u32 m0, s{S_RING}, {(s % 6)*2048 + 1024 - 64}\ns_add_u32 s{S_T4}, s{S_SOFF}, 16384\nbuffer_load_dwordx4 v{V_S0}, {sr(SRD_B,4)}, s{S_SOFF} offen offset:64 lds")
    vq.issue(); vq.issue(("w", s))
    e(f"s_cmp_ge_u32 s{S_T4}, s{S_U+1}\ns_cselect_b32 s{S_SOFF}, s{S_U}, s{S_T4}")
def f2_h(s):
    for c in range(2):
        e(f"buffer_load_dwordx4 {vr(F2B+8*(s % HD)+4*c,4)}, v{V_L16}, {sr(SRD_A,4)}, s{S_STEP} offen{off(1024*c)} sc1")
        vq.issue(("h", s))
    e(f"s_add_u32 s{S_STEP}, s{S_STEP}, 2048\ns_cmp_ge_u32 s{S_STEP}, s{S_U+3}\ns_cselect_b32 s{S_STEP}, s{S_U+2}, s{S_STEP}")
def f2_reads(s, c):
    for i in range(2):
        e(f"ds_read_b64_tr_b16 {vr(F2A+8*(s % 2)+4*c+2*i,2)}, v{V_TR2}{off((s % 6)*2048 + c*1024 + i*512)}")
        lq.issue(("r", s))
for s in range(6):
    f2_dma(s)
duty(4, 0)
e(f"s_waitcnt vmcnt(12)\ns_setprio 2\nv_cmp_ne_u64 vcc, {sr(S_TAG,2)}, v[8:9]\ns_setprio 0\ns_cbranch_vccnz L_hslow\nL_hok:")
with outofline():
    e("L_hslow:")
    glb_spin(V_HF, f"s{S_FLB}", 8, sleep=OPT["hsl"], prio=(2, 0))
    e("s_branch L_hok")
stamp("hok")
if OPT["hp2"]:
    e("s_setprio 2")
for s in range(HD):
    f2_h(s)
def f2_read1(k):
    s, c, i = k // 4, (k // 2) % 2, k % 2
    if k % 4 == 0:
        vq.wait(("w", s))
    e(f"ds_read_b64_tr_b16 {vr(F2A+8*(s % 2)+4*c+2*i,2)}, v{V_TR2}{off((s % 6)*2048 + c*1024 + i*512)}")
    lq.issue(("r", s, c))
G, nr, nh, nd = OPT["g2"], 0, HD, 6
while nr < 8:
    f2_read1(nr); nr += 1
for m in range(88):
    s, u = divmod(m, 4)
    c, tb = u >> 1, u & 1
    if m % G == 0:
        last = min(m + G, 88) - 1
        ls, lc = last // 4, (last % 4) >> 1
        e(f"s_waitcnt vmcnt({vq.left(('h', ls))}) lgkmcnt({lq.left(('r', ls, lc))})")
    mf32(ACC + 16 * c + 32 * tb, F2A + 8 * (s % 2) + 4 * c, F2B + 8 * (s % HD) + 4 * tb, ACC + 16 * c + 32 * tb if s else None)
    end = m % G == G - 1
    n = 0
    while nr < 88 and nr // 2 - 4 <= (m - 1) // 2 and (end or n < 2) and (end or nr % 4):
        f2_read1(nr); nr += 1; n += 1
    if end:
        while nh < 22 and nh - HD <= (m - 3) // 4:
            f2_h(nh); nh += 1
        while nd < 22 and nd - 6 <= (m - 2) // 4:
            f2_dma(nd); nd += 1
stamp("f2")

SLOT = [0, 1, 2, 0, 0, 1, 2, 0]
def piece_loads(t):
    for s_ in range(4):
        e(f"buffer_load_dwordx4 {vr(PC+16*SLOT[t]+4*s_,4)}, v{V_TB}, {sr(SRD_WS,4)}, s{(S_OB, S_U)[t // 4]+s_} offen{off((t % 4)*1024)} sc1")
def wait_duty(mask, sleep):
    top = label("wd")
    e(f"""{top}:
ds_read_b32 v{RL}, v{V_FLR} offset:{F_DUTY}
ds_read_b32 v{RL+1}, v{V_FLR} offset:{F_SLOW}
s_waitcnt lgkmcnt(0)
s_setprio 2
v_lshl_or_b32 v{RL}, v{RL+1}, 1, v{RL}
v_cmp_gt_u32 vcc, 2, v{RL}
s_setprio 0
s_nop 0
s_mov_b32 s{S_T5}, vcc_lo
s_and_b64 vcc, vcc, {mask}""")
    if mask:
        retry(top, sleep)
def consume(t, younger, sleep):
    chk, again = label("chk"), label("again")
    if t == 7 and OPT["inl"]:
        e(f"s_branch {chk}\n{again}:\ns_sub_u32 s3, s3, 1\ns_cbranch_scc1 L_exit")
        piece_loads(t)
    e(f"{chk}:")
    for n in range(4):
        d = PC + 16 * SLOT[t] + 4 * n
        e(f"s_waitcnt vmcnt({younger + 3 - n})")
        if n == 0: e("s_setprio 2")
        e(f"v_max3_u32 v{V_TMP}, v{d}, v{d+3}, v{V_TMP}" if n else f"v_max_u32 v{V_TMP}, v{d}, v{d+3}")
    e(f"v_cmp_eq_u32 vcc, -1, v{V_TMP}\ns_setprio 0\ns_cbranch_vccnz {again}")
    with outofline():
      if not (t == 7 and OPT["inl"]):
        e(f"{again}:\ns_sub_u32 s3, s3, 1\ns_cbranch_scc1 L_exit")
        if sleep:
            e(f"s_sleep {sleep}")
        piece_loads(t)
        if younger:
            e("s_waitcnt vmcnt(0)")
        e(f"s_branch {chk}")
    for s_ in range(4):
        for ee in range(2):
            c = ACC + 8 * (t // 4) + 4 * ee
            mf16(c, TA + 32 * (t % 4) + 8 * s_ + 4 * ee, PC + 16 * SLOT[t] + 4 * s_, c)
def store_out(tb):
    e("s_nop 5\ns_setprio 2")
    for k in range(4):
        e(f"v_cvt_pk_bf16_f32 v{XR+4*tb+k}, v{ACC+8*tb+2*k}, v{ACC+8*tb+2*k+1}")
    e(f"buffer_store_dwordx4 {vr(XR+4*tb,4)}, v{V_OUT}, {sr(SRD_OUT,4)}, s{S_XO+tb} offen{' sc1' if OPT['osc'] >> tb & 1 else ''}")

duty(4, 2)
if OPT["dtry"] & 1:
    duty(7, 0)
e("s_nop 7")
for tb in range(2):
    e(f"buffer_load_dwordx4 {vr(XR+4*tb,4)}, v{V_OUT}, {sr(SRD_X,4)}, s{S_XO+tb} offen")
for tb in range(2):
    if tb:
        e("s_waitcnt lgkmcnt(6)")
    for ct in range(2):
        for a in range(4):
            e(f"ds_write_b128 v{(V_DW0, V_DW1)[tb]}, {vr(ACC+32*tb+16*ct+4*a,4)}{off(ct*4096 + a*1024)}")
e(f"ds_write_b32 v{V_FLW}, v{V_ONE} offset:{F_D0}\ns_waitcnt lgkmcnt(0)")
for k in range(4):
    e(f"s_add_u32 s{S_U+k}, s{S_OB+k}, 32768")
for t in range(3):
    piece_loads(t)
lds_spin(V_FLR, F_D0, RL, "v_cmp_ne_u32", 1, sleep=1, prio=(2, 0))
def exchange_sum(tb):
    for w in range(4):
        for h in range(2):
            e(f"ds_read_b128 {vr(RT+8*w+4*h,4)}, v{(V_DR0, V_DR1)[tb]}{off(w*(8192, H_STR)[tb] + h*512)}")
    e("s_waitcnt vmcnt(12) lgkmcnt(4)\ns_setprio 2")
    for k in range(4):
        e(f"v_pk_add_f32 {vr(RT+2*k,2)}, {vr(RT+2*k,2)}, {vr(RT+8+2*k,2)}")
    e("s_waitcnt lgkmcnt(0)")
    for k in range(4):
        e(f"v_pk_add_f32 {vr(RT+16+2*k,2)}, {vr(RT+16+2*k,2)}, {vr(RT+24+2*k,2)}")
    for k in range(4):
        e(f"v_pk_add_f32 {vr(RT+2*k,2)}, {vr(RT+2*k,2)}, {vr(RT+16+2*k,2)}")
    for k in range(4):
        e(f"v_dot2_f32_bf16 v{ACC+8*tb+2*k}, v{XR+4*tb+k}, s{S_C10}, v{RT+2*k}")
        e(f"v_dot2_f32_bf16 v{ACC+8*tb+2*k+1}, v{XR+4*tb+k}, s{S_C01}, v{RT+2*k+1}")
    e("s_setprio 0")
exchange_sum(0)
if not OPT["defer"]:
    exchange_sum(1)
stamp("d0")
if OPT["dtry"] & 2:
    duty(7, 0)
consume(0, 8, OPT["csl"])
piece_loads(3)
consume(1, 8, OPT["csl"])
consume(2, 4, OPT["csl"])
wait_duty(0, 0)
e(f"s_bitcmp1_b32 s{S_T5}, s{S_HW}\ns_cselect_b32 s{S_IT}, s{S_IT}, 2")
consume(3, 0, OPT["csl"])
store_out(0)
e("s_setprio 0")
stamp("tb0")
duty(7, 2)
wait_duty(7, 4)
piece_loads(4)
piece_loads(5)
if OPT["defer"]:
    stamp("pre")
    wait_duty(8, 2)
    piece_loads(6)
    exchange_sum(1)
    consume(4, 8, 0)
    consume(5, 4, 0)
    if OPT["t7dl"]:
        e(f"s_sleep {OPT['t7dl']}")
    piece_loads(7)
else:
    e(f"s_bitcmp1_b32 s{S_T5}, 3\ns_cbranch_scc1 L_no6")
    piece_loads(6)
    e("L_no6:")
    consume(4, 4, OPT["csl"])
    e(f"s_bitcmp1_b32 s{S_T5}, 3\ns_cbranch_scc1 L_no7")
    piece_loads(7)
    e("L_no7:")
    consume(5, 0, OPT["csl"])
    stamp("pre")
    e(f"s_bitcmp1_b32 s{S_T5}, 3\ns_cbranch_scc0 L_have7")
    wait_duty(8, 2)
    piece_loads(6)
    if OPT["t7dl"]:
        e(f"s_sleep {OPT['t7dl']}")
    piece_loads(7)
    e("L_have7:")
consume(6, 4, 0)
consume(7, 0, OPT["t7sl"])
stamp("fbar")
store_out(1)
e("s_branch L_fin" if OPT["stamps"] or OPT["hold"] != -1 else "s_endpgm")

S_KO = 40
def a_setup():
    e(f"""v_lshlrev_b32 v1, 4, v0
v_and_b32 v4, 15, v0
v_lshlrev_b32 v4, 4, v4
v_lshrrev_b32 v6, 5, v0
v_lshl_add_u32 v4, v6, 8, v4
v_bfe_u32 v6, v0, 4, 1
v_lshl_add_u32 v2, v6, 9, v4
s_lshl_b32 s{S_T2}, s{S_W}, 13
s_add_u32 s{S_T2}, s{S_T2}, {L_P1}
v_add_u32 v5, s{S_T2}, v1
v_and_b32 v6, 31, v0
s_lshl_b32 s{S_T2}, s{S_W}, 7
s_add_u32 s{S_T2}, s{S_T2}, {L_LS}
v_lshl_add_u32 v6, v6, 2, s{S_T2}
v_mov_b32 v7, v{V_FLR}
v_add_u32 v252, {L_Q}, v1
s_lshl_b32 s{S_T0}, s{S_W}, 15
s_mov_b32 s{S_EX}, 0x0000ffff
s_mov_b32 s{S_EX+1}, 0x0000ffff
s_lshl_b32 s{S_T2}, s{S_W}, 11
s_add_u32 s{S_XO}, s{S_T2}, {L_P2}
s_mul_i32 s{S_T2}, s{S_W}, 384
s_add_u32 s{S_XO+1}, s{S_T2}, 2048
s_lshl4_add_u32 s{S_T2}, s{S_G}, s{S_J}
s_lshl2_add_u32 s{S_T2}, s{S_T2}, s{S_W}
s_lshl_b32 s{S_T2}, s{S_T2}, 10
s_add_u32 s{S_PC}, s{S_T2}, {hex(WS_O)}
s_add_u32 s{S_PC+1}, s{S_PC}, 32768
s_movk_i32 s{S_CLS}, 0x207
s_mov_b32 s{S_TA}, 0x07060302""")
    for b in range(16):
        e(f"s_add_u32 s{S_T2}, s{S_C}, {b}\ns_and_b32 s{S_T2}, s{S_T2}, 15\ns_lshl_b32 s{S_T2}, s{S_T2}, 11\ns_add_u32 s{S_KO+b}, s{S_T2}, s{S_T0}")
e(".p2align 6\nL_afront:")
stamp("karg")
if OPT["eb"]:
    e("s_barrier")
common_setup()
e(f"""s_lshl_b32 s{S_T0}, s{S_W}, 3
s_xor_b32 s{S_T0}, s{S_T0}, 8
s_or_b32 s{S_T0}, s{S_T0}, s2
s_cmp_lt_u32 s{S_T0}, 8
s_cbranch_scc0 L_notag
s_memrealtime {sr(S_T0+1,2)}
v_mov_b32 v46, 0
v_mov_b32 v47, 0
s_waitcnt lgkmcnt(0)
s_or_b32 s{S_T0+1}, s{S_T0+1}, 1
v_mov_b32 v44, s{S_T0+1}
v_mov_b32 v45, s{S_T0+2}
s_mov_b64 exec, 1
buffer_atomic_cmpswap_x2 v[44:47], v46, {sr(SRD_DBG,4)}, 0 offen sc1
s_mov_b64 exec, -1
L_notag:
v_lshlrev_b32 v3, 4, v0
v_mov_b32 v48, -1
v_mov_b32 v49, -1
v_mov_b32 v50, -1
v_mov_b32 v51, -1
s_lshl_b32 s{S_T0}, s{S_W}, 10
s_add_u32 s{S_T0}, s{S_T0}, {L_LS}
v_add_u32 v6, s{S_T0}, v3
ds_write_b128 v6, v[48:51]
v_mov_b32 v52, 0""")
if not OPT["eb"]:
    e(f"v_lshlrev_b32 v6, 2, v0\nv_add_u32 v6, {L_FLG}, v6\nds_write2st64_b32 v6, v52, v52 offset1:1")
unit_addr(0, 2)
unit_addr(1, 3)
e(f"s_cmp_eq_u32 s{S_W}, 0\ns_cbranch_scc1 L_kv")
def v_init():
    e(f"""v_mov_b32 v42, 0
s_mov_b32 exec_lo, 0x00110000
s_mov_b32 exec_hi, 0x00110000
v_mov_b32 v42, s{S_C11}
s_mov_b64 exec, -1
v_mov_b32 v43, v42""")
    for i in range(0, 128, 2):
        e(f"v_mov_b64 {vr(VV+i,2)}, v[42:43]")
v_init()
e("v_mov_b32 v226, v1")
a_setup()
srd(SRD_OUT, P_WQ, 512 * 1024)
e(f"""v_lshrrev_b32 v224, 3, v0
v_lshlrev_b32 v224, 10, v224
v_and_b32 v225, 7, v0
v_lshl_add_u32 v224, v225, 6, v224
s_lshl1_add_u32 s{S_T0}, s{S_C}, s{S_W}
s_sub_u32 s{S_T0}, s{S_T0}, 2
s_lshl_b32 s{S_T0}, s{S_T0}, 13
s_and_b32 s{S_T1}, s{S_J}, 4
s_lshl_b32 s{S_T1}, s{S_T1}, 7
s_add_u32 s{S_T0}, s{S_T0}, s{S_T1}
s_cmp_eq_u32 s{S_W}, 1
s_cselect_b32 s{S_T0}, 0x1000000, s{S_T0}""")
stamp("aset")
if not OPT["eb"]:
    e("s_waitcnt lgkmcnt(0)\ns_barrier")
if OPT["pf_wq"] == 4:
    e(f"buffer_load_dword v225, v224, {sr(SRD_OUT,4)}, s{S_T0} offen")
unit_loads(8, 0, 226)
if OPT["pf_wq"] == 5:
    e(f"buffer_load_dword v225, v224, {sr(SRD_OUT,4)}, s{S_T0} offen")
unit_loads(24, 1, 226)
if OPT["pf_wq"] == 1:
    e(f"buffer_load_dword v225, v224, {sr(SRD_OUT,4)}, s{S_T0} offen")
stamp("xis")
ln_centre([8, 24], [4 + (OPT["pf_wq"] in (1, 5)), 0 + (OPT["pf_wq"] == 1)], V_WR, 56, 58, 60)
ln_stats(2, V_ST, 56, 58)
e(f"ds_write_b32 v{V_FLW}, v{V_ONE} offset:{F_LNA}")
stamp("lnB")
def kv_poll():
    e(f"""v_lshrrev_b32 v3, 3, v0
v_lshlrev_b32 v3, 11, v3
v_and_b32 v8, 7, v0
v_lshl_add_u32 v3, v8, {OPT['fsh']}, v3""")
    for k in range(4):
        e(f"s_mov_b32 s{S_U+k}, {hex(WS_FL + k*16384)}")
    if OPT["warm"]:
        e(f"s_lshl_b32 s{S_T2}, s{S_C}, 12\nv_lshl_add_u32 v17, v0, 6, s{S_T2}")
    if OPT["pw"]:
        lds_spin(7, F_KVS, 8, "v_cmp_ne_u32", 1, sleep=1)
        read_tag(10, 8)
    if OPT["pgate"]:
        lds_spin(7, F_WQ, 8, "v_cmp_ne_u32", 1)
    if OPT["pdl"]:
        e(f"s_sleep {OPT['pdl']}")
    e("L_kvpoll:")
    for k in range(4):
        e(f"buffer_load_dwordx2 {vr(8+2*k,2)}, v3, {sr(SRD_WS,4)}, s{S_U+k} offen sc1")
    if OPT["warm"]:
        e(f"s_mov_b64 {sr(S_T0+1,2)}, exec\ns_mov_b64 exec, -1\nbuffer_load_dword v16, v17, {sr(SRD_WS,4)}, 0 offen sc1\ns_mov_b64 exec, {sr(S_T0+1,2)}")
    for k in range(4):
        e(f"s_waitcnt vmcnt({3-k+OPT['warm']})\nv_cmp_ne_u64 {'vcc' if k == 0 else sr(S_U+2+2*k,2)}, {sr(S_TAG,2)}, {vr(8+2*k,2)}")
    e(f"s_or_b64 vcc, vcc, {sr(S_U+4,2)}\ns_or_b64 vcc, vcc, {sr(S_U+6,2)}\ns_or_b64 vcc, vcc, {sr(S_U+8,2)}")
    retry("L_kvpoll", OPT["psl"], (lambda: e("s_mov_b64 exec, vcc")) if OPT["mask"] else None)
    e(f"s_mov_b64 exec, -1\nds_write_b32 v7, v255 offset:{F_KVOK}")
if OPT["pw"]:
    e(f"s_cmp_eq_u32 s{S_W}, {OPT['pw']}\ns_cbranch_scc0 L_kvwait")
    kv_poll()
    e("s_branch L_kvok")
else:
    e("s_branch L_kvwait")
WF, XF, KA = 72, 136, 208
e("L_kv:\ns_setprio 3")
e(f"""v_lshlrev_b32 v43, 3, v7
v_bfe_u32 v42, v0, 2, 2
v_lshl_add_u32 v43, v42, 5, v43
v_lshrrev_b32 v42, 4, v0
v_lshl_add_u32 v43, v42, 8, v43
v_add_u32 v43, {L_WKV}, v43
v_mul_u32_u24 v44, {X_STR}, v42
v_lshl_add_u32 v44, v5, 4, v44
s_lshl_b32 s{S_T0}, s{S_T3}, 8
s_add_u32 s{S_T0}, s{S_T0}, {L_X}
v_add_u32 v44, s{S_T0}, v44
s_lshl_b32 s{S_T0}, s{S_T3}, 6
s_add_u32 s{S_T0}, s{S_T0}, {L_RSTD}
v_lshl_add_u32 v45, v5, 2, s{S_T0}
v_lshl_add_u32 v46, v42, 4, s{S_T0}
v_mov_b32 v47, {L_FLG + F_TAG}
s_lshr_b32 s{S_T1}, s{S_T3}, 1
s_lshl1_add_u32 s{S_T0}, s{S_G}, s{S_T1}
s_lshr_b32 s{S_T1}, s{S_J}, 2
s_lshl1_add_u32 s{S_T0}, s{S_T0}, s{S_T1}
s_and_b32 s{S_T1}, s{S_T3}, 1
s_lshl1_add_u32 s{S_T0}, s{S_T0}, s{S_T1}
s_lshl_b32 s{S_T5}, s{S_T0}, 9
s_lshl_b32 s{S_T4}, s{S_J}, {OPT['fsh']}
s_add_u32 s{S_T4}, s{S_T4}, s{S_FLB}""")
if not OPT["eb"]:
    e("s_waitcnt lgkmcnt(0)\ns_barrier")
if not OPT["x0late"]:
    unit_loads(8, 0)
    unit_loads(24, 1)
for s in range(16):
    if s % 4 == 0:
        e(f"s_waitcnt vmcnt({(12 if OPT['x0late'] else 20) - s}) lgkmcnt(6)")
        if s == 0: stamp("wkv")
    for i in range(2):
        e(f"ds_read_b64_tr_b16 {vr(WF+4*s+2*i,2)}, v43{off(s*1024 + i*128)}")
if OPT["x0late"]:
    unit_loads(8, 0)
    unit_loads(24, 1)
stamp("trd")
e(f"s_bitcmp1_b32 s{S_J}, 2\ns_cbranch_scc1 L_kv_v")
def kv_tile(isv):
    lq = Queue("lgkmcnt")
    rs, ok = label("rs"), label("rsok")
    rd = f"ds_read_b32 v53, v{V_FLR} offset:{F_LN}\n" + ("ds_read_b128 v[68:71], v46" if isv else "ds_read_b32 v68, v45")
    top = label("lnp")
    e(f"{top}:\ns_sub_u32 s3, s3, 1\ns_cbranch_scc1 L_exit\nds_read_b32 v53, v{V_FLR} offset:{F_LNP}\ns_waitcnt lgkmcnt(0)\nv_cmp_ne_u32 vcc, 1, v53\ns_nop 0\ns_cbranch_vccnz {top}")
    stamp("bar1")
    def xr(s):
        e(f"ds_read_b128 {vr(XF+4*s,4)}, v44{off(s*4*X_STR)}")
        lq.issue(s)
    for s in range(8):
        xr(s)
    for s in range(16):
        if s + 8 < 16:
            xr(s + 8)
        elif s == 12:
            e(rd)
            lq.issue(); lq.issue()
        lq.wait(s)
        if isv:
            mf16(KA, XF + 4 * s, WF + 4 * s, KA if s else None)
        else:
            mf16(KA, WF + 4 * s, XF + 4 * s, KA if s else None)
    e(f"{ok}:\ns_waitcnt lgkmcnt(0)\nv_cmp_ne_u32 vcc, 1, v53\ns_nop 4\ns_cbranch_vccnz {rs}")
    with outofline():
        e(f"{rs}:\ns_sub_u32 s3, s3, 1\ns_cbranch_scc1 L_exit\n{rd}\ns_branch {ok}")
    for k in range(4):
        e(f"v_mul_f32 v{KA+k}, v{KA+k}, v{68 + (k if isv else 0)}")
    e(f"""v_cvt_pk_bf16_f32 v48, v{KA}, v{KA+1}
v_cvt_pk_bf16_f32 v49, v{KA+2}, v{KA+3}
s_nop 1
v_permlane32_swap_b32 v48, v50
v_permlane32_swap_b32 v49, v51
s_mov_b32 exec_hi, 0
buffer_store_dwordx4 v[48:51], v3, {sr(SRD_WS,4)}, s{S_T5} offen sc1
s_mov_b32 exec_hi, -1""")
kv_tile(0)
e("s_branch L_kv_done\nL_kv_v:")
kv_tile(1)
e("L_kv_done:")
stamp("kvst")
e(f"buffer_load_dwordx2 v[54:55], v52, {sr(SRD_DBG,4)}, 0 offen sc1")
e(f"ds_write_b32 v{V_FLR}, v{V_ONE} offset:{F_KVST}\ns_setprio {OPT['p0']}")
ln_centre([8], [6], V_WR, 56, 58, 60)
v_init()
e(f"""L_tagchk:
s_waitcnt vmcnt(0)
v_cmp_eq_u32 vcc, 0, v54
s_nop 0
s_cbranch_vccnz L_tag
s_mov_b64 exec, 1
buffer_store_dwordx2 v[54:55], v52, {sr(SRD_WS,4)}, s{S_T4} offen sc1
s_mov_b64 exec, -1""")
with outofline():
    e(f"L_tag:\ns_sub_u32 s3, s3, 1\ns_cbranch_scc1 L_exit\ns_sleep 2\nbuffer_load_dwordx2 v[54:55], v52, {sr(SRD_DBG,4)}, 0 offen sc1\ns_branch L_tagchk")
e(f"ds_write_b64 v47, v[54:55]\nds_write_b32 v{V_FLR}, v{V_ONE} offset:{F_KVS}")
stamp("kvfl")
ln_centre([24], [1], V_WR + 1, 57, 59, 60)
ln_stats(2, V_ST, 56, 58)
e(f"ds_write_b32 v{V_FLW}, v{V_ONE} offset:{F_LNA}")
stamp("lnB")
e(f"""v_readfirstlane_b32 s{S_TAG}, v54
v_readfirstlane_b32 s{S_TAG+1}, v55
s_setprio 0""")
a_setup()
if not OPT["pw"]:
    kv_poll()
    e("s_branch L_kvok")
e(f"L_kvwait:\ns_sub_u32 s3, s3, 1\ns_cbranch_scc1 L_exit\nds_read_b32 v8, v7 offset:{F_KVOK}\ns_waitcnt lgkmcnt(0)\nv_cmp_ne_u32 vcc, 1, v8\ns_nop 0\ns_cbranch_vccnz L_kvwait\nL_kvok:")
stamp("flags")
if OPT["pfa"]:
    srd(SRD_OUT, P_W1, 512 * 2752)
    e(f"""s_xor_b32 s{S_T2}, s{S_J}, {4 * OPT['flip']}
s_cmp_lt_u32 s{S_T2}, 4
s_cselect_b32 s{S_T2}, 26, 15
s_cselect_b32 s{S_T3}, 0, {27*64}
v_lshrrev_b32 v{VO}, 5, v0
v_mul_u32_u24 v{VO}, 2752, v{VO}
v_and_b32 v{VO+1}, 31, v0
v_min_u32 v{VO+1}, s{S_T2}, v{VO+1}
v_lshl_add_u32 v{VO}, v{VO+1}, 6, v{VO}
s_lshl2_add_u32 s{S_T2}, s{S_C}, s{S_W}
s_mul_i32 s{S_T2}, s{S_T2}, {4*2752}
s_add_u32 s{S_U+4}, s{S_T2}, s{S_T3}
s_add_u32 s{S_U+5}, s{S_U+4}, {2*2752}""")
vq = Queue("vmcnt")
NB0 = OPT["nb0"]
def k_load(b):
    vq.issue(("K", b))
    return [f"buffer_load_dwordx4 {vr(VK+4*b,4)}, v2, {sr(SRD_WS,4)}, s{S_KO+b} offen sc1"]
def v_load(b):
    vq.issue(); vq.issue(("V", b))
    return ([f"s_mov_b64 exec, {sr(S_EX,2)}"]
            + [f"buffer_load_dwordx4 {vr(VV+8*b+4*i,4)}, v4, {sr(SRD_WS,4)}, s{S_KO+b} offen{off(1024+512*i)} sc1" for i in range(2)]
            + ["s_mov_b64 exec, -1"])
for b in range(NB0):
    e("\n".join(k_load(b) + v_load(b)))
if OPT["pfa"]:
    for k in range(2):
        e(f"buffer_load_dword v254, v{VO}, {sr(SRD_OUT,4)}, s{S_U+4+k} offen")
        vq.issue()
if NB0 == 16:
    e(f"ds_write_b32 v253, v255 offset:{F_KVIS}")
stamp("kvis")
lds_spin(7, F_Q, 3, "v_cmp_ne_u32", 1)
e(f"ds_read_b128 {vr(VQ,4)}, v252\ns_setprio 1\ns_waitcnt vmcnt({vq.left(('K', 0))}) lgkmcnt(0)")
stamp("go")
mf32(SA, VK, VQ)
e("s_nop 11")

ORDER = "e0 d7 a e1 e2 e3 b e4 e5 c0 c1 Q e6 e7 c2 e8 c3 e9 e10 e11 c4 e12 e13 c5 e14 e15 c6".split()
def pack(d, a):
    e(f"v_perm_b32 v{d}, v{a+1}, v{a}, s{S_TA}" if OPT["perm"] else f"v_cvt_pk_bf16_f32 v{d}, v{a}, v{a+1}")
def flush(t):
    o = (t % 4) * 2048 + (t // 4) * (L_P2 - L_P1)
    return [f"ds_write_b128 v5, {vr(VO,4)}{off(o)}", f"ds_write_b128 v5, {vr(VO+4,4)}{off(o+1024)}",
            f"ds_write_b32 v6, v{VO+8}{off(t*512)}"]
for i in range(128):
    t, b = divmod(i, 16)
    S, T = (SA, SB) if i % 2 == 0 else (SB, SA)
    pb = (b - 1) % 16
    after = {}
    if t == 0:
        if b + NB0 < 16:
            after["a"] = k_load(b + NB0)
        after["b"] = [f"s_waitcnt vmcnt({min(vq.left(('K', b+1)), vq.left(('V', b))) if b < 15 else 0})"]
        if b + NB0 < 16:
            after["Q"] = v_load(b + NB0)
        if b + NB0 == 16 - OPT["kvlead"] and NB0 < 16:
            after["e9"] = [f"ds_write_b32 v253, v255 offset:{F_KVIS}"]
    if b == 14 and t < 7:
        after["Q"] = [f"ds_read_b128 {vr(VQ,4)}, v252{off((t+1)*1024)}"]
    if b == 15 and t < 7:
        after["a"] = ["s_waitcnt lgkmcnt(0)"]
    if b == 0 and t > 0:
        fl = flush(t - 1)
        after["e11"], after["e12"], after["e14"] = [fl[0]], [fl[1]], [fl[2]]
    if i == 126:
        after["a"] = [f"ds_read_b32 v3, v253 offset:{F_DUTY}"]
    if t == 4 and b == 6:
        after["a"] = [f"ds_read_b32 v3, v7 offset:{F_G1}"]
    if t == 4 and b == 7:
        after["a"] = ["s_waitcnt lgkmcnt(0)"]
        after["e7"] = ["v_cmp_ne_u32 vcc, 1, v3"]
        after["e8"] = ["s_cbranch_vccnz L_g1slow", "L_g1ok:"]
    for tok in ORDER:
        k = tok[0]
        if k == "e":
            n = int(tok[1:]); e(f"v_exp_f32 v{S+n}, v{S+n}")
        elif k == "c":
            n = int(tok[1:]); pack(S+(n//4)*8+n%4, S+2*n)
        elif k == "d":
            if i: pack(T+11, T+14)
        elif k == "a":
            if i: mf32(VO, VV + 8 * pb, T, None if b == 1 else VO)
        elif k == "b":
            if i: mf32(VO, VV + 8 * pb + 4, T + 8, VO)
        elif k == "Q":
            if i < 127:
                mf32(T, VK + 4 * ((b + 1) % 16), VQ)
        for x in after.get(tok, []):
            e(x)
    if b == 15:
        stamp(f"p{t}")
with outofline():
    e("L_g1slow:")
    lds_spin(7, F_G1, 3, "v_cmp_ne_u32", 1, sleep=1)
    e("s_branch L_g1ok")
pack(SB+11, SB+14)
mf32(VO, VV + 8 * 15, SB, VO)
e("s_nop 0")
mf32(VO, VV + 8 * 15 + 4, SB + 8, VO)
e(f"""s_waitcnt lgkmcnt(0)
v_readfirstlane_b32 s{S_IT}, v3
v_mov_b32 v{V_L16}, v1
v_mov_b32 v{V_FLR}, v7
v_add_u32 v{V_PART}, s{S_XO}, v1
v_add_u32 v{V_LS}, s{S_XO+1}, v6
s_getpc_b64 {sr(S_RET,2)}
L_apc:
s_add_u32 s{S_RET}, s{S_RET}, L_aduty_done-L_apc
s_addc_u32 s{S_RET+1}, s{S_RET+1}, 0
s_mov_b32 s{S_BLK}, 1
s_cmp_eq_u32 s{S_IT}, 1
s_nop 0""")
for x in flush(7):
    e(x)
stamp("fbar")
e(f"""s_cbranch_scc0 L_aduty
s_mov_b32 s{S_PC}, s{S_PC+1}""")
cur[0].extend(duty_code)
e("L_aduty_done:")
with outofline():
    e(f"L_aduty:\ns_cmp_eq_u32 s{S_IT}, 0\ns_cbranch_scc0 L_aduty_done")
    lds_spin(7, F_PZ, 3, "v_cmp_ne_u32", 1, sleep=4)
    e(f"""v_subrev_u32 v{V_PART}, {L_P2 - L_P1}, v{V_PART}
v_subrev_u32 v{V_LS}, 2048, v{V_LS}
s_call_b64 {sr(S_RET,2)}, L_duty
s_call_b64 {sr(S_RET,2)}, L_duty
s_branch L_aduty_done""")
stamp("adone")
e(f"""s_setprio 0
L_status:
s_sleep 4
ds_read_b32 v3, v7 offset:{F_DUTY}
ds_read_b32 v4, v7 offset:{F_SLOW}
s_waitcnt lgkmcnt(0)
v_cmp_ne_u32 vcc, 0, v4
s_nop 0
s_cbranch_vccnz L_slow
v_cmp_ne_u32 vcc, 2, v3
s_nop 0""")
retry("L_status", 0)
e("L_fin:")
if OPT["hold"] == "end":
    e("s_waitcnt vmcnt(0)")
    if OPT["amp"]:
        stamp("fin")
        e(f"s_sub_u32 s{S_ST0+8}, s{S_ST0+8}, s{S_ST0+9}\ns_mul_i32 s{S_ST0+8}, s{S_ST0+8}, 10\nL_amp:\ns_memrealtime {sr(S_STMP,2)}\ns_waitcnt lgkmcnt(0)\ns_sub_u32 s{S_STMP}, s{S_STMP}, s{S_ST0+9}\ns_sub_u32 s{S_STMP}, s{S_STMP}, {OPT['holdT']}\ns_cmp_lt_i32 s{S_STMP}, s{S_ST0+8}\ns_cbranch_scc1 L_amp")
    stamp("end")
if OPT["stamps"]:
    e(f"s_waitcnt vmcnt(0)\ns_memtime {sr(S_STMP,2)}\ns_waitcnt lgkmcnt(0)")
    e(f"s_lshl_b32 s{S_T0}, s{S_G}, 3\ns_add_u32 s{S_T0}, s{S_T0}, s{S_J}\ns_lshl_b32 s{S_T0}, s{S_T0}, 3\ns_add_u32 s{S_T0}, s{S_T0}, s{S_W}\ns_lshl_b32 s{S_T0}, s{S_T0}, 6\ns_add_u32 s{S_T0}, s{S_T0}, {hex(WS_ST)}")
    for k in range(10):
        e(f"v_mov_b32 v{8+k}, s{S_ST0+k}")
    e(f"v_mov_b32 v18, s{S_STMP}\ns_memrealtime {sr(S_STMP,2)}\ns_waitcnt lgkmcnt(0)\nv_mov_b32 v19, s{S_STMP}\nv_mov_b32 v1, 0\ns_mov_b64 exec, 1")
    for k in range(3):
        e(f"buffer_store_dwordx4 {vr(8+4*k,4)}, v1, {sr(SRD_WS,4)}, s{S_T0} offen{off(16*k)}")
e("L_exit:\ns_endpgm")
out += tail_code
tail_code.clear()
e("L_code_end:")

def wave_sync():
    e(f"s_add_u32 s{S_T4}, s{S_T4}, 1\nv_mov_b32 v3, s{S_T4}\nds_write_b32 v253, v3 offset:{F_AS}")
    lds_spin(7, F_AS, 3, "v_cmp_gt_u32", f"s{S_T4}", sleep=1)
e("L_slow:")
lds_spin(7, F_PZ, 3, "v_cmp_ne_u32", 1, sleep=4)
e(f"""s_lshl_b32 s{S_T0}, s{S_W}, 8
s_add_u32 s{S_T0}, s{S_T0}, {L_MB}
v_lshl_add_u32 v2, v0, 2, s{S_T0}
v_and_b32 v4, 31, v0
v_lshlrev_b32 v4, 2, v4
v_add_u32 v4, {L_MB}, v4
v_add_u32 v6, {L_SL - L_LS}, v6
v_add_u32 v254, {L_P1}, v1
s_lshl_b32 s{S_T2}, s{S_G}, 16
s_lshl_b32 s{S_T3}, s{S_J}, 12
s_add_u32 s{S_T2}, s{S_T2}, s{S_T3}
s_add_u32 s{S_T2}, s{S_T2}, {hex(WS_O)}
s_mov_b32 s{S_IT}, 0
s_mov_b32 s{S_T4}, 0
L_slow_loop:
ds_read_b128 {vr(VQ,4)}, v252
v_mov_b32 v3, 0xff800000
s_waitcnt lgkmcnt(0)
v_add_u32 v252, 1024, v252""")
for b in range(16):
    mf32(SA, VK + 4 * b, VQ)
    e("s_nop 11")
    for k in range(8):
        e(f"v_max3_f32 v3, v3, v{SA+2*k}, v{SA+2*k+1}")
e("ds_write_b32 v2, v3")
wave_sync()
for k in range(8):
    e(f"ds_read_b32 v{SA+k}, v4{off(128*k)}")
e("s_waitcnt lgkmcnt(0)")
e(f"v_max3_f32 v3, v{SA}, v{SA+1}, v{SA+2}\nv_max3_f32 v3, v3, v{SA+3}, v{SA+4}\nv_max3_f32 v3, v3, v{SA+5}, v{SA+6}\nv_max_f32 v3, v3, v{SA+7}")
for k in range(16):
    e(f"v_sub_f32 v{SB+k}, 0, v3")
e("s_nop 1")
for b in range(16):
    mf32(SA, VK + 4 * b, VQ, SB)
    e("s_nop 11")
    for k in range(16):
        e(f"v_exp_f32 v{SA+k}, v{SA+k}")
    for n in range(8):
        e(f"v_cvt_pk_bf16_f32 v{SA+(n//4)*8+n%4}, v{SA+2*n}, v{SA+2*n+1}")
    e("s_nop 1")
    mf32(VO, VV + 8 * b, SA, VO if b else None)
    mf32(VO, VV + 8 * b + 4, SA + 8, VO)
e("s_nop 11")
for x in flush(0):
    e(x)
wave_sync()
e(f"s_cmp_eq_u32 s{S_W}, 0\ns_cbranch_scc0 L_slow_next")
reduce_piece(254, 6)
e("s_waitcnt lgkmcnt(8)")
reduce_math(0)
for k in range(4):
    e(f"v_min_u32 v{OB+k}, -2, v{OB+k}")
e(f"""s_lshr_b32 s{S_T0}, s{S_IT}, 2
s_lshl_b32 s{S_T0}, s{S_T0}, 15
s_and_b32 s{S_T1}, s{S_IT}, 3
s_lshl_b32 s{S_T1}, s{S_T1}, 10
s_add_u32 s{S_T0}, s{S_T0}, s{S_T1}
s_add_u32 s{S_T0}, s{S_T0}, s{S_T2}
buffer_store_dwordx4 {vr(OB,4)}, v1, {sr(SRD_WS,4)}, s{S_T0} offen sc1
s_waitcnt vmcnt(0)
L_slow_next:
s_add_u32 s{S_IT}, s{S_IT}, 1
s_cmp_lt_u32 s{S_IT}, 8
s_cbranch_scc1 L_slow_loop
s_branch L_fin""")
out += tail_code

e(f""".section .rodata,"a"
.p2align 6
.amdhsa_kernel {NAME}_kernel
.amdhsa_next_free_vgpr 256
.amdhsa_next_free_sgpr 102
.amdhsa_accum_offset 256
.amdhsa_group_segment_fixed_size 0
.amdhsa_kernarg_size 88
.amdhsa_user_sgpr_count 2
.amdhsa_user_sgpr_kernarg_segment_ptr 1
.amdhsa_system_sgpr_workgroup_id_x 1
.end_amdhsa_kernel""")
open(sys.argv[1], "w").write("\n".join(out) + "\n")
```

```python
import sys, struct

NAME = "parallel_sum__grouped_kv_mqa__dense_activation_silu__prompt"
OPT = dict(hold=-1, holdT=6000, stamps=0, rt=0, force_slow=0, pf_code=1, pf_wq=1, pf_w1=0, pf_w2=1, f1wait=1, psl=0, pdl=0, fsh=6, chain=0, warm=0, bal=3, wq1=1, half=1, q0=1, p1=0, pf_at=20, pf_mall=0, nb0=6, mask=1, kvlead=1, gate=0, pgate=2, csl=4, t6dl=12, t7dl=4, t7sl=0, flip=0, d1=8, hsl=8, hp1=0, hp2=0, pfa=0, dtry=3, mallw=1, pf1=6, pw=0, p0=3, npre=16, g2=3, g1h=4, g1l=4, eb=1, x0late=0, inl=1, amp=0, osc=0, defer=1, perm=0)
for a in sys.argv[2:]:
    k, v = a.split("=")
    OPT[k] = int(v) if v.lstrip("-").isdigit() else v
SITES = ["start"] + (OPT["stamps"].split(",") if OPT["stamps"] else [])
assert len(SITES) <= 9

def f2u(x):
    return struct.unpack("<I", struct.pack("<f", x))[0]
LOG2E = 1.4426950408889634

WS_KV = 0x0
WS_O = 0x40000
WS_H = 0x300000
WS_FL = 0xE00000
FL_H = 1024
WS_ST = 0xF00000
WS_SIZE = 0x1000000
H_GRP = 86 * 2048

H_STR = 12288
L_P1 = 49152
L_WKV = 65536
L_X = 81920
X_STR = 1040
L_P2 = L_X
L_DUMP = L_X + 32768
L_Q = L_X + 64 * X_STR
L_M = L_Q + 8192
L_LS = L_M
L_RSTD = L_M + 4096
L_FLG = L_M + 4608
L_MB = L_M + 5120
L_SL = L_M + 6144
LDS_BYTES = 163840
F_LN2, F_LNA, F_WQ, F_Q, F_KVIS, F_G1, F_D0, F_PZ, F_LN, F_DUTY, F_SLOW, F_AS, F_LNP, F_KVST, F_KVOK, F_TAG = 0, 16, 32, 48, 64, 80, 96, 112, 128, 144, 176, 192, 208, 224, 240, 256
F_WOS, F_WOR, F_KVS, F_WQ0, F_WQI = 272, 288, 304, 320, 336
assert L_SL + 512 <= LDS_BYTES and L_DUMP + 32768 <= L_Q

S_W, S_G, S_J, S_GL = 4, 5, 6, 7
SRD_X, SRD_WS = 8, 12
P_X, P_WQ, P_WK, P_WV, P_WO, P_BX, P_W1, P_W2 = 16, 18, 20, 22, 24, 26, 28, 30
P_OUT, P_DBG, P_WS = 32, 34, 36
S_TA, S_TB = 38, 39
S_TAG = P_BX
SRD_W, SRD_DBG, SRD_A, SRD_B, SRD_C, SRD_OUT = 40, 44, 48, 52, 56, 60
S_STEP, S_SOFF, S_RING, S_FLB = 64, 65, 66, 67
S_C10, S_C01, S_C11 = 68, 69, 70
S_T0, S_T1, S_T2, S_T3, S_T4, S_T5 = 71, 72, 73, 74, 75, 76
S_C = 77
S_EX = 78
S_U = 80
S_HW, S_IT = 88, 89
S_STMP = 90
S_ST0 = 92

VK, VV, SA, SB, VO, VQ = 8, 72, 200, 216, 232, 248

out, tail_code = [], []
cur = [out]
def e(s):
    for l in s.split("\n"):
        l = l.strip()
        if l:
            cur[0].append(l if l.endswith(":") or l.startswith(".") else "    " + l)
class outofline:
    def __enter__(self):
        self.prev, cur[0] = cur[0], []
    def __exit__(self, *a):
        tail_code.extend(cur[0]); cur[0] = self.prev

def vr(a, n=1):
    return f"v{a}" if n == 1 else f"v[{a}:{a+n-1}]"
def sr(a, n=1):
    return f"s{a}" if n == 1 else f"s[{a}:{a+n-1}]"
def mf32(d, a, b, c=None):
    e(f"v_mfma_f32_32x32x16_bf16 {vr(d,16)}, {vr(a,4)}, {vr(b,4)}, {vr(c,16) if c is not None else 0}")
def mf16(d, a, b, c=None):
    e(f"v_mfma_f32_16x16x32_bf16 {vr(d,4)}, {vr(a,4)}, {vr(b,4)}, {vr(c,4) if c is not None else 0}")
def srd(d, p, n):
    e(f"s_mov_b32 s{d}, s{p}\ns_mov_b32 s{d+1}, s{p+1}\ns_mov_b32 s{d+2}, {hex(n)}\ns_mov_b32 s{d+3}, 0x20000")
def off(n):
    return f" offset:{n}" if n else ""
uid = [0]
def label(p):
    uid[0] += 1
    return f"L_{p}_{uid[0]}"
def stamp(k):
    if OPT["amp"] == k:
        e(f"s_memrealtime {sr(S_STMP,2)}\ns_waitcnt lgkmcnt(0)\ns_mov_b32 s{S_ST0+8}, s{S_STMP}")
    if OPT["hold"] == k:
        lb = label("hold")
        e(f"{lb}:\ns_memrealtime {sr(S_STMP,2)}\ns_waitcnt lgkmcnt(0)\ns_sub_u32 s{S_STMP}, s{S_STMP}, s{S_ST0+9}\ns_cmp_lt_u32 s{S_STMP}, {OPT['holdT']}\ns_cbranch_scc1 {lb}")
    if OPT["stamps"] and k in SITES:
        e(f"s_mem{'real' if OPT['rt'] else ''}time {sr(S_STMP,2)}\ns_waitcnt lgkmcnt(0)\ns_mov_b32 s{S_ST0+SITES.index(k)}, s{S_STMP}")

class Queue:
    def __init__(self, kind):
        self.kind, self.n, self.tags = kind, 0, {}
    def issue(self, tag=None):
        self.n += 1
        if tag is not None:
            self.tags[tag] = self.n
    def left(self, tag):
        return self.n - self.tags[tag]
    def wait(self, tag):
        e(f"s_waitcnt {self.kind}({min(self.left(tag), 63 if self.kind == 'vmcnt' else 15)})")

def retry(top, sleep, hook=None):
    stub = label("retry")
    e(f"s_cbranch_vccnz {stub}")
    with outofline():
        e(f"{stub}:\ns_sub_u32 s3, s3, 1\ns_cbranch_scc1 L_exit")
        if hook: hook()
        if sleep: e(f"s_sleep {sleep}")
        e(f"s_branch {top}")

def lds_spin(vaddr, offset, vtmp, cmp, ref, sleep=0, prio=None):
    top = label("spin")
    e(f"{top}:\nds_read_b32 v{vtmp}, v{vaddr}{off(offset)}\ns_waitcnt lgkmcnt(0)")
    if prio: e(f"s_setprio {prio[0]}")
    e(f"{cmp} vcc, {ref}, v{vtmp}")
    e(f"s_setprio {prio[1]}" if prio else "s_nop 0")
    retry(top, sleep)

def glb_spin(vaddr, soff, vtmp, sleep=2, prio=None):
    top = label("poll")
    e(f"{top}:\nbuffer_load_dwordx2 {vr(vtmp,2)}, v{vaddr}, {sr(SRD_WS,4)}, {soff} offen sc1\ns_waitcnt vmcnt(0)")
    if prio: e(f"s_setprio {prio[0]}")
    e(f"v_cmp_ne_u64 vcc, {sr(S_TAG,2)}, {vr(vtmp,2)}")
    e(f"s_setprio {prio[1]}" if prio else "s_nop 0")
    retry(top, sleep)

def read_tag(va, vt):
    e(f"""v_mov_b32 v{va}, {L_FLG + F_TAG}
ds_read_b64 {vr(vt,2)}, v{va}
s_waitcnt lgkmcnt(0)
v_readfirstlane_b32 s{S_TAG}, v{vt}
v_readfirstlane_b32 s{S_TAG+1}, v{vt+1}""")

def tr_addr(dst, tmp, half_shift):
    e(f"""v_and_b32 v{dst}, 3, v0
v_lshlrev_b32 v{dst}, 3, v{dst}
v_bfe_u32 v{tmp}, v0, 2, 2
v_lshl_add_u32 v{dst}, v{tmp}, 6, v{dst}
v_bfe_u32 v{tmp}, v0, 4, 1
v_lshl_add_u32 v{dst}, v{tmp}, 5, v{dst}
v_lshrrev_b32 v{tmp}, 5, v0
v_lshl_add_u32 v{dst}, v{tmp}, {half_shift}, v{dst}""")

def dpp_sum(regs):
    for r in (8, 4, 2, 1):
        for a in regs:
            e(f"v_add_f32_dpp v{a}, v{a}, v{a} row_ror:{r} row_mask:0xf bank_mask:0xf")
        if len(regs) < 3 and r != 1:
            e(f"s_nop {2 - len(regs)}")

def ln_centre(X, waits, vwr, A, B, T):
    n = len(X)
    for u in range(n):
        e(f"s_waitcnt vmcnt({waits[u]})")
        if u == 0:
            stamp("xarr" if B is None else "xarrB")
        for i in range(16):
            e(f"v_dot2_f32_bf16 v{A+u}, v{X[u]+i}, s{S_C11}, {'v%d' % (A+u) if i else 0}")
    if n < 4: e(f"s_nop {3 - n}")
    dpp_sum([A + u for u in range(n)])
    for u in range(n):
        e(f"v_mul_f32 v{A+u}, {hex(f2u(-1.0/512))}, v{A+u}")
    for u in range(n):
        for gi in range(4):
            for k in range(4):
                e(f"v_dot2_f32_bf16 v{T+2*k}, v{X[u]+4*gi+k}, s{S_C10}, v{A+u}")
                e(f"v_dot2_f32_bf16 v{T+2*k+1}, v{X[u]+4*gi+k}, s{S_C01}, v{A+u}")
            for k in range(4):
                e(f"v_cvt_pk_bf16_f32 v{X[u]+4*gi+k}, v{T+2*k}, v{T+2*k+1}")
            if gi == 0 and u >= 2:
                e("s_waitcnt lgkmcnt(6)")
            e(f"ds_write_b128 v{vwr+u}, {vr(X[u]+4*gi,4)}{off(gi*16*X_STR)}")
            if B is not None:
                for k in range(4):
                    e(f"v_dot2_f32_bf16 v{B+u}, v{X[u]+4*gi+k}, v{X[u]+4*gi+k}, {'v%d' % (B+u) if gi or k else 0}")
def ln_var(X, B):
    for i in range(16):
        e(f"v_dot2_f32_bf16 v{B}, v{X+i}, v{X+i}, {'v%d' % B if i else 0}")
def ln_stats(n, vst, A, B):
    if n < 4: e(f"s_nop {3 - n}")
    dpp_sum([B + u for u in range(n)])
    for u in range(n):
        e(f"v_mov_b32 v{A+u}, {hex(f2u(1e-5))}\nv_fmac_f32 v{A+u}, {hex(f2u(1.0/512))}, v{B+u}")
    for u in range(n):
        e(f"v_rsq_f32 v{B+u}, v{A+u}")
    e("s_waitcnt lgkmcnt(5)")
    for u in range(n):
        e(f"v_mul_f32 v{A+u}, v{A+u}, v{B+u}")
        e(f"ds_write_b32 v{vst+u}, v{B+u}\nds_write_b32 v{vst+u}, v{A+u} offset:256")

def w1_prefetch(va, vt, vd):
    e(f"""v_lshrrev_b32 v{va}, 5, v0
v_mul_u32_u24 v{va}, 2752, v{va}
v_and_b32 v{vt}, 31, v0
v_min_u32 v{vt}, 22, v{vt}
v_lshl_add_u32 v{va}, v{vt}, 6, v{va}""")
    e(f"""s_lshl_b32 s{S_T0}, s{S_C}, 2
s_add_u32 s{S_T0}, s{S_T0}, s{S_HW}
s_mul_i32 s{S_T0}, s{S_T0}, {4*2752}
s_lshr_b32 s{S_T2}, s{S_J}, 2
s_mul_i32 s{S_T2}, s{S_T2}, {20*64}
s_add_u32 s{S_T0}, s{S_T0}, s{S_T2}
s_add_u32 s{S_T2}, s{S_T0}, {2*2752}
buffer_load_dword v{vd}, v{va}, {sr(SRD_W,4)}, s{S_T0} offen
buffer_load_dword v{vd}, v{va}, {sr(SRD_W,4)}, s{S_T2} offen""")

HDR = open("cdna_kernels/" + NAME + ".s.ref").read().split("\n")
out += [l for l in HDR if l.startswith(";") and "@launch" not in l]
out.append(f"; @launch grid=(256,1,1) block=(512,1,1) lds={LDS_BYTES}")
e(f'.amdgcn_target "amdgcn-amd-amdhsa--gfx950"\n.text\n.globl {NAME}_kernel\n.p2align 8\n.type {NAME}_kernel,@function')
e(f"{NAME}_kernel:")

e("s_cmp_ge_u32 s2, 256\ns_cbranch_scc1 L_exit")
if OPT["stamps"] or OPT["hold"] != -1:
    e(f"s_memrealtime {sr(S_STMP,2)}\ns_waitcnt lgkmcnt(0)\ns_mov_b32 s{S_ST0+9}, s{S_STMP}")
    stamp("start")
    for k in range(1, 9):
        e(f"s_mov_b32 s{S_ST0+k}, s{S_ST0}")
    if OPT["amp"]:
        e(f"s_mov_b32 s{S_ST0+8}, s{S_ST0+9}")
e(f"""s_load_dwordx16 s[16:31], s[0:1], 0
s_load_dwordx4 s[32:35], s[0:1], 64
s_load_dwordx2 s[36:37], s[0:1], 80
v_lshrrev_b32 v2, 6, v0
v_bfe_u32 v4, v0, 4, 4
s_lshr_b32 s{S_C}, s2, 3
v_readfirstlane_b32 s{S_W}, v2
v_and_b32 v5, 15, v0
v_and_b32 v0, 63, v0""")
if OPT["pf_code"]:
    e(f"""s_getpc_b64 {sr(S_T0+1,2)}
L_pc:
v_lshl_add_u32 v2, s{S_C}, 3, v2
v_and_b32 v3, 3, v0
v_lshl_add_u32 v2, v2, 2, v3
v_lshlrev_b32 v2, 6, v2
v_min_u32 v2, L_code_end-L_pc-4, v2
global_load_dword v247, v2, {sr(S_T0+1,2)}""")
e(f"""s_and_b32 s{S_GL}, s{S_C}, 7
s_bfe_u32 s{S_T0}, s2, 0x20001
s_lshl3_add_u32 s{S_G}, s{S_T0}, s{S_GL}
s_lshr_b32 s{S_T3}, s{S_C}, 3
s_lshl2_add_u32 s{S_SOFF}, s{S_G}, s{S_T3}
s_lshl_b32 s{S_SOFF}, s{S_SOFF}, 14
v_lshlrev_b32 v1, 10, v4
v_lshl_add_u32 v1, v5, 4, v1
s_mov_b32 s{SRD_X+2}, {hex(2048*1024)}
s_mov_b32 s{SRD_X+3}, 0x20000
s_cmp_lt_u32 s{S_W}, 4
s_waitcnt lgkmcnt(0)
s_mov_b64 {sr(SRD_X,2)}, {sr(P_X,2)}
s_cbranch_scc1 L_a0""")
XA = 8
stamp("karg")
for i in range(4):
    e(f"buffer_load_dwordx4 {vr(XA+4*i,4)}, v1, {sr(SRD_X,4)}, s{S_SOFF} offen{off(256*i)}")
e(f"""s_branch L_hfront
L_a0:
s_bitcmp1_b32 s2, 0
s_cselect_b64 {sr(SRD_A,2)}, {sr(P_WV,2)}, {sr(P_WK,2)}
s_cselect_b32 s{S_T1}, 512, 0
s_mov_b32 s{SRD_A+2}, 16384
s_mov_b32 s{SRD_A+3}, 0x20000
s_cmp_eq_u32 s{S_W}, 0
s_cbranch_scc0 {'L_a1' if OPT['pf_wq'] == 2 else 'L_afront'}
v_lshlrev_b32 v3, 4, v0""")
for i in range(4):
    e(f"s_mov_b32 m0, {L_WKV + i*4096}\ns_movk_i32 s{S_T0}, {i*4096}")
    for k in range(4):
        e(f"buffer_load_dwordx4 v3, {sr(SRD_A,4)}, s{S_T0} offen{off(1024*k)} lds")
e("s_branch L_afront")
if OPT["pf_wq"] == 2:
    e(f"""L_a1:
v_lshrrev_b32 v3, 3, v0
v_and_b32 v2, 7, v0
v_lshlrev_b32 v2, 6, v2
s_lshl1_add_u32 s{S_T0}, s{S_C}, s{S_W}
s_sub_u32 s{S_T0}, s{S_T0}, 2
s_lshl_b32 s{S_T0}, s{S_T0}, 13
s_add_u32 s{S_T0}, s{S_T0}, s{S_T1}
s_lshl_b32 s{S_T1}, s{S_C}, 9
s_cmp_eq_u32 s{S_W}, 1
s_cselect_b32 s{S_T0}, s{S_T1}, s{S_T0}
s_cselect_b32 s{S_T1}, 0, 0x400
s_cselect_b64 {sr(SRD_A,2)}, {sr(SRD_A,2)}, {sr(P_WQ,2)}
s_cselect_b32 s{SRD_A+2}, s{SRD_A+2}, {hex(512*1024)}
v_mad_u32_u24 v2, v3, s{S_T1}, v2
buffer_load_dword v246, v2, {sr(SRD_A,4)}, s{S_T0} offen
s_branch L_afront""")

V_FLW, V_FLR, V_ONE = 253, 254, 255
V_WR, V_ST = 200, 204
def common_setup():
    srd(SRD_WS, P_WS, WS_SIZE)
    srd(SRD_DBG, P_DBG, 256)
    e(f"""s_and_b32 s{S_T0}, s2, 1
s_lshl2_add_u32 s{S_J}, s{S_T0}, s{S_T3}
s_and_b32 s{S_HW}, s{S_W}, 3
s_mov_b32 s3, 0x40000
s_lshl_b32 s{S_FLB}, s{S_G}, 11
s_add_u32 s{S_FLB}, s{S_FLB}, {hex(WS_FL)}
s_mov_b32 s{S_C10}, 0x00003f80
s_mov_b32 s{S_C01}, 0x3f800000
s_mov_b32 s{S_C11}, 0x3f803f80
v_mul_u32_u24 v2, {X_STR}, v5
v_lshl_add_u32 v2, v4, 4, v2
v_lshlrev_b32 v4, 2, v4
s_lshl2_add_u32 s{S_T0}, s{S_HW}, {L_FLG}
v_mov_b32 v{V_FLW}, s{S_T0}
v_and_b32 v7, 3, v0
v_lshlrev_b32 v{V_FLR}, 2, v7
v_add_u32 v{V_FLR}, {L_FLG}, v{V_FLR}
v_mov_b32 v{V_ONE}, 1""")
def unit_addr(slot, dq):
    e(f"""s_add_u32 s{S_T0}, s{S_T3}, {dq}
s_and_b32 s{S_T0}, s{S_T0}, 3
s_lshl2_add_u32 s{S_U+slot}, s{S_G}, s{S_T0}
s_lshl_b32 s{S_U+slot}, s{S_U+slot}, 14
s_lshl_b32 s{S_T1}, s{S_T0}, 8
s_add_u32 s{S_T1}, s{S_T1}, {L_X}
v_add_u32 v{V_WR+slot}, s{S_T1}, v2
s_lshl_b32 s{S_T1}, s{S_T0}, 6
s_add_u32 s{S_T1}, s{S_T1}, {L_RSTD}
v_add_u32 v{V_ST+slot}, s{S_T1}, v4""")
def unit_loads(X, slot, va=1):
    for i in range(4):
        e(f"buffer_load_dwordx4 {vr(X+4*i,4)}, v{va}, {sr(SRD_X,4)}, s{S_U+slot} offen{off(256*i)}")
def wq_prefetch(va, vt, vd):
    e(f"""v_lshrrev_b32 v{va}, 3, v0
v_lshlrev_b32 v{va}, 10, v{va}
v_and_b32 v{vt}, 7, v0
v_lshl_add_u32 v{va}, v{vt}, 6, v{va}
s_lshl2_add_u32 s{S_T0}, s{S_C}, s{S_HW}
s_lshl_b32 s{S_T0}, s{S_T0}, 12
s_and_b32 s{S_T1}, s{S_J}, 4
s_lshl_b32 s{S_T1}, s{S_T1}, 7
s_add_u32 s{S_T0}, s{S_T0}, s{S_T1}
s_mov_b32 exec_hi, 0
buffer_load_dword v{vd}, v{va}, {sr(SRD_W,4)}, s{S_T0} offen
s_mov_b32 exec_hi, -1""")

e("L_hfront:\ns_setprio 2")
common_setup()
srd(SRD_W, P_WQ, 512 * 1024)
unit_addr(1, 1)
if OPT["eb"]:
    e(f"v_mov_b32 v52, 0\nv_lshlrev_b32 v6, 2, v0\nv_add_u32 v6, {L_FLG}, v6\nds_write2st64_b32 v6, v52, v52 offset1:1\ns_waitcnt lgkmcnt(0)\ns_barrier")
if OPT["eb"] < 2:
    unit_loads(24, 1)
if OPT["bal"] == 1:
    unit_addr(2, 3)
    e(f"s_cmp_eq_u32 s{S_W}, 4\ns_cselect_b32 s{S_U+2}, s{S_U+2}, 0x1000000")
    unit_loads(40, 2)
if not OPT["eb"]:
    e("s_barrier")
unit_addr(0, 0)
if OPT["bal"] == 3:
    e(f"v_and_b32 v1, 0xfff, v1\ns_lshl_b32 s{S_T0}, s{S_HW}, 6\nv_subrev_u32 v2, s{S_T0}, v2\nv_and_b32 v4, 15, v4\ns_add_u32 s{S_IT}, s{S_HW}, 1")
    unit_addr(2, f"s{S_IT}")
e(f"""v_lshrrev_b32 v6, 2, v0
v_lshlrev_b32 v6, 10, v6
v_lshl_add_u32 v6, v7, 4, v6
s_and_b32 s{S_T0}, s{S_HW}, 1
s_lshl_b32 s{S_RING}, s{S_T0}, 15
s_lshl_b32 s{S_T0}, s{S_J}, 7
s_lshl_b32 s{S_T2}, s{S_HW}, 17
s_add_u32 s{S_SOFF}, s{S_T0}, s{S_T2}
s_lshl_b32 s{S_T5}, s{S_HW}, 13
""")
if OPT["eb"] == 2:
    e("s_waitcnt vmcnt(0)")
    unit_loads(24, 1)
ln_centre([XA], [4 + 4 * (OPT["bal"] == 1)], V_WR, 56, None, 60)
e(f"ds_write_b32 v{V_FLW}, v{V_ONE} offset:{F_LNP}")
stamp("lnA")
if OPT["bal"] == 3:
    e(f"s_bitcmp1_b32 s{S_IT}, 1\ns_cbranch_scc0 L_no3")
    unit_loads(40, 2)
    e("L_no3:")
    if OPT["pf_wq"] == 6:
        wq_prefetch(68, 69, 70)
ln_var(XA, 57)
ln_stats(1, V_ST, 56, 57)
e(f"ds_write_b32 v{V_FLW}, v{V_ONE} offset:{F_LN}")
npf = int(OPT["pf_wq"] == 6)
if OPT["bal"] == 3:
    e(f"s_bitcmp1_b32 s{S_IT}, 1\ns_cbranch_scc0 L_ln1")
    ln_centre([24], [4 + npf], V_WR + 1, 56, 58, 60)
    ln_centre([40], [npf], V_WR + 2, 57, 59, 60)
    ln_stats(2, V_ST + 1, 56, 58)
    e("s_branch L_ln2\nL_ln1:")
ln_centre([24], [4 * (OPT["bal"] == 1) + npf], V_WR + 1, 56, 57, 60)
ln_stats(1, V_ST + 1, 56, 57)
e("L_ln2:")
e("s_setprio 0" if OPT["bal"] == 1 else f"ds_write_b32 v{V_FLW}, v{V_ONE} offset:{F_LN2}\ns_setprio 0")
stamp("lnB")
if OPT["wq1"]:
    e(f"s_cmp_eq_u32 s{S_W}, 7\ns_cbranch_scc0 L_wqdone\ns_lshl_b32 s{S_SOFF}, s{S_J}, 7\ns_mov_b32 s{S_T5}, 0")
if OPT["gate"]:
    lds_spin(V_FLR, F_KVST, 68, "v_cmp_ne_u32", 1, sleep=1)
for k in range(32 if OPT["wq1"] else 8):
    if k == 24 and OPT["half"]:
        e(f"s_waitcnt vmcnt(16)\nds_write_b32 v{V_FLR}, v{V_ONE} offset:{F_WQ0}")
    e(f"s_add_u32 m0, s{S_T5}, {k*1024}\n{'s_waitcnt vmcnt(48)' if k > 24 else 's_nop 0'}\nbuffer_load_dwordx4 v6, {sr(SRD_W,4)}, s{S_SOFF} offen lds")
    e(f"s_add_u32 m0, s{S_T5}, {32768 + k*1024 - 64}\ns_nop 0\nbuffer_load_dwordx4 v6, {sr(SRD_W,4)}, s{S_SOFF} offen offset:64 lds\ns_add_u32 s{S_SOFF}, s{S_SOFF}, 16384")
if OPT["wq1"]:
    e(f"ds_write_b32 v{V_FLR}, v{V_ONE} offset:{F_WQI}\ns_waitcnt vmcnt(0)\nds_write_b32 v{V_FLR}, v{V_ONE} offset:{F_WQ}\nL_wqdone:")
if OPT["bal"] == 1:
    e(f"s_cmp_eq_u32 s{S_W}, 4\ns_cbranch_scc0 L_h3done")
    ln_centre([40], [16], V_WR + 2, 56, 57, 60)
    ln_stats(1, V_ST + 2, 56, 57)
    e(f"L_h3done:\nds_write_b32 v{V_FLW}, v{V_ONE} offset:{F_LN2}")
tr_addr(7, 3, 9)
V_XR = 252
e(f"""v_mul_u32_u24 v{V_XR}, {X_STR}, v3
v_and_b32 v3, 31, v0
v_lshl_add_u32 v{V_XR}, v3, 4, v{V_XR}
v_add_u32 v{V_XR}, {L_X}, v{V_XR}
v_lshlrev_b32 v4, 2, v3
v_add_u32 v1, s{S_RING}, v7
v_xor_b32 v2, 0x4000, v1
s_lshr_b32 s{S_T1}, s{S_HW}, 1
s_lshl_b32 s{S_T0}, s{S_T1}, 9
v_add_u32 v5, s{S_T0}, v{V_XR}
v_add_u32 v3, {32*X_STR}, v5
v_and_b32 v48, 15, v0
v_min_u32 v48, 11, v48
v_lshlrev_b32 v48, 2, v48
v_add_u32 v48, {L_FLG}, v48""")
srd(SRD_W, P_W1, 512 * 2752)
QA, QB, QO, QACC = 72, 8, 24, 200
if not OPT["wq1"]:
    e(f"s_waitcnt vmcnt(0)\nds_write_b32 v{V_FLW}, v{V_ONE} offset:{F_WQ}")
lds_spin(V_FLR, F_WQ0 if OPT["half"] else F_WQ, 52, "v_cmp_ne_u32", 1)
stamp("wq")
for k in range(OPT["npre"]):
    if k % 4 == 0 and k:
        e("s_waitcnt lgkmcnt(4)")
    for i in range(2):
        e(f"ds_read_b64_tr_b16 {vr(QA+4*k+2*i,2)}, v1{off(k*1024 + i*256)}")
lds_spin(48, F_LN2, 52, "v_cmp_ne_u32", 1, sleep=1)
e("s_setprio 2")
stamp("ln")
lq = Queue("lgkmcnt")
def q_reads(s):
    if s >= OPT["npre"]:
        for i in range(2):
            e(f"ds_read_b64_tr_b16 {vr(QO+4*(s % 4)+2*i,2)}, v{1 if s < 16 else 2}{off((s % 16)*1024 + i*256)}")
            lq.issue()
    e(f"ds_read_b128 {vr(QB+4*(s % 4),4)}, v{5 if s < 16 else 3}{off((s % 16)*2*X_STR)}")
    lq.issue(s)
for s in range(3):
    q_reads(s)
for s in range(32):
    if s + 3 < 32:
        q_reads(s + 3)
    elif s == 29:
        e(f"s_lshr_b32 s{S_T1}, s{S_HW}, 1\ns_lshl_b32 s{S_T0}, s{S_T1}, 7\ns_add_u32 s{S_T0}, s{S_T0}, {L_RSTD}\nv_add_u32 v1, s{S_T0}, v4\nds_read_b32 v44, v1")
        lq.issue()
    lq.wait(s)
    mf32(QACC, QA + 4 * s if s < OPT["npre"] else QO + 4 * (s % 4), QB + 4 * (s % 4), QACC if s else None)
e(f"""s_lshl_b32 s{S_T0}, s{S_HW}, 11
s_add_u32 s{S_T0}, s{S_T0}, {L_Q}
v_lshl_add_u32 v1, v0, 4, s{S_T0}
s_waitcnt lgkmcnt(0)
v_mul_f32 v44, {hex(f2u(0.25*LOG2E))}, v44
v_mov_b32 v45, v44
s_nop 5""")
for hl in range(2):
    for k in range(4):
        e(f"v_pk_mul_f32 {vr(QACC+8*hl+2*k,2)}, {vr(QACC+8*hl+2*k,2)}, v[44:45]")
    for k in range(4):
        e(f"v_cvt_pk_bf16_f32 v{8+4*hl+k}, v{QACC+8*hl+2*k}, v{QACC+8*hl+2*k+1}")
    e(f"ds_write_b128 v1, {vr(8+4*hl,4)}{off(hl*1024)}")
e(f"ds_write_b32 v{V_FLW}, v{V_ONE} offset:{F_Q}")
stamp("qd")

V_S0, V_PART, V_TR2, V_LS, V_DW0, V_DW1, V_DR0 = 1, 2, 3, 4, 5, 6, 7
V_DR1, V_OUT, V_TMP, V_L16, V_TB = 248, 249, 250, 251, 252
V_WO, V_TT, V_HF = 60, 61, 62
V_WA, V_WB, V_TR, V_PF, VXR, V_CS, V_NEG, V_TAG = 72, 73, 74, 75, 76, 92, 100, 64
S_OB, S_PC, S_XO, S_CLS, S_RET, S_BLK = 16, 20, 22, 18 + 6, 0, 2
t0, t1, t2, t3 = 24, 25, 26, 27
e(f"""s_xor_b32 s{S_T4}, s{S_J}, {4 * OPT['flip']}
s_mul_i32 s{S_T0}, s{S_T4}, 7
s_lshl1_add_u32 s{S_T0}, s{S_HW}, s{S_T0}
s_lshl2_add_u32 s{S_T1}, s{S_T4}, s{S_HW}
s_add_u32 s{S_T2}, s{S_T1}, 11
s_cmp_lt_u32 s{S_HW}, 3
s_cselect_b32 s{S_TB}, 2, 1
s_cmp_eq_u32 s{S_T1}, 14
s_cselect_b32 s{S_TB}, 1, s{S_TB}
s_min_u32 s{S_T0}, s{S_T0}, 26
s_cmp_lt_u32 s{S_T4}, 4
s_cselect_b32 s{S_TA}, s{S_T0}, s{S_T2}
s_cselect_b32 s{S_TB}, s{S_TB}, 1
s_lshr_b32 s{S_T5}, s{S_HW}, 1
s_mul_i32 s{S_RING}, s{S_HW}, {H_STR}
s_and_b32 s{S_T4}, s{S_HW}, 1
v_add_u32 v{t0}, {L_RSTD}, v4
ds_read_b32 v{V_CS}, v{t0}
ds_read_b32 v{V_CS+2}, v{t0} offset:128
ds_read_b32 v{V_CS+4}, v{t0} offset:256
ds_read_b32 v{V_CS+6}, v{t0} offset:384
v_add_u32 v{V_TR}, s{S_RING}, v7
v_lshrrev_b32 v{t3}, 5, v0
v_lshlrev_b32 v{t0}, 8, v{t3}
v_sub_u32 v{V_TR2}, v{V_TR}, v{t0}
v_lshlrev_b32 v{V_HF}, 3, v4
s_lshl_b32 s{S_T0}, s{S_HW}, 9
s_add_u32 s{S_T0}, s{S_T0}, {L_LS}
v_add_u32 v{V_LS}, s{S_T0}, v4
s_lshl_b32 s{S_T0}, s{S_J}, 7
v_add_u32 v{V_S0}, s{S_T0}, v6
s_lshl_b32 s{S_T1}, s{S_T4}, 6
v_add_u32 v{V_WO}, s{S_T1}, v{V_S0}
v_lshrrev_b32 v{t0}, 2, v0
v_mul_u32_u24 v{t0}, 2752, v{t0}
v_and_b32 v{t1}, 3, v0
v_lshl_add_u32 v{t0}, v{t1}, 4, v{t0}
s_lshl_b32 s{S_T2}, s{S_TA}, 6
v_add_u32 v{V_WA}, s{S_T2}, v{t0}
v_lshlrev_b32 v{V_TT}, 4, v{t1}
v_bfe_u32 v{t1}, v0, 2, 2
v_lshl_add_u32 v{V_TT}, v{t1}, 6, v{V_TT}
v_bfe_u32 v{t2}, v0, 4, 1
v_lshl_add_u32 v{V_TT}, v{t2}, 8, v{V_TT}
v_lshl_add_u32 v{V_TT}, v{t3}, 10, v{V_TT}
s_cmp_eq_u32 s{S_T4}, 0
s_cselect_b32 s{S_T2}, {L_DUMP}, 0
v_add_u32 v{V_TT}, s{S_T2}, v{V_TT}
v_lshlrev_b32 v{V_L16}, 4, v0""")
for k in range(8):
    e(f"s_add_u32 s{S_U}, s{S_GL}, {k}\ns_and_b32 s{S_U}, s{S_U}, 7\ns_mul_i32 s{S_U}, s{S_U}, {8*X_STR}")
    e(f"v_add_u32 v{VXR+k}, s{S_U}, v{V_XR}")
srd(SRD_B, P_W2, 1376 * 1024)
srd(SRD_C, P_WO, 512 * 1024)
srd(SRD_OUT, P_OUT, 2048 * 1024)
e(f"""v_lshlrev_b32 v{V_TB}, 9, v{t2}
v_lshl_add_u32 v{V_TB}, v{t3}, 12, v{V_TB}
v_and_b32 v{t0}, 15, v0
v_lshrrev_b32 v{t1}, 4, v0
v_lshlrev_b32 v{V_OUT}, 10, v{t0}
v_lshl_add_u32 v{V_OUT}, v{t1}, 4, v{V_OUT}
s_lshl_b32 s{S_T2}, s{S_T5}, 4
v_add_u32 v{t0}, s{S_T2}, v{t0}
v_lshl_add_u32 v{V_TB}, v{t0}, 4, v{V_TB}
v_lshlrev_b32 v{V_DR1}, 4, v{t0}
v_lshl_add_u32 v{V_DR1}, v{t1}, 10, v{V_DR1}
s_lshl_b32 s{S_T2}, s{S_T4}, 12
v_add_u32 v{V_DR1}, s{S_T2}, v{V_DR1}
v_add_u32 v{V_DR0}, {L_DUMP}, v{V_DR1}
v_add_u32 v{V_DW1}, s{S_RING}, v{V_L16}
s_lshl_b32 s{S_T2}, s{S_HW}, 13
s_add_u32 s{S_T2}, s{S_T2}, {L_DUMP}
v_add_u32 v{V_DW0}, s{S_T2}, v{V_L16}
s_lshl_b32 s{S_T2}, s{S_HW}, 11
s_add_u32 s{S_T2}, s{S_T2}, {L_P1}
v_add_u32 v{V_PART}, s{S_T2}, v{V_L16}
v_lshrrev_b32 v{V_PF}, 1, v0
v_lshlrev_b32 v{V_PF}, 10, v{V_PF}
v_and_b32 v{t0}, 1, v0
v_lshl_add_u32 v{V_PF}, v{t0}, 6, v{V_PF}
v_mov_b32 v{V_NEG}, -1
v_mov_b32 v{V_NEG+1}, -1
v_mov_b32 v{V_NEG+2}, -1
v_mov_b32 v{V_NEG+3}, -1
v_mov_b32 v{V_TAG+2}, 0
s_lshl_b32 s{S_T2}, s{S_G}, 2
s_add_u32 s{S_T2}, s{S_T2}, s{S_T5}
s_lshl_b32 s{S_T2}, s{S_T2}, 14
s_add_u32 s{S_T2}, s{S_T2}, s{S_T0}
s_add_u32 s{S_XO}, s{S_T2}, s{S_T1}
s_add_u32 s{S_XO+1}, s{S_XO}, 32768
s_lshl_b32 s{S_T2}, s{S_G}, 16
s_add_u32 s{S_OB}, s{S_T2}, {hex(WS_O)}
s_add_u32 s{S_OB+1}, s{S_OB}, 8192
s_add_u32 s{S_OB+2}, s{S_OB}, 16384
s_add_u32 s{S_OB+3}, s{S_OB}, 24576
s_lshl_b32 s{S_T2}, s{S_J}, 2
s_add_u32 s{S_T2}, s{S_T2}, s{S_HW}
s_lshl_b32 s{S_T3}, s{S_T2}, 10
s_add_u32 s{S_PC}, s{S_OB}, s{S_T3}
s_add_u32 s{S_PC+1}, s{S_PC}, 32768
s_add_u32 s{S_FLB}, s{S_FLB}, {FL_H}
s_lshl_b32 s{S_T2}, s{S_T2}, 5
s_add_u32 s{S_U+7}, s{S_T2}, s{S_FLB}
s_mul_i32 s{S_T2}, s{S_G}, {H_GRP}
s_add_u32 s{S_T2}, s{S_T2}, {hex(WS_H)}
s_add_u32 s{SRD_A}, s{P_WS}, s{S_T2}
s_addc_u32 s{SRD_A+1}, s{P_WS+1}, 0
s_mov_b32 s{SRD_A+2}, {H_GRP}
s_mov_b32 s{SRD_A+3}, 0x20000
s_lshl_b32 s{S_U+4}, s{S_TA}, 12
s_add_u32 s{S_U+5}, s{S_U+4}, 4096
s_movk_i32 s{S_CLS}, 0x207
s_mov_b32 s{S_IT}, 0
s_mul_i32 s{S_SOFF}, s{S_GL}, {64*2752}
s_lshl_b32 s{S_T1}, s{S_GL}, 2
s_add_u32 s{S_T1}, s{S_T1}, s{S_HW}
s_mul_i32 s{S_T2}, s{S_T1}, {43*1024}
s_add_u32 s{S_T2}, s{S_T2}, s{S_T0}
s_add_u32 s{S_T3}, s{S_T2}, {11*1024}
s_lshl_b32 s{S_T1}, s{S_T1}, 14
s_add_u32 s{S_T1}, s{S_T1}, s{S_T0}
s_waitcnt lgkmcnt(0)
v_mul_f32 v{V_CS}, {hex(f2u(-LOG2E))}, v{V_CS}
v_mul_f32 v{V_CS+2}, {hex(f2u(-LOG2E))}, v{V_CS+2}""")
for k in range(4):
    e(f"v_mov_b32 v{V_CS+2*k+1}, v{V_CS+2*k}")
lds_spin(V_FLR, F_Q, t0, "v_cmp_ne_u32", 1)
lds_spin(V_FLR, F_KVOK, t0, "v_cmp_ne_u32", 1, sleep=1)
read_tag(t0, V_TAG)
e("s_setprio 0")
if OPT["f1wait"] == 1:
    lds_spin(V_FLR, F_KVIS, t0, "v_cmp_ne_u32", 1, sleep=2, prio=(2, 0))
stamp("f1go")

F1A = 184
FR = [8, 24, 40]
def late_prefetch():
    e(f"""s_mov_b32 exec_hi, 0
buffer_load_dword v{V_TMP}, v{V_PF}, {sr(SRD_C,4)}, s{S_T1} offen
s_mov_b32 exec_hi, -1
buffer_load_dword v{V_TMP}, v{V_PF}, {sr(SRD_B,4)}, s{S_T2} offen
buffer_load_dword v{V_TMP}, v{V_PF}, {sr(SRD_B,4)}, s{S_T3} offen""")
def ffn1(nt):
    vq, lq = Queue("vmcnt"), Queue("lgkmcnt")
    D = 6 if nt == 2 else OPT["d1"]
    def dma(s):
        e(f"s_add_u32 m0, s{S_RING}, {(s % D)*1024*nt}\ns_add_u32 s{S_T4}, s{S_SOFF}, {16*2752}\nbuffer_load_dwordx4 v{V_WA}, {sr(SRD_W,4)}, s{S_SOFF} offen lds")
        vq.issue(("w", s))
        if nt == 2:
            e(f"s_add_u32 m0, s{S_RING}, {(s % D)*2048 + 1024 - 64}\ns_cmp_ge_u32 s{S_T4}, s{SRD_W+2}\nbuffer_load_dwordx4 v{V_WA}, {sr(SRD_W,4)}, s{S_SOFF} offen offset:64 lds")
            vq.issue(("w", s))
        else:
            e(f"s_cmp_ge_u32 s{S_T4}, s{SRD_W+2}")
        e(f"s_cselect_b32 s{S_SOFF}, 0, s{S_T4}")
    NR, NM, G = 2 + 2 * nt, 2 * nt, OPT["g1h"] if nt == 2 else OPT["g1l"]
    def read1(k):
        s, r = divmod(k, NR)
        f = 108 + 16 * (s % 4)
        if r < 2:
            e(f"ds_read_b128 {vr(f+8+4*r,4)}, v{VXR+s//4}{off((s % 4)*2*X_STR + r*512)}")
        else:
            if r == 2:
                vq.wait(("w", s))
            e(f"ds_read_b64_tr_b16 {vr(f+2*(r-2),2)}, v{V_TR}{off((s % D)*1024*nt + ((r-2)//2)*1024 + (r % 2)*256)}")
        lq.issue(("r", s))
    for s in range(D):
        dma(s)
    nr, nd = 0, D
    while nr < (2 if nt == 2 else 3) * NR:
        read1(nr); nr += 1
    for m in range(32 * NM):
        s, u = divmod(m, NM)
        f = 108 + 16 * (s % 4)
        if m % G == 0:
            ls = (min(m + G, 32 * NM) - 1) // NM
            assert nr >= (ls + 1) * NR, (nt, m, nr)
            lq.wait(("r", ls))
            done = (ls + 1) * NR
        mf32(F1A + 16 * u, f + 4 * (u >> 1), f + 8 + 4 * (u & 1), F1A + 16 * u if s else None)
        end = m % G == G - 1
        n = 0
        while nr < 32 * NR and nr // NR - 4 <= (m - NM + 1) // NM and nr - done < 12 and (end or n < 2):
            read1(nr); nr += 1; n += 1
        if end:
            while nd < 32 and nd - D <= ls:
                dma(nd); nd += 1
        if u != NM - 1:
            continue
        stamp(f"s{s}")
        if not OPT["pf_w2"]:
            pass
        elif nt == 2 or not OPT["mallw"]:
            if s == OPT["pf_at"]:
                late_prefetch()
                vq.issue(); vq.issue(); vq.issue()
        elif s in (OPT["pf1"], 31):
            skip = label("nopf")
            e(f"s_cmp_lt_u32 s{S_TA}, 27\ns_cbranch_scc{1 if s < 31 else 0} {skip}")
            if s < 31:
                for k in range(1, 4):
                    e(f"s_xor_b32 s{S_T0+k}, s{S_T0+k}, 512")
                late_prefetch()
                for k in range(1, 4):
                    e(f"s_xor_b32 s{S_T0+k}, s{S_T0+k}, 512")
            late_prefetch()
            e(f"{skip}:")
e(f"s_cmp_eq_u32 s{S_TB}, 2\ns_cbranch_scc0 L_f1one")
if OPT["hp1"]:
    e("s_setprio 2")
ffn1(2)
e("L_f1done:")
with outofline():
    e("L_f1one:")
    ffn1(1)
    e("s_branch L_f1done")
stamp("g1")
for k in range(2):
    e(f"buffer_store_dwordx4 {vr(V_NEG,4)}, v{V_L16}, {sr(SRD_WS,4)}, s{S_PC+k} offen sc1")
e(f"ds_write_b32 v{V_FLW}, v{V_ONE} offset:{F_G1}\ns_setprio 2\ns_nop 6")
for ti in range(2):
    e(f"s_cmp_eq_u32 s{S_TB}, 1\ns_cbranch_scc1 L_silu_done" if ti else "s_nop 1")
    for tb in range(2):
        for u in range(2):
            A, T, C, R = F1A + 32 * ti + 16 * tb + 8 * u, 8, V_CS + 2 * tb, 16 + 4 * (4 * ti + 2 * tb + u)
            for k in range(4):
                e(f"v_pk_mul_f32 {vr(T+2*k,2)}, {vr(A+2*k,2)}, {vr(C,2)}")
            for k in range(8):
                e(f"v_exp_f32 v{T+k}, v{T+k}")
            for k in range(4):
                e(f"v_pk_fma_f32 {vr(T+2*k,2)}, {vr(T+2*k,2)}, {vr(C+4,2)}, {vr(C+4,2)}")
            for k in range(8):
                e(f"v_rcp_f32 v{T+k}, v{T+k}")
            for k in range(4):
                e(f"v_pk_mul_f32 {vr(T+2*k,2)}, {vr(T+2*k,2)}, {vr(A+2*k,2)}")
            for k in range(4):
                e(f"v_cvt_pk_bf16_f32 v{R+k}, v{T+2*k}, v{T+2*k+1}")
            e(f"buffer_store_dwordx4 {vr(R,4)}, v{V_L16}, {sr(SRD_A,4)}, s{S_U+4+ti} offen{off(u*2048 + tb*1024)} sc1")
e("L_silu_done:\ns_setprio 0")
stamp("epi")

ACC, F2B, F2A, TA, XR = 8, 200, 232, 72, 240
PC, RT, RL, OB = 24, 200, 232, 236
def reduce_piece(vp, vl):
    for w in range(4):
        e(f"ds_read_b32 v{RL+w}, v{vl}{off(w*128)}")
    for w in range(4):
        for h in range(2):
            e(f"ds_read_b128 {vr(RT+8*w+4*h,4)}, v{vp}{off(w*8192 + h*1024)}")
def reduce_math(extra):
    e(f"v_add_f32 v{RL}, v{RL}, v{RL+1}\nv_add_f32 v{RL+2}, v{RL+2}, v{RL+3}\nv_add_f32 v{RL}, v{RL}, v{RL+2}\nv_rcp_f32 v{RL+2}, v{RL}")
    e(f"s_waitcnt lgkmcnt({4 + extra})")
    for k in range(4):
        e(f"v_pk_add_f32 {vr(RT+2*k,2)}, {vr(RT+2*k,2)}, {vr(RT+8+2*k,2)}")
    e(f"v_mov_b32 v{RL+3}, v{RL+2}\ns_waitcnt lgkmcnt(0)")
    for k in range(4):
        e(f"v_pk_add_f32 {vr(RT+16+2*k,2)}, {vr(RT+16+2*k,2)}, {vr(RT+24+2*k,2)}")
    for k in range(4):
        e(f"v_pk_add_f32 {vr(RT+2*k,2)}, {vr(RT+2*k,2)}, {vr(RT+16+2*k,2)}")
    for k in range(4):
        e(f"v_pk_mul_f32 {vr(RT+2*k,2)}, {vr(RT+2*k,2)}, {vr(RL+2,2)}")
    for k in range(4):
        e(f"v_cvt_pk_bf16_f32 v{OB+k}, v{RT+2*k}, v{RT+2*k+1}")
duty_code = []
class dutyblock(outofline):
    def __exit__(self, *a):
        duty_code.extend(cur[0]); cur[0] = self.prev
with dutyblock():
    lo, hi = f2u(2.0**-32), f2u(2.0**48)
    e("L_duty:")
    reduce_piece(V_PART, V_LS)
    e(f"""ds_read_b32 v{V_TMP}, v{V_FLR} offset:{F_SLOW}
s_waitcnt lgkmcnt(9)
s_setprio 2
v_max3_u32 v{OB}, v{RL}, v{RL+1}, v{RL+2}
v_max_u32 v{OB}, v{OB}, v{RL+3}
v_cmp_eq_u32 vcc, -1, v{OB}
s_nop 0
s_cbranch_vccnz L_duty_no""")
    reduce_math(1)
    for k in range(4):
        e(f"v_dot2_f32_bf16 v{RL+1}, v{OB+k}, s{S_C11}, {'v%d' % (RL+1) if k else 0}")
    e(f"""v_subrev_u32 v{RL+3}, {hex(lo)}, v{RL}
v_cmp_lt_u32 vcc, {hex(hi-lo)}, v{RL+3}
v_cmp_ne_u32 {sr(S_T0+1,2)}, 0, v{V_TMP}
s_add_u32 s{S_IT}, s{S_IT}, 1
v_cmp_class_f32 {sr(S_EX,2)}, v{RL+1}, s{S_CLS}
s_or_b64 vcc, vcc, {sr(S_T0+1,2)}
s_nop 0
s_or_b64 vcc, vcc, {sr(S_EX,2)}""")
    if OPT["force_slow"]:
        e(f"s_cmp_eq_u32 s{S_IT}, {OPT['force_slow']}\ns_cselect_b64 vcc, -1, vcc")
    e(f"""s_cbranch_vccnz L_duty_bad
buffer_store_dwordx4 {vr(OB,4)}, v{V_L16}, {sr(SRD_WS,4)}, s{S_PC} offen sc1
v_mov_b32 v{V_TMP}, s{S_IT}
s_mov_b64 exec, 1
ds_max_u32 v{V_FLW}, v{V_TMP} offset:{F_DUTY}
s_mov_b64 exec, -1
L_duty_next:
v_add_u32 v{V_PART}, {L_P2 - L_P1}, v{V_PART}
v_add_u32 v{V_LS}, 2048, v{V_LS}
s_mov_b32 s{S_PC}, s{S_PC+1}
s_setprio 0
L_duty_ret:
s_setpc_b64 {sr(S_RET,2)}
L_duty_no:
s_setprio 0
s_waitcnt lgkmcnt(0)
s_cmp_eq_u32 s{S_BLK}, 0
s_cbranch_scc1 L_duty_ret
s_sub_u32 s3, s3, 1
s_cbranch_scc1 L_exit
s_cmp_eq_u32 s{S_BLK}, 1
s_cbranch_scc1 L_duty
s_sleep 6
s_branch L_duty
L_duty_bad:
ds_write_b32 v{V_FLR}, v{V_ONE} offset:{F_SLOW}
s_branch L_duty_next""")
def duty(upto, mode):
    skip = label("noduty")
    e(f"s_lshl_b32 s{S_T0}, s{S_IT}, 2\ns_add_u32 s{S_T0}, s{S_T0}, s{S_HW}\ns_mov_b32 s{S_BLK}, {mode}\ns_cmp_lt_u32 s{S_T0}, {upto}\ns_cbranch_scc0 {skip}")
    e(f"s_call_b64 {sr(S_RET,2)}, L_duty\n{skip}:")

HD = 4
e(f"""s_waitcnt vmcnt(0)
s_mov_b64 exec, 1
buffer_store_dwordx2 {vr(V_TAG,2)}, v{V_TAG+2}, {sr(SRD_WS,4)}, s{S_U+7} offen sc1
s_mov_b64 exec, -1
ds_write_b32 v{V_FLW}, v{V_ONE} offset:{F_PZ}""")
stamp("hfl")
e(f"s_cmp_eq_u32 s{S_HW}, 3\ns_cbranch_scc1 L_wostage\nL_wostaged:")
with outofline():
    e("L_wostage:")
    lds_spin(V_FLR, F_G1, V_TMP, "v_cmp_ne_u32", 1, sleep=2, prio=(2, 0))
    for u in range(16):
        hh, s_ = divmod(u, 4)
        for p in range(2):
            e(f"s_mov_b32 m0, {L_DUMP + u*2048 + p*1024}\ns_mov_b32 s{S_SOFF}, {(8*s_ + 4*p + hh)*16384}\nbuffer_load_dwordx4 v{V_S0}, {sr(SRD_C,4)}, s{S_SOFF} offen lds")
            e(f"s_mov_b32 m0, {u*2048 + p*1024}\ns_waitcnt vmcnt(40)\nbuffer_load_dwordx4 v{V_WO}, {sr(SRD_C,4)}, s{S_SOFF} offen lds")
    e(f"s_waitcnt vmcnt(0)\nds_write_b32 v{V_FLR}, v{V_ONE} offset:{F_WOS}\ns_branch L_wostaged")
lds_spin(V_FLR, F_WOS, V_TMP, "v_cmp_ne_u32", 1, sleep=2, prio=(2, 0))
for u in range(16):
    if u >= 2:
        e("s_waitcnt lgkmcnt(8)")
    for ee in range(2):
        for i in range(2):
            e(f"ds_read_b64_tr_b16 {vr(TA+8*u+4*ee+2*i,2)}, v{V_TT}{off(u*2048 + i*512 + ee*8)}")
e(f"""s_lshl_b32 s{S_T3}, s{S_J}, 1
s_add_u32 s{S_T3}, s{S_T3}, s{S_GL}
s_and_b32 s{S_T3}, s{S_T3}, 7
s_mul_i32 s{S_T3}, s{S_T3}, 11
s_lshr_b32 s{S_T3}, s{S_T3}, 2
s_mul_i32 s{S_T2}, s{S_HW}, 22
s_add_u32 s{S_T3}, s{S_T3}, s{S_T2}
s_lshl_b32 s{S_SOFF}, s{S_T3}, 14
s_lshl_b32 s{S_STEP}, s{S_T3}, 11
s_lshl_b32 s{S_U}, s{S_T2}, 14
s_add_u32 s{S_U+1}, s{S_U}, {22*16384}
s_lshl_b32 s{S_U+2}, s{S_T2}, 11
s_add_u32 s{S_U+3}, s{S_U+2}, {22*2048}
buffer_load_dwordx2 v[8:9], v{V_HF}, {sr(SRD_WS,4)}, s{S_FLB} offen sc1
s_waitcnt lgkmcnt(0)
ds_write_b32 v{V_FLW}, v{V_ONE} offset:{F_WOR}""")
stamp("wo")
lds_spin(V_FLR, F_WOR, V_TMP, "v_cmp_ne_u32", 1, sleep=1, prio=(2, 0))
vq, lq = Queue("vmcnt"), Queue("lgkmcnt")
def f2_dma(s):
    e(f"s_add_u32 m0, s{S_RING}, {(s % 6)*2048}\ns_nop 0\nbuffer_load_dwordx4 v{V_S0}, {sr(SRD_B,4)}, s{S_SOFF} offen lds")
    e(f"s_add_u32 m0, s{S_RING}, {(s % 6)*2048 + 1024 - 64}\ns_add_u32 s{S_T4}, s{S_SOFF}, 16384\nbuffer_load_dwordx4 v{V_S0}, {sr(SRD_B,4)}, s{S_SOFF} offen offset:64 lds")
    vq.issue(); vq.issue(("w", s))
    e(f"s_cmp_ge_u32 s{S_T4}, s{S_U+1}\ns_cselect_b32 s{S_SOFF}, s{S_U}, s{S_T4}")
def f2_h(s):
    for c in range(2):
        e(f"buffer_load_dwordx4 {vr(F2B+8*(s % HD)+4*c,4)}, v{V_L16}, {sr(SRD_A,4)}, s{S_STEP} offen{off(1024*c)} sc1")
        vq.issue(("h", s))
    e(f"s_add_u32 s{S_STEP}, s{S_STEP}, 2048\ns_cmp_ge_u32 s{S_STEP}, s{S_U+3}\ns_cselect_b32 s{S_STEP}, s{S_U+2}, s{S_STEP}")
def f2_reads(s, c):
    for i in range(2):
        e(f"ds_read_b64_tr_b16 {vr(F2A+8*(s % 2)+4*c+2*i,2)}, v{V_TR2}{off((s % 6)*2048 + c*1024 + i*512)}")
        lq.issue(("r", s))
for s in range(6):
    f2_dma(s)
duty(4, 0)
e(f"s_waitcnt vmcnt(12)\ns_setprio 2\nv_cmp_ne_u64 vcc, {sr(S_TAG,2)}, v[8:9]\ns_setprio 0\ns_cbranch_vccnz L_hslow\nL_hok:")
with outofline():
    e("L_hslow:")
    glb_spin(V_HF, f"s{S_FLB}", 8, sleep=OPT["hsl"], prio=(2, 0))
    e("s_branch L_hok")
stamp("hok")
if OPT["hp2"]:
    e("s_setprio 2")
for s in range(HD):
    f2_h(s)
def f2_read1(k):
    s, c, i = k // 4, (k // 2) % 2, k % 2
    if k % 4 == 0:
        vq.wait(("w", s))
    e(f"ds_read_b64_tr_b16 {vr(F2A+8*(s % 2)+4*c+2*i,2)}, v{V_TR2}{off((s % 6)*2048 + c*1024 + i*512)}")
    lq.issue(("r", s, c))
G, nr, nh, nd = OPT["g2"], 0, HD, 6
while nr < 8:
    f2_read1(nr); nr += 1
for m in range(88):
    s, u = divmod(m, 4)
    c, tb = u >> 1, u & 1
    if m % G == 0:
        last = min(m + G, 88) - 1
        ls, lc = last // 4, (last % 4) >> 1
        e(f"s_waitcnt vmcnt({vq.left(('h', ls))}) lgkmcnt({lq.left(('r', ls, lc))})")
    mf32(ACC + 16 * c + 32 * tb, F2A + 8 * (s % 2) + 4 * c, F2B + 8 * (s % HD) + 4 * tb, ACC + 16 * c + 32 * tb if s else None)
    end = m % G == G - 1
    n = 0
    while nr < 88 and nr // 2 - 4 <= (m - 1) // 2 and (end or n < 2) and (end or nr % 4):
        f2_read1(nr); nr += 1; n += 1
    if end:
        while nh < 22 and nh - HD <= (m - 3) // 4:
            f2_h(nh); nh += 1
        while nd < 22 and nd - 6 <= (m - 2) // 4:
            f2_dma(nd); nd += 1
stamp("f2")

SLOT = [0, 1, 2, 0, 0, 1, 2, 0]
def piece_loads(t):
    for s_ in range(4):
        e(f"buffer_load_dwordx4 {vr(PC+16*SLOT[t]+4*s_,4)}, v{V_TB}, {sr(SRD_WS,4)}, s{(S_OB, S_U)[t // 4]+s_} offen{off((t % 4)*1024)} sc1")
def wait_duty(mask, sleep):
    top = label("wd")
    e(f"""{top}:
ds_read_b32 v{RL}, v{V_FLR} offset:{F_DUTY}
ds_read_b32 v{RL+1}, v{V_FLR} offset:{F_SLOW}
s_waitcnt lgkmcnt(0)
s_setprio 2
v_lshl_or_b32 v{RL}, v{RL+1}, 1, v{RL}
v_cmp_gt_u32 vcc, 2, v{RL}
s_setprio 0
s_nop 0
s_mov_b32 s{S_T5}, vcc_lo
s_and_b64 vcc, vcc, {mask}""")
    if mask:
        retry(top, sleep)
def consume(t, younger, sleep):
    chk, again = label("chk"), label("again")
    if t == 7 and OPT["inl"]:
        e(f"s_branch {chk}\n{again}:\ns_sub_u32 s3, s3, 1\ns_cbranch_scc1 L_exit")
        piece_loads(t)
    e(f"{chk}:")
    for n in range(4):
        d = PC + 16 * SLOT[t] + 4 * n
        e(f"s_waitcnt vmcnt({younger + 3 - n})")
        if n == 0: e("s_setprio 2")
        e(f"v_max3_u32 v{V_TMP}, v{d}, v{d+3}, v{V_TMP}" if n else f"v_max_u32 v{V_TMP}, v{d}, v{d+3}")
    e(f"v_cmp_eq_u32 vcc, -1, v{V_TMP}\ns_setprio 0\ns_cbranch_vccnz {again}")
    with outofline():
      if not (t == 7 and OPT["inl"]):
        e(f"{again}:\ns_sub_u32 s3, s3, 1\ns_cbranch_scc1 L_exit")
        if sleep:
            e(f"s_sleep {sleep}")
        piece_loads(t)
        if younger:
            e("s_waitcnt vmcnt(0)")
        e(f"s_branch {chk}")
    for s_ in range(4):
        for ee in range(2):
            c = ACC + 8 * (t // 4) + 4 * ee
            mf16(c, TA + 32 * (t % 4) + 8 * s_ + 4 * ee, PC + 16 * SLOT[t] + 4 * s_, c)
def store_out(tb):
    e("s_nop 5\ns_setprio 2")
    for k in range(4):
        e(f"v_cvt_pk_bf16_f32 v{XR+4*tb+k}, v{ACC+8*tb+2*k}, v{ACC+8*tb+2*k+1}")
    e(f"buffer_store_dwordx4 {vr(XR+4*tb,4)}, v{V_OUT}, {sr(SRD_OUT,4)}, s{S_XO+tb} offen{' sc1' if OPT['osc'] >> tb & 1 else ''}")

duty(4, 2)
if OPT["dtry"] & 1:
    duty(7, 0)
e("s_nop 7")
for tb in range(2):
    e(f"buffer_load_dwordx4 {vr(XR+4*tb,4)}, v{V_OUT}, {sr(SRD_X,4)}, s{S_XO+tb} offen")
for tb in range(2):
    if tb:
        e("s_waitcnt lgkmcnt(6)")
    for ct in range(2):
        for a in range(4):
            e(f"ds_write_b128 v{(V_DW0, V_DW1)[tb]}, {vr(ACC+32*tb+16*ct+4*a,4)}{off(ct*4096 + a*1024)}")
e(f"ds_write_b32 v{V_FLW}, v{V_ONE} offset:{F_D0}\ns_waitcnt lgkmcnt(0)")
for k in range(4):
    e(f"s_add_u32 s{S_U+k}, s{S_OB+k}, 32768")
for t in range(3):
    piece_loads(t)
lds_spin(V_FLR, F_D0, RL, "v_cmp_ne_u32", 1, sleep=1, prio=(2, 0))
def exchange_sum(tb):
    for w in range(4):
        for h in range(2):
            e(f"ds_read_b128 {vr(RT+8*w+4*h,4)}, v{(V_DR0, V_DR1)[tb]}{off(w*(8192, H_STR)[tb] + h*512)}")
    e("s_waitcnt vmcnt(12) lgkmcnt(4)\ns_setprio 2")
    for k in range(4):
        e(f"v_pk_add_f32 {vr(RT+2*k,2)}, {vr(RT+2*k,2)}, {vr(RT+8+2*k,2)}")
    e("s_waitcnt lgkmcnt(0)")
    for k in range(4):
        e(f"v_pk_add_f32 {vr(RT+16+2*k,2)}, {vr(RT+16+2*k,2)}, {vr(RT+24+2*k,2)}")
    for k in range(4):
        e(f"v_pk_add_f32 {vr(RT+2*k,2)}, {vr(RT+2*k,2)}, {vr(RT+16+2*k,2)}")
    for k in range(4):
        e(f"v_dot2_f32_bf16 v{ACC+8*tb+2*k}, v{XR+4*tb+k}, s{S_C10}, v{RT+2*k}")
        e(f"v_dot2_f32_bf16 v{ACC+8*tb+2*k+1}, v{XR+4*tb+k}, s{S_C01}, v{RT+2*k+1}")
    e("s_setprio 0")
exchange_sum(0)
if not OPT["defer"]:
    exchange_sum(1)
stamp("d0")
if OPT["dtry"] & 2:
    duty(7, 0)
consume(0, 8, OPT["csl"])
piece_loads(3)
consume(1, 8, OPT["csl"])
consume(2, 4, OPT["csl"])
wait_duty(0, 0)
e(f"s_bitcmp1_b32 s{S_T5}, s{S_HW}\ns_cselect_b32 s{S_IT}, s{S_IT}, 2")
consume(3, 0, OPT["csl"])
store_out(0)
e("s_setprio 0")
stamp("tb0")
duty(7, 2)
wait_duty(7, 4)
piece_loads(4)
piece_loads(5)
if OPT["defer"]:
    stamp("pre")
    wait_duty(8, 2)
    piece_loads(6)
    exchange_sum(1)
    consume(4, 8, 0)
    consume(5, 4, 0)
    if OPT["t7dl"]:
        e(f"s_sleep {OPT['t7dl']}")
    piece_loads(7)
else:
    e(f"s_bitcmp1_b32 s{S_T5}, 3\ns_cbranch_scc1 L_no6")
    piece_loads(6)
    e("L_no6:")
    consume(4, 4, OPT["csl"])
    e(f"s_bitcmp1_b32 s{S_T5}, 3\ns_cbranch_scc1 L_no7")
    piece_loads(7)
    e("L_no7:")
    consume(5, 0, OPT["csl"])
    stamp("pre")
    e(f"s_bitcmp1_b32 s{S_T5}, 3\ns_cbranch_scc0 L_have7")
    wait_duty(8, 2)
    piece_loads(6)
    if OPT["t7dl"]:
        e(f"s_sleep {OPT['t7dl']}")
    piece_loads(7)
    e("L_have7:")
consume(6, 4, 0)
consume(7, 0, OPT["t7sl"])
stamp("fbar")
store_out(1)
e("s_branch L_fin" if OPT["stamps"] or OPT["hold"] != -1 else "s_endpgm")

S_KO = 48
def a_setup():
    e(f"""v_lshlrev_b32 v1, 4, v0
v_and_b32 v4, 15, v0
v_lshlrev_b32 v4, 4, v4
v_lshrrev_b32 v6, 5, v0
v_lshl_add_u32 v4, v6, 8, v4
v_bfe_u32 v6, v0, 4, 1
v_lshl_add_u32 v2, v6, 9, v4
s_lshl_b32 s{S_T2}, s{S_W}, 13
s_add_u32 s{S_T2}, s{S_T2}, {L_P1}
v_add_u32 v5, s{S_T2}, v1
v_and_b32 v6, 31, v0
s_lshl_b32 s{S_T2}, s{S_W}, 7
s_add_u32 s{S_T2}, s{S_T2}, {L_LS}
v_lshl_add_u32 v6, v6, 2, s{S_T2}
v_mov_b32 v7, v{V_FLR}
v_add_u32 v252, {L_Q}, v1
s_lshl_b32 s{S_T0}, s{S_W}, 15
s_mov_b32 s{S_EX}, 0x0000ffff
s_mov_b32 s{S_EX+1}, 0x0000ffff
s_lshl_b32 s{S_T2}, s{S_W}, 11
s_add_u32 s{S_XO}, s{S_T2}, {L_P2}
s_mul_i32 s{S_T2}, s{S_W}, 384
s_add_u32 s{S_XO+1}, s{S_T2}, 2048
s_lshl4_add_u32 s{S_T2}, s{S_G}, s{S_J}
s_lshl2_add_u32 s{S_T2}, s{S_T2}, s{S_W}
s_lshl_b32 s{S_T2}, s{S_T2}, 10
s_add_u32 s{S_PC}, s{S_T2}, {hex(WS_O)}
s_add_u32 s{S_PC+1}, s{S_PC}, 32768
s_movk_i32 s{S_CLS}, 0x207
s_mov_b32 s{S_TA}, 0x07060302""")
    for b in range(16):
        e(f"s_add_u32 s{S_T2}, s{S_C}, {b}\ns_and_b32 s{S_T2}, s{S_T2}, 15\ns_lshl_b32 s{S_T2}, s{S_T2}, 11\ns_add_u32 s{S_KO+b}, s{S_T2}, s{S_T0}")
e(".p2align 6\nL_afront:")
stamp("karg")
if OPT["eb"]:
    e("s_barrier")
common_setup()
e(f"""s_lshl_b32 s{S_T0}, s{S_W}, 3
s_xor_b32 s{S_T0}, s{S_T0}, 8
s_or_b32 s{S_T0}, s{S_T0}, s2
s_cmp_lt_u32 s{S_T0}, 8
s_cbranch_scc0 L_notag
s_memrealtime {sr(S_T0+1,2)}
v_mov_b32 v46, 0
v_mov_b32 v47, 0
s_waitcnt lgkmcnt(0)
s_or_b32 s{S_T0+1}, s{S_T0+1}, 1
v_mov_b32 v44, s{S_T0+1}
v_mov_b32 v45, s{S_T0+2}
s_mov_b64 exec, 1
buffer_atomic_cmpswap_x2 v[44:47], v46, {sr(SRD_DBG,4)}, 0 offen sc1
s_mov_b64 exec, -1
L_notag:
v_lshlrev_b32 v3, 4, v0
v_mov_b32 v48, -1
v_mov_b32 v49, -1
v_mov_b32 v50, -1
v_mov_b32 v51, -1
s_lshl_b32 s{S_T0}, s{S_W}, 10
s_add_u32 s{S_T0}, s{S_T0}, {L_LS}
v_add_u32 v6, s{S_T0}, v3
ds_write_b128 v6, v[48:51]
v_mov_b32 v52, 0""")
if not OPT["eb"]:
    e(f"v_lshlrev_b32 v6, 2, v0\nv_add_u32 v6, {L_FLG}, v6\nds_write2st64_b32 v6, v52, v52 offset1:1")
unit_addr(0, 2)
unit_addr(1, 3)
e(f"s_cmp_eq_u32 s{S_W}, 0\ns_cbranch_scc1 L_kv")
def v_init():
    e(f"""v_mov_b32 v42, 0
s_mov_b32 exec_lo, 0x00110000
s_mov_b32 exec_hi, 0x00110000
v_mov_b32 v42, s{S_C11}
s_mov_b64 exec, -1
v_mov_b32 v43, v42""")
    for i in range(0, 128, 2):
        e(f"v_mov_b64 {vr(VV+i,2)}, v[42:43]")
if OPT["bal"] == 2:
    e(f"v_and_b32 v227, 0xfff, v1\ns_lshl_b32 s{S_T0}, s{S_W}, 6\nv_subrev_u32 v2, s{S_T0}, v2\nv_and_b32 v4, 15, v4\ns_add_u32 s{S_T5}, s{S_W}, 1\ns_min_u32 s{S_T5}, s{S_T5}, 3")
    unit_addr(2, f"s{S_T5}")
v_init()
e("v_mov_b32 v226, v1")
a_setup()
srd(SRD_W, P_WQ, 512 * 1024)
e(f"""v_lshrrev_b32 v224, 3, v0
v_lshlrev_b32 v224, 10, v224
v_and_b32 v225, 7, v0
v_lshl_add_u32 v224, v225, 6, v224
s_lshl1_add_u32 s{S_T0}, s{S_C}, s{S_W}
s_sub_u32 s{S_T0}, s{S_T0}, 2
s_lshl_b32 s{S_T0}, s{S_T0}, 13
s_and_b32 s{S_T1}, s{S_J}, 4
s_lshl_b32 s{S_T1}, s{S_T1}, 7
s_add_u32 s{S_T0}, s{S_T0}, s{S_T1}
s_cmp_eq_u32 s{S_W}, 1
s_cselect_b32 s{S_T0}, 0x1000000, s{S_T0}""")
stamp("aset")
if not OPT["eb"]:
    e("s_waitcnt lgkmcnt(0)\ns_barrier")
if OPT["pf_wq"] == 4:
    e(f"buffer_load_dword v225, v224, {sr(SRD_W,4)}, s{S_T0} offen")
unit_loads(8, 0, 226)
if OPT["pf_wq"] == 5:
    e(f"buffer_load_dword v225, v224, {sr(SRD_W,4)}, s{S_T0} offen")
unit_loads(24, 1, 226)
if OPT["bal"] == 2:
    unit_loads(40, 2, 227)
if OPT["pf_wq"] == 1:
    e(f"buffer_load_dword v225, v224, {sr(SRD_W,4)}, s{S_T0} offen")
stamp("xis")
if OPT["bal"] == 2:
    ln_centre([8, 24, 40], [8 + (OPT["pf_wq"] in (1, 5)), 4 + (OPT["pf_wq"] == 1), 0 + (OPT["pf_wq"] == 1)], V_WR, 56, 60, 64)
    ln_stats(3, V_ST, 56, 60)
else:
    ln_centre([8, 24], [4 + (OPT["pf_wq"] in (1, 5)), 0 + (OPT["pf_wq"] == 1)], V_WR, 56, 58, 60)
    ln_stats(2, V_ST, 56, 58)
e(f"ds_write_b32 v{V_FLW}, v{V_ONE} offset:{F_LNA}")
stamp("lnB")
def kv_poll():
    e(f"""v_lshrrev_b32 v3, 3, v0
v_lshlrev_b32 v3, 11, v3
v_and_b32 v8, 7, v0
v_lshl_add_u32 v3, v8, {OPT['fsh']}, v3""")
    for k in range(4):
        e(f"s_mov_b32 s{S_U+k}, {hex(WS_FL + k*16384)}")
    if OPT["warm"]:
        e(f"s_lshl_b32 s{S_T2}, s{S_C}, 12\nv_lshl_add_u32 v17, v0, 6, s{S_T2}")
    if OPT["pw"]:
        lds_spin(7, F_KVS, 8, "v_cmp_ne_u32", 1, sleep=1)
        read_tag(10, 8)
    if OPT["pgate"]:
        lds_spin(7, (F_WQ, F_WQI, F_WQ0)[OPT["pgate"] - 1], 8, "v_cmp_ne_u32", 1)
    if OPT["pdl"]:
        e(f"s_sleep {OPT['pdl']}")
    e("L_kvpoll:")
    for k in range(4):
        e(f"buffer_load_dwordx2 {vr(8+2*k,2)}, v3, {sr(SRD_WS,4)}, s{S_U+k} offen sc1")
    if OPT["warm"]:
        e(f"s_mov_b64 {sr(S_T0+1,2)}, exec\ns_mov_b64 exec, -1\nbuffer_load_dword v16, v17, {sr(SRD_WS,4)}, 0 offen sc1\ns_mov_b64 exec, {sr(S_T0+1,2)}")
    for k in range(4):
        e(f"s_waitcnt vmcnt({3-k+OPT['warm']})\nv_cmp_ne_u64 {'vcc' if k == 0 else sr(S_U+2+2*k,2)}, {sr(S_TAG,2)}, {vr(8+2*k,2)}")
    e(f"s_or_b64 vcc, vcc, {sr(S_U+4,2)}\ns_or_b64 vcc, vcc, {sr(S_U+6,2)}\ns_or_b64 vcc, vcc, {sr(S_U+8,2)}")
    retry("L_kvpoll", OPT["psl"], (lambda: e("s_mov_b64 exec, vcc")) if OPT["mask"] else None)
    e(f"s_mov_b64 exec, -1\nds_write_b32 v7, v255 offset:{F_KVOK}")
if OPT["pw"]:
    e(f"s_cmp_eq_u32 s{S_W}, {OPT['pw']}\ns_cbranch_scc0 L_kvwait")
    kv_poll()
    e("s_branch L_kvok")
else:
    e("s_branch L_kvwait")
WF, XF, KA = 72, 136, 208
e("L_kv:\ns_setprio 3")
e(f"""v_lshlrev_b32 v43, 3, v7
v_bfe_u32 v42, v0, 2, 2
v_lshl_add_u32 v43, v42, 5, v43
v_lshrrev_b32 v42, 4, v0
v_lshl_add_u32 v43, v42, 8, v43
v_add_u32 v43, {L_WKV}, v43
v_mul_u32_u24 v44, {X_STR}, v42
v_lshl_add_u32 v44, v5, 4, v44
s_lshl_b32 s{S_T0}, s{S_T3}, 8
s_add_u32 s{S_T0}, s{S_T0}, {L_X}
v_add_u32 v44, s{S_T0}, v44
s_lshl_b32 s{S_T0}, s{S_T3}, 6
s_add_u32 s{S_T0}, s{S_T0}, {L_RSTD}
v_lshl_add_u32 v45, v5, 2, s{S_T0}
v_lshl_add_u32 v46, v42, 4, s{S_T0}
v_mov_b32 v47, {L_FLG + F_TAG}
s_lshr_b32 s{S_T1}, s{S_T3}, 1
s_lshl1_add_u32 s{S_T0}, s{S_G}, s{S_T1}
s_lshr_b32 s{S_T1}, s{S_J}, 2
s_lshl1_add_u32 s{S_T0}, s{S_T0}, s{S_T1}
s_and_b32 s{S_T1}, s{S_T3}, 1
s_lshl1_add_u32 s{S_T0}, s{S_T0}, s{S_T1}
s_lshl_b32 s{S_T5}, s{S_T0}, 9
s_lshl_b32 s{S_T4}, s{S_J}, {OPT['fsh']}
s_add_u32 s{S_T4}, s{S_T4}, s{S_FLB}""")
if not OPT["eb"]:
    e("s_waitcnt lgkmcnt(0)\ns_barrier")
if not OPT["x0late"] and OPT["bal"] < 2:
    unit_loads(8, 0)
    if not OPT["bal"]:
        unit_loads(24, 1)
for s in range(16):
    if s % 4 == 0:
        e(f"s_waitcnt vmcnt({(12 if OPT['x0late'] else 20 - 4 * min(OPT['bal'], 2)) - s}) lgkmcnt(6)")
        if s == 0: stamp("wkv")
    for i in range(2):
        e(f"ds_read_b64_tr_b16 {vr(WF+4*s+2*i,2)}, v43{off(s*1024 + i*128)}")
if OPT["x0late"]:
    unit_loads(8, 0)
    unit_loads(24, 1)
stamp("trd")
e(f"s_bitcmp1_b32 s{S_J}, 2\ns_cbranch_scc1 L_kv_v")
def kv_tile(isv):
    lq = Queue("lgkmcnt")
    rs, ok = label("rs"), label("rsok")
    rd = f"ds_read_b32 v53, v{V_FLR} offset:{F_LN}\n" + ("ds_read_b128 v[68:71], v46" if isv else "ds_read_b32 v68, v45")
    top = label("lnp")
    e(f"{top}:\ns_sub_u32 s3, s3, 1\ns_cbranch_scc1 L_exit\nds_read_b32 v53, v{V_FLR} offset:{F_LNP}\ns_waitcnt lgkmcnt(0)\nv_cmp_ne_u32 vcc, 1, v53\ns_nop 0\ns_cbranch_vccnz {top}")
    stamp("bar1")
    def xr(s):
        e(f"ds_read_b128 {vr(XF+4*s,4)}, v44{off(s*4*X_STR)}")
        lq.issue(s)
    for s in range(8):
        xr(s)
    for s in range(16):
        if s + 8 < 16:
            xr(s + 8)
        elif s == 12:
            e(rd)
            lq.issue(); lq.issue()
        lq.wait(s)
        if isv:
            mf16(KA, XF + 4 * s, WF + 4 * s, KA if s else None)
        else:
            mf16(KA, WF + 4 * s, XF + 4 * s, KA if s else None)
    e(f"{ok}:\ns_waitcnt lgkmcnt(0)\nv_cmp_ne_u32 vcc, 1, v53\ns_nop 4\ns_cbranch_vccnz {rs}")
    with outofline():
        e(f"{rs}:\ns_sub_u32 s3, s3, 1\ns_cbranch_scc1 L_exit\n{rd}\ns_branch {ok}")
    for k in range(4):
        e(f"v_mul_f32 v{KA+k}, v{KA+k}, v{68 + (k if isv else 0)}")
    e(f"""v_cvt_pk_bf16_f32 v48, v{KA}, v{KA+1}
v_cvt_pk_bf16_f32 v49, v{KA+2}, v{KA+3}
s_nop 1
v_permlane32_swap_b32 v48, v50
v_permlane32_swap_b32 v49, v51
s_mov_b32 exec_hi, 0
buffer_store_dwordx4 v[48:51], v3, {sr(SRD_WS,4)}, s{S_T5} offen sc1
s_mov_b32 exec_hi, -1""")
kv_tile(0)
e("s_branch L_kv_done\nL_kv_v:")
kv_tile(1)
e("L_kv_done:")
stamp("kvst")
e(f"buffer_load_dwordx2 v[54:55], v52, {sr(SRD_DBG,4)}, 0 offen sc1")
e(f"ds_write_b32 v{V_FLR}, v{V_ONE} offset:{F_KVST}\ns_setprio {OPT['p0']}")
if OPT["bal"]:
    v_init()
    a_setup()
else:
    ln_centre([8], [6], V_WR, 56, 58, 60)
    v_init()
e(f"""L_tagchk:
s_waitcnt vmcnt(0)
v_cmp_eq_u32 vcc, 0, v54
s_nop 0
s_cbranch_vccnz L_tag
s_mov_b64 exec, 1
buffer_store_dwordx2 v[54:55], v52, {sr(SRD_WS,4)}, s{S_T4} offen sc1
s_mov_b64 exec, -1""")
with outofline():
    e(f"L_tag:\ns_sub_u32 s3, s3, 1\ns_cbranch_scc1 L_exit\ns_sleep 2\nbuffer_load_dwordx2 v[54:55], v52, {sr(SRD_DBG,4)}, 0 offen sc1\ns_branch L_tagchk")
e(f"ds_write_b64 v47, v[54:55]\nds_write_b32 v{V_FLR}, v{V_ONE} offset:{F_KVS}")
stamp("kvfl")
if OPT["bal"] >= 2:
    pass
elif OPT["bal"]:
    e(f"s_setprio {OPT['p1']}")
    ln_centre([8], [1], V_WR, 56, 57, 60)
    ln_stats(1, V_ST, 56, 57)
else:
    ln_centre([24], [1], V_WR + 1, 57, 59, 60)
    ln_stats(2, V_ST, 56, 58)
e(f"ds_write_b32 v{V_FLW}, v{V_ONE} offset:{F_LNA}")
stamp("lnB")
e(f"""v_readfirstlane_b32 s{S_TAG}, v54
v_readfirstlane_b32 s{S_TAG+1}, v55
s_setprio 0""")
if not OPT["bal"]:
    a_setup()
if not OPT["pw"]:
    kv_poll()
    e("s_branch L_kvok")
e(f"L_kvwait:\ns_sub_u32 s3, s3, 1\ns_cbranch_scc1 L_exit\nds_read_b32 v8, v7 offset:{F_KVOK}\ns_waitcnt lgkmcnt(0)\nv_cmp_ne_u32 vcc, 1, v8\ns_nop 0\ns_cbranch_vccnz L_kvwait\nL_kvok:")
stamp("flags")
vq = Queue("vmcnt")
NB0 = OPT["nb0"]
def k_load(b):
    vq.issue(("K", b))
    return [f"buffer_load_dwordx4 {vr(VK+4*b,4)}, v2, {sr(SRD_WS,4)}, s{S_KO+b} offen sc1"]
def v_load(b):
    vq.issue(); vq.issue(("V", b))
    return ([f"s_mov_b64 exec, {sr(S_EX,2)}"]
            + [f"buffer_load_dwordx4 {vr(VV+8*b+4*i,4)}, v4, {sr(SRD_WS,4)}, s{S_KO+b} offen{off(1024+512*i)} sc1" for i in range(2)]
            + ["s_mov_b64 exec, -1"])
for b in range(NB0):
    e("\n".join(k_load(b) + v_load(b)))
if NB0 == 16:
    e(f"ds_write_b32 v253, v255 offset:{F_KVIS}")
stamp("kvis")
if OPT["q0"]:
    e(f"v_mov_b32 v254, {L_FLG}")
lds_spin(254 if OPT["q0"] else 7, F_Q, 3, "v_cmp_ne_u32", 1)
e(f"ds_read_b128 {vr(VQ,4)}, v252\ns_setprio 1\ns_waitcnt vmcnt({vq.left(('K', 0))}) lgkmcnt(0)")
stamp("go")
mf32(SA, VK, VQ)
e("s_nop 11")

ORDER = "e0 d7 a e1 e2 e3 b e4 e5 c0 c1 Q e6 e7 c2 e8 c3 e9 e10 e11 c4 e12 e13 c5 e14 e15 c6".split()
def pack(d, a):
    e(f"v_perm_b32 v{d}, v{a+1}, v{a}, s{S_TA}" if OPT["perm"] else f"v_cvt_pk_bf16_f32 v{d}, v{a}, v{a+1}")
def flush(t):
    o = (t % 4) * 2048 + (t // 4) * (L_P2 - L_P1)
    return [f"ds_write_b128 v5, {vr(VO,4)}{off(o)}", f"ds_write_b128 v5, {vr(VO+4,4)}{off(o+1024)}",
            f"ds_write_b32 v6, v{VO+8}{off(t*512)}"]
for i in range(128):
    t, b = divmod(i, 16)
    S, T = (SA, SB) if i % 2 == 0 else (SB, SA)
    pb = (b - 1) % 16
    after = {}
    if t == 0:
        if b + NB0 < 16:
            after["a"] = k_load(b + NB0)
        after["b"] = [f"s_waitcnt vmcnt({min(vq.left(('K', b+1)), vq.left(('V', b))) if b < 15 else 0})"]
        if b + NB0 < 16:
            after["Q"] = v_load(b + NB0)
        if b + NB0 == 16 - OPT["kvlead"] and NB0 < 16:
            after["e9"] = [f"ds_write_b32 v253, v255 offset:{F_KVIS}"]
    if b == 14 and t < 7:
        after["Q"] = [f"ds_read_b128 {vr(VQ,4)}, v252{off((t+1)*1024)}"]
    if b == 15 and t < 7:
        after["a"] = ["s_waitcnt lgkmcnt(0)"]
    if b == 0 and t > 0:
        fl = flush(t - 1)
        after["e11"], after["e12"], after["e14"] = [fl[0]], [fl[1]], [fl[2]]
    if OPT["q0"] and i == 12:
        after["a"] = [f"ds_read_b32 v3, v7 offset:{F_Q}"]
    if OPT["q0"] and i == 13:
        after["a"] = ["s_waitcnt lgkmcnt(0)"]
        after["e7"] = ["v_cmp_ne_u32 vcc, 1, v3"]
        after["e8"] = ["s_cbranch_vccnz L_qslow", "L_qok:"]
    if i == 126:
        after["a"] = [f"ds_read_b32 v3, v253 offset:{F_DUTY}"]
    if t == 4 and b == 6:
        after["a"] = [f"ds_read_b32 v3, v7 offset:{F_G1}"]
    if t == 4 and b == 7:
        after["a"] = ["s_waitcnt lgkmcnt(0)"]
        after["e7"] = ["v_cmp_ne_u32 vcc, 1, v3"]
        after["e8"] = ["s_cbranch_vccnz L_g1slow", "L_g1ok:"]
    for tok in ORDER:
        k = tok[0]
        if k == "e":
            n = int(tok[1:]); e(f"v_exp_f32 v{S+n}, v{S+n}")
        elif k == "c":
            n = int(tok[1:]); pack(S+(n//4)*8+n%4, S+2*n)
        elif k == "d":
            if i: pack(T+11, T+14)
        elif k == "a":
            if i: mf32(VO, VV + 8 * pb, T, None if b == 1 else VO)
        elif k == "b":
            if i: mf32(VO, VV + 8 * pb + 4, T + 8, VO)
        elif k == "Q":
            if i < 127:
                mf32(T, VK + 4 * ((b + 1) % 16), VQ)
        for x in after.get(tok, []):
            e(x)
    if b == 15:
        stamp(f"p{t}")
with outofline():
    if OPT["q0"]:
        e("L_qslow:")
        lds_spin(7, F_Q, 3, "v_cmp_ne_u32", 1, sleep=1)
        e("s_branch L_qok")
    e("L_g1slow:")
    lds_spin(7, F_G1, 3, "v_cmp_ne_u32", 1, sleep=1)
    e("s_branch L_g1ok")
pack(SB+11, SB+14)
mf32(VO, VV + 8 * 15, SB, VO)
e("s_nop 0")
mf32(VO, VV + 8 * 15 + 4, SB + 8, VO)
e(f"""s_waitcnt lgkmcnt(0)
v_readfirstlane_b32 s{S_IT}, v3
v_mov_b32 v{V_L16}, v1
v_mov_b32 v{V_FLR}, v7
v_add_u32 v{V_PART}, s{S_XO}, v1
v_add_u32 v{V_LS}, s{S_XO+1}, v6
s_getpc_b64 {sr(S_RET,2)}
L_apc:
s_add_u32 s{S_RET}, s{S_RET}, L_aduty_done-L_apc
s_addc_u32 s{S_RET+1}, s{S_RET+1}, 0
s_mov_b32 s{S_BLK}, 1
s_cmp_eq_u32 s{S_IT}, 1
s_nop 0""")
for x in flush(7):
    e(x)
stamp("fbar")
e(f"""s_cbranch_scc0 L_aduty
s_mov_b32 s{S_PC}, s{S_PC+1}""")
cur[0].extend(duty_code)
e("L_aduty_done:")
with outofline():
    e(f"L_aduty:\ns_cmp_eq_u32 s{S_IT}, 0\ns_cbranch_scc0 L_aduty_done")
    lds_spin(7, F_PZ, 3, "v_cmp_ne_u32", 1, sleep=4)
    e(f"""v_subrev_u32 v{V_PART}, {L_P2 - L_P1}, v{V_PART}
v_subrev_u32 v{V_LS}, 2048, v{V_LS}
s_call_b64 {sr(S_RET,2)}, L_duty
s_call_b64 {sr(S_RET,2)}, L_duty
s_branch L_aduty_done""")
stamp("adone")
e(f"""s_setprio 0
L_status:
s_sleep 4
ds_read_b32 v3, v7 offset:{F_DUTY}
ds_read_b32 v4, v7 offset:{F_SLOW}
s_waitcnt lgkmcnt(0)
v_cmp_ne_u32 vcc, 0, v4
s_nop 0
s_cbranch_vccnz L_slow
v_cmp_ne_u32 vcc, 2, v3
s_nop 0""")
retry("L_status", 0)
e("L_fin:")
if OPT["hold"] == "end":
    e("s_waitcnt vmcnt(0)")
    if OPT["amp"]:
        stamp("fin")
        e(f"s_sub_u32 s{S_ST0+8}, s{S_ST0+8}, s{S_ST0+9}\ns_mul_i32 s{S_ST0+8}, s{S_ST0+8}, 10\nL_amp:\ns_memrealtime {sr(S_STMP,2)}\ns_waitcnt lgkmcnt(0)\ns_sub_u32 s{S_STMP}, s{S_STMP}, s{S_ST0+9}\ns_sub_u32 s{S_STMP}, s{S_STMP}, {OPT['holdT']}\ns_cmp_lt_i32 s{S_STMP}, s{S_ST0+8}\ns_cbranch_scc1 L_amp")
    stamp("end")
if OPT["stamps"]:
    e(f"s_waitcnt vmcnt(0)\ns_memtime {sr(S_STMP,2)}\ns_waitcnt lgkmcnt(0)")
    e(f"s_lshl_b32 s{S_T0}, s{S_G}, 3\ns_add_u32 s{S_T0}, s{S_T0}, s{S_J}\ns_lshl_b32 s{S_T0}, s{S_T0}, 3\ns_add_u32 s{S_T0}, s{S_T0}, s{S_W}\ns_lshl_b32 s{S_T0}, s{S_T0}, 6\ns_add_u32 s{S_T0}, s{S_T0}, {hex(WS_ST)}")
    for k in range(10):
        e(f"v_mov_b32 v{8+k}, s{S_ST0+k}")
    e(f"v_mov_b32 v18, s{S_STMP}\ns_memrealtime {sr(S_STMP,2)}\ns_waitcnt lgkmcnt(0)\nv_mov_b32 v19, s{S_STMP}\nv_mov_b32 v1, 0\ns_mov_b64 exec, 1")
    for k in range(3):
        e(f"buffer_store_dwordx4 {vr(8+4*k,4)}, v1, {sr(SRD_WS,4)}, s{S_T0} offen{off(16*k)}")
e("L_exit:\ns_endpgm")
out += tail_code
tail_code.clear()
e("L_code_end:")

def wave_sync():
    e(f"s_add_u32 s{S_T4}, s{S_T4}, 1\nv_mov_b32 v3, s{S_T4}\nds_write_b32 v253, v3 offset:{F_AS}")
    lds_spin(7, F_AS, 3, "v_cmp_gt_u32", f"s{S_T4}", sleep=1)
e("L_slow:")
lds_spin(7, F_PZ, 3, "v_cmp_ne_u32", 1, sleep=4)
e(f"""s_lshl_b32 s{S_T0}, s{S_W}, 8
s_add_u32 s{S_T0}, s{S_T0}, {L_MB}
v_lshl_add_u32 v2, v0, 2, s{S_T0}
v_and_b32 v4, 31, v0
v_lshlrev_b32 v4, 2, v4
v_add_u32 v4, {L_MB}, v4
v_add_u32 v6, {L_SL - L_LS}, v6
v_add_u32 v254, {L_P1}, v1
s_lshl_b32 s{S_T2}, s{S_G}, 16
s_lshl_b32 s{S_T3}, s{S_J}, 12
s_add_u32 s{S_T2}, s{S_T2}, s{S_T3}
s_add_u32 s{S_T2}, s{S_T2}, {hex(WS_O)}
s_mov_b32 s{S_IT}, 0
s_mov_b32 s{S_T4}, 0
L_slow_loop:
ds_read_b128 {vr(VQ,4)}, v252
v_mov_b32 v3, 0xff800000
s_waitcnt lgkmcnt(0)
v_add_u32 v252, 1024, v252""")
for b in range(16):
    mf32(SA, VK + 4 * b, VQ)
    e("s_nop 11")
    for k in range(8):
        e(f"v_max3_f32 v3, v3, v{SA+2*k}, v{SA+2*k+1}")
e("ds_write_b32 v2, v3")
wave_sync()
for k in range(8):
    e(f"ds_read_b32 v{SA+k}, v4{off(128*k)}")
e("s_waitcnt lgkmcnt(0)")
e(f"v_max3_f32 v3, v{SA}, v{SA+1}, v{SA+2}\nv_max3_f32 v3, v3, v{SA+3}, v{SA+4}\nv_max3_f32 v3, v3, v{SA+5}, v{SA+6}\nv_max_f32 v3, v3, v{SA+7}")
for k in range(16):
    e(f"v_sub_f32 v{SB+k}, 0, v3")
e("s_nop 1")
for b in range(16):
    mf32(SA, VK + 4 * b, VQ, SB)
    e("s_nop 11")
    for k in range(16):
        e(f"v_exp_f32 v{SA+k}, v{SA+k}")
    for n in range(8):
        e(f"v_cvt_pk_bf16_f32 v{SA+(n//4)*8+n%4}, v{SA+2*n}, v{SA+2*n+1}")
    e("s_nop 1")
    mf32(VO, VV + 8 * b, SA, VO if b else None)
    mf32(VO, VV + 8 * b + 4, SA + 8, VO)
e("s_nop 11")
for x in flush(0):
    e(x)
wave_sync()
e(f"s_cmp_eq_u32 s{S_W}, 0\ns_cbranch_scc0 L_slow_next")
reduce_piece(254, 6)
e("s_waitcnt lgkmcnt(8)")
reduce_math(0)
for k in range(4):
    e(f"v_min_u32 v{OB+k}, -2, v{OB+k}")
e(f"""s_lshr_b32 s{S_T0}, s{S_IT}, 2
s_lshl_b32 s{S_T0}, s{S_T0}, 15
s_and_b32 s{S_T1}, s{S_IT}, 3
s_lshl_b32 s{S_T1}, s{S_T1}, 10
s_add_u32 s{S_T0}, s{S_T0}, s{S_T1}
s_add_u32 s{S_T0}, s{S_T0}, s{S_T2}
buffer_store_dwordx4 {vr(OB,4)}, v1, {sr(SRD_WS,4)}, s{S_T0} offen sc1
s_waitcnt vmcnt(0)
L_slow_next:
s_add_u32 s{S_IT}, s{S_IT}, 1
s_cmp_lt_u32 s{S_IT}, 8
s_cbranch_scc1 L_slow_loop
s_branch L_fin""")
out += tail_code

e(f""".section .rodata,"a"
.p2align 6
.amdhsa_kernel {NAME}_kernel
.amdhsa_next_free_vgpr 256
.amdhsa_next_free_sgpr 102
.amdhsa_accum_offset 256
.amdhsa_group_segment_fixed_size 0
.amdhsa_kernarg_size 88
.amdhsa_user_sgpr_count 2
.amdhsa_user_sgpr_kernarg_segment_ptr 1
.amdhsa_system_sgpr_workgroup_id_x 1
.end_amdhsa_kernel""")
open(sys.argv[1], "w").write("\n".join(out) + "\n")
```

```python
import sys, struct

NAME = "parallel_sum__grouped_kv_mqa__dense_activation_silu__prompt"
OPT = dict(hold=-1, holdT=6000, stamps=0, rt=0, force_slow=0, pf_code=1, pf_wq=1, pf_w1=0, pf_w2=1, f1wait=1, psl=0, pdl=0, fsh=6, chain=0, warm=0, bal=3, wq1=1, half=1, q0=1, w8sl=1, c6first=1, ksl=2, self=0, hpoll=2, d0pos=2, p1=0, pf_at=20, pf_mall=0, nb0=6, mask=1, kvlead=1, gate=0, pgate=2, csl=4, t6dl=12, t7dl=4, t7sl=0, flip=0, d1=8, hsl=8, hp1=0, hp2=0, pfa=0, dtry=3, mallw=1, pf1=6, pw=0, p0=3, npre=16, g2=3, g1h=3, order=3, g1l=4, eb=1, x0late=0, inl=1, amp=0, osc=0, defer=1, perm=0)
for a in sys.argv[2:]:
    k, v = a.split("=")
    OPT[k] = int(v) if v.lstrip("-").isdigit() else v
SITES = ["start"] + (OPT["stamps"].split(",") if OPT["stamps"] else [])
assert len(SITES) <= 9

def f2u(x):
    return struct.unpack("<I", struct.pack("<f", x))[0]
LOG2E = 1.4426950408889634

WS_KV = 0x0
WS_O = 0x40000
WS_H = 0x300000
WS_FL = 0xE00000
FL_H = 1024
WS_ST = 0xF00000
WS_SIZE = 0x1000000
H_GRP = 86 * 2048

H_STR = 12288
L_P1 = 49152
L_WKV = 65536
L_X = 81920
X_STR = 1040
L_P2 = L_X
L_DUMP = L_X + 32768
L_Q = L_X + 64 * X_STR
L_M = L_Q + 8192
L_LS = L_M
L_RSTD = L_M + 4096
L_FLG = L_M + 4608
L_MB = L_M + 5120
L_SL = L_M + 6144
LDS_BYTES = 163840
F_LN2, F_LNA, F_WQ, F_Q, F_KVIS, F_G1, F_D0, F_PZ, F_LN, F_DUTY, F_SLOW, F_AS, F_LNP, F_KVST, F_KVOK, F_TAG = 0, 16, 32, 48, 64, 80, 96, 112, 128, 144, 176, 192, 208, 224, 240, 256
F_WOS, F_WOR, F_WQ0, F_KVS, F_WQI = 272, 288, 304, 320, 336
assert L_SL + 512 <= LDS_BYTES and L_DUMP + 32768 <= L_Q

S_W, S_G, S_J, S_GL = 4, 5, 6, 7
SRD_X, SRD_WS = 8, 12
P_X, P_WQ, P_WK, P_WV, P_WO, P_BX, P_W1, P_W2 = 16, 18, 20, 22, 24, 26, 28, 30
P_OUT, P_DBG, P_WS = 32, 34, 36
S_TA, S_TB = 38, 39
S_TAG = P_BX
SRD_W, SRD_DBG, SRD_A, SRD_B, SRD_C, SRD_OUT = 40, 44, 48, 52, 56, 60
S_STEP, S_SOFF, S_RING, S_FLB = 64, 65, 66, 67
S_C10, S_C01, S_C11 = 68, 69, 70
S_T0, S_T1, S_T2, S_T3, S_T4, S_T5 = 71, 72, 73, 74, 75, 76
S_C = 77
S_EX = 78
S_U = 80
S_HW, S_IT = 88, 89
S_STMP = 90
S_ST0 = 92

VK, VV, SA, SB, VO, VQ = 8, 72, 200, 216, 232, 248

out, tail_code = [], []
cur = [out]
def e(s):
    for l in s.split("\n"):
        l = l.strip()
        if l:
            cur[0].append(l if l.endswith(":") or l.startswith(".") else "    " + l)
def note(s):
    cur[0].append("    ; " + s)
class outofline:
    def __enter__(self):
        self.prev, cur[0] = cur[0], []
    def __exit__(self, *a):
        tail_code.extend(cur[0]); cur[0] = self.prev

def vr(a, n=1):
    return f"v{a}" if n == 1 else f"v[{a}:{a+n-1}]"
def sr(a, n=1):
    return f"s{a}" if n == 1 else f"s[{a}:{a+n-1}]"
def mf32(d, a, b, c=None):
    e(f"v_mfma_f32_32x32x16_bf16 {vr(d,16)}, {vr(a,4)}, {vr(b,4)}, {vr(c,16) if c is not None else 0}")
def mf16(d, a, b, c=None):
    e(f"v_mfma_f32_16x16x32_bf16 {vr(d,4)}, {vr(a,4)}, {vr(b,4)}, {vr(c,4) if c is not None else 0}")
def srd(d, p, n):
    e(f"s_mov_b32 s{d}, s{p}\ns_mov_b32 s{d+1}, s{p+1}\ns_mov_b32 s{d+2}, {hex(n)}\ns_mov_b32 s{d+3}, 0x20000")
def off(n):
    return f" offset:{n}" if n else ""
uid = [0]
def label(p):
    uid[0] += 1
    return f"L_{p}_{uid[0]}"
def stamp(k):
    if OPT["amp"] == k:
        e(f"s_memrealtime {sr(S_STMP,2)}\ns_waitcnt lgkmcnt(0)\ns_mov_b32 s{S_ST0+8}, s{S_STMP}")
    if OPT["hold"] == k:
        lb = label("hold")
        e(f"{lb}:\ns_memrealtime {sr(S_STMP,2)}\ns_waitcnt lgkmcnt(0)\ns_sub_u32 s{S_STMP}, s{S_STMP}, s{S_ST0+9}\ns_cmp_lt_u32 s{S_STMP}, {OPT['holdT']}\ns_cbranch_scc1 {lb}")
    if OPT["stamps"] and k in SITES:
        e(f"s_mem{'real' if OPT['rt'] else ''}time {sr(S_STMP,2)}\ns_waitcnt lgkmcnt(0)\ns_mov_b32 s{S_ST0+SITES.index(k)}, s{S_STMP}")

class Queue:
    def __init__(self, kind):
        self.kind, self.n, self.tags = kind, 0, {}
    def issue(self, tag=None):
        self.n += 1
        if tag is not None:
            self.tags[tag] = self.n
    def left(self, tag):
        return self.n - self.tags[tag]
    def wait(self, tag):
        e(f"s_waitcnt {self.kind}({min(self.left(tag), 63 if self.kind == 'vmcnt' else 15)})")

def retry(top, sleep, hook=None):
    stub = label("retry")
    e(f"s_cbranch_vccnz {stub}")
    with outofline():
        e(f"{stub}:\ns_sub_u32 s3, s3, 1\ns_cbranch_scc1 L_exit")
        if hook: hook()
        if sleep: e(f"s_sleep {sleep}")
        e(f"s_branch {top}")

def lds_spin(vaddr, offset, vtmp, cmp, ref, sleep=0, prio=None):
    top = label("spin")
    e(f"{top}:\nds_read_b32 v{vtmp}, v{vaddr}{off(offset)}\ns_waitcnt lgkmcnt(0)")
    if prio: e(f"s_setprio {prio[0]}")
    e(f"{cmp} vcc, {ref}, v{vtmp}")
    e(f"s_setprio {prio[1]}" if prio else "s_nop 0")
    retry(top, sleep)

def glb_spin(vaddr, soff, vtmp, sleep=2, prio=None):
    top = label("poll")
    e(f"{top}:\nbuffer_load_dwordx2 {vr(vtmp,2)}, v{vaddr}, {sr(SRD_WS,4)}, {soff} offen sc1\ns_waitcnt vmcnt(0)")
    if prio: e(f"s_setprio {prio[0]}")
    e(f"v_cmp_ne_u64 vcc, {sr(S_TAG,2)}, {vr(vtmp,2)}")
    e(f"s_setprio {prio[1]}" if prio else "s_nop 0")
    retry(top, sleep)

def read_tag(va, vt):
    e(f"""v_mov_b32 v{va}, {L_FLG + F_TAG}
ds_read_b64 {vr(vt,2)}, v{va}
s_waitcnt lgkmcnt(0)
v_readfirstlane_b32 s{S_TAG}, v{vt}
v_readfirstlane_b32 s{S_TAG+1}, v{vt+1}""")

def tr_addr(dst, tmp, half_shift):
    e(f"""v_and_b32 v{dst}, 3, v0
v_lshlrev_b32 v{dst}, 3, v{dst}
v_bfe_u32 v{tmp}, v0, 2, 2
v_lshl_add_u32 v{dst}, v{tmp}, 6, v{dst}
v_bfe_u32 v{tmp}, v0, 4, 1
v_lshl_add_u32 v{dst}, v{tmp}, 5, v{dst}
v_lshrrev_b32 v{tmp}, 5, v0
v_lshl_add_u32 v{dst}, v{tmp}, {half_shift}, v{dst}""")

def dpp_sum(regs):
    for r in (8, 4, 2, 1):
        for a in regs:
            e(f"v_add_f32_dpp v{a}, v{a}, v{a} row_ror:{r} row_mask:0xf bank_mask:0xf")
        if len(regs) < 3 and r != 1:
            e(f"s_nop {2 - len(regs)}")

def ln_centre(X, waits, vwr, A, B, T):
    n = len(X)
    for u in range(n):
        e(f"s_waitcnt vmcnt({waits[u]})")
        if u == 0:
            stamp("xarr" if B is None else "xarrB")
        for i in range(16):
            e(f"v_dot2_f32_bf16 v{A+u}, v{X[u]+i}, s{S_C11}, {'v%d' % (A+u) if i else 0}")
    if n < 4: e(f"s_nop {3 - n}")
    dpp_sum([A + u for u in range(n)])
    for u in range(n):
        e(f"v_mul_f32 v{A+u}, {hex(f2u(-1.0/512))}, v{A+u}")
    for u in range(n):
        for gi in range(4):
            for k in range(4):
                e(f"v_dot2_f32_bf16 v{T+2*k}, v{X[u]+4*gi+k}, s{S_C10}, v{A+u}")
                e(f"v_dot2_f32_bf16 v{T+2*k+1}, v{X[u]+4*gi+k}, s{S_C01}, v{A+u}")
            for k in range(4):
                e(f"v_cvt_pk_bf16_f32 v{X[u]+4*gi+k}, v{T+2*k}, v{T+2*k+1}")
            if gi == 0 and u >= 2:
                e("s_waitcnt lgkmcnt(6)")
            e(f"ds_write_b128 v{vwr+u}, {vr(X[u]+4*gi,4)}{off(gi*16*X_STR)}")
            if B is not None:
                for k in range(4):
                    e(f"v_dot2_f32_bf16 v{B+u}, v{X[u]+4*gi+k}, v{X[u]+4*gi+k}, {'v%d' % (B+u) if gi or k else 0}")
def ln_var(X, B):
    for i in range(16):
        e(f"v_dot2_f32_bf16 v{B}, v{X+i}, v{X+i}, {'v%d' % B if i else 0}")
def ln_stats(n, vst, A, B):
    if n < 4: e(f"s_nop {3 - n}")
    dpp_sum([B + u for u in range(n)])
    for u in range(n):
        e(f"v_mov_b32 v{A+u}, {hex(f2u(1e-5))}\nv_fmac_f32 v{A+u}, {hex(f2u(1.0/512))}, v{B+u}")
    for u in range(n):
        e(f"v_rsq_f32 v{B+u}, v{A+u}")
    e("s_waitcnt lgkmcnt(5)")
    for u in range(n):
        e(f"v_mul_f32 v{A+u}, v{A+u}, v{B+u}")
        e(f"ds_write_b32 v{vst+u}, v{B+u}\nds_write_b32 v{vst+u}, v{A+u} offset:256")

def w1_prefetch(va, vt, vd):
    e(f"""v_lshrrev_b32 v{va}, 5, v0
v_mul_u32_u24 v{va}, 2752, v{va}
v_and_b32 v{vt}, 31, v0
v_min_u32 v{vt}, 22, v{vt}
v_lshl_add_u32 v{va}, v{vt}, 6, v{va}""")
    e(f"""s_lshl_b32 s{S_T0}, s{S_C}, 2
s_add_u32 s{S_T0}, s{S_T0}, s{S_HW}
s_mul_i32 s{S_T0}, s{S_T0}, {4*2752}
s_lshr_b32 s{S_T2}, s{S_J}, 2
s_mul_i32 s{S_T2}, s{S_T2}, {20*64}
s_add_u32 s{S_T0}, s{S_T0}, s{S_T2}
s_add_u32 s{S_T2}, s{S_T0}, {2*2752}
buffer_load_dword v{vd}, v{va}, {sr(SRD_W,4)}, s{S_T0} offen
buffer_load_dword v{vd}, v{va}, {sr(SRD_W,4)}, s{S_T2} offen""")

HDR = open("cdna_kernels/" + NAME + ".s.ref").read().split("\n")
out += [l for l in HDR if l.startswith(";") and "@launch" not in l]
out.append(f"; @launch grid=(256,1,1) block=(512,1,1) lds={LDS_BYTES}")
out += ["; " + l if l else ";" for l in '''
out = x + MQA(LN(x)) + SiLU-FFN(LN(x)) in one launch of 256 co-resident workgroups (one per CU).
Workgroup (g, j): 64 tokens (group g), heads 4j..4j+3, output columns 64j..64j+63.
  waves 0-3: attention; each keeps the K/V fragments of 512 keys in registers and walks 8 q blocks (32 tokens x 1 head).
  waves 4-7: LayerNorm, Q projection, FFN1 + SiLU, FFN2, softmax normalisation, output projection.
Hand-offs through d_ws (write-through stores, L1-bypassing loads):
  K/V (all workgroups) and h (group): payload, drain, then a flag that holds the launch tag published in d_debug.
  O (group): slots are first filled with all-ones words; a fragment is taken once no lane holds that pattern.
Softmax: exp2 of the unshifted scores; every row sum is checked against [2^-32, 2^48] and every O for finiteness before it is
published. A failed check makes the attention waves recompute the workgroup's q blocks with the true row maximum.
'''.strip("\n").split("\n")]
e(f'.amdgcn_target "amdgcn-amd-amdhsa--gfx950"\n.text\n.globl {NAME}_kernel\n.p2align 8\n.type {NAME}_kernel,@function')
e(f"{NAME}_kernel:")

e("s_cmp_ge_u32 s2, 256\ns_cbranch_scc1 L_exit")
if OPT["stamps"] or OPT["hold"] != -1:
    e(f"s_memrealtime {sr(S_STMP,2)}\ns_waitcnt lgkmcnt(0)\ns_mov_b32 s{S_ST0+9}, s{S_STMP}")
    stamp("start")
    for k in range(1, 9):
        e(f"s_mov_b32 s{S_ST0+k}, s{S_ST0}")
    if OPT["amp"]:
        e(f"s_mov_b32 s{S_ST0+8}, s{S_ST0+9}")
e(f"""s_load_dwordx16 s[16:31], s[0:1], 0
s_load_dwordx4 s[32:35], s[0:1], 64
s_load_dwordx2 s[36:37], s[0:1], 80
v_lshrrev_b32 v2, 6, v0
v_bfe_u32 v4, v0, 4, 4
s_lshr_b32 s{S_C}, s2, 3
v_readfirstlane_b32 s{S_W}, v2
v_and_b32 v5, 15, v0
v_and_b32 v0, 63, v0""")
if OPT["pf_code"]:
    note("each wave pulls 256 bytes of the kernel's code into L2")
    e(f"""s_getpc_b64 {sr(S_T0+1,2)}
L_pc:
v_lshl_add_u32 v2, s{S_C}, 3, v2
v_and_b32 v3, 3, v0
v_lshl_add_u32 v2, v2, 2, v3
v_lshlrev_b32 v2, 6, v2
v_min_u32 v2, L_code_end-L_pc-4, v2
global_load_dword v247, v2, {sr(S_T0+1,2)}""")
e(f"""s_and_b32 s{S_GL}, s{S_C}, 7
s_bfe_u32 s{S_T0}, s2, 0x20001
s_lshl3_add_u32 s{S_G}, s{S_T0}, s{S_GL}
s_lshr_b32 s{S_T3}, s{S_C}, 3
s_lshl2_add_u32 s{S_SOFF}, s{S_G}, s{S_T3}
s_lshl_b32 s{S_SOFF}, s{S_SOFF}, 14
v_lshlrev_b32 v1, 10, v4
v_lshl_add_u32 v1, v5, 4, v1
s_mov_b32 s{SRD_X+2}, {hex(2048*1024)}
s_mov_b32 s{SRD_X+3}, 0x20000
s_cmp_lt_u32 s{S_W}, 4
s_waitcnt lgkmcnt(0)
s_mov_b64 {sr(SRD_X,2)}, {sr(P_X,2)}
s_cbranch_scc1 L_a0""")
XA = 8
stamp("karg")
for i in range(4):
    e(f"buffer_load_dwordx4 {vr(XA+4*i,4)}, v1, {sr(SRD_X,4)}, s{S_SOFF} offen{off(256*i)}")
e(f"""s_branch L_hfront
L_a0:
s_bitcmp1_b32 s2, 0
s_cselect_b64 {sr(SRD_A,2)}, {sr(P_WV,2)}, {sr(P_WK,2)}
s_cselect_b32 s{S_T1}, 512, 0
s_mov_b32 s{SRD_A+2}, 16384
s_mov_b32 s{SRD_A+3}, 0x20000
s_cmp_eq_u32 s{S_W}, 0
s_cbranch_scc0 {'L_a1' if OPT['pf_wq'] == 2 else 'L_afront'}
v_lshlrev_b32 v3, 4, v0""")
for i in range(4):
    e(f"s_mov_b32 m0, {L_WKV + i*4096}\ns_movk_i32 s{S_T0}, {i*4096}")
    for k in range(4):
        e(f"buffer_load_dwordx4 v3, {sr(SRD_A,4)}, s{S_T0} offen{off(1024*k)} lds")
e("s_branch L_afront")
if OPT["pf_wq"] == 2:
    e(f"""L_a1:
v_lshrrev_b32 v3, 3, v0
v_and_b32 v2, 7, v0
v_lshlrev_b32 v2, 6, v2
s_lshl1_add_u32 s{S_T0}, s{S_C}, s{S_W}
s_sub_u32 s{S_T0}, s{S_T0}, 2
s_lshl_b32 s{S_T0}, s{S_T0}, 13
s_add_u32 s{S_T0}, s{S_T0}, s{S_T1}
s_lshl_b32 s{S_T1}, s{S_C}, 9
s_cmp_eq_u32 s{S_W}, 1
s_cselect_b32 s{S_T0}, s{S_T1}, s{S_T0}
s_cselect_b32 s{S_T1}, 0, 0x400
s_cselect_b64 {sr(SRD_A,2)}, {sr(SRD_A,2)}, {sr(P_WQ,2)}
s_cselect_b32 s{SRD_A+2}, s{SRD_A+2}, {hex(512*1024)}
v_mad_u32_u24 v2, v3, s{S_T1}, v2
buffer_load_dword v246, v2, {sr(SRD_A,4)}, s{S_T0} offen
s_branch L_afront""")

V_FLW, V_FLR, V_ONE = 253, 254, 255
V_WR, V_ST = 200, 204
def common_setup():
    srd(SRD_WS, P_WS, WS_SIZE)
    srd(SRD_DBG, P_DBG, 256)
    e(f"""s_and_b32 s{S_T0}, s2, 1
s_lshl2_add_u32 s{S_J}, s{S_T0}, s{S_T3}
s_and_b32 s{S_HW}, s{S_W}, 3
s_mov_b32 s3, 0x40000
s_lshl_b32 s{S_FLB}, s{S_G}, 11
s_add_u32 s{S_FLB}, s{S_FLB}, {hex(WS_FL)}
s_mov_b32 s{S_C10}, 0x00003f80
s_mov_b32 s{S_C01}, 0x3f800000
s_mov_b32 s{S_C11}, 0x3f803f80
v_mul_u32_u24 v2, {X_STR}, v5
v_lshl_add_u32 v2, v4, 4, v2
v_lshlrev_b32 v4, 2, v4
s_lshl2_add_u32 s{S_T0}, s{S_HW}, {L_FLG}
v_mov_b32 v{V_FLW}, s{S_T0}
v_and_b32 v7, 3, v0
v_lshlrev_b32 v{V_FLR}, 2, v7
v_add_u32 v{V_FLR}, {L_FLG}, v{V_FLR}
v_mov_b32 v{V_ONE}, 1""")
def unit_addr(slot, dq):
    e(f"""s_add_u32 s{S_T0}, s{S_T3}, {dq}
s_and_b32 s{S_T0}, s{S_T0}, 3
s_lshl2_add_u32 s{S_U+slot}, s{S_G}, s{S_T0}
s_lshl_b32 s{S_U+slot}, s{S_U+slot}, 14
s_lshl_b32 s{S_T1}, s{S_T0}, 8
s_add_u32 s{S_T1}, s{S_T1}, {L_X}
v_add_u32 v{V_WR+slot}, s{S_T1}, v2
s_lshl_b32 s{S_T1}, s{S_T0}, 6
s_add_u32 s{S_T1}, s{S_T1}, {L_RSTD}
v_add_u32 v{V_ST+slot}, s{S_T1}, v4""")
def unit_loads(X, slot, va=1):
    for i in range(4):
        e(f"buffer_load_dwordx4 {vr(X+4*i,4)}, v{va}, {sr(SRD_X,4)}, s{S_U+slot} offen{off(256*i)}")
def wq_prefetch(va, vt, vd):
    e(f"""v_lshrrev_b32 v{va}, 3, v0
v_lshlrev_b32 v{va}, 10, v{va}
v_and_b32 v{vt}, 7, v0
v_lshl_add_u32 v{va}, v{vt}, 6, v{va}
s_lshl2_add_u32 s{S_T0}, s{S_C}, s{S_HW}
s_lshl_b32 s{S_T0}, s{S_T0}, 12
s_and_b32 s{S_T1}, s{S_J}, 4
s_lshl_b32 s{S_T1}, s{S_T1}, 7
s_add_u32 s{S_T0}, s{S_T0}, s{S_T1}
s_mov_b32 exec_hi, 0
buffer_load_dword v{vd}, v{va}, {sr(SRD_W,4)}, s{S_T0} offen
s_mov_b32 exec_hi, -1""")

V_S0, V_PART, V_TR2, V_LS, V_DW0, V_DW1, V_DR0 = 1, 2, 3, 4, 5, 6, 7
V_DR1, V_OUT, V_TMP, V_L16, V_TB = 248, 249, 250, 251, 252
V_WO, V_TT, V_HF, V_TAG = 60, 61, 62, 64
V_WA, V_TR, V_PF, VXR, V_CS, V_NEG = 72, 74, 75, 76, 92, 100
V_QT, V_QX, V_QRS, V_QW, V_QFL, V_RS, V_X2, V_X3 = 172, 173, 174, 175, 176, 177, 178, 179
S_OB, S_PC, S_XO, S_CLS, S_RET, S_BLK = 16, 20, 22, 24, 0, 2
LA, LT = 216, 220
t0, t1, t2, t3, t4 = 232, 233, 234, 235, 236
e("L_hfront:\ns_setprio 2")
common_setup()
e(f"v_mov_b32 v{t0}, 0\nv_lshlrev_b32 v{t1}, 2, v0\nv_add_u32 v{t1}, {L_FLG}, v{t1}\nds_write2st64_b32 v{t1}, v{t0}, v{t0} offset1:1")
unit_addr(0, 0)
unit_addr(1, 1)
e(f"""v_mov_b32 v{V_X2}, v1
v_and_b32 v{V_X3}, 0xfff, v1
s_lshl_b32 s{S_T0}, s{S_HW}, 6
v_subrev_u32 v2, s{S_T0}, v2
v_and_b32 v4, 15, v4
s_add_u32 s{S_IT}, s{S_HW}, 1""")
unit_addr(2, f"s{S_IT}")
e(f"""s_mul_i32 s{S_T0}, s{S_J}, 7
s_lshl1_add_u32 s{S_T0}, s{S_HW}, s{S_T0}
s_lshl2_add_u32 s{S_T1}, s{S_J}, s{S_HW}
s_add_u32 s{S_T2}, s{S_T1}, 11
s_cmp_lt_u32 s{S_HW}, 3
s_cselect_b32 s{S_TB}, 2, 1
s_cmp_eq_u32 s{S_T1}, 14
s_cselect_b32 s{S_TB}, 1, s{S_TB}
s_min_u32 s{S_T0}, s{S_T0}, 26
s_cmp_lt_u32 s{S_J}, 4
s_cselect_b32 s{S_TA}, s{S_T0}, s{S_T2}
s_cselect_b32 s{S_TB}, s{S_TB}, 1
s_lshr_b32 s{S_T5}, s{S_HW}, 1
s_and_b32 s{S_T4}, s{S_HW}, 1
s_mul_i32 s{S_RING}, s{S_HW}, {H_STR}
v_and_b32 v{t0}, 3, v0
v_bfe_u32 v{t1}, v0, 2, 2
v_bfe_u32 v{t2}, v0, 4, 1
v_lshrrev_b32 v{t3}, 5, v0
v_lshrrev_b32 v{t4}, 2, v0
v_lshlrev_b32 v{V_L16}, 4, v0
v_lshlrev_b32 v{V_TR2}, 3, v{t0}
v_lshl_add_u32 v{V_TR2}, v{t1}, 6, v{V_TR2}
v_lshl_add_u32 v{V_TR2}, v{t2}, 5, v{V_TR2}
v_lshl_add_u32 v{V_TR2}, v{t3}, 8, v{V_TR2}
v_lshl_add_u32 v{V_TR}, v{t3}, 8, v{V_TR2}
s_lshl_b32 s{S_T0}, s{S_T4}, 15
v_add_u32 v{V_QT}, s{S_T0}, v{V_TR}
v_add_u32 v{V_TR}, s{S_RING}, v{V_TR}
v_add_u32 v{V_TR2}, s{S_RING}, v{V_TR2}
v_lshlrev_b32 v{t0}, 4, v{t0}
v_lshl_add_u32 v{V_S0}, v{t4}, 10, v{t0}
s_lshl_b32 s{S_T0}, s{S_J}, 7
v_add_u32 v{V_S0}, s{S_T0}, v{V_S0}
v_add_u32 v{V_WO}, 64, v{V_S0}
v_mul_u32_u24 v{V_WA}, 2752, v{t4}
s_lshl_b32 s{S_T0}, s{S_TA}, 6
v_add3_u32 v{V_WA}, v{V_WA}, v{t0}, s{S_T0}
v_lshl_add_u32 v{V_TT}, v{t1}, 6, v{t0}
v_lshl_add_u32 v{V_TT}, v{t2}, 8, v{V_TT}
v_lshl_add_u32 v{V_TT}, v{t3}, 10, v{V_TT}
s_cmp_eq_u32 s{S_T4}, 0
s_cselect_b32 s{S_T0}, {L_DUMP}, 0
v_add_u32 v{V_TT}, s{S_T0}, v{V_TT}
v_lshlrev_b32 v{V_TB}, 9, v{t2}
v_lshl_add_u32 v{V_TB}, v{t3}, 12, v{V_TB}
v_and_b32 v{t0}, 31, v0
v_mul_u32_u24 v{t1}, {X_STR}, v{t3}
v_lshl_add_u32 v{t1}, v{t0}, 4, v{t1}
v_add_u32 v{t1}, {L_X}, v{t1}
v_lshl_add_u32 v{V_QX}, s{S_T5}, 9, v{t1}
v_lshlrev_b32 v{V_HF}, 5, v{t0}
v_lshlrev_b32 v{t0}, 2, v{t0}
v_add_u32 v{V_RS}, {L_RSTD}, v{t0}
v_lshl_add_u32 v{V_QRS}, s{S_T5}, 7, v{V_RS}
s_lshl_b32 s{S_T0}, s{S_HW}, 9
s_add_u32 s{S_T0}, s{S_T0}, {L_LS}
v_add_u32 v{V_LS}, s{S_T0}, v{t0}""")
for k in range(8):
    e(f"s_add_u32 s{S_T0}, s{S_GL}, {k}\ns_and_b32 s{S_T0}, s{S_T0}, 7\ns_mul_i32 s{S_T0}, s{S_T0}, {8*X_STR}\nv_add_u32 v{VXR+k}, s{S_T0}, v{t1}")
e(f"""v_and_b32 v{t0}, 15, v0
v_lshrrev_b32 v{t1}, 4, v0
v_min_u32 v{V_QFL}, 11, v{t0}
v_lshlrev_b32 v{V_QFL}, 2, v{V_QFL}
v_add_u32 v{V_QFL}, {L_FLG}, v{V_QFL}
v_lshlrev_b32 v{V_OUT}, 10, v{t0}
v_lshl_add_u32 v{V_OUT}, v{t1}, 4, v{V_OUT}
v_lshl_add_u32 v{t0}, s{S_T5}, 4, v{t0}
v_lshl_add_u32 v{V_TB}, v{t0}, 4, v{V_TB}
v_lshlrev_b32 v{V_DR1}, 4, v{t0}
v_lshl_add_u32 v{V_DR1}, v{t1}, 10, v{V_DR1}
v_lshl_add_u32 v{V_DR1}, s{S_T4}, 12, v{V_DR1}
v_add_u32 v{V_DR0}, {L_DUMP}, v{V_DR1}
v_add_u32 v{V_DW1}, s{S_RING}, v{V_L16}
s_lshl_b32 s{S_T0}, s{S_HW}, 13
s_add_u32 s{S_T0}, s{S_T0}, {L_DUMP}
v_add_u32 v{V_DW0}, s{S_T0}, v{V_L16}
v_lshl_add_u32 v{V_PART}, s{S_HW}, 11, v{V_L16}
v_add_u32 v{V_QW}, {L_Q}, v{V_PART}
v_add_u32 v{V_PART}, {L_P1}, v{V_PART}
v_lshrrev_b32 v{V_PF}, 1, v0
v_lshlrev_b32 v{V_PF}, 10, v{V_PF}
v_and_b32 v{t0}, 1, v0
v_lshl_add_u32 v{V_PF}, v{t0}, 6, v{V_PF}
v_mov_b32 v{V_NEG}, -1
v_mov_b32 v{V_NEG+1}, -1
v_mov_b32 v{V_NEG+2}, -1
v_mov_b32 v{V_NEG+3}, -1
v_mov_b32 v{V_TAG+2}, 0
v_mov_b32 v{V_TAG+3}, {L_FLG + F_TAG}
s_waitcnt lgkmcnt(0)
s_barrier""")
unit_loads(24, 1, V_X2)
srd(SRD_W, P_WQ, 512 * 1024)
ln_centre([XA], [4], V_WR, LA, None, LT)
e(f"ds_write_b32 v{V_FLW}, v{V_ONE} offset:{F_LNP}")
stamp("lnA")
e(f"s_bitcmp1_b32 s{S_IT}, 1\ns_cbranch_scc0 L_no3")
unit_loads(40, 2, V_X3)
e("L_no3:")
ln_var(XA, LA + 1)
ln_stats(1, V_ST, LA, LA + 1)
e(f"ds_write_b32 v{V_FLW}, v{V_ONE} offset:{F_LN}\ns_bitcmp1_b32 s{S_IT}, 1\ns_cbranch_scc0 L_ln1")
ln_centre([24], [4], V_WR + 1, LA, LA + 2, LT)
ln_centre([40], [0], V_WR + 2, LA + 1, LA + 3, LT)
ln_stats(2, V_ST + 1, LA, LA + 2)
e("s_branch L_ln2\nL_ln1:")
ln_centre([24], [0], V_WR + 1, LA, LA + 1, LT)
ln_stats(1, V_ST + 1, LA, LA + 1)
e(f"L_ln2:\nds_write_b32 v{V_FLW}, v{V_ONE} offset:{F_LN2}\ns_setprio 0")
stamp("lnB")
e(f"s_cmp_eq_u32 s{S_W}, 7\ns_cbranch_scc0 L_wqdone")
for k in range(32):
    if k == 24:
        e(f"s_waitcnt vmcnt(16)\nds_write_b32 v{V_FLR}, v{V_ONE} offset:{F_WQ0}")
    e(f"s_mov_b32 m0, {k*1024}\ns_mov_b32 s{S_SOFF}, {k*16384}\nbuffer_load_dwordx4 v{V_S0}, {sr(SRD_W,4)}, s{S_SOFF} offen lds")
    e(f"s_mov_b32 m0, {32768 + k*1024}\ns_nop 0\nbuffer_load_dwordx4 v{V_WO}, {sr(SRD_W,4)}, s{S_SOFF} offen lds")
e(f"ds_write_b32 v{V_FLR}, v{V_ONE} offset:{F_WQI}\ns_waitcnt vmcnt(0)\nds_write_b32 v{V_FLR}, v{V_ONE} offset:{F_WQ}\nL_wqdone:")
QA, QB, QO, QACC = 108, 8, 24, 200
lds_spin(V_FLR, F_WQ0, V_TMP, "v_cmp_ne_u32", 1)
stamp("wq")
for k in range(16):
    if k % 4 == 0 and k:
        e("s_waitcnt lgkmcnt(4)")
    for i in range(2):
        e(f"ds_read_b64_tr_b16 {vr(QA+4*k+2*i,2)}, v{V_QT}{off(k*1024 + i*256)}")
lds_spin(V_QFL, F_LN2, V_TMP, "v_cmp_ne_u32", 1, sleep=1)
e("s_setprio 2")
stamp("ln")
lq = Queue("lgkmcnt")
def q_reads(s):
    if s >= 16:
        for i in range(2):
            e(f"ds_read_b64_tr_b16 {vr(QO+4*(s % 4)+2*i,2)}, v{V_QT}{off(s*1024 + i*256)}")
            lq.issue()
    e(f"ds_read_b128 {vr(QB+4*(s % 4),4)}, v{V_QX}{off(s*2*X_STR)}")
    lq.issue(s)
for s in range(3):
    q_reads(s)
for s in range(32):
    if s + 3 < 32:
        q_reads(s + 3)
    if s < 5:
        e(f"ds_read_b32 v{V_CS+2*s}, v{V_RS}{off(128*s)}" if s < 4 else f"ds_read_b32 v44, v{V_QRS}")
        lq.issue()
    lq.wait(s)
    mf32(QACC, QA + 4 * s if s < 16 else QO + 4 * (s % 4), QB + 4 * (s % 4), QACC if s else None)
    if s == 8:
        e(f"v_mul_f32 v{V_CS}, {hex(f2u(-LOG2E))}, v{V_CS}\nv_mul_f32 v{V_CS+2}, {hex(f2u(-LOG2E))}, v{V_CS+2}")
    if s == 12:
        e(f"v_min_u32 v{V_QFL}, {L_FLG + 28}, v{V_QFL}")
    if s == 9:
        e(f"v_mul_f32 v44, {hex(f2u(0.25*LOG2E))}, v44\nv_mov_b32 v45, v44")
    if s in (10, 11):
        for k in (2 * (s - 10), 2 * (s - 10) + 1):
            e(f"v_mov_b32 v{V_CS+2*k+1}, v{V_CS+2*k}")
srd(SRD_W, P_W1, 512 * 2752)
srd(SRD_B, P_W2, 1376 * 1024)
srd(SRD_C, P_WO, 512 * 1024)
for hl in range(2):
    for k in range(4):
        e(f"v_pk_mul_f32 {vr(QACC+8*hl+2*k,2)}, {vr(QACC+8*hl+2*k,2)}, v[44:45]")
    for k in range(4):
        e(f"v_cvt_pk_bf16_f32 v{8+4*hl+k}, v{QACC+8*hl+2*k}, v{QACC+8*hl+2*k+1}")
    e(f"ds_write_b128 v{V_QW}, {vr(8+4*hl,4)}{off(hl*1024)}")
e(f"ds_write_b32 v{V_FLW}, v{V_ONE} offset:{F_Q}\ns_setprio 0")
stamp("qd")
srd(SRD_OUT, P_OUT, 2048 * 1024)
e(f"""s_lshl_b32 s{S_T0}, s{S_J}, 7
s_lshl_b32 s{S_T1}, s{S_T4}, 6
s_lshl2_add_u32 s{S_T2}, s{S_G}, s{S_T5}
s_lshl_b32 s{S_T2}, s{S_T2}, 14
s_add_u32 s{S_T2}, s{S_T2}, s{S_T0}
s_add_u32 s{S_XO}, s{S_T2}, s{S_T1}
s_add_u32 s{S_XO+1}, s{S_XO}, 32768
s_lshl_b32 s{S_T2}, s{S_G}, 16
s_add_u32 s{S_OB}, s{S_T2}, {hex(WS_O)}
s_add_u32 s{S_OB+1}, s{S_OB}, 8192
s_add_u32 s{S_OB+2}, s{S_OB}, 16384
s_add_u32 s{S_OB+3}, s{S_OB}, 24576
s_lshl2_add_u32 s{S_T2}, s{S_J}, s{S_HW}
s_lshl_b32 s{S_T3}, s{S_T2}, 10
s_add_u32 s{S_PC}, s{S_OB}, s{S_T3}
s_add_u32 s{S_PC+1}, s{S_PC}, 32768
s_add_u32 s{S_FLB}, s{S_FLB}, {FL_H}
s_lshl_b32 s{S_T2}, s{S_T2}, 5
s_add_u32 s{S_U+7}, s{S_T2}, s{S_FLB}
s_mul_i32 s{S_T2}, s{S_G}, {H_GRP}
s_add_u32 s{S_T2}, s{S_T2}, {hex(WS_H)}
s_add_u32 s{SRD_A}, s{P_WS}, s{S_T2}
s_addc_u32 s{SRD_A+1}, s{P_WS+1}, 0
s_mov_b32 s{SRD_A+2}, {H_GRP}
s_mov_b32 s{SRD_A+3}, 0x20000
s_lshl_b32 s{S_U+4}, s{S_TA}, 12
s_add_u32 s{S_U+5}, s{S_U+4}, 4096
s_movk_i32 s{S_CLS}, 0x207
s_mov_b32 s{S_IT}, 0
s_mul_i32 s{S_SOFF}, s{S_GL}, {64*2752}
s_lshl2_add_u32 s{S_T1}, s{S_GL}, s{S_HW}
s_mul_i32 s{S_T2}, s{S_T1}, {43*1024}
s_add_u32 s{S_T2}, s{S_T2}, s{S_T0}
s_add_u32 s{S_T3}, s{S_T2}, {11*1024}
s_lshl_b32 s{S_T1}, s{S_T1}, 14
s_add_u32 s{S_T1}, s{S_T1}, s{S_T0}""")
lds_spin(V_QFL, F_Q, V_TMP, "v_cmp_ne_u32", 1, sleep=OPT["ksl"], prio=(2, 0))
e(f"ds_read_b64 {vr(V_TAG,2)}, v{V_TAG+3}")
stamp("f1go")

F1A = 184
FR = [8, 24, 40]
def late_prefetch():
    e(f"""s_mov_b32 exec_hi, 0
buffer_load_dword v{V_TMP}, v{V_PF}, {sr(SRD_C,4)}, s{S_T1} offen
s_mov_b32 exec_hi, -1
buffer_load_dword v{V_TMP}, v{V_PF}, {sr(SRD_B,4)}, s{S_T2} offen
buffer_load_dword v{V_TMP}, v{V_PF}, {sr(SRD_B,4)}, s{S_T3} offen""")
def ffn1(nt):
    vq, lq = Queue("vmcnt"), Queue("lgkmcnt")
    D = 6 if nt == 2 else OPT["d1"]
    def dma(s):
        e(f"s_add_u32 m0, s{S_RING}, {(s % D)*1024*nt}\ns_add_u32 s{S_T4}, s{S_SOFF}, {16*2752}\nbuffer_load_dwordx4 v{V_WA}, {sr(SRD_W,4)}, s{S_SOFF} offen lds")
        vq.issue(("w", s))
        if nt == 2:
            e(f"s_add_u32 m0, s{S_RING}, {(s % D)*2048 + 1024 - 64}\ns_cmp_ge_u32 s{S_T4}, s{SRD_W+2}\nbuffer_load_dwordx4 v{V_WA}, {sr(SRD_W,4)}, s{S_SOFF} offen offset:64 lds")
            vq.issue(("w", s))
        else:
            e(f"s_cmp_ge_u32 s{S_T4}, s{SRD_W+2}")
        e(f"s_cselect_b32 s{S_SOFF}, 0, s{S_T4}")
    NR, NM, G = 2 + 2 * nt, 2 * nt, OPT["g1h"] if nt == 2 else OPT["g1l"]
    def read1(k):
        s, r = divmod(k, NR)
        f = 108 + 16 * (s % 4)
        if r < 2:
            e(f"ds_read_b128 {vr(f+8+4*r,4)}, v{VXR+s//4}{off((s % 4)*2*X_STR + r*512)}")
        else:
            if r == 2:
                vq.wait(("w", s))
            e(f"ds_read_b64_tr_b16 {vr(f+2*(r-2),2)}, v{V_TR}{off((s % D)*1024*nt + ((r-2)//2)*1024 + (r % 2)*256)}")
        lq.issue(("r", s))
    for s in range(D):
        dma(s)
    nr, nd = 0, D
    while nr < (2 if nt == 2 else 3) * NR:
        read1(nr); nr += 1
    for m in range(32 * NM):
        s, u = divmod(m, NM)
        f = 108 + 16 * (s % 4)
        if m % G == 0:
            ls = (min(m + G, 32 * NM) - 1) // NM
            assert nr >= (ls + 1) * NR, (nt, m, nr)
            lq.wait(("r", ls))
            done = (ls + 1) * NR
        mf32(F1A + 16 * u, f + 4 * (u >> 1), f + 8 + 4 * (u & 1), F1A + 16 * u if s else None)
        end = m % G == G - 1
        n = 0
        while nr < 32 * NR and nr // NR - 4 <= (m - NM + 1) // NM and nr - done < 12 and (end or n < 2):
            read1(nr); nr += 1; n += 1
        if end:
            while nd < 32 and nd - D <= ls:
                dma(nd); nd += 1
        if u != NM - 1:
            continue
        stamp(f"s{s}")
        if not OPT["pf_w2"]:
            pass
        elif nt == 2 or not OPT["mallw"]:
            if s == OPT["pf_at"]:
                late_prefetch()
                vq.issue(); vq.issue(); vq.issue()
        elif s in (OPT["pf1"], 31):
            skip = label("nopf")
            e(f"s_cmp_lt_u32 s{S_TA}, 27\ns_cbranch_scc{1 if s < 31 else 0} {skip}")
            if s < 31:
                for k in range(1, 4):
                    e(f"s_xor_b32 s{S_T0+k}, s{S_T0+k}, 512")
                late_prefetch()
                for k in range(1, 4):
                    e(f"s_xor_b32 s{S_T0+k}, s{S_T0+k}, 512")
            late_prefetch()
            e(f"{skip}:")
e(f"s_cmp_eq_u32 s{S_TB}, 2\ns_cbranch_scc0 L_f1one")
if OPT["hp1"]:
    e("s_setprio 2")
ffn1(2)
e("L_f1done:")
with outofline():
    e("L_f1one:")
    ffn1(1)
    e("s_branch L_f1done")
stamp("g1")
for k in range(2):
    e(f"buffer_store_dwordx4 {vr(V_NEG,4)}, v{V_L16}, {sr(SRD_WS,4)}, s{S_PC+k} offen sc1")
e(f"ds_write_b32 v{V_FLW}, v{V_ONE} offset:{F_G1}\ns_setprio 2\nv_readfirstlane_b32 s{S_TAG}, v{V_TAG}\nv_readfirstlane_b32 s{S_TAG+1}, v{V_TAG+1}\ns_nop 4")
for ti in range(2):
    e(f"s_cmp_eq_u32 s{S_TB}, 1\ns_cbranch_scc1 L_silu_done" if ti else "s_nop 1")
    for tb in range(2):
        for u in range(2):
            A, T, C, R = F1A + 32 * ti + 16 * tb + 8 * u, 8, V_CS + 2 * tb, 16 + 4 * (4 * ti + 2 * tb + u)
            for k in range(4):
                e(f"v_pk_mul_f32 {vr(T+2*k,2)}, {vr(A+2*k,2)}, {vr(C,2)}")
            for k in range(8):
                e(f"v_exp_f32 v{T+k}, v{T+k}")
            for k in range(4):
                e(f"v_pk_fma_f32 {vr(T+2*k,2)}, {vr(T+2*k,2)}, {vr(C+4,2)}, {vr(C+4,2)}")
            for k in range(8):
                e(f"v_rcp_f32 v{T+k}, v{T+k}")
            for k in range(4):
                e(f"v_pk_mul_f32 {vr(T+2*k,2)}, {vr(T+2*k,2)}, {vr(A+2*k,2)}")
            for k in range(4):
                e(f"v_cvt_pk_bf16_f32 v{R+k}, v{T+2*k}, v{T+2*k+1}")
            e(f"buffer_store_dwordx4 {vr(R,4)}, v{V_L16}, {sr(SRD_A,4)}, s{S_U+4+ti} offen{off(u*2048 + tb*1024)} sc1")
e("L_silu_done:\ns_setprio 0")
stamp("epi")

ACC, F2B, F2A, TA, XR = 8, 200, 232, 72, 240
PC, RT, RL, OB = 24, 200, 232, 236
def reduce_piece(vp, vl):
    for w in range(4):
        e(f"ds_read_b32 v{RL+w}, v{vl}{off(w*128)}")
    for w in range(4):
        for h in range(2):
            e(f"ds_read_b128 {vr(RT+8*w+4*h,4)}, v{vp}{off(w*8192 + h*1024)}")
def reduce_math(extra):
    e(f"v_add_f32 v{RL}, v{RL}, v{RL+1}\nv_add_f32 v{RL+2}, v{RL+2}, v{RL+3}\nv_add_f32 v{RL}, v{RL}, v{RL+2}\nv_rcp_f32 v{RL+2}, v{RL}")
    e(f"s_waitcnt lgkmcnt({4 + extra})")
    for k in range(4):
        e(f"v_pk_add_f32 {vr(RT+2*k,2)}, {vr(RT+2*k,2)}, {vr(RT+8+2*k,2)}")
    e(f"v_mov_b32 v{RL+3}, v{RL+2}\ns_waitcnt lgkmcnt(0)")
    for k in range(4):
        e(f"v_pk_add_f32 {vr(RT+16+2*k,2)}, {vr(RT+16+2*k,2)}, {vr(RT+24+2*k,2)}")
    for k in range(4):
        e(f"v_pk_add_f32 {vr(RT+2*k,2)}, {vr(RT+2*k,2)}, {vr(RT+16+2*k,2)}")
    for k in range(4):
        e(f"v_pk_mul_f32 {vr(RT+2*k,2)}, {vr(RT+2*k,2)}, {vr(RL+2,2)}")
    for k in range(4):
        e(f"v_cvt_pk_bf16_f32 v{OB+k}, v{RT+2*k}, v{RT+2*k+1}")
duty_code = []
class dutyblock(outofline):
    def __exit__(self, *a):
        duty_code.extend(cur[0]); cur[0] = self.prev
with dutyblock():
    lo, hi = f2u(2.0**-32), f2u(2.0**48)
    e("L_duty:")
    reduce_piece(V_PART, V_LS)
    e(f"""ds_read_b32 v{V_TMP}, v{V_FLR} offset:{F_SLOW}
s_waitcnt lgkmcnt(9)
s_setprio 2
v_max3_u32 v{OB}, v{RL}, v{RL+1}, v{RL+2}
v_max_u32 v{OB}, v{OB}, v{RL+3}
v_cmp_eq_u32 vcc, -1, v{OB}
s_nop 0
s_cbranch_vccnz L_duty_no""")
    reduce_math(1)
    for k in range(4):
        e(f"v_dot2_f32_bf16 v{RL+1}, v{OB+k}, s{S_C11}, {'v%d' % (RL+1) if k else 0}")
    e(f"""v_subrev_u32 v{RL+3}, {hex(lo)}, v{RL}
v_cmp_lt_u32 vcc, {hex(hi-lo)}, v{RL+3}
v_cmp_ne_u32 {sr(S_T0+1,2)}, 0, v{V_TMP}
s_add_u32 s{S_IT}, s{S_IT}, 1
v_cmp_class_f32 {sr(S_EX,2)}, v{RL+1}, s{S_CLS}
s_or_b64 vcc, vcc, {sr(S_T0+1,2)}
s_nop 0
s_or_b64 vcc, vcc, {sr(S_EX,2)}""")
    if OPT["force_slow"]:
        e(f"s_cmp_eq_u32 s{S_IT}, {OPT['force_slow']}\ns_cselect_b64 vcc, -1, vcc")
    e(f"""s_cbranch_vccnz L_duty_bad
buffer_store_dwordx4 {vr(OB,4)}, v{V_L16}, {sr(SRD_WS,4)}, s{S_PC} offen sc1
v_mov_b32 v{V_TMP}, s{S_IT}
s_mov_b32 s{S_BLK}, 9
s_mov_b64 exec, 1
ds_max_u32 v{V_FLW}, v{V_TMP} offset:{F_DUTY}
s_mov_b64 exec, -1
L_duty_next:
v_add_u32 v{V_PART}, {L_P2 - L_P1}, v{V_PART}
v_add_u32 v{V_LS}, 2048, v{V_LS}
s_mov_b32 s{S_PC}, s{S_PC+1}
s_setprio 0
L_duty_ret:
s_setpc_b64 {sr(S_RET,2)}
L_duty_no:
s_setprio 0
s_waitcnt lgkmcnt(0)
s_cmp_eq_u32 s{S_BLK}, 0
s_cbranch_scc1 L_duty_ret
s_sub_u32 s3, s3, 1
s_cbranch_scc1 L_exit
s_cmp_eq_u32 s{S_BLK}, 1
s_cbranch_scc1 L_duty
s_sleep 6
s_branch L_duty
L_duty_bad:
ds_write_b32 v{V_FLR}, v{V_ONE} offset:{F_SLOW}
s_branch L_duty_next""")
def duty(upto, mode):
    skip = label("noduty")
    e(f"s_lshl_b32 s{S_T0}, s{S_IT}, 2\ns_add_u32 s{S_T0}, s{S_T0}, s{S_HW}\ns_mov_b32 s{S_BLK}, {mode}\ns_cmp_lt_u32 s{S_T0}, {upto}\ns_cbranch_scc0 {skip}")
    e(f"s_call_b64 {sr(S_RET,2)}, L_duty\n{skip}:")

HD = 4
if OPT["d0pos"] == 2:
    e(f"s_waitcnt vmcnt(4)\nds_write_b32 v{V_FLW}, v{V_ONE} offset:{F_PZ}")
    duty(4, 0)
    e(f"s_waitcnt vmcnt(1)\ns_cmp_eq_u32 s{S_BLK}, 9\ns_cbranch_scc1 L_hdrained")
e(f"""s_waitcnt vmcnt(0)
L_hdrained:
s_mov_b64 exec, 1
buffer_store_dwordx2 {vr(V_TAG,2)}, v{V_TAG+2}, {sr(SRD_WS,4)}, s{S_U+7} offen sc1
s_mov_b64 exec, -1
ds_write_b32 v{V_FLW}, v{V_ONE} offset:{F_PZ}""")
stamp("hfl")
e(f"s_cmp_eq_u32 s{S_HW}, 3\ns_cbranch_scc1 L_wostage\nL_wostaged:")
with outofline():
    note("helper 3 stages the wo slice of the workgroup: [column tile 2][head in slice 4][producer 8][16 rows x 64 B]")
    e("L_wostage:")
    lds_spin(V_FLR, F_G1, V_TMP, "v_cmp_ne_u32", 1, sleep=2, prio=(2, 0))
    for u in range(16):
        hh, s_ = divmod(u, 4)
        for p in range(2):
            e(f"s_mov_b32 m0, {L_DUMP + u*2048 + p*1024}\ns_mov_b32 s{S_SOFF}, {(8*s_ + 4*p + hh)*16384}\nbuffer_load_dwordx4 v{V_S0}, {sr(SRD_C,4)}, s{S_SOFF} offen lds")
            e(f"s_mov_b32 m0, {u*2048 + p*1024}\ns_waitcnt vmcnt(40)\nbuffer_load_dwordx4 v{V_WO}, {sr(SRD_C,4)}, s{S_SOFF} offen lds")
    e(f"s_waitcnt vmcnt(0)\nds_write_b32 v{V_FLR}, v{V_ONE} offset:{F_WOS}\ns_branch L_wostaged")
if OPT["d0pos"] == 1:
    duty(4, 0)
lds_spin(V_FLR, F_WOS, V_TMP, "v_cmp_ne_u32", 1, sleep=2, prio=(2, 0))
for u in range(16):
    if u >= 2:
        e("s_waitcnt lgkmcnt(8)")
    for ee in range(2):
        for i in range(2):
            e(f"ds_read_b64_tr_b16 {vr(TA+8*u+4*ee+2*i,2)}, v{V_TT}{off(u*2048 + i*512 + ee*8)}")
e(f"""s_lshl_b32 s{S_T3}, s{S_J}, 1
s_add_u32 s{S_T3}, s{S_T3}, s{S_GL}
s_and_b32 s{S_T3}, s{S_T3}, 7
s_mul_i32 s{S_T3}, s{S_T3}, 11
s_lshr_b32 s{S_T3}, s{S_T3}, 2
s_mul_i32 s{S_T2}, s{S_HW}, 22
s_add_u32 s{S_T3}, s{S_T3}, s{S_T2}
s_lshl_b32 s{S_SOFF}, s{S_T3}, 14
s_lshl_b32 s{S_STEP}, s{S_T3}, 11
s_lshl_b32 s{S_U}, s{S_T2}, 14
s_add_u32 s{S_U+1}, s{S_U}, {22*16384}
s_lshl_b32 s{S_U+2}, s{S_T2}, 11
s_add_u32 s{S_U+3}, s{S_U+2}, {22*2048}
s_waitcnt lgkmcnt(0)
ds_write_b32 v{V_FLW}, v{V_ONE} offset:{F_WOR}""")
stamp("wo")
hp = f"buffer_load_dwordx2 v[8:9], v{V_HF}, {sr(SRD_WS,4)}, s{S_FLB} offen sc1"
if OPT["hpoll"] < 0:
    e(hp)
lds_spin(V_FLR, F_WOR, V_TMP, "v_cmp_ne_u32", 1, sleep=1, prio=(2, 0))
vq, lq = Queue("vmcnt"), Queue("lgkmcnt")
def f2_dma(s):
    e(f"s_add_u32 m0, s{S_RING}, {(s % 6)*2048}\ns_nop 0\nbuffer_load_dwordx4 v{V_S0}, {sr(SRD_B,4)}, s{S_SOFF} offen lds")
    e(f"s_add_u32 m0, s{S_RING}, {(s % 6)*2048 + 1024 - 64}\ns_add_u32 s{S_T4}, s{S_SOFF}, 16384\nbuffer_load_dwordx4 v{V_S0}, {sr(SRD_B,4)}, s{S_SOFF} offen offset:64 lds")
    vq.issue(); vq.issue(("w", s))
    e(f"s_cmp_ge_u32 s{S_T4}, s{S_U+1}\ns_cselect_b32 s{S_SOFF}, s{S_U}, s{S_T4}")
def f2_h(s):
    for c in range(2):
        e(f"buffer_load_dwordx4 {vr(F2B+8*(s % HD)+4*c,4)}, v{V_L16}, {sr(SRD_A,4)}, s{S_STEP} offen{off(1024*c)} sc1")
        vq.issue(("h", s))
    e(f"s_add_u32 s{S_STEP}, s{S_STEP}, 2048\ns_cmp_ge_u32 s{S_STEP}, s{S_U+3}\ns_cselect_b32 s{S_STEP}, s{S_U+2}, s{S_STEP}")
def f2_reads(s, c):
    for i in range(2):
        e(f"ds_read_b64_tr_b16 {vr(F2A+8*(s % 2)+4*c+2*i,2)}, v{V_TR2}{off((s % 6)*2048 + c*1024 + i*512)}")
        lq.issue(("r", s))
for s in range(6):
    if OPT["hpoll"] == s:
        e(hp)
    f2_dma(s)
duty(4, 0)
e(f"s_waitcnt vmcnt({12 - 2 * max(OPT['hpoll'], 0)})\ns_setprio 2\nv_cmp_ne_u64 vcc, {sr(S_TAG,2)}, v[8:9]\ns_setprio 0\ns_cbranch_vccnz L_hslow\nL_hok:")
with outofline():
    e("L_hslow:")
    glb_spin(V_HF, f"s{S_FLB}", 8, sleep=OPT["hsl"], prio=(2, 0))
    e("s_branch L_hok")
stamp("hok")
if OPT["hp2"]:
    e("s_setprio 2")
for s in range(HD):
    f2_h(s)
def f2_read1(k):
    s, c, i = k // 4, (k // 2) % 2, k % 2
    if k % 4 == 0:
        vq.wait(("w", s))
    e(f"ds_read_b64_tr_b16 {vr(F2A+8*(s % 2)+4*c+2*i,2)}, v{V_TR2}{off((s % 6)*2048 + c*1024 + i*512)}")
    lq.issue(("r", s, c))
G, nr, nh, nd = OPT["g2"], 0, HD, 6
while nr < 8:
    f2_read1(nr); nr += 1
for m in range(88):
    s, u = divmod(m, 4)
    c, tb = u >> 1, u & 1
    if m % G == 0:
        last = min(m + G, 88) - 1
        ls, lc = last // 4, (last % 4) >> 1
        e(f"s_waitcnt vmcnt({vq.left(('h', ls))}) lgkmcnt({lq.left(('r', ls, lc))})")
    mf32(ACC + 16 * c + 32 * tb, F2A + 8 * (s % 2) + 4 * c, F2B + 8 * (s % HD) + 4 * tb, ACC + 16 * c + 32 * tb if s else None)
    end = m % G == G - 1
    n = 0
    while nr < 88 and nr // 2 - 4 <= (m - 1) // 2 and (end or n < 2) and (end or nr % 4):
        f2_read1(nr); nr += 1; n += 1
    if end:
        while nh < 22 and nh - HD <= (m - 3) // 4:
            f2_h(nh); nh += 1
        while nd < 22 and nd - 6 <= (m - 2) // 4:
            f2_dma(nd); nd += 1
stamp("f2")

SLOT = [0, 1, 2, 0, 0, 1, 2, 0]
def piece_loads(t):
    for s_ in range(4):
        e(f"buffer_load_dwordx4 {vr(PC+16*SLOT[t]+4*s_,4)}, v{V_TB}, {sr(SRD_WS,4)}, s{(S_OB, S_U)[t // 4]+s_} offen{off((t % 4)*1024)} sc1")
def wait_duty(mask, sleep):
    top = label("wd")
    e(f"""{top}:
ds_read_b32 v{RL}, v{V_FLR} offset:{F_DUTY}
ds_read_b32 v{RL+1}, v{V_FLR} offset:{F_SLOW}
s_waitcnt lgkmcnt(0)
s_setprio 2
v_lshl_or_b32 v{RL}, v{RL+1}, 1, v{RL}
v_cmp_gt_u32 vcc, 2, v{RL}
s_setprio 0
s_nop 0
s_mov_b32 s{S_T5}, vcc_lo
s_and_b64 vcc, vcc, {mask}""")
    if mask:
        retry(top, sleep)
def consume(t, younger, sleep):
    chk, again = label("chk"), label("again")
    if t == 7 and OPT["inl"]:
        e(f"s_branch {chk}\n{again}:\ns_sub_u32 s3, s3, 1\ns_cbranch_scc1 L_exit")
        piece_loads(t)
    e(f"{chk}:")
    for n in range(4):
        d = PC + 16 * SLOT[t] + 4 * n
        e(f"s_waitcnt vmcnt({younger + 3 - n})")
        if n == 0: e("s_setprio 2")
        e(f"v_max3_u32 v{V_TMP}, v{d}, v{d+3}, v{V_TMP}" if n else f"v_max_u32 v{V_TMP}, v{d}, v{d+3}")
    e(f"v_cmp_eq_u32 vcc, -1, v{V_TMP}\ns_setprio 0\ns_cbranch_vccnz {again}")
    with outofline():
      if not (t == 7 and OPT["inl"]):
        e(f"{again}:\ns_sub_u32 s3, s3, 1\ns_cbranch_scc1 L_exit")
        if sleep:
            e(f"s_sleep {sleep}")
        piece_loads(t)
        if younger:
            e("s_waitcnt vmcnt(0)")
        e(f"s_branch {chk}")
    for s_ in range(4):
        for ee in range(2):
            c = ACC + 8 * (t // 4) + 4 * ee
            mf16(c, TA + 32 * (t % 4) + 8 * s_ + 4 * ee, PC + 16 * SLOT[t] + 4 * s_, c)
def store_out(tb):
    e("s_nop 5\ns_setprio 2")
    for k in range(4):
        e(f"v_cvt_pk_bf16_f32 v{XR+4*tb+k}, v{ACC+8*tb+2*k}, v{ACC+8*tb+2*k+1}")
    e(f"buffer_store_dwordx4 {vr(XR+4*tb,4)}, v{V_OUT}, {sr(SRD_OUT,4)}, s{S_XO+tb} offen{' sc1' if OPT['osc'] >> tb & 1 else ''}")

duty(4, 2)
if OPT["dtry"] & 1:
    duty(7, 0)
e("s_nop 7")
for tb in range(2):
    e(f"buffer_load_dwordx4 {vr(XR+4*tb,4)}, v{V_OUT}, {sr(SRD_X,4)}, s{S_XO+tb} offen")
for tb in range(2):
    if tb:
        e("s_waitcnt lgkmcnt(6)")
    for ct in range(2):
        for a in range(4):
            e(f"ds_write_b128 v{(V_DW0, V_DW1)[tb]}, {vr(ACC+32*tb+16*ct+4*a,4)}{off(ct*4096 + a*1024)}")
e(f"ds_write_b32 v{V_FLW}, v{V_ONE} offset:{F_D0}\ns_waitcnt lgkmcnt(0)")
for k in range(4):
    e(f"s_add_u32 s{S_U+k}, s{S_OB+k}, 32768")
for t in range(3):
    piece_loads(t)
lds_spin(V_FLR, F_D0, RL, "v_cmp_ne_u32", 1, sleep=1, prio=(2, 0))
def exchange_sum(tb):
    for w in range(4):
        for h in range(2):
            e(f"ds_read_b128 {vr(RT+8*w+4*h,4)}, v{(V_DR0, V_DR1)[tb]}{off(w*(8192, H_STR)[tb] + h*512)}")
    e("s_waitcnt vmcnt(12) lgkmcnt(4)\ns_setprio 2")
    for k in range(4):
        e(f"v_pk_add_f32 {vr(RT+2*k,2)}, {vr(RT+2*k,2)}, {vr(RT+8+2*k,2)}")
    e("s_waitcnt lgkmcnt(0)")
    for k in range(4):
        e(f"v_pk_add_f32 {vr(RT+16+2*k,2)}, {vr(RT+16+2*k,2)}, {vr(RT+24+2*k,2)}")
    for k in range(4):
        e(f"v_pk_add_f32 {vr(RT+2*k,2)}, {vr(RT+2*k,2)}, {vr(RT+16+2*k,2)}")
    for k in range(4):
        e(f"v_dot2_f32_bf16 v{ACC+8*tb+2*k}, v{XR+4*tb+k}, s{S_C10}, v{RT+2*k}")
        e(f"v_dot2_f32_bf16 v{ACC+8*tb+2*k+1}, v{XR+4*tb+k}, s{S_C01}, v{RT+2*k+1}")
    e("s_setprio 0")
exchange_sum(0)
if not OPT["defer"]:
    exchange_sum(1)
stamp("d0")
if OPT["dtry"] & 2:
    duty(7, 0)
consume(0, 8, OPT["csl"])
piece_loads(3)
if OPT["dtry"] & 4:
    duty(7, 0)
consume(1, 8, OPT["csl"])
consume(2, 4, OPT["csl"])
wait_duty(0, 0)
e(f"s_bitcmp1_b32 s{S_T5}, s{S_HW}\ns_cselect_b32 s{S_IT}, s{S_IT}, 2")
consume(3, 0, OPT["csl"])
store_out(0)
e("s_setprio 0")
stamp("tb0")
duty(7, 2)
wait_duty(7, 4)
piece_loads(4)
piece_loads(5)
if OPT["defer"]:
    stamp("pre")
    wait_duty(8, OPT["w8sl"])
    stamp("w8")
    piece_loads(6)
    exchange_sum(1)
    consume(4, 8, 0)
    consume(5, 4, 0)
    if OPT["c6first"]:
        consume(6, 0, 0)
    elif OPT["t7dl"]:
        e(f"s_sleep {OPT['t7dl']}")
    piece_loads(7)
    stamp("l7")
else:
    e(f"s_bitcmp1_b32 s{S_T5}, 3\ns_cbranch_scc1 L_no6")
    piece_loads(6)
    e("L_no6:")
    consume(4, 4, OPT["csl"])
    e(f"s_bitcmp1_b32 s{S_T5}, 3\ns_cbranch_scc1 L_no7")
    piece_loads(7)
    e("L_no7:")
    consume(5, 0, OPT["csl"])
    stamp("pre")
    e(f"s_bitcmp1_b32 s{S_T5}, 3\ns_cbranch_scc0 L_have7")
    wait_duty(8, 2)
    piece_loads(6)
    if OPT["t7dl"]:
        e(f"s_sleep {OPT['t7dl']}")
    piece_loads(7)
    e("L_have7:")
if not OPT["c6first"]:
    consume(6, 4, 0)
consume(7, 0, OPT["t7sl"])
stamp("fbar")
store_out(1)
e("s_branch L_fin" if OPT["stamps"] or OPT["hold"] != -1 else "s_endpgm")

S_KO = 48
def a_setup():
    e(f"""v_lshlrev_b32 v1, 4, v0
v_and_b32 v4, 15, v0
v_lshlrev_b32 v4, 4, v4
v_lshrrev_b32 v6, 5, v0
v_lshl_add_u32 v4, v6, 8, v4
v_bfe_u32 v6, v0, 4, 1
v_lshl_add_u32 v2, v6, 9, v4
s_lshl_b32 s{S_T2}, s{S_W}, 13
s_add_u32 s{S_T2}, s{S_T2}, {L_P1}
v_add_u32 v5, s{S_T2}, v1
v_and_b32 v6, 31, v0
s_lshl_b32 s{S_T2}, s{S_W}, 7
s_add_u32 s{S_T2}, s{S_T2}, {L_LS}
v_lshl_add_u32 v6, v6, 2, s{S_T2}
v_mov_b32 v7, v{V_FLR}
v_add_u32 v252, {L_Q}, v1
s_lshl_b32 s{S_T0}, s{S_W}, 15
s_mov_b32 s{S_EX}, 0x0000ffff
s_mov_b32 s{S_EX+1}, 0x0000ffff
s_lshl_b32 s{S_T2}, s{S_W}, 11
s_add_u32 s{S_XO}, s{S_T2}, {L_P2}
s_mul_i32 s{S_T2}, s{S_W}, 384
s_add_u32 s{S_XO+1}, s{S_T2}, 2048
s_lshl4_add_u32 s{S_T2}, s{S_G}, s{S_J}
s_lshl2_add_u32 s{S_T2}, s{S_T2}, s{S_W}
s_lshl_b32 s{S_T2}, s{S_T2}, 10
s_add_u32 s{S_PC}, s{S_T2}, {hex(WS_O)}
s_add_u32 s{S_PC+1}, s{S_PC}, 32768
s_movk_i32 s{S_CLS}, 0x207
s_mov_b32 s{S_TA}, 0x07060302""")
    for b in range(16):
        e(f"s_add_u32 s{S_T2}, s{S_C}, {b}\ns_and_b32 s{S_T2}, s{S_T2}, 15\ns_lshl_b32 s{S_T2}, s{S_T2}, 11\ns_add_u32 s{S_KO+b}, s{S_T2}, s{S_T0}")
e(".p2align 6\nL_afront:")
stamp("karg")
if OPT["eb"]:
    e("s_barrier")
common_setup()
e(f"""s_lshl_b32 s{S_T0}, s{S_W}, 3
s_xor_b32 s{S_T0}, s{S_T0}, 8
s_or_b32 s{S_T0}, s{S_T0}, s2
s_cmp_lt_u32 s{S_T0}, 8
s_cbranch_scc0 L_notag
s_memrealtime {sr(S_T0+1,2)}
v_mov_b32 v46, 0
v_mov_b32 v47, 0
s_waitcnt lgkmcnt(0)
s_or_b32 s{S_T0+1}, s{S_T0+1}, 1
v_mov_b32 v44, s{S_T0+1}
v_mov_b32 v45, s{S_T0+2}
s_mov_b64 exec, 1
buffer_atomic_cmpswap_x2 v[44:47], v46, {sr(SRD_DBG,4)}, 0 offen sc1
s_mov_b64 exec, -1
L_notag:
v_lshlrev_b32 v3, 4, v0
v_mov_b32 v48, -1
v_mov_b32 v49, -1
v_mov_b32 v50, -1
v_mov_b32 v51, -1
s_lshl_b32 s{S_T0}, s{S_W}, 10
s_add_u32 s{S_T0}, s{S_T0}, {L_LS}
v_add_u32 v6, s{S_T0}, v3
ds_write_b128 v6, v[48:51]
v_mov_b32 v52, 0""")
if not OPT["eb"]:
    e(f"v_lshlrev_b32 v6, 2, v0\nv_add_u32 v6, {L_FLG}, v6\nds_write2st64_b32 v6, v52, v52 offset1:1")
unit_addr(0, 2)
unit_addr(1, 3)
e(f"s_cmp_eq_u32 s{S_W}, 0\ns_cbranch_scc1 L_kv")
def v_init():
    e(f"""v_mov_b32 v42, 0
s_mov_b32 exec_lo, 0x00110000
s_mov_b32 exec_hi, 0x00110000
v_mov_b32 v42, s{S_C11}
s_mov_b64 exec, -1
v_mov_b32 v43, v42""")
    for i in range(0, 128, 2):
        e(f"v_mov_b64 {vr(VV+i,2)}, v[42:43]")
if OPT["bal"] == 2:
    e(f"v_and_b32 v227, 0xfff, v1\ns_lshl_b32 s{S_T0}, s{S_W}, 6\nv_subrev_u32 v2, s{S_T0}, v2\nv_and_b32 v4, 15, v4\ns_add_u32 s{S_T5}, s{S_W}, 1\ns_min_u32 s{S_T5}, s{S_T5}, 3")
    unit_addr(2, f"s{S_T5}")
v_init()
e("v_mov_b32 v226, v1")
a_setup()
srd(SRD_W, P_WQ, 512 * 1024)
e(f"""v_lshrrev_b32 v224, 3, v0
v_lshlrev_b32 v224, 10, v224
v_and_b32 v225, 7, v0
v_lshl_add_u32 v224, v225, 6, v224
s_lshl1_add_u32 s{S_T0}, s{S_C}, s{S_W}
s_sub_u32 s{S_T0}, s{S_T0}, 2
s_lshl_b32 s{S_T0}, s{S_T0}, 13
s_and_b32 s{S_T1}, s{S_J}, 4
s_lshl_b32 s{S_T1}, s{S_T1}, 7
s_add_u32 s{S_T0}, s{S_T0}, s{S_T1}
s_cmp_eq_u32 s{S_W}, 1
s_cselect_b32 s{S_T0}, 0x1000000, s{S_T0}""")
stamp("aset")
if not OPT["eb"]:
    e("s_waitcnt lgkmcnt(0)\ns_barrier")
if OPT["pf_wq"] == 4:
    e(f"buffer_load_dword v225, v224, {sr(SRD_W,4)}, s{S_T0} offen")
unit_loads(8, 0, 226)
if OPT["pf_wq"] == 5:
    e(f"buffer_load_dword v225, v224, {sr(SRD_W,4)}, s{S_T0} offen")
unit_loads(24, 1, 226)
if OPT["bal"] == 2:
    unit_loads(40, 2, 227)
if OPT["pf_wq"] == 1:
    e(f"buffer_load_dword v225, v224, {sr(SRD_W,4)}, s{S_T0} offen")
stamp("xis")
if OPT["bal"] == 2:
    ln_centre([8, 24, 40], [8 + (OPT["pf_wq"] in (1, 5)), 4 + (OPT["pf_wq"] == 1), 0 + (OPT["pf_wq"] == 1)], V_WR, 56, 60, 64)
    ln_stats(3, V_ST, 56, 60)
else:
    ln_centre([8, 24], [4 + (OPT["pf_wq"] in (1, 5)), 0 + (OPT["pf_wq"] == 1)], V_WR, 56, 58, 60)
    ln_stats(2, V_ST, 56, 58)
e(f"ds_write_b32 v{V_FLW}, v{V_ONE} offset:{F_LNA}")
stamp("lnB")
e("s_branch L_kvwait")
WF, XF, KA = 72, 136, 208
e(f"L_kv:\ns_setprio 3\nds_write_b32 v{V_FLW}, v{V_ONE} offset:{F_LNA}")
e(f"""v_lshlrev_b32 v43, 3, v7
v_bfe_u32 v42, v0, 2, 2
v_lshl_add_u32 v43, v42, 5, v43
v_lshrrev_b32 v42, 4, v0
v_lshl_add_u32 v43, v42, 8, v43
v_add_u32 v43, {L_WKV}, v43
v_mul_u32_u24 v44, {X_STR}, v42
v_lshl_add_u32 v44, v5, 4, v44
s_lshl_b32 s{S_T0}, s{S_T3}, 8
s_add_u32 s{S_T0}, s{S_T0}, {L_X}
v_add_u32 v44, s{S_T0}, v44
s_lshl_b32 s{S_T0}, s{S_T3}, 6
s_add_u32 s{S_T0}, s{S_T0}, {L_RSTD}
v_lshl_add_u32 v45, v5, 2, s{S_T0}
v_lshl_add_u32 v46, v42, 4, s{S_T0}
v_mov_b32 v47, {L_FLG + F_TAG}
s_lshr_b32 s{S_T1}, s{S_T3}, 1
s_lshl1_add_u32 s{S_T0}, s{S_G}, s{S_T1}
s_lshr_b32 s{S_T1}, s{S_J}, 2
s_lshl1_add_u32 s{S_T0}, s{S_T0}, s{S_T1}
s_and_b32 s{S_T1}, s{S_T3}, 1
s_lshl1_add_u32 s{S_T0}, s{S_T0}, s{S_T1}
s_lshl_b32 s{S_T5}, s{S_T0}, 9
s_lshl_b32 s{S_T4}, s{S_J}, {OPT['fsh']}
s_add_u32 s{S_T4}, s{S_T4}, s{S_FLB}""")
if not OPT["eb"]:
    e("s_waitcnt lgkmcnt(0)\ns_barrier")
if not OPT["x0late"] and OPT["bal"] < 2:
    unit_loads(8, 0)
    if not OPT["bal"]:
        unit_loads(24, 1)
for s in range(16):
    if s % 4 == 0:
        e(f"s_waitcnt vmcnt({(12 if OPT['x0late'] else 20 - 4 * min(OPT['bal'], 2)) - s}) lgkmcnt(6)")
        if s == 0: stamp("wkv")
    for i in range(2):
        e(f"ds_read_b64_tr_b16 {vr(WF+4*s+2*i,2)}, v43{off(s*1024 + i*128)}")
if OPT["x0late"]:
    unit_loads(8, 0)
    unit_loads(24, 1)
stamp("trd")
e(f"s_bitcmp1_b32 s{S_J}, 2\ns_cbranch_scc1 L_kv_v")
def kv_tile(isv):
    lq = Queue("lgkmcnt")
    rs, ok = label("rs"), label("rsok")
    rd = f"ds_read_b32 v53, v{V_FLR} offset:{F_LN}\n" + ("ds_read_b128 v[68:71], v46" if isv else "ds_read_b32 v68, v45")
    top = label("lnp")
    e(f"{top}:\ns_sub_u32 s3, s3, 1\ns_cbranch_scc1 L_exit\nds_read_b32 v53, v{V_FLR} offset:{F_LNP}\ns_waitcnt lgkmcnt(0)\nv_cmp_ne_u32 vcc, 1, v53\ns_nop 0\ns_cbranch_vccnz {top}")
    stamp("bar1")
    def xr(s):
        e(f"ds_read_b128 {vr(XF+4*s,4)}, v44{off(s*4*X_STR)}")
        lq.issue(s)
    for s in range(8):
        xr(s)
    for s in range(16):
        if s + 8 < 16:
            xr(s + 8)
        elif s == 12:
            e(rd)
            lq.issue(); lq.issue()
        lq.wait(s)
        if isv:
            mf16(KA, XF + 4 * s, WF + 4 * s, KA if s else None)
        else:
            mf16(KA, WF + 4 * s, XF + 4 * s, KA if s else None)
    e(f"{ok}:\ns_waitcnt lgkmcnt(0)\nv_cmp_ne_u32 vcc, 1, v53\ns_nop 4\ns_cbranch_vccnz {rs}")
    with outofline():
        e(f"{rs}:\ns_sub_u32 s3, s3, 1\ns_cbranch_scc1 L_exit\n{rd}\ns_branch {ok}")
    for k in range(4):
        e(f"v_mul_f32 v{KA+k}, v{KA+k}, v{68 + (k if isv else 0)}")
    e(f"""v_cvt_pk_bf16_f32 v48, v{KA}, v{KA+1}
v_cvt_pk_bf16_f32 v49, v{KA+2}, v{KA+3}
s_nop 1
v_permlane32_swap_b32 v48, v50
v_permlane32_swap_b32 v49, v51
s_mov_b32 exec_hi, 0
buffer_store_dwordx4 v[48:51], v3, {sr(SRD_WS,4)}, s{S_T5} offen sc1
s_mov_b32 exec_hi, -1""")
kv_tile(0)
e("s_branch L_kv_done\nL_kv_v:")
kv_tile(1)
e("L_kv_done:")
stamp("kvst")
e(f"buffer_load_dwordx2 v[54:55], v52, {sr(SRD_DBG,4)}, 0 offen sc1")
v_init()
a_setup()
e(f"""L_tagchk:
s_waitcnt vmcnt(0)
v_cmp_eq_u32 vcc, 0, v54
s_nop 0
s_cbranch_vccnz L_tag
s_mov_b64 exec, 1
buffer_store_dwordx2 v[54:55], v52, {sr(SRD_WS,4)}, s{S_T4} offen sc1
s_mov_b64 exec, -1
ds_write_b64 v47, v[54:55]
ds_write_b32 v{V_FLR}, v{V_ONE} offset:{F_KVS}
s_setprio 0""")
with outofline():
    e(f"L_tag:\ns_sub_u32 s3, s3, 1\ns_cbranch_scc1 L_exit\ns_sleep 2\nbuffer_load_dwordx2 v[54:55], v52, {sr(SRD_DBG,4)}, 0 offen sc1\ns_branch L_tagchk")
stamp("kvfl")
def flag_addr():
    e(f"v_lshrrev_b32 v3, 3, v0\nv_lshlrev_b32 v3, 11, v3\nv_and_b32 v8, 7, v0\nv_lshl_add_u32 v3, v8, {OPT['fsh']}, v3")
if OPT["self"]:
    e("L_kvwait:")
    flag_addr()
    e(f"""v_lshlrev_b32 v12, 2, v8
v_add_u32 v12, {L_FLG + F_KVS}, v12
v_mov_b32 v13, {L_FLG + F_TAG}
s_lshl_b32 s{S_U}, s{S_W}, 14
s_add_u32 s{S_U}, s{S_U}, {hex(WS_FL)}
L_gate:
s_sub_u32 s3, s3, 1
s_cbranch_scc1 L_exit
ds_read_b32 v14, v12
ds_read_b64 v[10:11], v13
s_waitcnt lgkmcnt(0)
v_cmp_ne_u32 vcc, 1, v14
s_nop 0
s_cbranch_vccnz L_gate""")
    if OPT["pdl"]:
        e(f"s_sleep {OPT['pdl']}")
    e(f"L_kvpoll:\nbuffer_load_dwordx2 v[8:9], v3, {sr(SRD_WS,4)}, s{S_U} offen sc1\ns_waitcnt vmcnt(0)\nv_cmp_ne_u64 vcc, v[10:11], v[8:9]\ns_nop 0")
    retry("L_kvpoll", OPT["psl"], lambda: e("s_mov_b64 exec, vcc"))
    e("s_mov_b64 exec, -1")
else:
    e(f"v_readfirstlane_b32 s{S_TAG}, v54\nv_readfirstlane_b32 s{S_TAG+1}, v55")
    flag_addr()
    for k in range(4):
        e(f"s_mov_b32 s{S_U+k}, {hex(WS_FL + k*16384)}")
    lds_spin(7, F_WQI, 8, "v_cmp_ne_u32", 1)
    e("L_kvpoll:")
    for k in range(4):
        e(f"buffer_load_dwordx2 {vr(8+2*k,2)}, v3, {sr(SRD_WS,4)}, s{S_U+k} offen sc1")
    for k in range(4):
        e(f"s_waitcnt vmcnt({3-k})\nv_cmp_ne_u64 {'vcc' if k == 0 else sr(S_U+2+2*k,2)}, {sr(S_TAG,2)}, {vr(8+2*k,2)}")
    e(f"s_or_b64 vcc, vcc, {sr(S_U+4,2)}\ns_or_b64 vcc, vcc, {sr(S_U+6,2)}\ns_or_b64 vcc, vcc, {sr(S_U+8,2)}")
    retry("L_kvpoll", OPT["psl"], lambda: e("s_mov_b64 exec, vcc"))
    e(f"s_mov_b64 exec, -1\nds_write_b32 v7, v255 offset:{F_KVOK}\ns_branch L_kvok")
    e(f"L_kvwait:\ns_sub_u32 s3, s3, 1\ns_cbranch_scc1 L_exit\nds_read_b32 v8, v7 offset:{F_KVOK}\ns_waitcnt lgkmcnt(0)\nv_cmp_ne_u32 vcc, 1, v8\ns_nop 0\ns_cbranch_vccnz L_kvwait\nL_kvok:")
stamp("flags")
vq = Queue("vmcnt")
NB0 = OPT["nb0"]
def k_load(b):
    vq.issue(("K", b))
    return [f"buffer_load_dwordx4 {vr(VK+4*b,4)}, v2, {sr(SRD_WS,4)}, s{S_KO+b} offen sc1"]
def v_load(b):
    vq.issue(); vq.issue(("V", b))
    return ([f"s_mov_b64 exec, {sr(S_EX,2)}"]
            + [f"buffer_load_dwordx4 {vr(VV+8*b+4*i,4)}, v4, {sr(SRD_WS,4)}, s{S_KO+b} offen{off(1024+512*i)} sc1" for i in range(2)]
            + ["s_mov_b64 exec, -1"])
for b in range(NB0):
    e("\n".join(k_load(b) + v_load(b)))
if NB0 == 16:
    e(f"ds_write_b32 v253, v255 offset:{F_KVIS}")
stamp("kvis")
if OPT["q0"]:
    e(f"v_mov_b32 v254, {L_FLG}")
lds_spin(254 if OPT["q0"] else 7, F_Q, 3, "v_cmp_ne_u32", 1)
e(f"ds_read_b128 {vr(VQ,4)}, v252\ns_setprio 1\ns_waitcnt vmcnt({vq.left(('K', 0))}) lgkmcnt(0)")
stamp("go")
mf32(SA, VK, VQ)
e("s_nop 11")

ORDER = ["e0 d7 a e1 e2 e3 b e4 e5 c0 c1 Q e6 e7 c2 e8 c3 e9 e10 e11 c4 e12 e13 c5 e14 e15 c6",
         "e0 d7 a e1 e2 c0 b e3 e4 c1 Q e5 e6 e7 c2 e8 c3 e9 e10 e11 c4 e12 e13 c5 e14 e15 c6",
         "e0 d7 a e1 e2 e3 c0 b e4 e5 e6 c1 Q e7 c2 e8 c3 e9 e10 e11 c4 e12 e13 c5 e14 e15 c6",
         "e0 d7 a e1 e2 e3 b e4 e5 e6 Q c0 c1 e7 c2 e8 c3 e9 e10 e11 c4 e12 e13 c5 e14 e15 c6"][OPT["order"]].split()
def pack(d, a):
    e(f"v_perm_b32 v{d}, v{a+1}, v{a}, s{S_TA}" if OPT["perm"] else f"v_cvt_pk_bf16_f32 v{d}, v{a}, v{a+1}")
def flush(t):
    o = (t % 4) * 2048 + (t // 4) * (L_P2 - L_P1)
    return [f"ds_write_b128 v5, {vr(VO,4)}{off(o)}", f"ds_write_b128 v5, {vr(VO+4,4)}{off(o+1024)}",
            f"ds_write_b32 v6, v{VO+8}{off(t*512)}"]
for i in range(128):
    t, b = divmod(i, 16)
    S, T = (SA, SB) if i % 2 == 0 else (SB, SA)
    pb = (b - 1) % 16
    after = {}
    if b == 0:
        note(f"q block {t}")
    if t == 0:
        if b + NB0 < 16:
            after["a"] = k_load(b + NB0)
        after["b"] = [f"s_waitcnt vmcnt({min(vq.left(('K', b+1)), vq.left(('V', b))) if b < 15 else 0})"]
        if b + NB0 < 16:
            after["Q"] = v_load(b + NB0)
        if b + NB0 == 16 - OPT["kvlead"] and NB0 < 16:
            after["e9"] = [f"ds_write_b32 v253, v255 offset:{F_KVIS}"]
    if b == 14 and t < 7:
        after["Q"] = [f"ds_read_b128 {vr(VQ,4)}, v252{off((t+1)*1024)}"]
    if b == 15 and t < 7:
        after["a"] = ["s_waitcnt lgkmcnt(0)"]
    if b == 0 and t > 0:
        fl = flush(t - 1)
        after["e11"], after["e12"], after["e14"] = [fl[0]], [fl[1]], [fl[2]]
    if OPT["q0"] and i == 12:
        after["a"] = [f"ds_read_b32 v3, v7 offset:{F_Q}"]
    if OPT["q0"] and i == 13:
        after["a"] = ["s_waitcnt lgkmcnt(0)"]
        after["e7"] = ["v_cmp_ne_u32 vcc, 1, v3"]
        after["e8"] = ["s_cbranch_vccnz L_qslow", "L_qok:"]
    if i == 126:
        after["a"] = [f"ds_read_b32 v3, v253 offset:{F_DUTY}"]
    if t == 4 and b == 6:
        after["a"] = [f"ds_read_b32 v3, v7 offset:{F_G1}"]
    if t == 4 and b == 7:
        after["a"] = ["s_waitcnt lgkmcnt(0)"]
        after["e7"] = ["v_cmp_ne_u32 vcc, 1, v3"]
        after["e8"] = ["s_cbranch_vccnz L_g1slow", "L_g1ok:"]
    for tok in ORDER:
        k = tok[0]
        if k == "e":
            n = int(tok[1:]); e(f"v_exp_f32 v{S+n}, v{S+n}")
        elif k == "c":
            n = int(tok[1:]); pack(S+(n//4)*8+n%4, S+2*n)
        elif k == "d":
            if i: pack(T+11, T+14)
        elif k == "a":
            if i: mf32(VO, VV + 8 * pb, T, None if b == 1 else VO)
        elif k == "b":
            if i: mf32(VO, VV + 8 * pb + 4, T + 8, VO)
        elif k == "Q":
            if i < 127:
                mf32(T, VK + 4 * ((b + 1) % 16), VQ)
        for x in after.get(tok, []):
            e(x)
    if b == 15:
        stamp(f"p{t}")
with outofline():
    if OPT["q0"]:
        e("L_qslow:")
        lds_spin(7, F_Q, 3, "v_cmp_ne_u32", 1, sleep=1)
        e("s_branch L_qok")
    e("L_g1slow:")
    lds_spin(7, F_G1, 3, "v_cmp_ne_u32", 1, sleep=1)
    e("s_branch L_g1ok")
pack(SB+11, SB+14)
mf32(VO, VV + 8 * 15, SB, VO)
e("s_nop 0")
mf32(VO, VV + 8 * 15 + 4, SB + 8, VO)
e(f"""s_waitcnt lgkmcnt(0)
v_readfirstlane_b32 s{S_IT}, v3
v_mov_b32 v{V_L16}, v1
v_mov_b32 v{V_FLR}, v7
v_add_u32 v{V_PART}, s{S_XO}, v1
v_add_u32 v{V_LS}, s{S_XO+1}, v6
s_getpc_b64 {sr(S_RET,2)}
L_apc:
s_add_u32 s{S_RET}, s{S_RET}, L_aduty_done-L_apc
s_addc_u32 s{S_RET+1}, s{S_RET+1}, 0
s_mov_b32 s{S_BLK}, 1
s_cmp_eq_u32 s{S_IT}, 1
s_nop 0""")
for x in flush(7):
    e(x)
stamp("fbar")
e(f"""s_cbranch_scc0 L_aduty
s_mov_b32 s{S_PC}, s{S_PC+1}""")
cur[0].extend(duty_code)
e("L_aduty_done:")
with outofline():
    e(f"L_aduty:\ns_cmp_eq_u32 s{S_IT}, 0\ns_cbranch_scc0 L_aduty_done")
    lds_spin(7, F_PZ, 3, "v_cmp_ne_u32", 1, sleep=4)
    e(f"""v_subrev_u32 v{V_PART}, {L_P2 - L_P1}, v{V_PART}
v_subrev_u32 v{V_LS}, 2048, v{V_LS}
s_call_b64 {sr(S_RET,2)}, L_duty
s_mov_b32 s{S_BLK}, 1
s_call_b64 {sr(S_RET,2)}, L_duty
s_branch L_aduty_done""")
stamp("adone")
e(f"""s_setprio 0
L_status:
s_sleep 4
ds_read_b32 v3, v7 offset:{F_DUTY}
ds_read_b32 v4, v7 offset:{F_SLOW}
s_waitcnt lgkmcnt(0)
v_cmp_ne_u32 vcc, 0, v4
s_nop 0
s_cbranch_vccnz L_slow
v_cmp_ne_u32 vcc, 2, v3
s_nop 0""")
retry("L_status", 0)
e("L_fin:")
if OPT["hold"] == "end":
    e("s_waitcnt vmcnt(0)")
    if OPT["amp"]:
        stamp("fin")
        e(f"s_sub_u32 s{S_ST0+8}, s{S_ST0+8}, s{S_ST0+9}\ns_mul_i32 s{S_ST0+8}, s{S_ST0+8}, 10\nL_amp:\ns_memrealtime {sr(S_STMP,2)}\ns_waitcnt lgkmcnt(0)\ns_sub_u32 s{S_STMP}, s{S_STMP}, s{S_ST0+9}\ns_sub_u32 s{S_STMP}, s{S_STMP}, {OPT['holdT']}\ns_cmp_lt_i32 s{S_STMP}, s{S_ST0+8}\ns_cbranch_scc1 L_amp")
    stamp("end")
if OPT["stamps"]:
    e(f"s_waitcnt vmcnt(0)\ns_memtime {sr(S_STMP,2)}\ns_waitcnt lgkmcnt(0)")
    e(f"s_lshl_b32 s{S_T0}, s{S_G}, 3\ns_add_u32 s{S_T0}, s{S_T0}, s{S_J}\ns_lshl_b32 s{S_T0}, s{S_T0}, 3\ns_add_u32 s{S_T0}, s{S_T0}, s{S_W}\ns_lshl_b32 s{S_T0}, s{S_T0}, 6\ns_add_u32 s{S_T0}, s{S_T0}, {hex(WS_ST)}")
    for k in range(10):
        e(f"v_mov_b32 v{8+k}, s{S_ST0+k}")
    e(f"v_mov_b32 v18, s{S_STMP}\ns_memrealtime {sr(S_STMP,2)}\ns_waitcnt lgkmcnt(0)\nv_mov_b32 v19, s{S_STMP}\nv_mov_b32 v1, 0\ns_mov_b64 exec, 1")
    for k in range(3):
        e(f"buffer_store_dwordx4 {vr(8+4*k,4)}, v1, {sr(SRD_WS,4)}, s{S_T0} offen{off(16*k)}")
e("L_exit:\ns_endpgm")
out += tail_code
tail_code.clear()
e("L_code_end:")

def wave_sync():
    e(f"s_add_u32 s{S_T4}, s{S_T4}, 1\nv_mov_b32 v3, s{S_T4}\nds_write_b32 v253, v3 offset:{F_AS}")
    lds_spin(7, F_AS, 3, "v_cmp_gt_u32", f"s{S_T4}", sleep=1)
e("L_slow:")
lds_spin(7, F_PZ, 3, "v_cmp_ne_u32", 1, sleep=4)
e(f"""s_lshl_b32 s{S_T0}, s{S_W}, 8
s_add_u32 s{S_T0}, s{S_T0}, {L_MB}
v_lshl_add_u32 v2, v0, 2, s{S_T0}
v_and_b32 v4, 31, v0
v_lshlrev_b32 v4, 2, v4
v_add_u32 v4, {L_MB}, v4
v_add_u32 v6, {L_SL - L_LS}, v6
v_add_u32 v254, {L_P1}, v1
s_lshl_b32 s{S_T2}, s{S_G}, 16
s_lshl_b32 s{S_T3}, s{S_J}, 12
s_add_u32 s{S_T2}, s{S_T2}, s{S_T3}
s_add_u32 s{S_T2}, s{S_T2}, {hex(WS_O)}
s_mov_b32 s{S_IT}, 0
s_mov_b32 s{S_T4}, 0
L_slow_loop:
ds_read_b128 {vr(VQ,4)}, v252
v_mov_b32 v3, 0xff800000
s_waitcnt lgkmcnt(0)
v_add_u32 v252, 1024, v252""")
for b in range(16):
    mf32(SA, VK + 4 * b, VQ)
    e("s_nop 11")
    for k in range(8):
        e(f"v_max3_f32 v3, v3, v{SA+2*k}, v{SA+2*k+1}")
e("ds_write_b32 v2, v3")
wave_sync()
for k in range(8):
    e(f"ds_read_b32 v{SA+k}, v4{off(128*k)}")
e("s_waitcnt lgkmcnt(0)")
e(f"v_max3_f32 v3, v{SA}, v{SA+1}, v{SA+2}\nv_max3_f32 v3, v3, v{SA+3}, v{SA+4}\nv_max3_f32 v3, v3, v{SA+5}, v{SA+6}\nv_max_f32 v3, v3, v{SA+7}")
for k in range(16):
    e(f"v_sub_f32 v{SB+k}, 0, v3")
e("s_nop 1")
for b in range(16):
    mf32(SA, VK + 4 * b, VQ, SB)
    e("s_nop 11")
    for k in range(16):
        e(f"v_exp_f32 v{SA+k}, v{SA+k}")
    for n in range(8):
        e(f"v_cvt_pk_bf16_f32 v{SA+(n//4)*8+n%4}, v{SA+2*n}, v{SA+2*n+1}")
    e("s_nop 1")
    mf32(VO, VV + 8 * b, SA, VO if b else None)
    mf32(VO, VV + 8 * b + 4, SA + 8, VO)
e("s_nop 11")
for x in flush(0):
    e(x)
wave_sync()
e(f"s_cmp_eq_u32 s{S_W}, 0\ns_cbranch_scc0 L_slow_next")
reduce_piece(254, 6)
e("s_waitcnt lgkmcnt(8)")
reduce_math(0)
for k in range(4):
    e(f"v_min_u32 v{OB+k}, -2, v{OB+k}")
e(f"""s_lshr_b32 s{S_T0}, s{S_IT}, 2
s_lshl_b32 s{S_T0}, s{S_T0}, 15
s_and_b32 s{S_T1}, s{S_IT}, 3
s_lshl_b32 s{S_T1}, s{S_T1}, 10
s_add_u32 s{S_T0}, s{S_T0}, s{S_T1}
s_add_u32 s{S_T0}, s{S_T0}, s{S_T2}
buffer_store_dwordx4 {vr(OB,4)}, v1, {sr(SRD_WS,4)}, s{S_T0} offen sc1
s_waitcnt vmcnt(0)
L_slow_next:
s_add_u32 s{S_IT}, s{S_IT}, 1
s_cmp_lt_u32 s{S_IT}, 8
s_cbranch_scc1 L_slow_loop
s_branch L_fin""")
out += tail_code

e(f""".section .rodata,"a"
.p2align 6
.amdhsa_kernel {NAME}_kernel
.amdhsa_next_free_vgpr 256
.amdhsa_next_free_sgpr 102
.amdhsa_accum_offset 256
.amdhsa_group_segment_fixed_size 0
.amdhsa_kernarg_size 88
.amdhsa_user_sgpr_count 2
.amdhsa_user_sgpr_kernarg_segment_ptr 1
.amdhsa_system_sgpr_workgroup_id_x 1
.end_amdhsa_kernel""")
open(sys.argv[1], "w").write("\n".join(out) + "\n")
```

```python
import sys, struct

NAME = "parallel_sum__grouped_kv_mqa__dense_activation_silu__prompt"
OPT = dict(hold=-1, holdT=6000, stamps=0, rt=0, force_slow=0, pf_code=1, pf_wq=1, pf_w1=0, pf_w2=1, f1wait=1, psl=0, pdl=0, fsh=6, chain=0, warm=0, bal=3, wq1=1, half=1, q0=1, w8sl=1, c6first=1, ksl=2, ne=2, m1=0, eat=4, eck=6, wat=4, lwait=1, lp=1, hat=8, self=0, hpoll=2, d0pos=2, p1=0, pf_at=14, pf_mall=0, nb0=6, mask=1, kvlead=1, gate=0, pgate=2, csl=4, t6dl=12, t7dl=4, t7sl=0, flip=0, d1=8, hsl=8, hp1=0, hp2=0, pfa=0, dtry=3, mallw=1, pf1=0, pw=0, p0=3, npre=16, g2=3, g1h=3, order=1, g1l=4, eb=1, x0late=0, inl=1, amp=0, osc=0, defer=1, perm=0)
for a in sys.argv[2:]:
    k, v = a.split("=")
    OPT[k] = int(v) if v.lstrip("-").isdigit() else v
SITES = ["start"] + (OPT["stamps"].split(",") if OPT["stamps"] else [])
assert len(SITES) <= 9

def f2u(x):
    return struct.unpack("<I", struct.pack("<f", x))[0]
LOG2E = 1.4426950408889634

WS_KV = 0x0
WS_O = 0x40000
WS_H = 0x300000
WS_FL = 0xE00000
FL_H = 512
WS_ST = 0xF00000
WS_SIZE = 0x1000000
H_GRP = 86 * 2048

H_STR = 12288
L_P1 = 49152
L_WKV = 65536
L_X = 81920
X_STR = 1040
L_P2 = L_X
L_DUMP = L_X + 32768
L_Q = L_X + 64 * X_STR
L_M = L_Q + 8192
L_LS = L_M
L_RSTD = L_M + 4096
L_FLG = L_M + 4608
L_MB = L_M + 5120
L_SL = L_M + 6144
LDS_BYTES = 163840
F_LN2, F_LNA, F_WQ, F_Q, F_KVIS, F_G1, F_D0, F_PZ, F_LN, F_DUTY, F_SLOW, F_AS, F_LNP, F_KVST, F_KVOK, F_TAG = 0, 16, 32, 48, 64, 80, 96, 112, 128, 144, 176, 192, 208, 224, 240, 256
F_WOS, F_WOR, F_WQ0, F_KVS, F_WQI, F_FREE = 272, 288, 304, 320, 336, 352
assert L_SL + 512 <= LDS_BYTES and L_DUMP + 32768 <= L_Q

S_W, S_G, S_J, S_GL = 4, 5, 6, 7
SRD_X, SRD_WS = 8, 12
P_X, P_WQ, P_WK, P_WV, P_WO, P_BX, P_W1, P_W2 = 16, 18, 20, 22, 24, 26, 28, 30
P_OUT, P_DBG, P_WS = 32, 34, 36
S_TA, S_TB = 38, 39
S_TAG = P_BX
SRD_W, SRD_DBG, SRD_A, SRD_B, SRD_C, SRD_OUT = 40, 44, 48, 52, 56, 60
S_STEP, S_SOFF, S_RING, S_FLB = 64, 65, 66, 67
S_C10, S_C01, S_C11 = 68, 69, 70
S_T0, S_T1, S_T2, S_T3, S_T4, S_T5 = 71, 72, 73, 74, 75, 76
S_C = 77
S_EX = 78
S_U = 80
S_HW, S_IT = 88, 89
S_EOK = 25
S_DW = 86
S_STMP = 90
S_ST0 = 92

VK, VV, SA, SB, VO, VQ = 8, 72, 200, 216, 232, 248

out, tail_code = [], []
cur = [out]
def e(s):
    for l in s.split("\n"):
        l = l.strip()
        if l:
            cur[0].append(l if l.endswith(":") or l.startswith(".") else "    " + l)
def note(s):
    cur[0].append("    ; " + s)
class outofline:
    def __enter__(self):
        self.prev, cur[0] = cur[0], []
    def __exit__(self, *a):
        tail_code.extend(cur[0]); cur[0] = self.prev

def vr(a, n=1):
    return f"v{a}" if n == 1 else f"v[{a}:{a+n-1}]"
def sr(a, n=1):
    return f"s{a}" if n == 1 else f"s[{a}:{a+n-1}]"
def mf32(d, a, b, c=None):
    e(f"v_mfma_f32_32x32x16_bf16 {vr(d,16)}, {vr(a,4)}, {vr(b,4)}, {vr(c,16) if c is not None else 0}")
def mf16(d, a, b, c=None):
    e(f"v_mfma_f32_16x16x32_bf16 {vr(d,4)}, {vr(a,4)}, {vr(b,4)}, {vr(c,4) if c is not None else 0}")
def pv(o, v, p, idx):
    e(f"v_smfmac_f32_32x32x32_bf16 {vr(o,16)}, {vr(v,4)}, {vr(p,8)}, v{idx}")
def srd(d, p, n):
    e(f"s_mov_b32 s{d}, s{p}\ns_mov_b32 s{d+1}, s{p+1}\ns_mov_b32 s{d+2}, {hex(n)}\ns_mov_b32 s{d+3}, 0x20000")
def off(n):
    return f" offset:{n}" if n else ""
uid = [0]
def label(p):
    uid[0] += 1
    return f"L_{p}_{uid[0]}"
def stamp(k):
    if OPT["amp"] == k:
        e(f"s_memrealtime {sr(S_STMP,2)}\ns_waitcnt lgkmcnt(0)\ns_mov_b32 s{S_ST0+8}, s{S_STMP}")
    if OPT["hold"] == k:
        lb = label("hold")
        e(f"{lb}:\ns_memrealtime {sr(S_STMP,2)}\ns_waitcnt lgkmcnt(0)\ns_sub_u32 s{S_STMP}, s{S_STMP}, s{S_ST0+9}\ns_cmp_lt_u32 s{S_STMP}, {OPT['holdT']}\ns_cbranch_scc1 {lb}")
    if OPT["stamps"] and k in SITES:
        e(f"s_mem{'real' if OPT['rt'] else ''}time {sr(S_STMP,2)}\ns_waitcnt lgkmcnt(0)\ns_mov_b32 s{S_ST0+SITES.index(k)}, s{S_STMP}")

class Queue:
    def __init__(self, kind):
        self.kind, self.n, self.tags = kind, 0, {}
    def issue(self, tag=None):
        self.n += 1
        if tag is not None:
            self.tags[tag] = self.n
    def left(self, tag):
        return self.n - self.tags[tag]
    def wait(self, tag):
        e(f"s_waitcnt {self.kind}({min(self.left(tag), 63 if self.kind == 'vmcnt' else 15)})")

def retry(top, sleep, hook=None):
    stub = label("retry")
    e(f"s_cbranch_vccnz {stub}")
    with outofline():
        e(f"{stub}:\ns_sub_u32 s3, s3, 1\ns_cbranch_scc1 L_exit")
        if hook: hook()
        if sleep: e(f"s_sleep {sleep}")
        e(f"s_branch {top}")

def lds_spin(vaddr, offset, vtmp, cmp, ref, sleep=0, prio=None):
    top = label("spin")
    e(f"{top}:\nds_read_b32 v{vtmp}, v{vaddr}{off(offset)}\ns_waitcnt lgkmcnt(0)")
    if prio: e(f"s_setprio {prio[0]}")
    e(f"{cmp} vcc, {ref}, v{vtmp}")
    e(f"s_setprio {prio[1]}" if prio else "s_nop 0")
    retry(top, sleep)

def glb_spin(vaddr, soff, vtmp, sleep=2, prio=None):
    top = label("poll")
    e(f"{top}:\nbuffer_load_dwordx2 {vr(vtmp,2)}, v{vaddr}, {sr(SRD_WS,4)}, {soff} offen sc1\ns_waitcnt vmcnt(0)")
    if prio: e(f"s_setprio {prio[0]}")
    e(f"v_cmp_ne_u64 vcc, {sr(S_TAG,2)}, {vr(vtmp,2)}")
    e(f"s_setprio {prio[1]}" if prio else "s_nop 0")
    retry(top, sleep)

def read_tag(va, vt):
    e(f"""v_mov_b32 v{va}, {L_FLG + F_TAG}
ds_read_b64 {vr(vt,2)}, v{va}
s_waitcnt lgkmcnt(0)
v_readfirstlane_b32 s{S_TAG}, v{vt}
v_readfirstlane_b32 s{S_TAG+1}, v{vt+1}""")

def tr_addr(dst, tmp, half_shift):
    e(f"""v_and_b32 v{dst}, 3, v0
v_lshlrev_b32 v{dst}, 3, v{dst}
v_bfe_u32 v{tmp}, v0, 2, 2
v_lshl_add_u32 v{dst}, v{tmp}, 6, v{dst}
v_bfe_u32 v{tmp}, v0, 4, 1
v_lshl_add_u32 v{dst}, v{tmp}, 5, v{dst}
v_lshrrev_b32 v{tmp}, 5, v0
v_lshl_add_u32 v{dst}, v{tmp}, {half_shift}, v{dst}""")

def dpp_sum(regs):
    for r in (8, 4, 2, 1):
        for a in regs:
            e(f"v_add_f32_dpp v{a}, v{a}, v{a} row_ror:{r} row_mask:0xf bank_mask:0xf")
        if len(regs) < 3 and r != 1:
            e(f"s_nop {2 - len(regs)}")

def ln_centre(X, waits, vwr, A, B, T):
    n = len(X)
    for u in range(n):
        e(f"s_waitcnt vmcnt({waits[u]})")
        if u == 0:
            stamp("xarr" if B is None else "xarrB")
        for i in range(16):
            e(f"v_dot2_f32_bf16 v{A+u}, v{X[u]+i}, s{S_C11}, {'v%d' % (A+u) if i else 0}")
    if n < 4: e(f"s_nop {3 - n}")
    dpp_sum([A + u for u in range(n)])
    for u in range(n):
        e(f"v_mul_f32 v{A+u}, {hex(f2u(-1.0/512))}, v{A+u}")
    for u in range(n):
        for gi in range(4):
            for k in range(4):
                e(f"v_dot2_f32_bf16 v{T+2*k}, v{X[u]+4*gi+k}, s{S_C10}, v{A+u}")
                e(f"v_dot2_f32_bf16 v{T+2*k+1}, v{X[u]+4*gi+k}, s{S_C01}, v{A+u}")
            for k in range(4):
                e(f"v_cvt_pk_bf16_f32 v{X[u]+4*gi+k}, v{T+2*k}, v{T+2*k+1}")
            if gi == 0 and u >= 2:
                e("s_waitcnt lgkmcnt(6)")
            e(f"ds_write_b128 v{vwr+u}, {vr(X[u]+4*gi,4)}{off(gi*16*X_STR)}")
            if B is not None:
                for k in range(4):
                    e(f"v_dot2_f32_bf16 v{B+u}, v{X[u]+4*gi+k}, v{X[u]+4*gi+k}, {'v%d' % (B+u) if gi or k else 0}")
def ln_var(X, B):
    for i in range(16):
        e(f"v_dot2_f32_bf16 v{B}, v{X+i}, v{X+i}, {'v%d' % B if i else 0}")
def ln_stats(n, vst, A, B):
    if n < 4: e(f"s_nop {3 - n}")
    dpp_sum([B + u for u in range(n)])
    for u in range(n):
        e(f"v_mov_b32 v{A+u}, {hex(f2u(1e-5))}\nv_fmac_f32 v{A+u}, {hex(f2u(1.0/512))}, v{B+u}")
    for u in range(n):
        e(f"v_rsq_f32 v{B+u}, v{A+u}")
    e("s_waitcnt lgkmcnt(5)")
    for u in range(n):
        e(f"v_mul_f32 v{A+u}, v{A+u}, v{B+u}")
        e(f"ds_write_b32 v{vst+u}, v{B+u}\nds_write_b32 v{vst+u}, v{A+u} offset:256")

def w1_prefetch(va, vt, vd):
    e(f"""v_lshrrev_b32 v{va}, 5, v0
v_mul_u32_u24 v{va}, 2752, v{va}
v_and_b32 v{vt}, 31, v0
v_min_u32 v{vt}, 22, v{vt}
v_lshl_add_u32 v{va}, v{vt}, 6, v{va}""")
    e(f"""s_lshl_b32 s{S_T0}, s{S_C}, 2
s_add_u32 s{S_T0}, s{S_T0}, s{S_HW}
s_mul_i32 s{S_T0}, s{S_T0}, {4*2752}
s_lshr_b32 s{S_T2}, s{S_J}, 2
s_mul_i32 s{S_T2}, s{S_T2}, {20*64}
s_add_u32 s{S_T0}, s{S_T0}, s{S_T2}
s_add_u32 s{S_T2}, s{S_T0}, {2*2752}
buffer_load_dword v{vd}, v{va}, {sr(SRD_W,4)}, s{S_T0} offen
buffer_load_dword v{vd}, v{va}, {sr(SRD_W,4)}, s{S_T2} offen""")

HDR = open("cdna_kernels/" + NAME + ".s.ref").read().split("\n")
out += [l for l in HDR if l.startswith(";") and "@launch" not in l]
out.append(f"; @launch grid=(256,1,1) block=(512,1,1) lds={LDS_BYTES}")
out += ["; " + l if l else ";" for l in '''
out = x + MQA(LN(x)) + SiLU-FFN(LN(x)) in one launch of 256 co-resident workgroups (one per CU).
Workgroup (g, j): 64 tokens (group g), heads 4j..4j+3, output columns 64j..64j+63.
  waves 0-3: attention; each keeps the K/V fragments of 512 keys in registers and walks 8 q blocks (32 tokens x 1 head).
  waves 4-7: LayerNorm, Q projection, FFN1 + SiLU, FFN2, softmax normalisation, output projection.
Hand-offs through d_ws (write-through stores, L1-bypassing loads):
  K/V (all workgroups) and h (group): payload, drain, then a flag that holds the launch tag published in d_debug.
  O (group): slots are first filled with all-ones words; a fragment is taken once no lane holds that pattern.
P*V uses the sparse MFMA: its indices pick the high (bf16) halves of the fp32 probabilities, so no pack instructions are needed.
Softmax: exp2 of the unshifted scores; every row sum is checked against [2^-32, 2^48] and every O for finiteness before it is
published. A failed check makes the attention waves recompute the workgroup's q blocks with the true row maximum.
'''.strip("\n").split("\n")]
e(f'.amdgcn_target "amdgcn-amd-amdhsa--gfx950"\n.text\n.globl {NAME}_kernel\n.p2align 8\n.type {NAME}_kernel,@function')
e(f"{NAME}_kernel:")

e("s_cmp_ge_u32 s2, 256\ns_cbranch_scc1 L_exit")
if OPT["stamps"] or OPT["hold"] != -1:
    e(f"s_memrealtime {sr(S_STMP,2)}\ns_waitcnt lgkmcnt(0)\ns_mov_b32 s{S_ST0+9}, s{S_STMP}")
    stamp("start")
    for k in range(1, 9):
        e(f"s_mov_b32 s{S_ST0+k}, s{S_ST0}")
    if OPT["amp"]:
        e(f"s_mov_b32 s{S_ST0+8}, s{S_ST0+9}")
e(f"""s_load_dwordx16 s[16:31], s[0:1], 0
s_load_dwordx4 s[32:35], s[0:1], 64
s_load_dwordx2 s[36:37], s[0:1], 80
v_lshrrev_b32 v2, 6, v0
v_bfe_u32 v4, v0, 4, 4
s_lshr_b32 s{S_C}, s2, 3
v_readfirstlane_b32 s{S_W}, v2
v_and_b32 v5, 15, v0
v_and_b32 v0, 63, v0""")
if OPT["pf_code"]:
    note("each wave pulls 256 bytes of the kernel's code into L2")
    e(f"""s_getpc_b64 {sr(S_T0+1,2)}
L_pc:
v_lshl_add_u32 v2, s{S_C}, 3, v2
v_and_b32 v3, 3, v0
v_lshl_add_u32 v2, v2, 2, v3
v_lshlrev_b32 v2, 6, v2
v_min_u32 v2, L_code_end-L_pc-4, v2
global_load_dword v247, v2, {sr(S_T0+1,2)}""")
e(f"""s_and_b32 s{S_GL}, s{S_C}, 7
s_bfe_u32 s{S_T0}, s2, 0x20001
s_lshl3_add_u32 s{S_G}, s{S_T0}, s{S_GL}
s_lshr_b32 s{S_T3}, s{S_C}, 3
s_lshl2_add_u32 s{S_SOFF}, s{S_G}, s{S_T3}
s_lshl_b32 s{S_SOFF}, s{S_SOFF}, 14
v_lshlrev_b32 v1, 10, v4
v_lshl_add_u32 v1, v5, 4, v1
s_mov_b32 s{SRD_X+2}, {hex(2048*1024)}
s_mov_b32 s{SRD_X+3}, 0x20000
s_cmp_lt_u32 s{S_W}, 4
s_waitcnt lgkmcnt(0)
s_mov_b64 {sr(SRD_X,2)}, {sr(P_X,2)}
s_cbranch_scc1 L_a0""")
XA = 8
stamp("karg")
for i in range(4):
    e(f"buffer_load_dwordx4 {vr(XA+4*i,4)}, v1, {sr(SRD_X,4)}, s{S_SOFF} offen{off(256*i)}")
e(f"""s_branch L_hfront
L_a0:
s_bitcmp1_b32 s2, 0
s_cselect_b64 {sr(SRD_A,2)}, {sr(P_WV,2)}, {sr(P_WK,2)}
s_cselect_b32 s{S_T1}, 512, 0
s_mov_b32 s{SRD_A+2}, 16384
s_mov_b32 s{SRD_A+3}, 0x20000
s_cmp_eq_u32 s{S_W}, 0
s_cbranch_scc0 {'L_a1' if OPT['pf_wq'] == 2 else 'L_afront'}
v_lshlrev_b32 v3, 4, v0""")
for i in range(4):
    e(f"s_mov_b32 m0, {L_WKV + i*4096}\ns_movk_i32 s{S_T0}, {i*4096}")
    for k in range(4):
        e(f"buffer_load_dwordx4 v3, {sr(SRD_A,4)}, s{S_T0} offen{off(1024*k)} lds")
e("s_branch L_afront")
if OPT["pf_wq"] == 2:
    e(f"""L_a1:
v_lshrrev_b32 v3, 3, v0
v_and_b32 v2, 7, v0
v_lshlrev_b32 v2, 6, v2
s_lshl1_add_u32 s{S_T0}, s{S_C}, s{S_W}
s_sub_u32 s{S_T0}, s{S_T0}, 2
s_lshl_b32 s{S_T0}, s{S_T0}, 13
s_add_u32 s{S_T0}, s{S_T0}, s{S_T1}
s_lshl_b32 s{S_T1}, s{S_C}, 9
s_cmp_eq_u32 s{S_W}, 1
s_cselect_b32 s{S_T0}, s{S_T1}, s{S_T0}
s_cselect_b32 s{S_T1}, 0, 0x400
s_cselect_b64 {sr(SRD_A,2)}, {sr(SRD_A,2)}, {sr(P_WQ,2)}
s_cselect_b32 s{SRD_A+2}, s{SRD_A+2}, {hex(512*1024)}
v_mad_u32_u24 v2, v3, s{S_T1}, v2
buffer_load_dword v246, v2, {sr(SRD_A,4)}, s{S_T0} offen
s_branch L_afront""")

V_FLW, V_FLR, V_ONE = 253, 254, 255
V_WR, V_ST = 200, 204
def common_setup():
    srd(SRD_WS, P_WS, WS_SIZE)
    srd(SRD_DBG, P_DBG, 256)
    e(f"""s_and_b32 s{S_T0}, s2, 1
s_lshl2_add_u32 s{S_J}, s{S_T0}, s{S_T3}
s_and_b32 s{S_HW}, s{S_W}, 3
s_mov_b32 s3, 0x40000
s_lshl_b32 s{S_FLB}, s{S_G}, 11
s_add_u32 s{S_FLB}, s{S_FLB}, {hex(WS_FL)}
s_mov_b32 s{S_C10}, 0x00003f80
s_mov_b32 s{S_C01}, 0x3f800000
s_mov_b32 s{S_C11}, 0x3f803f80
v_mul_u32_u24 v2, {X_STR}, v5
v_lshl_add_u32 v2, v4, 4, v2
v_lshlrev_b32 v4, 2, v4
s_lshl2_add_u32 s{S_T0}, s{S_HW}, {L_FLG}
v_mov_b32 v{V_FLW}, s{S_T0}
v_and_b32 v7, 3, v0
v_lshlrev_b32 v{V_FLR}, 2, v7
v_add_u32 v{V_FLR}, {L_FLG}, v{V_FLR}
v_mov_b32 v{V_ONE}, 1""")
def unit_addr(slot, dq):
    e(f"""s_add_u32 s{S_T0}, s{S_T3}, {dq}
s_and_b32 s{S_T0}, s{S_T0}, 3
s_lshl2_add_u32 s{S_U+slot}, s{S_G}, s{S_T0}
s_lshl_b32 s{S_U+slot}, s{S_U+slot}, 14
s_lshl_b32 s{S_T1}, s{S_T0}, 8
s_add_u32 s{S_T1}, s{S_T1}, {L_X}
v_add_u32 v{V_WR+slot}, s{S_T1}, v2
s_lshl_b32 s{S_T1}, s{S_T0}, 6
s_add_u32 s{S_T1}, s{S_T1}, {L_RSTD}
v_add_u32 v{V_ST+slot}, s{S_T1}, v4""")
def unit_loads(X, slot, va=1):
    for i in range(4):
        e(f"buffer_load_dwordx4 {vr(X+4*i,4)}, v{va}, {sr(SRD_X,4)}, s{S_U+slot} offen{off(256*i)}")
def wq_prefetch(va, vt, vd):
    e(f"""v_lshrrev_b32 v{va}, 3, v0
v_lshlrev_b32 v{va}, 10, v{va}
v_and_b32 v{vt}, 7, v0
v_lshl_add_u32 v{va}, v{vt}, 6, v{va}
s_lshl2_add_u32 s{S_T0}, s{S_C}, s{S_HW}
s_lshl_b32 s{S_T0}, s{S_T0}, 12
s_and_b32 s{S_T1}, s{S_J}, 4
s_lshl_b32 s{S_T1}, s{S_T1}, 7
s_add_u32 s{S_T0}, s{S_T0}, s{S_T1}
s_mov_b32 exec_hi, 0
buffer_load_dword v{vd}, v{va}, {sr(SRD_W,4)}, s{S_T0} offen
s_mov_b32 exec_hi, -1""")

V_S0, V_PART, V_TR2, V_LS, V_DW0, V_DW1, V_DR0 = 1, 2, 3, 4, 5, 6, 7
V_DR1, V_OUT, V_TMP, V_L16, V_TB = 248, 249, 250, 251, 252
V_WO, V_TT, V_HF, V_TAG = 60, 5, 62, 64
V_WA, V_TR, V_PF, VXR, V_CS, V_NEG = 72, 74, 75, 76, 92, 100
V_QT, V_QX, V_QRS, V_QW, V_QFL, V_RS, V_X2, V_X3 = 172, 173, 174, 175, 176, 177, 178, 179
S_OB, S_PC, S_XO, S_CLS, S_RET, S_BLK = 16, 20, 22, 24, 0, 2
LA, LT = 216, 220
t0, t1, t2, t3, t4 = 232, 233, 234, 235, 236
e("L_hfront:\ns_setprio 2")
common_setup()
e(f"v_mov_b32 v{t0}, 0\nv_lshlrev_b32 v{t1}, 2, v0\nv_add_u32 v{t1}, {L_FLG}, v{t1}\nds_write2st64_b32 v{t1}, v{t0}, v{t0} offset1:1")
unit_addr(0, 0)
unit_addr(1, 1)
e(f"""v_mov_b32 v{V_X2}, v1
v_and_b32 v{V_X3}, 0xfff, v1
s_lshl_b32 s{S_T0}, s{S_HW}, 6
v_subrev_u32 v2, s{S_T0}, v2
v_and_b32 v4, 15, v4
s_add_u32 s{S_IT}, s{S_HW}, 1""")
unit_addr(2, f"s{S_IT}")
e(f"""s_mul_i32 s{S_T0}, s{S_J}, 6
s_lshl1_add_u32 s{S_T0}, s{S_HW}, s{S_T0}
s_lshl2_add_u32 s{S_T1}, s{S_J}, s{S_HW}
s_add_u32 s{S_T2}, s{S_J}, 22
s_cmp_lt_u32 s{S_HW}, 3
s_cselect_b32 s{S_TA}, s{S_T0}, s{S_T2}
s_cselect_b32 s{S_TB}, 2, 1
s_add_u32 s{S_T2}, s{S_T1}, 11
s_cmp_lt_u32 s{S_T1}, 14
s_cselect_b32 s{S_TA}, s{S_TA}, s{S_T2}
s_cselect_b32 s{S_TB}, s{S_TB}, 1
s_add_u32 s{S_DW}, s{S_HW}, 1
s_and_b32 s{S_DW}, s{S_DW}, 3
s_lshl2_add_u32 s{S_T0}, s{S_DW}, {L_FLG}
v_mov_b32 v{V_FLW}, s{S_T0}
s_lshr_b32 s{S_T5}, s{S_HW}, 1
s_and_b32 s{S_T4}, s{S_HW}, 1
s_mul_i32 s{S_RING}, s{S_HW}, {H_STR}
v_and_b32 v{t0}, 3, v0
v_bfe_u32 v{t1}, v0, 2, 2
v_bfe_u32 v{t2}, v0, 4, 1
v_lshrrev_b32 v{t3}, 5, v0
v_lshrrev_b32 v{t4}, 2, v0
v_lshlrev_b32 v{V_L16}, 4, v0
v_lshlrev_b32 v{V_TR2}, 3, v{t0}
v_lshl_add_u32 v{V_TR2}, v{t1}, 6, v{V_TR2}
v_lshl_add_u32 v{V_TR2}, v{t2}, 5, v{V_TR2}
v_lshl_add_u32 v{V_TR2}, v{t3}, 8, v{V_TR2}
v_lshl_add_u32 v{V_TR}, v{t3}, 8, v{V_TR2}
s_lshl_b32 s{S_T0}, s{S_T4}, 15
v_add_u32 v{V_QT}, s{S_T0}, v{V_TR}
v_add_u32 v{V_TR}, s{S_RING}, v{V_TR}
v_add_u32 v{V_TR2}, s{S_RING}, v{V_TR2}
v_lshlrev_b32 v{t0}, 4, v{t0}
v_lshl_add_u32 v{V_S0}, v{t4}, 10, v{t0}
s_lshl_b32 s{S_T0}, s{S_J}, 7
v_add_u32 v{V_S0}, s{S_T0}, v{V_S0}
v_add_u32 v{V_WO}, 64, v{V_S0}
v_mul_u32_u24 v{V_WA}, 2752, v{t4}
s_lshl_b32 s{S_T0}, s{S_TA}, 6
v_add3_u32 v{V_WA}, v{V_WA}, v{t0}, s{S_T0}
v_lshl_add_u32 v{V_TT}, v{t1}, 6, v{t0}
v_lshl_add_u32 v{V_TT}, v{t2}, 8, v{V_TT}
v_lshl_add_u32 v{V_TT}, v{t3}, 10, v{V_TT}
s_cmp_eq_u32 s{S_T4}, 0
s_cselect_b32 s{S_T0}, {L_DUMP - L_X}, 0
s_add_u32 s{S_T0}, s{S_T0}, {L_X}
v_add_u32 v{V_TT}, s{S_T0}, v{V_TT}
v_lshlrev_b32 v{V_TB}, 9, v{t2}
v_lshl_add_u32 v{V_TB}, v{t3}, 12, v{V_TB}
v_and_b32 v{t0}, 31, v0
v_mul_u32_u24 v{t1}, {X_STR}, v{t3}
v_lshl_add_u32 v{t1}, v{t0}, 4, v{t1}
v_add_u32 v{t1}, {L_X}, v{t1}
v_lshl_add_u32 v{V_QX}, s{S_T5}, 9, v{t1}
v_min_u32 v{V_HF}, 20, v{t0}
v_lshlrev_b32 v{V_HF}, 5, v{V_HF}
v_lshlrev_b32 v{t0}, 2, v{t0}
v_add_u32 v{V_RS}, {L_RSTD}, v{t0}
v_lshl_add_u32 v{V_QRS}, s{S_T5}, 7, v{V_RS}
s_lshl_b32 s{S_T0}, s{S_DW}, 9
s_add_u32 s{S_T0}, s{S_T0}, {L_LS}
v_add_u32 v{V_LS}, s{S_T0}, v{t0}""")
for k in range(8):
    e(f"s_add_u32 s{S_T0}, s{S_GL}, {k}\ns_and_b32 s{S_T0}, s{S_T0}, 7\ns_mul_i32 s{S_T0}, s{S_T0}, {8*X_STR}\nv_add_u32 v{VXR+k}, s{S_T0}, v{t1}")
e(f"""v_and_b32 v{t0}, 15, v0
v_lshrrev_b32 v{t1}, 4, v0
v_min_u32 v{V_QFL}, 11, v{t0}
v_lshlrev_b32 v{V_QFL}, 2, v{V_QFL}
v_add_u32 v{V_QFL}, {L_FLG}, v{V_QFL}
v_lshlrev_b32 v{V_OUT}, 10, v{t0}
v_lshl_add_u32 v{V_OUT}, v{t1}, 4, v{V_OUT}
v_lshl_add_u32 v{t0}, s{S_T5}, 4, v{t0}
v_lshl_add_u32 v{V_TB}, v{t0}, 4, v{V_TB}
v_lshlrev_b32 v{V_DR1}, 4, v{t0}
v_lshl_add_u32 v{V_DR1}, v{t1}, 10, v{V_DR1}
v_lshl_add_u32 v{V_DR1}, s{S_T4}, 12, v{V_DR1}
v_lshl_add_u32 v{V_QW}, s{S_HW}, 11, v{V_L16}
v_add_u32 v{V_QW}, {L_Q}, v{V_QW}
v_lshl_add_u32 v{V_PART}, s{S_DW}, 11, v{V_L16}
v_add_u32 v{V_PART}, {L_P1}, v{V_PART}
v_lshrrev_b32 v{V_PF}, 1, v0
v_lshlrev_b32 v{V_PF}, 10, v{V_PF}
v_and_b32 v{t0}, 1, v0
v_lshl_add_u32 v{V_PF}, v{t0}, 6, v{V_PF}
v_min_u32 v73, 42, v0
v_lshlrev_b32 v73, 6, v73
v_mov_b32 v{V_NEG}, -1
v_mov_b32 v{V_NEG+1}, -1
v_mov_b32 v{V_NEG+2}, -1
v_mov_b32 v{V_NEG+3}, -1
v_mov_b32 v{V_TAG+2}, 0
v_mov_b32 v{V_TAG+3}, {L_FLG + F_TAG}
v_min_u32 v0, 10, v0
v_lshlrev_b32 v0, 6, v0
s_waitcnt lgkmcnt(0)
s_barrier""")
unit_loads(24, 1, V_X2)
srd(SRD_W, P_WQ, 512 * 1024)
ln_centre([XA], [4], V_WR, LA, None, LT)
e(f"ds_write_b32 v{V_FLW}, v{V_ONE} offset:{F_LNP}")
stamp("lnA")
e(f"s_bitcmp1_b32 s{S_IT}, 1\ns_cbranch_scc0 L_no3")
unit_loads(40, 2, V_X3)
e("L_no3:")
ln_var(XA, LA + 1)
ln_stats(1, V_ST, LA, LA + 1)
e(f"ds_write_b32 v{V_FLW}, v{V_ONE} offset:{F_LN}\ns_bitcmp1_b32 s{S_IT}, 1\ns_cbranch_scc0 L_ln1")
ln_centre([24], [4], V_WR + 1, LA, LA + 2, LT)
ln_centre([40], [0], V_WR + 2, LA + 1, LA + 3, LT)
ln_stats(2, V_ST + 1, LA, LA + 2)
e("s_branch L_ln2\nL_ln1:")
ln_centre([24], [0], V_WR + 1, LA, LA + 1, LT)
ln_stats(1, V_ST + 1, LA, LA + 1)
e(f"L_ln2:\nds_write_b32 v{V_FLW}, v{V_ONE} offset:{F_LN2}\ns_setprio 0")
stamp("lnB")
e(f"s_cmp_eq_u32 s{S_W}, 7\ns_cbranch_scc0 L_wqdone")
for k in range(32):
    if k == 24:
        e(f"s_waitcnt vmcnt(16)\nds_write_b32 v{V_FLR}, v{V_ONE} offset:{F_WQ0}")
    e(f"s_mov_b32 m0, {k*1024}\ns_mov_b32 s{S_SOFF}, {k*16384}\nbuffer_load_dwordx4 v{V_S0}, {sr(SRD_W,4)}, s{S_SOFF} offen lds")
    e(f"s_mov_b32 m0, {32768 + k*1024}\ns_nop 0\nbuffer_load_dwordx4 v{V_WO}, {sr(SRD_W,4)}, s{S_SOFF} offen lds")
if OPT["m1"] == 2:
    srd(SRD_B, P_W1, 512 * 2752)
    e(f"s_mul_i32 s{S_T0}, s2, 5504\nbuffer_load_dword v247, v73, {sr(SRD_B,4)}, s{S_T0} offen\nbuffer_load_dword v247, v73, {sr(SRD_B,4)}, s{S_T0} offen offset:2752")
e(f"ds_write_b32 v{V_FLR}, v{V_ONE} offset:{F_WQI}\ns_waitcnt vmcnt({2 * (OPT['m1'] == 2)})\nds_write_b32 v{V_FLR}, v{V_ONE} offset:{F_WQ}")
if OPT["m1"] == 3:
    srd(SRD_B, P_W1, 512 * 2752)
    e(f"s_mul_i32 s{S_T0}, s2, 5504\nbuffer_load_dword v247, v73, {sr(SRD_B,4)}, s{S_T0} offen\nbuffer_load_dword v247, v73, {sr(SRD_B,4)}, s{S_T0} offen offset:2752")
e("L_wqdone:")
QA, QB, QO, QACC = 108, 8, 24, 200
lds_spin(V_FLR, F_WQ0, V_TMP, "v_cmp_ne_u32", 1)
stamp("wq")
for k in range(16):
    if k % 4 == 0 and k:
        e("s_waitcnt lgkmcnt(4)")
    for i in range(2):
        e(f"ds_read_b64_tr_b16 {vr(QA+4*k+2*i,2)}, v{V_QT}{off(k*1024 + i*256)}")
lds_spin(V_QFL, F_LN2, V_TMP, "v_cmp_ne_u32", 1, sleep=1)
e("s_setprio 2")
stamp("ln")
lq = Queue("lgkmcnt")
def q_reads(s):
    if s >= 16:
        for i in range(2):
            e(f"ds_read_b64_tr_b16 {vr(QO+4*(s % 4)+2*i,2)}, v{V_QT}{off(s*1024 + i*256)}")
            lq.issue()
    e(f"ds_read_b128 {vr(QB+4*(s % 4),4)}, v{V_QX}{off(s*2*X_STR)}")
    lq.issue(s)
for s in range(3):
    q_reads(s)
for s in range(32):
    if s + 3 < 32:
        q_reads(s + 3)
    if s < 5:
        e(f"ds_read_b32 v{V_CS+2*s}, v{V_RS}{off(128*s)}" if s < 4 else f"ds_read_b32 v44, v{V_QRS}")
        lq.issue()
    lq.wait(s)
    mf32(QACC, QA + 4 * s if s < 16 else QO + 4 * (s % 4), QB + 4 * (s % 4), QACC if s else None)
    if s == 8:
        e(f"v_mul_f32 v{V_CS}, {hex(f2u(-LOG2E))}, v{V_CS}\nv_mul_f32 v{V_CS+2}, {hex(f2u(-LOG2E))}, v{V_CS+2}")
    if s == 12:
        e(f"v_min_u32 v{V_QFL}, {L_FLG + 28}, v{V_QFL}")
    if s == 9:
        e(f"v_mul_f32 v44, {hex(f2u(0.25*LOG2E))}, v44\nv_mov_b32 v45, v44")
    if s in (10, 11):
        for k in (2 * (s - 10), 2 * (s - 10) + 1):
            e(f"v_mov_b32 v{V_CS+2*k+1}, v{V_CS+2*k}")
srd(SRD_W, P_W1, 512 * 2752)
srd(SRD_B, P_W2, 1376 * 1024)
srd(SRD_C, P_WO, 512 * 1024)
for hl in range(2):
    for k in range(4):
        e(f"v_pk_mul_f32 {vr(QACC+8*hl+2*k,2)}, {vr(QACC+8*hl+2*k,2)}, v[44:45]")
    for k in range(4):
        e(f"v_cvt_pk_bf16_f32 v{8+4*hl+k}, v{QACC+8*hl+2*k}, v{QACC+8*hl+2*k+1}")
    e(f"ds_write_b128 v{V_QW}, {vr(8+4*hl,4)}{off(hl*1024)}")
e(f"ds_write_b32 v{V_FLW}, v{V_ONE} offset:{F_Q}\ns_setprio 0")
stamp("qd")
srd(SRD_OUT, P_OUT, 2048 * 1024)
e(f"""s_lshl_b32 s{S_T0}, s{S_J}, 7
s_lshl_b32 s{S_T1}, s{S_T4}, 6
s_lshl2_add_u32 s{S_T2}, s{S_G}, s{S_T5}
s_lshl_b32 s{S_T2}, s{S_T2}, 14
s_add_u32 s{S_T2}, s{S_T2}, s{S_T0}
s_add_u32 s{S_XO}, s{S_T2}, s{S_T1}
s_add_u32 s{S_XO+1}, s{S_XO}, 32768
s_lshl_b32 s{S_T2}, s{S_G}, 16
s_add_u32 s{S_OB}, s{S_T2}, {hex(WS_O)}
s_add_u32 s{S_OB+1}, s{S_OB}, 8192
s_add_u32 s{S_OB+2}, s{S_OB}, 16384
s_add_u32 s{S_OB+3}, s{S_OB}, 24576
s_lshl2_add_u32 s{S_T2}, s{S_J}, s{S_DW}
s_lshl_b32 s{S_T3}, s{S_T2}, 10
s_add_u32 s{S_PC}, s{S_OB}, s{S_T3}
s_add_u32 s{S_PC+1}, s{S_PC}, 32768
s_add_u32 s{S_FLB}, s{S_FLB}, {FL_H}
s_lshl_b32 s{S_T2}, s{S_TA}, 5
s_add_u32 s{S_U+7}, s{S_T2}, s{S_FLB}
s_mul_i32 s{S_T2}, s{S_G}, {H_GRP}
s_add_u32 s{S_T2}, s{S_T2}, {hex(WS_H)}
s_add_u32 s{SRD_A}, s{P_WS}, s{S_T2}
s_addc_u32 s{SRD_A+1}, s{P_WS+1}, 0
s_mov_b32 s{SRD_A+2}, {H_GRP}
s_mov_b32 s{SRD_A+3}, 0x20000
s_lshl_b32 s{S_U+4}, s{S_TA}, 12
s_add_u32 s{S_U+5}, s{S_U+4}, 4096
s_movk_i32 s{S_CLS}, 0x207
s_mov_b32 s{S_IT}, 0
s_mul_i32 s{S_SOFF}, s{S_GL}, {64*2752}
s_lshl1_add_u32 s{S_T3}, s{S_J}, s{S_GL}
s_and_b32 s{S_T3}, s{S_T3}, 7
s_mul_i32 s{S_T3}, s{S_T3}, 11
s_lshr_b32 s{S_T3}, s{S_T3}, 3
s_mul_i32 s{S_T2}, s{S_HW}, 11
s_add_u32 s{S_T2}, s{S_T2}, 44
s_add_u32 s{S_T3}, s{S_T3}, s{S_T2}
s_lshl_b32 s{S_STEP}, s{S_T3}, 11
s_lshl_b32 s{S_U}, s{S_T2}, 14
s_add_u32 s{S_U+1}, s{S_U}, {11*16384}
s_lshl_b32 s{S_U+2}, s{S_T2}, 11
s_add_u32 s{S_U+3}, s{S_U+2}, {11*2048}
s_mov_b32 s{S_EOK}, 0
s_lshl2_add_u32 s{S_T1}, s{S_GL}, s{S_HW}
s_mul_i32 s{S_T2}, s{S_T1}, {43*1024}
s_add_u32 s{S_T2}, s{S_T2}, s{S_T0}
s_add_u32 s{S_T3}, s{S_T2}, {11*1024}
s_lshl_b32 s{S_T1}, s{S_T1}, 14
s_add_u32 s{S_T1}, s{S_T1}, s{S_T0}""")
lds_spin(V_QFL, F_Q, V_TMP, "v_cmp_ne_u32", 1, sleep=OPT["ksl"], prio=(2, 0))
e(f"ds_read_b64 {vr(V_TAG,2)}, v{V_TAG+3}")
stamp("f1go")

F1A = 184
ACC, F2B, F2A, TA, XR = 8, 200, 232, 72, 240
NE, HE, HD = OPT["ne"], 124, 4
def hreg(s):
    return HE + 8 * s if s < NE else F2B + 8 * ((s - NE) % HD)
def f2_dma(s, q):
    slot = ((s + 2) % 6) * 2048
    if s == 0:
        e(f"s_lshl_b32 s{S_SOFF}, s{S_STEP}, 3")
    if s == 11:
        e(f"s_sub_u32 s{S_U}, s{S_U}, {44*16384}\ns_sub_u32 s{S_U+1}, s{S_U+1}, {44*16384}\ns_sub_u32 s{S_SOFF}, s{S_SOFF}, {44*16384}")
    e(f"s_add_u32 m0, s{S_RING}, {slot}\ns_add_u32 s{S_T4}, s{S_SOFF}, 16384\nbuffer_load_dwordx4 v{V_S0}, {sr(SRD_B,4)}, s{S_SOFF} offen lds")
    e(f"s_add_u32 m0, s{S_RING}, {slot + 1024 - 64}\ns_cmp_ge_u32 s{S_T4}, s{S_U+1}\nbuffer_load_dwordx4 v{V_S0}, {sr(SRD_B,4)}, s{S_SOFF} offen offset:64 lds")
    q.issue(); q.issue(("w2", s))
    e(f"s_cselect_b32 s{S_SOFF}, s{S_U}, s{S_T4}")
def f2_h(s, q):
    for c in range(2):
        e(f"buffer_load_dwordx4 {vr(hreg(s)+4*c,4)}, v{V_L16}, {sr(SRD_A,4)}, s{S_STEP} offen{off(1024*c)} sc1")
        q.issue(("h", s))
    e(f"s_add_u32 s{S_STEP}, s{S_STEP}, 2048\ns_cmp_ge_u32 s{S_STEP}, s{S_U+3}\ns_cselect_b32 s{S_STEP}, s{S_U+2}, s{S_STEP}")
EARLY = f"buffer_load_dwordx2 v[6:7], v{V_HF}, {sr(SRD_WS,4)}, s{S_FLB} offen offset:{22*32} sc1"
FR = [8, 24, 40]
def late_prefetch():
    e(f"""s_mov_b32 exec_hi, 0
buffer_load_dword v{V_TMP}, v{V_PF}, {sr(SRD_C,4)}, s{S_T1} offen
s_mov_b32 exec_hi, -1
buffer_load_dword v{V_TMP}, v{V_PF}, {sr(SRD_B,4)}, s{S_T2} offen
buffer_load_dword v{V_TMP}, v{V_PF}, {sr(SRD_B,4)}, s{S_T3} offen""")
def ffn1(nt):
    vq, lq = Queue("vmcnt"), Queue("lgkmcnt")
    D = 6 if nt == 2 else OPT["d1"]
    def dma(s):
        e(f"s_add_u32 m0, s{S_RING}, {(s % D)*1024*nt}\ns_add_u32 s{S_T4}, s{S_SOFF}, {16*2752}\nbuffer_load_dwordx4 v{V_WA}, {sr(SRD_W,4)}, s{S_SOFF} offen lds")
        vq.issue(("w", s))
        if nt == 2:
            e(f"s_add_u32 m0, s{S_RING}, {(s % D)*2048 + 1024 - 64}\ns_cmp_ge_u32 s{S_T4}, s{SRD_W+2}\nbuffer_load_dwordx4 v{V_WA}, {sr(SRD_W,4)}, s{S_SOFF} offen offset:64 lds")
            vq.issue(("w", s))
        else:
            e(f"s_cmp_ge_u32 s{S_T4}, s{SRD_W+2}")
        e(f"s_cselect_b32 s{S_SOFF}, 0, s{S_T4}")
    NR, NM, G = 2 + 2 * nt, 2 * nt, OPT["g1h"] if nt == 2 else OPT["g1l"]
    def read1(k):
        s, r = divmod(k, NR)
        f = 108 + 16 * (s % 4)
        if r < 2:
            e(f"ds_read_b128 {vr(f+8+4*r,4)}, v{VXR+s//4}{off((s % 4)*2*X_STR + r*512)}")
        else:
            if r == 2:
                vq.wait(("w", s))
            e(f"ds_read_b64_tr_b16 {vr(f+2*(r-2),2)}, v{V_TR}{off((s % D)*1024*nt + ((r-2)//2)*1024 + (r % 2)*256)}")
        lq.issue(("r", s))
    for s in range(D):
        dma(s)
    nr, nd = 0, D
    while nr < (2 if nt == 2 else 3) * NR:
        read1(nr); nr += 1
    for m in range(32 * NM):
        s, u = divmod(m, NM)
        f = 108 + 16 * (s % 4)
        if m % G == 0:
            ls = (min(m + G, 32 * NM) - 1) // NM
            assert nr >= (ls + 1) * NR, (nt, m, nr)
            lq.wait(("r", ls))
            done = (ls + 1) * NR
        mf32(F1A + 16 * u, f + 4 * (u >> 1), f + 8 + 4 * (u & 1), F1A + 16 * u if s else None)
        end = m % G == G - 1
        n = 0
        while nr < 32 * NR and nr // NR - 4 <= (m - NM + 1) // NM and nr - done < 12 and (end or n < 2):
            read1(nr); nr += 1; n += 1
        if end:
            while nd < (38 if nt == 2 else 32) and nd - D <= ls:
                if nd < 32:
                    dma(nd)
                else:
                    f2_dma(nd - 32, vq)
                nd += 1
        if u != NM - 1:
            continue
        stamp(f"s{s}")
        if nt == 2 and s + 1 == OPT["hp1"]:
            e("s_setprio 0")
        if nt == 2 and s == OPT["pf_at"]:
            late_prefetch()
            vq.issue(); vq.issue(); vq.issue()
        if nt == 1 and s == OPT["pf1"]:
            note("slices 4-7 pull w2 and wo from HBM, every line once")
            e(f"""s_cmp_lt_u32 s{S_J}, 4
s_cbranch_scc1 L_nomall
s_lshl2_add_u32 s{S_T0}, s{S_G}, s{S_J}
s_lshl2_add_u32 s{S_T0}, s{S_T0}, s{S_HW}
s_sub_u32 s{S_T0}, s{S_T0}, 16
s_mul_i32 s{S_T5}, s{S_T0}, 2752
buffer_load_dword v{V_TMP}, v73, {sr(SRD_B,4)}, s{S_T5} offen
s_lshl_b32 s{S_T5}, s{S_T0}, 10
s_mov_b64 exec, 0xffff
buffer_load_dword v{V_TMP}, v73, {sr(SRD_C,4)}, s{S_T5} offen
s_mov_b64 exec, -1
L_nomall:""")
    if nt == 2:
        while nd < 38:
            f2_dma(nd - 32, vq); nd += 1
e(f"s_cmp_eq_u32 s{S_TB}, 2\ns_cbranch_scc0 L_f1one")
if OPT["hp1"]:
    e("s_setprio 2")
ffn1(2)
e("L_f1done:")
with outofline():
    e("L_f1one:")
    ffn1(1)
    e("s_branch L_f1done")
stamp("g1")
for k in range(2):
    e(f"buffer_store_dwordx4 {vr(V_NEG,4)}, v{V_L16}, {sr(SRD_WS,4)}, s{S_PC+k} offen sc1")
e(f"ds_write_b32 v{V_FLW}, v{V_ONE} offset:{F_G1}\ns_setprio 2\nv_readfirstlane_b32 s{S_TAG}, v{V_TAG}\nv_readfirstlane_b32 s{S_TAG+1}, v{V_TAG+1}\ns_nop 4")
for ti in range(2):
    e(f"s_cmp_eq_u32 s{S_TB}, 1\ns_cbranch_scc1 L_silu_done" if ti else "s_nop 1")
    for tb in range(2):
        for u in range(2):
            A, T, C, R = F1A + 32 * ti + 16 * tb + 8 * u, 8, V_CS + 2 * tb, 16 + 4 * (4 * ti + 2 * tb + u)
            for k in range(4):
                e(f"v_pk_mul_f32 {vr(T+2*k,2)}, {vr(A+2*k,2)}, {vr(C,2)}")
            for k in range(8):
                e(f"v_exp_f32 v{T+k}, v{T+k}")
            for k in range(4):
                e(f"v_pk_fma_f32 {vr(T+2*k,2)}, {vr(T+2*k,2)}, {vr(C+4,2)}, {vr(C+4,2)}")
            for k in range(8):
                e(f"v_rcp_f32 v{T+k}, v{T+k}")
            for k in range(4):
                e(f"v_pk_mul_f32 {vr(T+2*k,2)}, {vr(T+2*k,2)}, {vr(A+2*k,2)}")
            for k in range(4):
                e(f"v_cvt_pk_bf16_f32 v{R+k}, v{T+2*k}, v{T+2*k+1}")
            e(f"buffer_store_dwordx4 {vr(R,4)}, v{V_L16}, {sr(SRD_A,4)}, s{S_U+4+ti} offen{off(u*2048 + tb*1024)} sc1")
            gi = 4 * ti + 2 * tb + u
            if gi == OPT["eat"]:
                e(EARLY)
            if gi == OPT["eck"]:
                e(f"s_waitcnt vmcnt({OPT['eck'] - OPT['eat']})\nv_cmp_ne_u64 vcc, {sr(S_TAG,2)}, v[6:7]\ns_nop 0\ns_cbranch_vccnz L_noearly\ns_mov_b32 s{S_EOK}, 1")
                for s in range(NE):
                    f2_h(s, Queue("vmcnt"))
                e("L_noearly:")
e("L_silu_done:\ns_setprio 0")
stamp("epi")

PC, RT, RL, OB = 24, 200, 232, 236
def reduce_piece(vp, vl):
    for w in range(4):
        e(f"ds_read_b32 v{RL+w}, v{vl}{off(w*128)}")
    for w in range(4):
        for h in range(2):
            e(f"ds_read_b128 {vr(RT+8*w+4*h,4)}, v{vp}{off(w*8192 + h*1024)}")
def reduce_math(extra):
    e(f"v_add_f32 v{RL}, v{RL}, v{RL+1}\nv_add_f32 v{RL+2}, v{RL+2}, v{RL+3}\nv_add_f32 v{RL}, v{RL}, v{RL+2}\nv_rcp_f32 v{RL+2}, v{RL}")
    e(f"s_waitcnt lgkmcnt({4 + extra})")
    for k in range(4):
        e(f"v_pk_add_f32 {vr(RT+2*k,2)}, {vr(RT+2*k,2)}, {vr(RT+8+2*k,2)}")
    e(f"v_mov_b32 v{RL+3}, v{RL+2}\ns_waitcnt lgkmcnt(0)")
    for k in range(4):
        e(f"v_pk_add_f32 {vr(RT+16+2*k,2)}, {vr(RT+16+2*k,2)}, {vr(RT+24+2*k,2)}")
    for k in range(4):
        e(f"v_pk_add_f32 {vr(RT+2*k,2)}, {vr(RT+2*k,2)}, {vr(RT+16+2*k,2)}")
    for k in range(4):
        e(f"v_pk_mul_f32 {vr(RT+2*k,2)}, {vr(RT+2*k,2)}, {vr(RL+2,2)}")
    for k in range(4):
        e(f"v_cvt_pk_bf16_f32 v{OB+k}, v{RT+2*k}, v{RT+2*k+1}")
duty_code = []
class dutyblock(outofline):
    def __exit__(self, *a):
        duty_code.extend(cur[0]); cur[0] = self.prev
with dutyblock():
    lo, hi = f2u(2.0**-32), f2u(2.0**48)
    e("L_duty:")
    reduce_piece(V_PART, V_LS)
    e(f"""ds_read_b32 v{V_TMP}, v{V_FLR} offset:{F_SLOW}
s_waitcnt lgkmcnt(9)
s_setprio 2
v_max3_u32 v{OB}, v{RL}, v{RL+1}, v{RL+2}
v_max_u32 v{OB}, v{OB}, v{RL+3}
v_cmp_eq_u32 vcc, -1, v{OB}
s_nop 0
s_cbranch_vccnz L_duty_no""")
    reduce_math(1)
    for k in range(4):
        e(f"v_dot2_f32_bf16 v{RL+1}, v{OB+k}, s{S_C11}, {'v%d' % (RL+1) if k else 0}")
    e(f"""v_subrev_u32 v{RL+3}, {hex(lo)}, v{RL}
v_cmp_lt_u32 vcc, {hex(hi-lo)}, v{RL+3}
v_cmp_ne_u32 {sr(S_T0+1,2)}, 0, v{V_TMP}
s_add_u32 s{S_IT}, s{S_IT}, 1
v_cmp_class_f32 {sr(S_EX,2)}, v{RL+1}, s{S_CLS}
s_or_b64 vcc, vcc, {sr(S_T0+1,2)}
s_nop 0
s_or_b64 vcc, vcc, {sr(S_EX,2)}""")
    if OPT["force_slow"]:
        e(f"s_cmp_eq_u32 s{S_IT}, {OPT['force_slow']}\ns_cselect_b64 vcc, -1, vcc")
    e(f"""s_cbranch_vccnz L_duty_bad
buffer_store_dwordx4 {vr(OB,4)}, v{V_L16}, {sr(SRD_WS,4)}, s{S_PC} offen sc1
v_mov_b32 v{V_TMP}, s{S_IT}
s_mov_b32 s{S_BLK}, 9
s_mov_b64 exec, 1
ds_max_u32 v{V_FLW}, v{V_TMP} offset:{F_DUTY}
s_mov_b64 exec, -1
L_duty_next:
ds_write_b32 v{V_FLW}, v{V_ONE} offset:{F_FREE}
v_add_u32 v{V_LS}, 2048, v{V_LS}
s_mov_b32 s{S_PC}, s{S_PC+1}
s_setprio 0
L_duty_ret:
s_setpc_b64 {sr(S_RET,2)}
L_duty_no:
s_setprio 0
s_waitcnt lgkmcnt(0)
s_cmp_eq_u32 s{S_BLK}, 0
s_cbranch_scc1 L_duty_ret
s_sub_u32 s3, s3, 1
s_cbranch_scc1 L_exit
s_cmp_eq_u32 s{S_BLK}, 1
s_cbranch_scc1 L_duty
s_sleep 6
s_branch L_duty
L_duty_bad:
ds_write_b32 v{V_FLR}, v{V_ONE} offset:{F_SLOW}
s_branch L_duty_next""")
def duty(upto, mode):
    skip = label("noduty")
    e(f"s_lshl_b32 s{S_T0}, s{S_IT}, 2\ns_add_u32 s{S_T0}, s{S_T0}, s{S_DW}\ns_mov_b32 s{S_BLK}, {mode}\ns_cmp_lt_u32 s{S_T0}, {upto}\ns_cbranch_scc0 {skip}")
    e(f"s_call_b64 {sr(S_RET,2)}, L_duty\n{skip}:")

vq, lq = Queue("vmcnt"), Queue("lgkmcnt")
hflag = f"s_mov_b64 exec, 1\nbuffer_store_dwordx2 {vr(V_TAG,2)}, v{V_TAG+2}, {sr(SRD_WS,4)}, s{S_U+7} offen sc1\ns_mov_b64 exec, -1"
e(f"s_waitcnt vmcnt(4)\nds_write_b32 v{V_FLW}, v{V_ONE} offset:{F_PZ}\ns_cmp_eq_u32 s{S_EOK}, 1\ns_cbranch_scc0 L_f2late")
duty(4, 0)
for s in range(6):
    vq.issue(("w2", s))
for s in range(NE):
    vq.issue(("h", s))
for s in range(NE, NE + HD):
    f2_h(s, vq)
e(f"s_waitcnt vmcnt({2*HD+1})\ns_cmp_eq_u32 s{S_BLK}, 9\ns_cbranch_scc1 L_hdrained\ns_waitcnt vmcnt({2*HD})\nL_hdrained:\n{hflag}")
stamp("hfl")
e("L_f2go:")
with outofline():
    q = Queue("vmcnt")
    e(f"L_f2late:\ns_waitcnt vmcnt(0)\n{hflag}")
    stamp("hfl")
    e(f"s_cmp_eq_u32 s{S_TB}, 2\ns_cbranch_scc1 L_f2pre")
    late_prefetch()
    e("s_waitcnt vmcnt(0)")
    for s in range(6):
        f2_dma(s, q)
    e("L_f2pre:")
    duty(4, 0)
    e(f"L_epoll:\n{EARLY}\ns_waitcnt vmcnt(0)\ns_setprio 2\nv_cmp_ne_u64 vcc, {sr(S_TAG,2)}, v[6:7]\ns_setprio 0")
    retry("L_epoll", OPT["hsl"])
    for s in range(NE + HD):
        f2_h(s, q)
    e(f"s_waitcnt vmcnt({2*HD})\ns_cmp_eq_u32 s{S_HW}, 3\ns_cbranch_scc0 L_f2go")
    lds_spin(V_FLR, F_G1, V_TMP, "v_cmp_ne_u32", 1, sleep=2, prio=(2, 0))
    for u in range(16):
        hh, s_ = divmod(u, 4)
        for p in range(2):
            e(f"s_mov_b32 m0, {L_DUMP + u*2048 + p*1024}\ns_mov_b32 s{S_T5}, {(8*s_ + 4*p + hh)*16384}\nbuffer_load_dwordx4 v{V_S0}, {sr(SRD_C,4)}, s{S_T5} offen lds")
            e(f"s_mov_b32 m0, {L_X + u*2048 + p*1024}\ns_waitcnt vmcnt(40)\nbuffer_load_dwordx4 v{V_WO}, {sr(SRD_C,4)}, s{S_T5} offen lds")
    e(f"s_waitcnt vmcnt(0)\nds_write_b32 v{V_FLR}, v{V_ONE} offset:{F_WOS}\ns_branch L_f2go")
stamp("hok")
def f2_read1(k):
    s, c, i = k // 4, (k // 2) % 2, k % 2
    if k % 4 == 0:
        vq.wait(("w2", s))
    e(f"ds_read_b64_tr_b16 {vr(F2A+8*(s % 2)+4*c+2*i,2)}, v{V_TR2}{off(((s + 2) % 6)*2048 + c*1024 + i*512)}")
    lq.issue(("r", s, c))
def wo_read1(k):
    u, ee, i = k // 4, (k // 2) % 2, k % 2
    e(f"ds_read_b64_tr_b16 {vr(TA+8*u+4*ee+2*i,2)}, v{V_TT}{off(u*2048 + i*512 + ee*8)}")
    lq.issue()
    if k == 63:
        e(f"s_waitcnt lgkmcnt(8)\nds_write_b32 v{V_FLW}, v{V_ONE} offset:{F_WOR}")
        lq.issue()
G, nr, nh, nd, nw, late, wos = OPT["g2"], 0, NE + HD, 6, 0, 0, 0
while nr < 8:
    f2_read1(nr); nr += 1
for m in range(88):
    s, u = divmod(m, 4)
    c, tb = u >> 1, u & 1
    if m % G == 0:
        last = min(m + G, 88) - 1
        ls, lc = last // 4, (last % 4) >> 1
        e(f"s_waitcnt vmcnt({min(63, vq.left(('h', ls)))}) lgkmcnt({min(lq.left(('r', ls, lc)), 7)})")
    mf32(ACC + 16 * c + 32 * tb, F2A + 8 * (s % 2) + 4 * c, hreg(s) + 4 * tb, ACC + 16 * c + 32 * tb if s else None)
    end = m % G == G - 1
    n = 0
    while nr < 88 and nr // 2 - 4 <= (m - 1) // 2 and (end or n < 2) and (end or nr % 4):
        f2_read1(nr); nr += 1; n += 1
    while wos and nw < 64 and n < (2 if not end else 3) and (TA + 2 * nw + 1 < HE or (TA + 2 * nw + 1 - HE) // 8 <= (m - 3) // 4 or (m - 3) // 4 >= NE - 1):
        wo_read1(nw); nw += 1; n += 1
    if end:
        if not wos and s >= OPT["wat"]:
            lds_spin(V_FLR, F_WOS, V_TMP, "v_cmp_ne_u32", 1, sleep=2, prio=(2, 0))
            wos = 1
        if not late and s >= 7 - OPT["lp"]:
            e(f"buffer_load_dwordx2 v[6:7], v0, {sr(SRD_WS,4)}, s{S_FLB} offen sc1")
            vq.issue("late"); late = 1
        while nh < 22 and nh - HD <= (m - 3) // 4:
            if nh == 11:
                vq.wait("late")
                e(f"s_setprio 2\nv_cmp_ne_u64 vcc, {sr(S_TAG,2)}, v[6:7]\ns_setprio 0\ns_cbranch_vccnz L_lslow\nL_lok:")
                with outofline():
                    e("L_lslow:")
                    glb_spin(0, f"s{S_FLB}", 6, sleep=OPT["hsl"], prio=(2, 0))
                    e("s_branch L_lok")
                stamp("lok")
                e(f"s_sub_u32 s{S_U+2}, s{S_U+2}, {44*2048}\ns_sub_u32 s{S_U+3}, s{S_U+3}, {44*2048}\ns_sub_u32 s{S_STEP}, s{S_STEP}, {44*2048}")
            f2_h(nh, vq); nh += 1
        while nd < 22 and nd - 6 <= (m - 2) // 4:
            f2_dma(nd, vq); nd += 1
while nw < 64:
    if nw % 8 == 0:
        e("s_waitcnt lgkmcnt(4)")
    wo_read1(nw); nw += 1
e("s_waitcnt lgkmcnt(0)")
stamp("f2")

SLOT = [0, 1, 2, 0, 0, 1, 2, 0]
def piece_loads(t):
    for s_ in range(4):
        e(f"buffer_load_dwordx4 {vr(PC+16*SLOT[t]+4*s_,4)}, v{V_TB}, {sr(SRD_WS,4)}, s{(S_OB, S_U)[t // 4]+s_} offen{off((t % 4)*1024)} sc1")
def wait_duty(mask, sleep):
    top = label("wd")
    e(f"""{top}:
ds_read_b32 v{RL}, v{V_FLR} offset:{F_DUTY}
ds_read_b32 v{RL+1}, v{V_FLR} offset:{F_SLOW}
s_waitcnt lgkmcnt(0)
s_setprio 2
v_lshl_or_b32 v{RL}, v{RL+1}, 1, v{RL}
v_cmp_gt_u32 vcc, 2, v{RL}
s_setprio 0
s_nop 0
s_mov_b32 s{S_T5}, vcc_lo
s_and_b64 vcc, vcc, {mask}""")
    if mask:
        retry(top, sleep)
def consume(t, younger, sleep):
    chk, again = label("chk"), label("again")
    if t == 7 and OPT["inl"]:
        e(f"s_branch {chk}\n{again}:\ns_sub_u32 s3, s3, 1\ns_cbranch_scc1 L_exit")
        piece_loads(t)
    e(f"{chk}:")
    for n in range(4):
        d = PC + 16 * SLOT[t] + 4 * n
        e(f"s_waitcnt vmcnt({younger + 3 - n})")
        if n == 0: e("s_setprio 2")
        e(f"v_max3_u32 v{V_TMP}, v{d}, v{d+3}, v{V_TMP}" if n else f"v_max_u32 v{V_TMP}, v{d}, v{d+3}")
    e(f"v_cmp_eq_u32 vcc, -1, v{V_TMP}\ns_setprio 0\ns_cbranch_vccnz {again}")
    with outofline():
      if not (t == 7 and OPT["inl"]):
        e(f"{again}:\ns_sub_u32 s3, s3, 1\ns_cbranch_scc1 L_exit")
        if sleep:
            e(f"s_sleep {sleep}")
        piece_loads(t)
        if younger:
            e("s_waitcnt vmcnt(0)")
        e(f"s_branch {chk}")
    for s_ in range(4):
        for ee in range(2):
            c = ACC + 8 * (t // 4) + 4 * ee
            mf16(c, TA + 32 * (t % 4) + 8 * s_ + 4 * ee, PC + 16 * SLOT[t] + 4 * s_, c)
def store_out(tb):
    e("s_nop 5\ns_setprio 2")
    for k in range(4):
        e(f"v_cvt_pk_bf16_f32 v{XR+4*tb+k}, v{ACC+8*tb+2*k}, v{ACC+8*tb+2*k+1}")
    e(f"buffer_store_dwordx4 {vr(XR+4*tb,4)}, v{V_OUT}, {sr(SRD_OUT,4)}, s{S_XO+tb} offen{' sc1' if OPT['osc'] >> tb & 1 else ''}")

duty(4, 2)
if OPT["dtry"] & 1:
    duty(7, 0)
e(f"s_lshl_b32 s{S_T0}, s{S_HW}, 13\ns_add_u32 s{S_T0}, s{S_T0}, {L_DUMP}\ns_setprio 2\nv_add_u32 v{V_DW0}, s{S_T0}, v{V_L16}\nv_add_u32 v{V_DR0}, {L_DUMP}, v{V_DR1}\nv_add_u32 v{V_DW1}, s{S_RING}, v{V_L16}")
lds_spin(V_FLR, F_WOR, V_TMP, "v_cmp_ne_u32", 1, sleep=1, prio=(2, 0))
for tb in range(2):
    e(f"buffer_load_dwordx4 {vr(XR+4*tb,4)}, v{V_OUT}, {sr(SRD_X,4)}, s{S_XO+tb} offen")
for tb in range(2):
    if tb:
        e("s_waitcnt lgkmcnt(6)")
    for ct in range(2):
        for a in range(4):
            e(f"ds_write_b128 v{(V_DW0, V_DW1)[tb]}, {vr(ACC+32*tb+16*ct+4*a,4)}{off(ct*4096 + a*1024)}")
e(f"ds_write_b32 v{V_FLW}, v{V_ONE} offset:{F_D0}\ns_waitcnt lgkmcnt(0)")
for k in range(4):
    e(f"s_add_u32 s{S_U+k}, s{S_OB+k}, 32768")
for t in range(3):
    piece_loads(t)
lds_spin(V_FLR, F_D0, RL, "v_cmp_ne_u32", 1, sleep=1, prio=(2, 0))
def exchange_sum(tb):
    for w in range(4):
        for h in range(2):
            e(f"ds_read_b128 {vr(RT+8*w+4*h,4)}, v{(V_DR0, V_DR1)[tb]}{off(w*(8192, H_STR)[tb] + h*512)}")
    e("s_waitcnt vmcnt(12) lgkmcnt(4)\ns_setprio 2")
    for k in range(4):
        e(f"v_pk_add_f32 {vr(RT+2*k,2)}, {vr(RT+2*k,2)}, {vr(RT+8+2*k,2)}")
    e("s_waitcnt lgkmcnt(0)")
    for k in range(4):
        e(f"v_pk_add_f32 {vr(RT+16+2*k,2)}, {vr(RT+16+2*k,2)}, {vr(RT+24+2*k,2)}")
    for k in range(4):
        e(f"v_pk_add_f32 {vr(RT+2*k,2)}, {vr(RT+2*k,2)}, {vr(RT+16+2*k,2)}")
    for k in range(4):
        e(f"v_dot2_f32_bf16 v{ACC+8*tb+2*k}, v{XR+4*tb+k}, s{S_C10}, v{RT+2*k}")
        e(f"v_dot2_f32_bf16 v{ACC+8*tb+2*k+1}, v{XR+4*tb+k}, s{S_C01}, v{RT+2*k+1}")
    e("s_setprio 0")
exchange_sum(0)
if not OPT["defer"]:
    exchange_sum(1)
stamp("d0")
if OPT["dtry"] & 2:
    duty(7, 0)
consume(0, 8, OPT["csl"])
piece_loads(3)
if OPT["dtry"] & 4:
    duty(7, 0)
consume(1, 8, OPT["csl"])
consume(2, 4, OPT["csl"])
wait_duty(0, 0)
e(f"s_bitcmp1_b32 s{S_T5}, s{S_DW}\ns_cselect_b32 s{S_IT}, s{S_IT}, 2")
consume(3, 0, OPT["csl"])
store_out(0)
e("s_setprio 0")
stamp("tb0")
duty(7, 2)
wait_duty(7, 4)
piece_loads(4)
piece_loads(5)
if OPT["defer"]:
    stamp("pre")
    wait_duty(8, OPT["w8sl"])
    stamp("w8")
    piece_loads(6)
    exchange_sum(1)
    consume(4, 8, 0)
    consume(5, 4, 0)
    if OPT["c6first"]:
        consume(6, 0, 0)
    elif OPT["t7dl"]:
        e(f"s_sleep {OPT['t7dl']}")
    piece_loads(7)
    stamp("l7")
else:
    e(f"s_bitcmp1_b32 s{S_T5}, 3\ns_cbranch_scc1 L_no6")
    piece_loads(6)
    e("L_no6:")
    consume(4, 4, OPT["csl"])
    e(f"s_bitcmp1_b32 s{S_T5}, 3\ns_cbranch_scc1 L_no7")
    piece_loads(7)
    e("L_no7:")
    consume(5, 0, OPT["csl"])
    stamp("pre")
    e(f"s_bitcmp1_b32 s{S_T5}, 3\ns_cbranch_scc0 L_have7")
    wait_duty(8, 2)
    piece_loads(6)
    if OPT["t7dl"]:
        e(f"s_sleep {OPT['t7dl']}")
    piece_loads(7)
    e("L_have7:")
if not OPT["c6first"]:
    consume(6, 4, 0)
consume(7, 0, OPT["t7sl"])
stamp("fbar")
store_out(1)
e("s_branch L_fin" if OPT["stamps"] or OPT["hold"] != -1 else "s_endpgm")

S_KO = 48
def a_setup():
    e(f"""v_lshlrev_b32 v1, 4, v0
v_and_b32 v4, 15, v0
v_lshlrev_b32 v4, 4, v4
v_lshrrev_b32 v6, 5, v0
v_lshl_add_u32 v4, v6, 8, v4
v_bfe_u32 v6, v0, 4, 1
v_lshl_add_u32 v2, v6, 9, v4
s_lshl_b32 s{S_T2}, s{S_W}, 13
s_add_u32 s{S_T2}, s{S_T2}, {L_P1}
v_add_u32 v5, s{S_T2}, v1
v_and_b32 v6, 31, v0
s_lshl_b32 s{S_T2}, s{S_W}, 7
s_add_u32 s{S_T2}, s{S_T2}, {L_LS}
v_lshl_add_u32 v6, v6, 2, s{S_T2}
v_mov_b32 v7, v{V_FLR}
v_add_u32 v252, {L_Q}, v1
s_lshl_b32 s{S_T0}, s{S_W}, 15
s_mov_b32 s{S_EX}, 0x0000ffff
s_mov_b32 s{S_EX+1}, 0x0000ffff
s_lshl_b32 s{S_T2}, s{S_W}, 11
s_add_u32 s{S_XO}, s{S_T2}, {L_P1}
s_mul_i32 s{S_T2}, s{S_W}, 384
s_add_u32 s{S_XO+1}, s{S_T2}, 2048
s_lshl4_add_u32 s{S_T2}, s{S_G}, s{S_J}
s_lshl2_add_u32 s{S_T2}, s{S_T2}, s{S_W}
s_lshl_b32 s{S_T2}, s{S_T2}, 10
s_add_u32 s{S_PC}, s{S_T2}, {hex(WS_O)}
s_add_u32 s{S_PC+1}, s{S_PC}, 32768
s_movk_i32 s{S_CLS}, 0x207
s_mov_b32 s{S_TA}, 0x07060302""")
    for b in range(16):
        e(f"s_add_u32 s{S_T2}, s{S_C}, {b}\ns_and_b32 s{S_T2}, s{S_T2}, 15\ns_lshl_b32 s{S_T2}, s{S_T2}, 11\ns_add_u32 s{S_KO+b}, s{S_T2}, s{S_T0}")
e(".p2align 6\nL_afront:")
stamp("karg")
if OPT["eb"]:
    e("s_barrier")
common_setup()
e(f"""s_lshl_b32 s{S_T0}, s{S_W}, 3
s_xor_b32 s{S_T0}, s{S_T0}, 8
s_or_b32 s{S_T0}, s{S_T0}, s2
s_cmp_lt_u32 s{S_T0}, 8
s_cbranch_scc0 L_notag
s_memrealtime {sr(S_T0+1,2)}
v_mov_b32 v46, 0
v_mov_b32 v47, 0
s_waitcnt lgkmcnt(0)
s_or_b32 s{S_T0+1}, s{S_T0+1}, 1
v_mov_b32 v44, s{S_T0+1}
v_mov_b32 v45, s{S_T0+2}
s_mov_b64 exec, 1
buffer_atomic_cmpswap_x2 v[44:47], v46, {sr(SRD_DBG,4)}, 0 offen sc1
s_mov_b64 exec, -1
L_notag:
v_lshlrev_b32 v3, 4, v0
v_mov_b32 v48, -1
v_mov_b32 v49, -1
v_mov_b32 v50, -1
v_mov_b32 v51, -1
s_lshl_b32 s{S_T0}, s{S_W}, 10
s_add_u32 s{S_T0}, s{S_T0}, {L_LS}
v_add_u32 v6, s{S_T0}, v3
ds_write_b128 v6, v[48:51]
v_mov_b32 v52, 0""")
if not OPT["eb"]:
    e(f"v_lshlrev_b32 v6, 2, v0\nv_add_u32 v6, {L_FLG}, v6\nds_write2st64_b32 v6, v52, v52 offset1:1")
unit_addr(0, 2)
unit_addr(1, 3)
e(f"s_cmp_eq_u32 s{S_W}, 0\ns_cbranch_scc1 L_kv")
def v_init():
    e(f"""v_mov_b32 v42, 0
s_mov_b32 exec_lo, 0x00110000
s_mov_b32 exec_hi, 0x00110000
v_mov_b32 v42, s{S_C11}
s_mov_b64 exec, -1
v_mov_b32 v43, v42""")
    for i in range(0, 128, 2):
        e(f"v_mov_b64 {vr(VV+i,2)}, v[42:43]")
if OPT["bal"] == 2:
    e(f"v_and_b32 v227, 0xfff, v1\ns_lshl_b32 s{S_T0}, s{S_W}, 6\nv_subrev_u32 v2, s{S_T0}, v2\nv_and_b32 v4, 15, v4\ns_add_u32 s{S_T5}, s{S_W}, 1\ns_min_u32 s{S_T5}, s{S_T5}, 3")
    unit_addr(2, f"s{S_T5}")
v_init()
e("v_mov_b32 v226, v1")
a_setup()
srd(SRD_W, P_WQ, 512 * 1024)
e(f"""v_lshrrev_b32 v224, 3, v0
v_lshlrev_b32 v224, 10, v224
v_and_b32 v225, 7, v0
v_lshl_add_u32 v224, v225, 6, v224
s_lshl1_add_u32 s{S_T0}, s{S_C}, s{S_W}
s_sub_u32 s{S_T0}, s{S_T0}, 2
s_lshl_b32 s{S_T0}, s{S_T0}, 13
s_and_b32 s{S_T1}, s{S_J}, 4
s_lshl_b32 s{S_T1}, s{S_T1}, 7
s_add_u32 s{S_T0}, s{S_T0}, s{S_T1}
s_cmp_eq_u32 s{S_W}, 1
s_cselect_b32 s{S_T0}, 0x1000000, s{S_T0}""")
stamp("aset")
if not OPT["eb"]:
    e("s_waitcnt lgkmcnt(0)\ns_barrier")
if OPT["pf_wq"] == 4:
    e(f"buffer_load_dword v225, v224, {sr(SRD_W,4)}, s{S_T0} offen")
unit_loads(8, 0, 226)
if OPT["pf_wq"] == 5:
    e(f"buffer_load_dword v225, v224, {sr(SRD_W,4)}, s{S_T0} offen")
unit_loads(24, 1, 226)
if OPT["bal"] == 2:
    unit_loads(40, 2, 227)
if OPT["pf_wq"] == 1:
    e(f"buffer_load_dword v225, v224, {sr(SRD_W,4)}, s{S_T0} offen")
if OPT["m1"] == 1:
    srd(SRD_W, P_W1, 512 * 2752)
    e(f"v_min_u32 v224, 28, v0\nv_lshlrev_b32 v224, 6, v224\ns_mul_i32 s{S_T0}, s2, 3\ns_add_u32 s{S_T0}, s{S_T0}, s{S_W}\ns_sub_u32 s{S_T0}, s{S_T0}, 1\ns_mul_i32 s{S_T0}, s{S_T0}, {29*64}\nbuffer_load_dword v225, v224, {sr(SRD_W,4)}, s{S_T0} offen")
stamp("xis")
if OPT["bal"] == 2:
    ln_centre([8, 24, 40], [8 + (OPT["pf_wq"] in (1, 5)), 4 + (OPT["pf_wq"] == 1), 0 + (OPT["pf_wq"] == 1)], V_WR, 56, 60, 64)
    ln_stats(3, V_ST, 56, 60)
else:
    ln_centre([8, 24], [5 + (OPT["m1"] == 1), 1 + (OPT["m1"] == 1)], V_WR, 56, 58, 60)
    ln_stats(2, V_ST, 56, 58)
e(f"ds_write_b32 v{V_FLW}, v{V_ONE} offset:{F_LNA}")
stamp("lnB")
e("s_branch L_kvwait")
WF, XF, KA = 72, 136, 208
e(f"L_kv:\ns_setprio 3\nds_write_b32 v{V_FLW}, v{V_ONE} offset:{F_LNA}")
e(f"""v_lshlrev_b32 v43, 3, v7
v_bfe_u32 v42, v0, 2, 2
v_lshl_add_u32 v43, v42, 5, v43
v_lshrrev_b32 v42, 4, v0
v_lshl_add_u32 v43, v42, 8, v43
v_add_u32 v43, {L_WKV}, v43
v_mul_u32_u24 v44, {X_STR}, v42
v_lshl_add_u32 v44, v5, 4, v44
s_lshl_b32 s{S_T0}, s{S_T3}, 8
s_add_u32 s{S_T0}, s{S_T0}, {L_X}
v_add_u32 v44, s{S_T0}, v44
s_lshl_b32 s{S_T0}, s{S_T3}, 6
s_add_u32 s{S_T0}, s{S_T0}, {L_RSTD}
v_lshl_add_u32 v45, v5, 2, s{S_T0}
v_lshl_add_u32 v46, v42, 4, s{S_T0}
v_mov_b32 v47, {L_FLG + F_TAG}
v_lshrrev_b32 v41, 5, v0
v_lshlrev_b32 v41, 8, v41
v_lshl_add_u32 v41, v5, 4, v41
s_lshr_b32 s{S_T1}, s{S_T3}, 1
s_lshl1_add_u32 s{S_T0}, s{S_G}, s{S_T1}
s_lshr_b32 s{S_T1}, s{S_J}, 2
s_lshl1_add_u32 s{S_T0}, s{S_T0}, s{S_T1}
s_and_b32 s{S_T1}, s{S_T3}, 1
s_lshl1_add_u32 s{S_T0}, s{S_T0}, s{S_T1}
s_lshl_b32 s{S_T5}, s{S_T0}, 9
s_lshl_b32 s{S_T4}, s{S_J}, {OPT['fsh']}
s_add_u32 s{S_T4}, s{S_T4}, s{S_FLB}""")
if not OPT["eb"]:
    e("s_waitcnt lgkmcnt(0)\ns_barrier")
if not OPT["x0late"] and OPT["bal"] < 2:
    unit_loads(8, 0)
    if not OPT["bal"]:
        unit_loads(24, 1)
for s in range(16):
    if s % 4 == 0:
        e(f"s_waitcnt vmcnt({(12 if OPT['x0late'] else 20 - 4 * min(OPT['bal'], 2)) - s}) lgkmcnt(6)")
        if s == 0: stamp("wkv")
    for i in range(2):
        e(f"ds_read_b64_tr_b16 {vr(WF+4*s+2*i,2)}, v43{off(s*1024 + i*128)}")
if OPT["x0late"]:
    unit_loads(8, 0)
    unit_loads(24, 1)
stamp("trd")
e(f"s_bitcmp1_b32 s{S_J}, 2\ns_cbranch_scc1 L_kv_v")
def kv_tile(isv):
    lq = Queue("lgkmcnt")
    rs, ok = label("rs"), label("rsok")
    rd = f"ds_read_b32 v53, v{V_FLR} offset:{F_LN}\n" + ("ds_read_b128 v[68:71], v46" if isv else "ds_read_b32 v68, v45")
    top = label("lnp")
    e(f"{top}:\ns_sub_u32 s3, s3, 1\ns_cbranch_scc1 L_exit\nds_read_b32 v53, v{V_FLR} offset:{F_LNP}\ns_waitcnt lgkmcnt(0)\nv_cmp_ne_u32 vcc, 1, v53\ns_nop 0\ns_cbranch_vccnz {top}")
    stamp("bar1")
    def xr(s):
        e(f"ds_read_b128 {vr(XF+4*s,4)}, v44{off(s*4*X_STR)}")
        lq.issue(s)
    for s in range(8):
        xr(s)
    for s in range(16):
        if s + 8 < 16:
            xr(s + 8)
        elif s == 12:
            e(rd)
            lq.issue(); lq.issue()
        lq.wait(s)
        if isv:
            mf16(KA, XF + 4 * s, WF + 4 * s, KA if s else None)
        else:
            mf16(KA, WF + 4 * s, XF + 4 * s, KA if s else None)
    e(f"{ok}:\ns_waitcnt lgkmcnt(0)\nv_cmp_ne_u32 vcc, 1, v53\ns_nop 4\ns_cbranch_vccnz {rs}")
    with outofline():
        e(f"{rs}:\ns_sub_u32 s3, s3, 1\ns_cbranch_scc1 L_exit\n{rd}\ns_branch {ok}")
    for k in range(4):
        e(f"v_mul_f32 v{KA+k}, v{KA+k}, v{68 + (k if isv else 0)}")
    e(f"""v_cvt_pk_bf16_f32 v48, v{KA}, v{KA+1}
v_cvt_pk_bf16_f32 v49, v{KA+2}, v{KA+3}
s_nop 1
v_permlane{16 if isv else 32}_swap_b32 v48, v50
v_permlane{16 if isv else 32}_swap_b32 v49, v51
s_mov_b32 exec_lo, {'0xffff' if isv else -1}
s_mov_b32 exec_hi, {'0xffff' if isv else 0}
buffer_store_dwordx4 v[48:51], v{41 if isv else 3}, {sr(SRD_WS,4)}, s{S_T5} offen sc1
s_mov_b64 exec, -1""")
kv_tile(0)
e("s_branch L_kv_done\nL_kv_v:")
kv_tile(1)
e("L_kv_done:")
stamp("kvst")
e(f"buffer_load_dwordx2 v[54:55], v52, {sr(SRD_DBG,4)}, 0 offen sc1")
v_init()
a_setup()
e(f"""L_tagchk:
s_waitcnt vmcnt(0)
v_cmp_eq_u32 vcc, 0, v54
s_nop 0
s_cbranch_vccnz L_tag
s_mov_b64 exec, 1
buffer_store_dwordx2 v[54:55], v52, {sr(SRD_WS,4)}, s{S_T4} offen sc1
s_mov_b64 exec, -1
ds_write_b64 v47, v[54:55]
ds_write_b32 v{V_FLR}, v{V_ONE} offset:{F_KVS}
s_setprio 0""")
with outofline():
    e(f"L_tag:\ns_sub_u32 s3, s3, 1\ns_cbranch_scc1 L_exit\ns_sleep 2\nbuffer_load_dwordx2 v[54:55], v52, {sr(SRD_DBG,4)}, 0 offen sc1\ns_branch L_tagchk")
stamp("kvfl")
def flag_addr():
    e(f"v_lshrrev_b32 v3, 3, v0\nv_lshlrev_b32 v3, 11, v3\nv_and_b32 v8, 7, v0\nv_lshl_add_u32 v3, v8, {OPT['fsh']}, v3")
if OPT["self"]:
    e("L_kvwait:")
    flag_addr()
    e(f"""v_lshlrev_b32 v12, 2, v8
v_add_u32 v12, {L_FLG + F_KVS}, v12
v_mov_b32 v13, {L_FLG + F_TAG}
s_lshl_b32 s{S_U}, s{S_W}, 14
s_add_u32 s{S_U}, s{S_U}, {hex(WS_FL)}
L_gate:
s_sub_u32 s3, s3, 1
s_cbranch_scc1 L_exit
ds_read_b32 v14, v12
ds_read_b64 v[10:11], v13
s_waitcnt lgkmcnt(0)
v_cmp_ne_u32 vcc, 1, v14
s_nop 0
s_cbranch_vccnz L_gate""")
    if OPT["pdl"]:
        e(f"s_sleep {OPT['pdl']}")
    e(f"L_kvpoll:\nbuffer_load_dwordx2 v[8:9], v3, {sr(SRD_WS,4)}, s{S_U} offen sc1\ns_waitcnt vmcnt(0)\nv_cmp_ne_u64 vcc, v[10:11], v[8:9]\ns_nop 0")
    retry("L_kvpoll", OPT["psl"], lambda: e("s_mov_b64 exec, vcc"))
    e("s_mov_b64 exec, -1")
else:
    e(f"v_readfirstlane_b32 s{S_TAG}, v54\nv_readfirstlane_b32 s{S_TAG+1}, v55")
    flag_addr()
    for k in range(4):
        e(f"s_mov_b32 s{S_U+k}, {hex(WS_FL + k*16384)}")
    lds_spin(7, F_WQI, 8, "v_cmp_ne_u32", 1)
    e("L_kvpoll:")
    for k in range(4):
        e(f"buffer_load_dwordx2 {vr(8+2*k,2)}, v3, {sr(SRD_WS,4)}, s{S_U+k} offen sc1")
    for k in range(4):
        e(f"s_waitcnt vmcnt({3-k})\nv_cmp_ne_u64 {'vcc' if k == 0 else sr(S_U+2+2*k,2)}, {sr(S_TAG,2)}, {vr(8+2*k,2)}")
    e(f"s_or_b64 vcc, vcc, {sr(S_U+4,2)}\ns_or_b64 vcc, vcc, {sr(S_U+6,2)}\ns_or_b64 vcc, vcc, {sr(S_U+8,2)}")
    retry("L_kvpoll", OPT["psl"], lambda: e("s_mov_b64 exec, vcc"))
    e(f"s_mov_b64 exec, -1\nds_write_b32 v7, v255 offset:{F_KVOK}\ns_branch L_kvok")
    e(f"L_kvwait:\ns_sub_u32 s3, s3, 1\ns_cbranch_scc1 L_exit\nds_read_b32 v8, v7 offset:{F_KVOK}\ns_waitcnt lgkmcnt(0)\nv_cmp_ne_u32 vcc, 1, v8\ns_nop 0\ns_cbranch_vccnz L_kvwait\nL_kvok:")
stamp("flags")
vq = Queue("vmcnt")
NB0 = OPT["nb0"]
def k_load(b):
    vq.issue(("K", b))
    return [f"buffer_load_dwordx4 {vr(VK+4*b,4)}, v2, {sr(SRD_WS,4)}, s{S_KO+b} offen sc1"]
def v_load(b):
    vq.issue(); vq.issue(("V", b))
    return ([f"s_mov_b64 exec, {sr(S_EX,2)}"]
            + [f"buffer_load_dwordx4 {vr(VV+8*b+4*i,4)}, v4, {sr(SRD_WS,4)}, s{S_KO+b} offen{off(1024+512*i)} sc1" for i in range(2)]
            + ["s_mov_b64 exec, -1"])
for b in range(NB0):
    e("\n".join(k_load(b) + v_load(b)))
if NB0 == 16:
    e(f"ds_write_b32 v253, v255 offset:{F_KVIS}")
stamp("kvis")
if OPT["q0"]:
    e(f"v_mov_b32 v254, {L_FLG + 4}")
lds_spin(254 if OPT["q0"] else 7, F_Q, 3, "v_cmp_ne_u32", 1)
e(f"ds_read_b128 {vr(VQ,4)}, v252\ns_setprio 1\ns_waitcnt vmcnt({vq.left(('K', 0))}) lgkmcnt(0)")
stamp("go")
mf32(SA, VK, VQ)
VI = 254
e(f"v_mov_b32 v{VI}, 0xdddddddd")
for k in range(0, 16, 2):
    e(f"v_mov_b64 {vr(VO+k,2)}, 0")
e("s_nop 2")

ORDERS = [("e0 e1 b e2 e3 e4 e5 e6 Q n e7 e8 e9 A n e10 e11 e12 e13 e14 e15",
           "e0 e1 b e2 e3 e4 e5 e6 Q n e7 e8 e9 e10 e11 F e12 e13 A n e14 e15"),
          ("a e0 e1 e2 b e3 e4 e5 Q n e6 e7 e8 e9 e10 e11 e12 e13 e14 e15",
           "a e0 e1 e2 b e3 e4 e5 Q n e6 e7 e8 e9 e10 e11 e12 F e13 e14 e15"),
          ("e0 e1 b e2 e3 e4 Q n e5 e6 e7 e8 e9 A n e10 e11 e12 e13 e14 e15",
           "e0 e1 b e2 e3 e4 Q n e5 e6 e7 e8 e9 e10 e11 F e12 e13 A n e14 e15"),
          ("e0 e1 b e2 e3 e4 e5 Q n e6 e7 e8 e9 A n e10 e11 e12 e13 e14 e15",
           "e0 e1 b e2 e3 e4 e5 Q n e6 e7 e8 e9 e10 e11 F e12 e13 A n e14 e15"),
          ("a e0 e1 b e2 e3 Q n e4 e5 e6 e7 e8 e9 e10 e11 e12 e13 e14 e15",
           "a e0 e1 b e2 e3 Q n e4 e5 e6 e7 e8 e9 e10 e11 F e12 e13 e14 e15")][OPT["order"]]
CURA = "A" in ORDERS[0]
GUARDS = [(12, F_Q, "q", 15), (76, F_FREE, "f0", 1), (92, F_FREE, "f1", 6), (123, F_FREE, "f3", 8)]
def flush(t):
    o = (t % 4) * 2048
    return [f"ds_write_b128 v5, {vr(VO,4)}{off(o)}", f"ds_write_b128 v5, {vr(VO+4,4)}{off(o+1024)}",
            f"ds_write_b32 v6, v{VO+8}{off(t*512)}"]
for i in range(128):
    t, b = divmod(i, 16)
    S, T = (SA, SB) if i % 2 == 0 else (SB, SA)
    pb = (b - 1) % 16
    after = {}
    AT = "A" if CURA else "a"
    if b == 0:
        note(f"q block {t}")
    if t == 0:
        if b + NB0 < 16 and not CURA:
            after["a"] = k_load(b + NB0)
        after["b"] = [f"s_waitcnt vmcnt({min(vq.left(('K', b+1)), vq.left(('V', b))) if b < 15 else 0})"]
        if b + NB0 < 16:
            if CURA:
                after["Q"], after["A"] = k_load(b + NB0), v_load(b + NB0)
            else:
                after["Q"] = v_load(b + NB0)
        if b + NB0 == 16 - OPT["kvlead"] and NB0 < 16:
            after["e14"] = [f"ds_write_b32 v253, v255 offset:{F_KVIS}"]
    if b == 14 and t < 7:
        after["Q"] = [f"ds_read_b128 {vr(VQ,4)}, v252{off((t+1)*1024)}"]
    if b == 15 and t < 7:
        after["b"] = ["s_waitcnt vmcnt(0) lgkmcnt(0)" if t == 0 else "s_waitcnt lgkmcnt(0)"]
    for at, flag, lab, mask in GUARDS:
        if i == at:
            after["Q"] = [f"ds_read_b32 v3, v7 offset:{flag}"]
        if i == at + 1:
            after["Q"] = ["s_waitcnt lgkmcnt(0)"]
            after["e12"] = ["v_cmp_ne_u32 vcc, 1, v3"]
            after["e14"] = ([f"s_and_b64 vcc, vcc, {mask}"] if mask != 15 else []) + [f"s_cbranch_vccnz L_{lab}slow", f"L_{lab}ok:"]
    if i == 126:
        after["Q"] = [f"ds_read_b32 v3, v253 offset:{F_DUTY}"]
    prev = None
    for tok in ORDERS[1 if b == 0 and t else 0].split():
        k = tok[0]
        if k == "e":
            n = int(tok[1:]); e(f"v_exp_f32 v{S+n}, v{S+n}")
        elif k == "a":
            if i: pv(VO, VV + 8 * pb, T, VI)
        elif k == "A":
            pv(VO, VV + 8 * b, S, VI)
        elif k == "b":
            if i: pv(VO, VV + 8 * pb + 4, T + 8, VI)
        elif k == "Q":
            if i < 127:
                mf32(T, VK + 4 * ((b + 1) % 16), VQ)
        elif k == "n":
            if prev not in after: e("s_nop 0")
        elif k == "F":
            for x in flush(t - 1):
                e(x)
            for r in range(0, 10, 2):
                e(f"v_mov_b64 {vr(VO+r,2)}, 0")
        for x in after.get(tok, []):
            e(x)
        prev = tok
    if b == 15:
        stamp(f"p{t}")
with outofline():
    for at, flag, lab, mask in GUARDS:
        e(f"L_{lab}slow:\ns_sub_u32 s3, s3, 1\ns_cbranch_scc1 L_exit\ns_sleep 1\nds_read_b32 v3, v7 offset:{flag}\ns_waitcnt lgkmcnt(0)\nv_cmp_ne_u32 vcc, 1, v3\ns_nop 1\ns_and_b64 vcc, vcc, {mask}\ns_cbranch_vccnz L_{lab}slow\ns_branch L_{lab}ok")
if CURA:
    e("s_nop 1")
else:
    pv(VO, VV + 8 * 15, SB, VI)
    e("s_nop 0")
pv(VO, VV + 8 * 15 + 4, SB + 8, VI)
e(f"""s_waitcnt lgkmcnt(0)
v_readfirstlane_b32 s{S_IT}, v3
v_mov_b32 v{V_L16}, v1
v_add_u32 v{V_PART}, s{S_XO}, v1
v_add_u32 v{V_LS}, s{S_XO+1}, v6
s_getpc_b64 {sr(S_RET,2)}
L_apc:
s_add_u32 s{S_RET}, s{S_RET}, L_aduty_done-L_apc
s_addc_u32 s{S_RET+1}, s{S_RET+1}, 0
s_mov_b32 s{S_BLK}, 1
s_cmp_eq_u32 s{S_IT}, 1
v_mov_b32 v{V_FLR}, v7
s_nop 0""")
for x in flush(7):
    e(x)
stamp("fbar")
e(f"""s_cbranch_scc0 L_aduty_done
s_mov_b32 s{S_PC}, s{S_PC+1}""")
cur[0].extend(duty_code)
e("L_aduty_done:")
stamp("adone")
e(f"""s_setprio 0
L_status:
s_sleep 4
ds_read_b32 v3, v7 offset:{F_DUTY}
ds_read_b32 v4, v7 offset:{F_SLOW}
s_waitcnt lgkmcnt(0)
v_cmp_ne_u32 vcc, 0, v4
s_nop 0
s_cbranch_vccnz L_slow
v_cmp_ne_u32 vcc, 2, v3
s_nop 0""")
retry("L_status", 0)
e("L_fin:")
if OPT["hold"] == "end":
    e("s_waitcnt vmcnt(0)")
    if OPT["amp"]:
        stamp("fin")
        e(f"s_sub_u32 s{S_ST0+8}, s{S_ST0+8}, s{S_ST0+9}\ns_mul_i32 s{S_ST0+8}, s{S_ST0+8}, 10\nL_amp:\ns_memrealtime {sr(S_STMP,2)}\ns_waitcnt lgkmcnt(0)\ns_sub_u32 s{S_STMP}, s{S_STMP}, s{S_ST0+9}\ns_sub_u32 s{S_STMP}, s{S_STMP}, {OPT['holdT']}\ns_cmp_lt_i32 s{S_STMP}, s{S_ST0+8}\ns_cbranch_scc1 L_amp")
    stamp("end")
if OPT["stamps"]:
    e(f"s_waitcnt vmcnt(0)\ns_memtime {sr(S_STMP,2)}\ns_waitcnt lgkmcnt(0)")
    e(f"s_lshl_b32 s{S_T0}, s{S_G}, 3\ns_add_u32 s{S_T0}, s{S_T0}, s{S_J}\ns_lshl_b32 s{S_T0}, s{S_T0}, 3\ns_add_u32 s{S_T0}, s{S_T0}, s{S_W}\ns_lshl_b32 s{S_T0}, s{S_T0}, 6\ns_add_u32 s{S_T0}, s{S_T0}, {hex(WS_ST)}")
    for k in range(10):
        e(f"v_mov_b32 v{8+k}, s{S_ST0+k}")
    e(f"v_mov_b32 v18, s{S_STMP}\ns_memrealtime {sr(S_STMP,2)}\ns_waitcnt lgkmcnt(0)\nv_mov_b32 v19, s{S_STMP}\nv_mov_b32 v1, 0\ns_mov_b64 exec, 1")
    for k in range(3):
        e(f"buffer_store_dwordx4 {vr(8+4*k,4)}, v1, {sr(SRD_WS,4)}, s{S_T0} offen{off(16*k)}")
e("L_exit:\ns_endpgm")
out += tail_code
tail_code.clear()
e("L_code_end:")

def wave_sync():
    e(f"s_add_u32 s{S_T4}, s{S_T4}, 1\nv_mov_b32 v3, s{S_T4}\nds_write_b32 v253, v3 offset:{F_AS}")
    lds_spin(7, F_AS, 3, "v_cmp_gt_u32", f"s{S_T4}", sleep=1)
e("L_slow:")
lds_spin(7, F_PZ, 3, "v_cmp_ne_u32", 1, sleep=4)
e(f"""s_lshl_b32 s{S_T0}, s{S_W}, 8
s_add_u32 s{S_T0}, s{S_T0}, {L_MB}
v_lshl_add_u32 v2, v0, 2, s{S_T0}
v_and_b32 v4, 31, v0
v_lshlrev_b32 v4, 2, v4
v_add_u32 v4, {L_MB}, v4
v_add_u32 v6, {L_SL - L_LS}, v6
v_add_u32 v254, {L_P1}, v1
v_mov_b32 v255, 0xdddddddd
s_lshl_b32 s{S_T2}, s{S_G}, 16
s_lshl_b32 s{S_T3}, s{S_J}, 12
s_add_u32 s{S_T2}, s{S_T2}, s{S_T3}
s_add_u32 s{S_T2}, s{S_T2}, {hex(WS_O)}
s_mov_b32 s{S_IT}, 0
s_mov_b32 s{S_T4}, 0
L_slow_loop:
ds_read_b128 {vr(VQ,4)}, v252
v_mov_b32 v3, 0xff800000
s_waitcnt lgkmcnt(0)
v_add_u32 v252, 1024, v252""")
for b in range(16):
    mf32(SA, VK + 4 * b, VQ)
    e("s_nop 11")
    for k in range(8):
        e(f"v_max3_f32 v3, v3, v{SA+2*k}, v{SA+2*k+1}")
e("ds_write_b32 v2, v3")
wave_sync()
for k in range(8):
    e(f"ds_read_b32 v{SA+k}, v4{off(128*k)}")
e("s_waitcnt lgkmcnt(0)")
e(f"v_max3_f32 v3, v{SA}, v{SA+1}, v{SA+2}\nv_max3_f32 v3, v3, v{SA+3}, v{SA+4}\nv_max3_f32 v3, v3, v{SA+5}, v{SA+6}\nv_max_f32 v3, v3, v{SA+7}")
for k in range(16):
    e(f"v_sub_f32 v{SB+k}, 0, v3\nv_mov_b32 v{VO+k}, 0")
e("s_nop 1")
for b in range(16):
    mf32(SA, VK + 4 * b, VQ, SB)
    e("s_nop 11")
    for k in range(16):
        e(f"v_exp_f32 v{SA+k}, v{SA+k}")
    e("s_nop 1")
    pv(VO, VV + 8 * b, SA, 255)
    pv(VO, VV + 8 * b + 4, SA + 8, 255)
e("s_nop 11")
for x in flush(0):
    e(x)
wave_sync()
e(f"s_cmp_eq_u32 s{S_W}, 0\ns_cbranch_scc0 L_slow_next")
reduce_piece(254, 6)
e("s_waitcnt lgkmcnt(8)")
reduce_math(0)
for k in range(4):
    e(f"v_min_u32 v{OB+k}, -2, v{OB+k}")
e(f"""s_lshr_b32 s{S_T0}, s{S_IT}, 2
s_lshl_b32 s{S_T0}, s{S_T0}, 15
s_and_b32 s{S_T1}, s{S_IT}, 3
s_lshl_b32 s{S_T1}, s{S_T1}, 10
s_add_u32 s{S_T0}, s{S_T0}, s{S_T1}
s_add_u32 s{S_T0}, s{S_T0}, s{S_T2}
buffer_store_dwordx4 {vr(OB,4)}, v1, {sr(SRD_WS,4)}, s{S_T0} offen sc1
s_waitcnt vmcnt(0)
L_slow_next:
s_add_u32 s{S_IT}, s{S_IT}, 1
s_cmp_lt_u32 s{S_IT}, 8
s_cbranch_scc1 L_slow_loop
s_branch L_fin""")
out += tail_code

e(f""".section .rodata,"a"
.p2align 6
.amdhsa_kernel {NAME}_kernel
.amdhsa_next_free_vgpr 256
.amdhsa_next_free_sgpr 102
.amdhsa_accum_offset 256
.amdhsa_group_segment_fixed_size 0
.amdhsa_kernarg_size 88
.amdhsa_user_sgpr_count 2
.amdhsa_user_sgpr_kernarg_segment_ptr 1
.amdhsa_system_sgpr_workgroup_id_x 1
.end_amdhsa_kernel""")
open(sys.argv[1], "w").write("\n".join(out) + "\n")
```

```python
import sys, struct, re

NAME = "parallel_sum__grouped_kv_mqa__dense_activation_silu__prompt"
OPT = dict(hold=-1, holdT=6000, stamps=0, rt=0, force_slow=0, pf_code=1, pf_wq=1, pf_w1=0, pf_w2=1, f1wait=1, psl=0, pdl=0, fsh=6, chain=0, warm=0, bal=3, wq1=1, half=1, q0=1, w8sl=1, c6first=1, ksl=2, ne=2, m1=0, eat=5, eck=6, wat=2, lwait=1, lp=1, hat=8, self=0, hpoll=2, d0pos=2, p1=0, pf_at=14, pf_mall=0, nb0=6, mask=1, kvlead=1, gate=0, pgate=2, csl=4, t6dl=12, t7dl=4, t7sl=0, flip=0, d1=8, dfirst=1, eblk=2, hsl=8, hp1=0, hp2=0, pfa=0, dtry=3, mallw=1, pf1=0, pw=0, p0=3, npre=16, g2=3, g1h=3, mid=59, gw=1, sp=3, sfirst=1, fuse=1, ow=99, b0=1, near=1, s2=0, wc=0, stag=0, order=1, g1l=2, eb=1, x0late=0, inl=1, amp=0, osc=0, defer=1, perm=0)
for a in sys.argv[2:]:
    k, v = a.split("=")
    OPT[k] = int(v) if v.lstrip("-").isdigit() else v
SITES = ["start"] + (OPT["stamps"].split(",") if OPT["stamps"] else [])
assert len(SITES) <= 9

def f2u(x):
    return struct.unpack("<I", struct.pack("<f", x))[0]
LOG2E = 1.4426950408889634

WS_KV = 0x0
WS_O = 0x40000
WS_H = 0x300000
WS_FL = 0xE00000
FL_H = 512
WS_ST = 0xF00000
WS_SIZE = 0x1000000
H_GRP = 86 * 2048

H_STR = 12288
L_P1 = 49152
L_WKV = 65536
L_X = 81920
X_STR = 1040
L_P2 = L_X
L_DUMP = L_X + 32768
L_Q = L_X + 64 * X_STR
L_M = L_Q + 8192
L_LS = L_M
L_RSTD = L_M + 4096
L_FLG = L_M + 4608
L_MB = L_M + 5120
L_SL = L_M + 6144
LDS_BYTES = 163840
F_LN2, F_LNA, F_WQ, F_Q, F_KVIS, F_G1, F_D0, F_PZ, F_LN, F_DUTY, F_SLOW, F_AS, F_LNP, F_KVST, F_KVOK, F_TAG = 0, 16, 32, 48, 64, 80, 96, 112, 128, 144, 176, 192, 208, 224, 240, 256
F_WOS, F_WOR, F_WQ0, F_KVS, F_WQI, F_FREE = 272, 288, 304, 320, 336, 352
assert L_SL + 512 <= LDS_BYTES and L_DUMP + 32768 <= L_Q

S_W, S_G, S_J, S_GL = 4, 5, 6, 7
SRD_X, SRD_WS = 8, 12
P_X, P_WQ, P_WK, P_WV, P_WO, P_BX, P_W1, P_W2 = 16, 18, 20, 22, 24, 26, 28, 30
P_OUT, P_DBG, P_WS = 32, 34, 36
S_TA, S_TB = 38, 39
S_TAG = P_BX
SRD_W, SRD_DBG, SRD_A, SRD_B, SRD_C, SRD_OUT = 40, 44, 48, 52, 56, 60
S_STEP, S_SOFF, S_RING, S_FLB = 64, 65, 66, 67
S_C10, S_C01, S_C11 = 68, 69, 70
S_T0, S_T1, S_T2, S_T3, S_T4, S_T5 = 71, 72, 73, 74, 75, 76
S_C = 77
S_EX = 78
S_U = 80
S_HW, S_IT = 88, 89
S_EOK = 25
S_DW = 86
S_STMP = 90
S_ST0 = 92

VK, VV, SA, SB, VO, VQ = 8, 72, 200, 216, 232, 248

out, tail_code = [], []
cur = [out]
def e(s):
    for l in s.split("\n"):
        l = l.strip()
        if l:
            cur[0].append(l if l.endswith(":") or l.startswith(".") else "    " + l)
def note(s):
    cur[0].append("    ; " + s)
class outofline:
    def __enter__(self):
        self.prev, cur[0] = cur[0], []
    def __exit__(self, *a):
        tail_code.extend(cur[0]); cur[0] = self.prev

def vr(a, n=1):
    return f"v{a}" if n == 1 else f"v[{a}:{a+n-1}]"
def sr(a, n=1):
    return f"s{a}" if n == 1 else f"s[{a}:{a+n-1}]"
def mf32(d, a, b, c=None):
    e(f"v_mfma_f32_32x32x16_bf16 {vr(d,16)}, {vr(a,4)}, {vr(b,4)}, {vr(c,16) if c is not None else 0}")
def mf16(d, a, b, c=None):
    e(f"v_mfma_f32_16x16x32_bf16 {vr(d,4)}, {vr(a,4)}, {vr(b,4)}, {vr(c,4) if c is not None else 0}")
def pv(o, v, p, idx):
    e(f"v_smfmac_f32_32x32x32_bf16 {vr(o,16)}, {vr(v,4)}, {vr(p,8)}, v{idx}")
def srd(d, p, n):
    e(f"s_mov_b32 s{d}, s{p}\ns_mov_b32 s{d+1}, s{p+1}\ns_mov_b32 s{d+2}, {hex(n)}\ns_mov_b32 s{d+3}, 0x20000")
def off(n):
    return f" offset:{n}" if n else ""
uid = [0]
def label(p):
    uid[0] += 1
    return f"L_{p}_{uid[0]}"
def stamp(k):
    if OPT["stamps"] and "x" + k in SITES:
        e(f"s_mov_b32 s{S_ST0+SITES.index('x' + k)}, s3")
    if OPT["amp"] == k:
        e(f"s_memrealtime {sr(S_STMP,2)}\ns_waitcnt lgkmcnt(0)\ns_mov_b32 s{S_ST0+8}, s{S_STMP}")
    if OPT["hold"] == k:
        lb = label("hold")
        e(f"{lb}:\ns_memrealtime {sr(S_STMP,2)}\ns_waitcnt lgkmcnt(0)\ns_sub_u32 s{S_STMP}, s{S_STMP}, s{S_ST0+9}\ns_cmp_lt_u32 s{S_STMP}, {OPT['holdT']}\ns_cbranch_scc1 {lb}")
    if OPT["stamps"] and k in SITES:
        e(f"s_mem{'real' if OPT['rt'] else ''}time {sr(S_STMP,2)}\ns_waitcnt lgkmcnt(0)\ns_mov_b32 s{S_ST0+SITES.index(k)}, s{S_STMP}")

class Queue:
    def __init__(self, kind):
        self.kind, self.n, self.tags = kind, 0, {}
    def issue(self, tag=None):
        self.n += 1
        if tag is not None:
            self.tags[tag] = self.n
    def left(self, tag):
        return self.n - self.tags[tag]
    def wait(self, tag):
        e(f"s_waitcnt {self.kind}({min(self.left(tag), 63 if self.kind == 'vmcnt' else 15)})")

def retry(top, sleep, hook=None):
    stub = label("retry")
    e(f"s_cbranch_vccnz {stub}")
    with outofline():
        e(f"{stub}:\ns_sub_u32 s3, s3, 1\ns_cbranch_scc1 L_exit")
        if hook: hook()
        if sleep: e(f"s_sleep {sleep}")
        e(f"s_branch {top}")

def lds_spin(vaddr, offset, vtmp, cmp, ref, sleep=0, prio=None):
    top = label("spin")
    e(f"{top}:\nds_read_b32 v{vtmp}, v{vaddr}{off(offset)}\ns_waitcnt lgkmcnt(0)")
    if prio: e(f"s_setprio {prio[0]}")
    e(f"{cmp} vcc, {ref}, v{vtmp}")
    e(f"s_setprio {prio[1]}" if prio else "s_nop 0")
    retry(top, sleep)

def glb_spin(vaddr, soff, vtmp, sleep=2, prio=None):
    top = label("poll")
    e(f"{top}:\nbuffer_load_dwordx2 {vr(vtmp,2)}, v{vaddr}, {sr(SRD_WS,4)}, {soff} offen sc1\ns_waitcnt vmcnt(0)")
    if prio: e(f"s_setprio {prio[0]}")
    e(f"v_cmp_ne_u64 vcc, {sr(S_TAG,2)}, {vr(vtmp,2)}")
    e(f"s_setprio {prio[1]}" if prio else "s_nop 0")
    retry(top, sleep)

def read_tag(va, vt):
    e(f"""v_mov_b32 v{va}, {L_FLG + F_TAG}
ds_read_b64 {vr(vt,2)}, v{va}
s_waitcnt lgkmcnt(0)
v_readfirstlane_b32 s{S_TAG}, v{vt}
v_readfirstlane_b32 s{S_TAG+1}, v{vt+1}""")

def tr_addr(dst, tmp, half_shift):
    e(f"""v_and_b32 v{dst}, 3, v0
v_lshlrev_b32 v{dst}, 3, v{dst}
v_bfe_u32 v{tmp}, v0, 2, 2
v_lshl_add_u32 v{dst}, v{tmp}, 6, v{dst}
v_bfe_u32 v{tmp}, v0, 4, 1
v_lshl_add_u32 v{dst}, v{tmp}, 5, v{dst}
v_lshrrev_b32 v{tmp}, 5, v0
v_lshl_add_u32 v{dst}, v{tmp}, {half_shift}, v{dst}""")

def dpp_sum(regs):
    for r in (8, 4, 2, 1):
        for a in regs:
            e(f"v_add_f32_dpp v{a}, v{a}, v{a} row_ror:{r} row_mask:0xf bank_mask:0xf")
        if len(regs) < 3 and r != 1:
            e(f"s_nop {2 - len(regs)}")

def ln_centre(X, waits, vwr, A, B, T):
    n = len(X)
    for u in range(n):
        e(f"s_waitcnt vmcnt({waits[u]})")
        if u == 0:
            stamp("xarr" if B is None else "xarrB")
        for i in range(16):
            e(f"v_dot2_f32_bf16 v{A+u}, v{X[u]+i}, s{S_C11}, {'v%d' % (A+u) if i else 0}")
    if n < 4: e(f"s_nop {3 - n}")
    dpp_sum([A + u for u in range(n)])
    for u in range(n):
        e(f"v_mul_f32 v{A+u}, {hex(f2u(-1.0/512))}, v{A+u}")
    for u in range(n):
        for gi in range(4):
            for k in range(4):
                e(f"v_dot2_f32_bf16 v{T+2*k}, v{X[u]+4*gi+k}, s{S_C10}, v{A+u}")
                e(f"v_dot2_f32_bf16 v{T+2*k+1}, v{X[u]+4*gi+k}, s{S_C01}, v{A+u}")
            for k in range(4):
                e(f"v_cvt_pk_bf16_f32 v{X[u]+4*gi+k}, v{T+2*k}, v{T+2*k+1}")
            if gi == 0 and u >= 2:
                e("s_waitcnt lgkmcnt(6)")
            e(f"ds_write_b128 v{vwr+u}, {vr(X[u]+4*gi,4)}{off(gi*16*X_STR)}")
            if B is not None:
                for k in range(4):
                    e(f"v_dot2_f32_bf16 v{B+u}, v{X[u]+4*gi+k}, v{X[u]+4*gi+k}, {'v%d' % (B+u) if gi or k else 0}")
def ln_var(X, B):
    for i in range(16):
        e(f"v_dot2_f32_bf16 v{B}, v{X+i}, v{X+i}, {'v%d' % B if i else 0}")
def ln_stats(n, vst, A, B):
    if n < 4: e(f"s_nop {3 - n}")
    dpp_sum([B + u for u in range(n)])
    for u in range(n):
        e(f"v_mov_b32 v{A+u}, {hex(f2u(1e-5))}\nv_fmac_f32 v{A+u}, {hex(f2u(1.0/512))}, v{B+u}")
    for u in range(n):
        e(f"v_rsq_f32 v{B+u}, v{A+u}")
    e("s_waitcnt lgkmcnt(5)")
    for u in range(n):
        e(f"v_mul_f32 v{A+u}, v{A+u}, v{B+u}")
        e(f"ds_write_b32 v{vst+u}, v{B+u}\nds_write_b32 v{vst+u}, v{A+u} offset:256")

def w1_prefetch(va, vt, vd):
    e(f"""v_lshrrev_b32 v{va}, 5, v0
v_mul_u32_u24 v{va}, 2752, v{va}
v_and_b32 v{vt}, 31, v0
v_min_u32 v{vt}, 22, v{vt}
v_lshl_add_u32 v{va}, v{vt}, 6, v{va}""")
    e(f"""s_lshl_b32 s{S_T0}, s{S_C}, 2
s_add_u32 s{S_T0}, s{S_T0}, s{S_HW}
s_mul_i32 s{S_T0}, s{S_T0}, {4*2752}
s_lshr_b32 s{S_T2}, s{S_J}, 2
s_mul_i32 s{S_T2}, s{S_T2}, {20*64}
s_add_u32 s{S_T0}, s{S_T0}, s{S_T2}
s_add_u32 s{S_T2}, s{S_T0}, {2*2752}
buffer_load_dword v{vd}, v{va}, {sr(SRD_W,4)}, s{S_T0} offen
buffer_load_dword v{vd}, v{va}, {sr(SRD_W,4)}, s{S_T2} offen""")

HDR = open("cdna_kernels/" + NAME + ".s.ref").read().split("\n")
out += [l for l in HDR if l.startswith(";") and "@launch" not in l]
out.append(f"; @launch grid=(256,1,1) block=(512,1,1) lds={LDS_BYTES}")
out += ["; " + l if l else ";" for l in '''
out = x + MQA(LN(x)) + SiLU-FFN(LN(x)) in one launch of 256 co-resident workgroups (one per CU).
Workgroup (g, j): 64 tokens (group g), heads 4j..4j+3, output columns 64j..64j+63.
  waves 0-3: attention; each keeps the K/V fragments of 512 keys in registers and walks 8 q blocks (32 tokens x 1 head).
  waves 4-7: LayerNorm, Q projection, FFN1 + SiLU, FFN2, softmax normalisation, output projection.
Hand-offs through d_ws (write-through stores, L1-bypassing loads):
  K/V (all workgroups) and h (group): payload, drain, then a flag that holds the launch tag published in d_debug.
  O (group): slots are first filled with all-ones words; a fragment is taken once no lane holds that pattern.
P*V uses the sparse MFMA: its indices pick the high (bf16) halves of the fp32 probabilities, so no pack instructions are needed.
Softmax: exp2 of the unshifted scores; every row sum is checked against [2^-32, 2^48] and every O for finiteness before it is
published. A failed check makes the attention waves recompute the workgroup's q blocks with the true row maximum.
'''.strip("\n").split("\n")]
e(f'.amdgcn_target "amdgcn-amd-amdhsa--gfx950"\n.text\n.globl {NAME}_kernel\n.p2align 8\n.type {NAME}_kernel,@function')
e(f"{NAME}_kernel:")

e("s_cmp_ge_u32 s2, 256\ns_cbranch_scc1 L_exit")
DIAG = OPT["stamps"] or OPT["hold"] != -1
if DIAG:
    e(f"s_memrealtime {sr(S_ST0,2)}" if OPT["rt"] or not OPT["stamps"] else f"s_memrealtime {sr(S_ST0+2,2)}\ns_memtime {sr(S_ST0,2)}")
def diag_init():
    if DIAG:
        e(f"s_mov_b32 s{S_ST0+9}, s{S_ST0 + (0 if OPT['rt'] or not OPT['stamps'] else 2)}")
        for k in range(1, 9):
            e(f"s_mov_b32 s{S_ST0+k}, s{S_ST0}")
e(f"""s_load_dwordx16 s[16:31], s[0:1], 0
s_load_dwordx4 s[32:35], s[0:1], 64
s_load_dwordx2 s[36:37], s[0:1], 80
v_lshrrev_b32 v2, 6, v0
v_bfe_u32 v4, v0, 4, 4
s_lshr_b32 s{S_C}, s2, 3
v_readfirstlane_b32 s{S_W}, v2
v_and_b32 v5, 15, v0
v_and_b32 v0, 63, v0""")
if OPT["pf_code"]:
    note("each wave pulls 256 bytes of the kernel's code into L2")
    e(f"""s_getpc_b64 {sr(S_T0+1,2)}
L_pc:
v_lshl_add_u32 v2, s{S_C}, 3, v2
v_and_b32 v3, 3, v0
v_lshl_add_u32 v2, v2, 2, v3
v_lshlrev_b32 v2, 6, v2
v_min_u32 v2, L_code_end-L_pc-4, v2
global_load_dword v247, v2, {sr(S_T0+1,2)}""")
e(f"""s_and_b32 s{S_GL}, s{S_C}, 7
s_bfe_u32 s{S_T0}, s2, 0x20001
s_lshl3_add_u32 s{S_G}, s{S_T0}, s{S_GL}
s_lshr_b32 s{S_T3}, s{S_C}, 3
s_lshl2_add_u32 s{S_SOFF}, s{S_G}, s{S_T3}
s_lshl_b32 s{S_SOFF}, s{S_SOFF}, 14
v_lshlrev_b32 v1, 10, v4
v_lshl_add_u32 v1, v5, 4, v1
s_mov_b32 s{SRD_X+2}, {hex(2048*1024)}
s_mov_b32 s{SRD_A+3}, 0x20000
s_bitcmp1_b32 s2, 0
s_waitcnt lgkmcnt(0)
s_cselect_b64 {sr(SRD_A,2)}, {sr(P_WV,2)}, {sr(P_WK,2)}
s_cmp_lt_u32 s{S_W}, 4
s_cselect_b64 {sr(SRD_A,2)}, {sr(SRD_A,2)}, {sr(P_X,2)}
s_cselect_b32 s{SRD_A+2}, 0x4000, s{SRD_X+2}
s_cselect_b32 s{S_SOFF}, 0, s{S_SOFF}""")
XA = 8
stamp("karg")
for i in range(4):
    e(f"buffer_load_dwordx4 {vr(XA+4*i,4)}, v1, {sr(SRD_A,4)}, s{S_SOFF} offen{off(256*i)}")
stamp("xi")
e(f"s_mov_b64 {sr(SRD_X,2)}, {sr(P_X,2)}\ns_mov_b32 s{SRD_X+3}, 0x20000\ns_cbranch_scc1 L_afront")

V_FLW, V_FLR, V_ONE = 253, 254, 255
V_WR, V_ST = 200, 204
def common_setup():
    srd(SRD_WS, P_WS, WS_SIZE)
    srd(SRD_DBG, P_DBG, 256)
    e(f"""s_and_b32 s{S_T0}, s2, 1
s_lshl2_add_u32 s{S_J}, s{S_T0}, s{S_T3}
s_and_b32 s{S_HW}, s{S_W}, 3
s_mov_b32 s3, 0x40000
s_lshl_b32 s{S_FLB}, s{S_G}, 11
s_add_u32 s{S_FLB}, s{S_FLB}, {hex(WS_FL)}
s_mov_b32 s{S_C10}, 0x00003f80
s_mov_b32 s{S_C01}, 0x3f800000
s_mov_b32 s{S_C11}, 0x3f803f80
v_mul_u32_u24 v2, {X_STR}, v5
v_lshl_add_u32 v2, v4, 4, v2
v_lshlrev_b32 v4, 2, v4
s_lshl2_add_u32 s{S_T0}, s{S_HW}, {L_FLG}
v_mov_b32 v{V_FLW}, s{S_T0}
v_and_b32 v7, 3, v0
v_lshlrev_b32 v{V_FLR}, 2, v7
v_add_u32 v{V_FLR}, {L_FLG}, v{V_FLR}
v_mov_b32 v{V_ONE}, 1""")
def unit_addr(slot, dq):
    e(f"""s_add_u32 s{S_T0}, s{S_T3}, {dq}
s_and_b32 s{S_T0}, s{S_T0}, 3
s_lshl2_add_u32 s{S_U+slot}, s{S_G}, s{S_T0}
s_lshl_b32 s{S_U+slot}, s{S_U+slot}, 14
s_lshl_b32 s{S_T1}, s{S_T0}, 8
s_add_u32 s{S_T1}, s{S_T1}, {L_X}
v_add_u32 v{V_WR+slot}, s{S_T1}, v2
s_lshl_b32 s{S_T1}, s{S_T0}, 6
s_add_u32 s{S_T1}, s{S_T1}, {L_RSTD}
v_add_u32 v{V_ST+slot}, s{S_T1}, v4""")
def unit_loads(X, slot, va=1):
    for i in range(4):
        e(f"buffer_load_dwordx4 {vr(X+4*i,4)}, v{va}, {sr(SRD_X,4)}, s{S_U+slot} offen{off(256*i)}")
def wq_prefetch(va, vt, vd):
    e(f"""v_lshrrev_b32 v{va}, 3, v0
v_lshlrev_b32 v{va}, 10, v{va}
v_and_b32 v{vt}, 7, v0
v_lshl_add_u32 v{va}, v{vt}, 6, v{va}
s_lshl2_add_u32 s{S_T0}, s{S_C}, s{S_HW}
s_lshl_b32 s{S_T0}, s{S_T0}, 12
s_and_b32 s{S_T1}, s{S_J}, 4
s_lshl_b32 s{S_T1}, s{S_T1}, 7
s_add_u32 s{S_T0}, s{S_T0}, s{S_T1}
s_mov_b32 exec_hi, 0
buffer_load_dword v{vd}, v{va}, {sr(SRD_W,4)}, s{S_T0} offen
s_mov_b32 exec_hi, -1""")

V_S0, V_PART, V_TR2, V_LS, V_DW0, V_DW1, V_DR0 = 1, 2, 3, 4, 5, 6, 7
V_DR1, V_OUT, V_TMP, V_L16, V_TB = 248, 249, 250, 251, 252
V_WO, V_TT, V_HF, V_TAG = 60, 5, 62, 64
V_WA, V_TR, V_PF, VXR, V_CS, V_NEG = 72, 74, 75, 76, 92, 100
V_QT, V_QX, V_QRS, V_QW, V_QFL, V_RS, V_X2, V_X3 = 172, 173, 174, 175, 176, 177, 178, 179
S_OB, S_PC, S_XO, S_CLS, S_RET, S_BLK = 16, 20, 22, 24, 0, 2
LA, LT = 216, 220
t0, t1, t2, t3, t4 = 232, 233, 234, 235, 236
e("L_hfront:\ns_setprio 2")
diag_init()
e(f"v_mov_b32 v{t0}, 0\nv_lshlrev_b32 v{t1}, 2, v0\nv_add_u32 v{t1}, {L_FLG}, v{t1}\nds_write2st64_b32 v{t1}, v{t0}, v{t0} offset1:1")
if OPT["b0"]:
    e("s_waitcnt lgkmcnt(0)\ns_barrier")
common_setup()
unit_addr(0, 0)
unit_addr(1, 1)
e(f"""v_mov_b32 v{V_X2}, v1
v_and_b32 v{V_X3}, 0xfff, v1
s_lshl_b32 s{S_T0}, s{S_HW}, 6
v_subrev_u32 v2, s{S_T0}, v2
v_and_b32 v4, 15, v4
s_add_u32 s{S_IT}, s{S_HW}, 1""")
unit_addr(2, f"s{S_IT}")
if OPT["s2"]:
    unit_loads(24, 1, V_X2)
e(f"""s_mul_i32 s{S_T0}, s{S_J}, 6
s_lshl1_add_u32 s{S_T0}, s{S_HW}, s{S_T0}
s_lshl2_add_u32 s{S_T1}, s{S_J}, s{S_HW}
s_add_u32 s{S_T2}, s{S_J}, 22
s_cmp_lt_u32 s{S_HW}, 3
s_cselect_b32 s{S_TA}, s{S_T0}, s{S_T2}
s_cselect_b32 s{S_TB}, 2, 1
s_add_u32 s{S_T2}, s{S_T1}, 11
s_cmp_lt_u32 s{S_T1}, 14
s_cselect_b32 s{S_TA}, s{S_TA}, s{S_T2}
s_cselect_b32 s{S_TB}, s{S_TB}, 1
s_add_u32 s{S_DW}, s{S_HW}, 1
s_and_b32 s{S_DW}, s{S_DW}, 3
s_lshl2_add_u32 s{S_T0}, s{S_DW}, {L_FLG}
v_mov_b32 v{V_FLW}, s{S_T0}
s_lshr_b32 s{S_T5}, s{S_HW}, 1
s_and_b32 s{S_T4}, s{S_HW}, 1
s_mul_i32 s{S_RING}, s{S_HW}, {H_STR}
v_and_b32 v{t0}, 3, v0
v_bfe_u32 v{t1}, v0, 2, 2
v_bfe_u32 v{t2}, v0, 4, 1
v_lshrrev_b32 v{t3}, 5, v0
v_lshrrev_b32 v{t4}, 2, v0
v_lshlrev_b32 v{V_L16}, 4, v0
v_lshlrev_b32 v{V_TR2}, 3, v{t0}
v_lshl_add_u32 v{V_TR2}, v{t1}, 6, v{V_TR2}
v_lshl_add_u32 v{V_TR2}, v{t2}, 5, v{V_TR2}
v_lshl_add_u32 v{V_TR2}, v{t3}, 8, v{V_TR2}
v_lshl_add_u32 v{V_TR}, v{t3}, 8, v{V_TR2}
s_lshl_b32 s{S_T0}, s{S_T4}, 15
v_add_u32 v{V_QT}, s{S_T0}, v{V_TR}
v_add_u32 v{V_TR}, s{S_RING}, v{V_TR}
v_add_u32 v{V_TR2}, s{S_RING}, v{V_TR2}
v_lshlrev_b32 v{t0}, 4, v{t0}
v_lshl_add_u32 v{V_S0}, v{t4}, 10, v{t0}
s_lshl_b32 s{S_T0}, s{S_J}, 7
v_add_u32 v{V_S0}, s{S_T0}, v{V_S0}
v_add_u32 v{V_WO}, 64, v{V_S0}
v_mul_u32_u24 v{V_WA}, 2752, v{t4}
s_lshl_b32 s{S_T0}, s{S_TA}, 6
v_add3_u32 v{V_WA}, v{V_WA}, v{t0}, s{S_T0}
v_lshl_add_u32 v{V_TT}, v{t1}, 6, v{t0}
v_lshl_add_u32 v{V_TT}, v{t2}, 8, v{V_TT}
v_lshl_add_u32 v{V_TT}, v{t3}, 10, v{V_TT}
s_cmp_eq_u32 s{S_T4}, 0
s_cselect_b32 s{S_T0}, {L_DUMP - L_X}, 0
s_add_u32 s{S_T0}, s{S_T0}, {L_X}
v_add_u32 v{V_TT}, s{S_T0}, v{V_TT}
v_lshlrev_b32 v{V_TB}, 9, v{t2}
v_lshl_add_u32 v{V_TB}, v{t3}, 12, v{V_TB}
v_and_b32 v{t0}, 31, v0
v_mul_u32_u24 v{t1}, {X_STR}, v{t3}
v_lshl_add_u32 v{t1}, v{t0}, 4, v{t1}
v_add_u32 v{t1}, {L_X}, v{t1}
v_lshl_add_u32 v{V_QX}, s{S_T5}, 9, v{t1}
v_min_u32 v{V_HF}, 20, v{t0}
v_lshlrev_b32 v{V_HF}, 5, v{V_HF}
v_lshlrev_b32 v{t0}, 2, v{t0}
v_add_u32 v{V_RS}, {L_RSTD}, v{t0}
v_lshl_add_u32 v{V_QRS}, s{S_T5}, 7, v{V_RS}
s_lshl_b32 s{S_T0}, s{S_DW}, 9
s_add_u32 s{S_T0}, s{S_T0}, {L_LS}
v_add_u32 v{V_LS}, s{S_T0}, v{t0}""")
for k in range(8):
    e(f"s_add_u32 s{S_T0}, s{S_GL}, {k}\ns_and_b32 s{S_T0}, s{S_T0}, 7\ns_mul_i32 s{S_T0}, s{S_T0}, {8*X_STR}\nv_add_u32 v{VXR+k}, s{S_T0}, v{t1}")
e(f"""v_and_b32 v{t0}, 15, v0
v_lshrrev_b32 v{t1}, 4, v0
v_min_u32 v{V_QFL}, 11, v{t0}
v_lshlrev_b32 v{V_QFL}, 2, v{V_QFL}
v_add_u32 v{V_QFL}, {L_FLG}, v{V_QFL}
v_lshlrev_b32 v{V_OUT}, 10, v{t0}
v_lshl_add_u32 v{V_OUT}, v{t1}, 4, v{V_OUT}
v_lshl_add_u32 v{t0}, s{S_T5}, 4, v{t0}
v_lshl_add_u32 v{V_TB}, v{t0}, 4, v{V_TB}
v_lshlrev_b32 v{V_DR1}, 4, v{t0}
v_lshl_add_u32 v{V_DR1}, v{t1}, 10, v{V_DR1}
v_lshl_add_u32 v{V_DR1}, s{S_T4}, 12, v{V_DR1}
v_lshl_add_u32 v{V_QW}, s{S_HW}, 11, v{V_L16}
v_add_u32 v{V_QW}, {L_Q}, v{V_QW}
v_lshl_add_u32 v{V_PART}, s{S_DW}, 11, v{V_L16}
v_add_u32 v{V_PART}, {L_P1}, v{V_PART}
v_lshrrev_b32 v{V_PF}, 1, v0
v_lshlrev_b32 v{V_PF}, 10, v{V_PF}
v_and_b32 v{t0}, 1, v0
v_lshl_add_u32 v{V_PF}, v{t0}, 6, v{V_PF}
v_min_u32 v73, 42, v0
v_lshlrev_b32 v73, 6, v73
v_mov_b32 v{V_NEG}, -1
v_mov_b32 v{V_NEG+1}, -1
v_mov_b32 v{V_NEG+2}, -1
v_mov_b32 v{V_NEG+3}, -1
v_mov_b32 v{V_TAG+2}, 0
v_mov_b32 v{V_TAG+3}, {L_FLG + F_TAG}
v_min_u32 v0, 10, v0
v_lshlrev_b32 v0, 6, v0""")
if not OPT["b0"]:
    e("s_waitcnt lgkmcnt(0)\ns_barrier")
stamp("hs0")
if not OPT["s2"]:
    unit_loads(24, 1, V_X2)
stamp("hset")
srd(SRD_W, P_WQ, 512 * 1024)
ln_centre([XA], [4], V_WR, LA, None, LT)
e(f"ds_write_b32 v{V_FLW}, v{V_ONE} offset:{F_LNP}")
stamp("lnA")
e(f"s_bitcmp1_b32 s{S_IT}, 1\ns_cbranch_scc0 L_no3")
unit_loads(40, 2, V_X3)
e("L_no3:")
ln_var(XA, LA + 1)
ln_stats(1, V_ST, LA, LA + 1)
e(f"ds_write_b32 v{V_FLW}, v{V_ONE} offset:{F_LN}\ns_bitcmp1_b32 s{S_IT}, 1\ns_cbranch_scc0 L_ln1")
ln_centre([24], [4], V_WR + 1, LA, LA + 2, LT)
ln_centre([40], [0], V_WR + 2, LA + 1, LA + 3, LT)
ln_stats(2, V_ST + 1, LA, LA + 2)
e("s_branch L_ln2\nL_ln1:")
ln_centre([24], [0], V_WR + 1, LA, LA + 1, LT)
ln_stats(1, V_ST + 1, LA, LA + 1)
e(f"L_ln2:\nds_write_b32 v{V_FLW}, v{V_ONE} offset:{F_LN2}\ns_setprio 0")
stamp("lnB")
e(f"s_cmp_eq_u32 s{S_W}, 7\ns_cbranch_scc0 L_wqdone")
for k in range(32):
    if k == 24:
        e(f"s_waitcnt vmcnt(16)\nds_write_b32 v{V_FLR}, v{V_ONE} offset:{F_WQ0}")
    e(f"s_mov_b32 m0, {k*1024}\ns_mov_b32 s{S_SOFF}, {k*16384}\nbuffer_load_dwordx4 v{V_S0}, {sr(SRD_W,4)}, s{S_SOFF} offen lds")
    e(f"s_mov_b32 m0, {32768 + k*1024}\ns_nop 0\nbuffer_load_dwordx4 v{V_WO}, {sr(SRD_W,4)}, s{S_SOFF} offen lds")
if OPT["m1"] == 2:
    srd(SRD_B, P_W1, 512 * 2752)
    e(f"s_mul_i32 s{S_T0}, s2, 5504\nbuffer_load_dword v247, v73, {sr(SRD_B,4)}, s{S_T0} offen\nbuffer_load_dword v247, v73, {sr(SRD_B,4)}, s{S_T0} offen offset:2752")
e(f"ds_write_b32 v{V_FLR}, v{V_ONE} offset:{F_WQI}\ns_waitcnt vmcnt({2 * (OPT['m1'] == 2)})\nds_write_b32 v{V_FLR}, v{V_ONE} offset:{F_WQ}")
if OPT["m1"] == 4:
    srd(SRD_B, P_W1, 512 * 2752)
    e(f"""s_cmp_lt_u32 s{S_J}, 4
s_cselect_b32 s{S_T0}, 26, 15
s_cselect_b32 s{S_T1}, 0, {27*64}
s_lshl_b32 s{S_T0}, s{S_T0}, 6
v_lshrrev_b32 v246, 9, v{V_L16}
v_mul_u32_u24 v246, 2752, v246
v_and_b32 v245, 0x1f0, v{V_L16}
v_lshlrev_b32 v245, 2, v245
v_min_u32 v245, s{S_T0}, v245
v_add_u32 v246, v246, v245
s_mul_i32 s{S_T0}, s{S_C}, {16*2752}
s_add_u32 s{S_T0}, s{S_T0}, s{S_T1}""")
    for k in range(8):
        e(f"buffer_load_dword v247, v246, {sr(SRD_B,4)}, s{S_T0} offen\ns_add_u32 s{S_T0}, s{S_T0}, {2*2752}")
if OPT["m1"] == 3:
    srd(SRD_B, P_W1, 512 * 2752)
    e(f"s_mul_i32 s{S_T0}, s2, 5504\nbuffer_load_dword v247, v73, {sr(SRD_B,4)}, s{S_T0} offen\nbuffer_load_dword v247, v73, {sr(SRD_B,4)}, s{S_T0} offen offset:2752")
e("L_wqdone:")
QA, QB, QO, QACC = 108, 8, 24, 200
lds_spin(V_FLR, F_WQ0, V_TMP, "v_cmp_ne_u32", 1)
stamp("wq")
for k in range(16):
    if k % 4 == 0 and k:
        e("s_waitcnt lgkmcnt(4)")
    for i in range(2):
        e(f"ds_read_b64_tr_b16 {vr(QA+4*k+2*i,2)}, v{V_QT}{off(k*1024 + i*256)}")
lds_spin(V_QFL, F_LN2, V_TMP, "v_cmp_ne_u32", 1, sleep=1)
e("s_setprio 2")
stamp("ln")
lq = Queue("lgkmcnt")
def q_reads(s):
    if s >= 16:
        for i in range(2):
            e(f"ds_read_b64_tr_b16 {vr(QO+4*(s % 4)+2*i,2)}, v{V_QT}{off(s*1024 + i*256)}")
            lq.issue()
    e(f"ds_read_b128 {vr(QB+4*(s % 4),4)}, v{V_QX}{off(s*2*X_STR)}")
    lq.issue(s)
for s in range(3):
    q_reads(s)
for s in range(32):
    if s + 3 < 32:
        q_reads(s + 3)
    if s < 5:
        e(f"ds_read_b32 v{V_CS+2*s}, v{V_RS}{off(128*s)}" if s < 4 else f"ds_read_b32 v44, v{V_QRS}")
        lq.issue()
    lq.wait(s)
    mf32(QACC, QA + 4 * s if s < 16 else QO + 4 * (s % 4), QB + 4 * (s % 4), QACC if s else None)
    if s == 8:
        e(f"v_mul_f32 v{V_CS}, {hex(f2u(-LOG2E))}, v{V_CS}\nv_mul_f32 v{V_CS+2}, {hex(f2u(-LOG2E))}, v{V_CS+2}")
    if s == 12:
        e(f"v_min_u32 v{V_QFL}, {L_FLG + 28}, v{V_QFL}")
    if s == 9:
        e(f"v_mul_f32 v44, {hex(f2u(0.25*LOG2E))}, v44\nv_mov_b32 v45, v44")
    if s in (10, 11):
        for k in (2 * (s - 10), 2 * (s - 10) + 1):
            e(f"v_mov_b32 v{V_CS+2*k+1}, v{V_CS+2*k}")
srd(SRD_W, P_W1, 512 * 2752)
srd(SRD_B, P_W2, 1376 * 1024)
srd(SRD_C, P_WO, 512 * 1024)
for hl in range(2):
    for k in range(4):
        e(f"v_pk_mul_f32 {vr(QACC+8*hl+2*k,2)}, {vr(QACC+8*hl+2*k,2)}, v[44:45]")
    for k in range(4):
        e(f"v_cvt_pk_bf16_f32 v{8+4*hl+k}, v{QACC+8*hl+2*k}, v{QACC+8*hl+2*k+1}")
    e(f"ds_write_b128 v{V_QW}, {vr(8+4*hl,4)}{off(hl*1024)}")
e(f"ds_write_b32 v{V_FLW}, v{V_ONE} offset:{F_Q}\ns_setprio 0")
stamp("qd")
srd(SRD_OUT, P_OUT, 2048 * 1024)
e(f"""s_lshl_b32 s{S_T0}, s{S_J}, 7
s_lshl_b32 s{S_T1}, s{S_T4}, 6
s_lshl2_add_u32 s{S_T2}, s{S_G}, s{S_T5}
s_lshl_b32 s{S_T2}, s{S_T2}, 14
s_add_u32 s{S_T2}, s{S_T2}, s{S_T0}
s_add_u32 s{S_XO}, s{S_T2}, s{S_T1}
s_add_u32 s{S_XO+1}, s{S_XO}, 32768
s_lshl_b32 s{S_T2}, s{S_G}, 16
s_add_u32 s{S_OB}, s{S_T2}, {hex(WS_O)}
s_add_u32 s{S_OB+1}, s{S_OB}, 8192
s_add_u32 s{S_OB+2}, s{S_OB}, 16384
s_add_u32 s{S_OB+3}, s{S_OB}, 24576
s_lshl2_add_u32 s{S_T2}, s{S_J}, s{S_DW}
s_lshl_b32 s{S_T3}, s{S_T2}, 10
s_add_u32 s{S_PC}, s{S_OB}, s{S_T3}
s_add_u32 s{S_PC+1}, s{S_PC}, 32768
s_add_u32 s{S_FLB}, s{S_FLB}, {FL_H}
s_lshl_b32 s{S_T2}, s{S_TA}, 5
s_add_u32 s{S_U+7}, s{S_T2}, s{S_FLB}
s_mul_i32 s{S_T2}, s{S_G}, {H_GRP}
s_add_u32 s{S_T2}, s{S_T2}, {hex(WS_H)}
s_add_u32 s{SRD_A}, s{P_WS}, s{S_T2}
s_addc_u32 s{SRD_A+1}, s{P_WS+1}, 0
s_mov_b32 s{SRD_A+2}, {H_GRP}
s_mov_b32 s{SRD_A+3}, 0x20000
s_lshl_b32 s{S_U+4}, s{S_TA}, 12
s_add_u32 s{S_U+5}, s{S_U+4}, 4096
s_movk_i32 s{S_CLS}, 0x207
s_mov_b32 s{S_IT}, 0
s_mul_i32 s{S_SOFF}, s{S_GL}, {64*2752}
s_lshl1_add_u32 s{S_T3}, s{S_J}, s{S_GL}
s_and_b32 s{S_T3}, s{S_T3}, 7
s_mul_i32 s{S_T3}, s{S_T3}, 11
s_lshr_b32 s{S_T3}, s{S_T3}, 3
s_mul_i32 s{S_T2}, s{S_HW}, 11
s_add_u32 s{S_T2}, s{S_T2}, 44
s_add_u32 s{S_T3}, s{S_T3}, s{S_T2}
s_lshl_b32 s{S_STEP}, s{S_T3}, 11
s_lshl_b32 s{S_U}, s{S_T2}, 14
s_add_u32 s{S_U+1}, s{S_U}, {11*16384}
s_lshl_b32 s{S_U+2}, s{S_T2}, 11
s_add_u32 s{S_U+3}, s{S_U+2}, {11*2048}
s_mov_b32 s{S_EOK}, 0
s_lshl2_add_u32 s{S_T1}, s{S_GL}, s{S_HW}
s_mul_i32 s{S_T2}, s{S_T1}, {43*1024}
s_add_u32 s{S_T2}, s{S_T2}, s{S_T0}
s_add_u32 s{S_T3}, s{S_T2}, {11*1024}
s_lshl_b32 s{S_T1}, s{S_T1}, 14
s_add_u32 s{S_T1}, s{S_T1}, s{S_T0}""")
lds_spin(V_QFL, F_Q, V_TMP, "v_cmp_ne_u32", 1, sleep=OPT["ksl"], prio=(2, 0))
e(f"ds_read_b64 {vr(V_TAG,2)}, v{V_TAG+3}")
stamp("f1go")

F1A = 184
ACC, F2B, F2A, TA, XR = 8, 200, 232, 72, 240
NE, HE, HD = OPT["ne"], 124, 4
def hreg(s):
    return HE + 8 * s if s < NE else F2B + 8 * ((s - NE) % HD)
def f2_dma(s, q):
    slot = ((s + 2) % 6) * 2048
    if s == 0:
        e(f"s_lshl_b32 s{S_SOFF}, s{S_STEP}, 3")
    if s == 11:
        e(f"s_sub_u32 s{S_U}, s{S_U}, {44*16384}\ns_sub_u32 s{S_U+1}, s{S_U+1}, {44*16384}\ns_sub_u32 s{S_SOFF}, s{S_SOFF}, {44*16384}")
    e(f"s_add_u32 m0, s{S_RING}, {slot}\ns_add_u32 s{S_T4}, s{S_SOFF}, 16384\nbuffer_load_dwordx4 v{V_S0}, {sr(SRD_B,4)}, s{S_SOFF} offen lds")
    e(f"s_add_u32 m0, s{S_RING}, {slot + 1024 - 64}\ns_cmp_ge_u32 s{S_T4}, s{S_U+1}\nbuffer_load_dwordx4 v{V_S0}, {sr(SRD_B,4)}, s{S_SOFF} offen offset:64 lds")
    q.issue(); q.issue(("w2", s))
    e(f"s_cselect_b32 s{S_SOFF}, s{S_U}, s{S_T4}")
def f2_h(s, q):
    for c in range(2):
        e(f"buffer_load_dwordx4 {vr(hreg(s)+4*c,4)}, v{V_L16}, {sr(SRD_A,4)}, s{S_STEP} offen{off(1024*c)} sc1")
        q.issue(("h", s))
    e(f"s_add_u32 s{S_STEP}, s{S_STEP}, 2048\ns_cmp_ge_u32 s{S_STEP}, s{S_U+3}\ns_cselect_b32 s{S_STEP}, s{S_U+2}, s{S_STEP}")
EARLY = f"buffer_load_dwordx2 v[6:7], v{V_HF}, {sr(SRD_WS,4)}, s{S_FLB} offen offset:{22*32} sc1"
FR = [8, 24, 40]
def late_prefetch():
    e(f"""s_mov_b32 exec_hi, 0
buffer_load_dword v63, v{V_PF}, {sr(SRD_C,4)}, s{S_T1} offen
s_mov_b32 exec_hi, -1
buffer_load_dword v63, v{V_PF}, {sr(SRD_B,4)}, s{S_T2} offen
buffer_load_dword v63, v{V_PF}, {sr(SRD_B,4)}, s{S_T3} offen""")
def ffn1(nt):
    vq, lq = Queue("vmcnt"), Queue("lgkmcnt")
    D = 6 if nt == 2 else OPT["d1"]
    def dma(s):
        e(f"s_add_u32 m0, s{S_RING}, {(s % D)*1024*nt}\ns_add_u32 s{S_T4}, s{S_SOFF}, {16*2752}\nbuffer_load_dwordx4 v{V_WA}, {sr(SRD_W,4)}, s{S_SOFF} offen lds")
        vq.issue(("w", s))
        if nt == 2:
            e(f"s_add_u32 m0, s{S_RING}, {(s % D)*2048 + 1024 - 64}\ns_cmp_ge_u32 s{S_T4}, s{SRD_W+2}\nbuffer_load_dwordx4 v{V_WA}, {sr(SRD_W,4)}, s{S_SOFF} offen offset:64 lds")
            vq.issue(("w", s))
        else:
            e(f"s_cmp_ge_u32 s{S_T4}, s{SRD_W+2}")
        e(f"s_cselect_b32 s{S_SOFF}, 0, s{S_T4}")
    NR, NM, G = 2 + 2 * nt, 2 * nt, OPT["g1h"] if nt == 2 else OPT["g1l"]
    def read1(k):
        s, r = divmod(k, NR)
        f = 108 + 16 * (s % 4)
        if r < 2:
            e(f"ds_read_b128 {vr(f+8+4*r,4)}, v{VXR+s//4}{off((s % 4)*2*X_STR + r*512)}")
        else:
            if r == 2:
                vq.wait(("w", s))
            e(f"ds_read_b64_tr_b16 {vr(f+2*(r-2),2)}, v{V_TR}{off((s % D)*1024*nt + ((r-2)//2)*1024 + (r % 2)*256)}")
        lq.issue(("r", s))
    for s in range(D):
        dma(s)
    nr, nd = 0, D
    while nr < (2 if nt == 2 else 3) * NR:
        read1(nr); nr += 1
    for m in range(32 * NM):
        s, u = divmod(m, NM)
        f = 108 + 16 * (s % 4)
        if m % G == 0:
            ls = (min(m + G, 32 * NM) - 1) // NM
            assert nr >= (ls + 1) * NR, (nt, m, nr)
            lq.wait(("r", ls))
            done = (ls + 1) * NR
        mf32(F1A + 16 * u, f + 4 * (u >> 1), f + 8 + 4 * (u & 1), F1A + 16 * u if s else None)
        end = m % G == G - 1
        n = 0
        while nr < 32 * NR and nr // NR - 4 <= (m - NM + 1) // NM and nr - done < 12 and (end or n < 2):
            read1(nr); nr += 1; n += 1
        if end:
            while nd < (38 if nt == 2 else 32) and nd - D <= ls:
                if nd < 32:
                    dma(nd)
                else:
                    f2_dma(nd - 32, vq)
                nd += 1
        if u != NM - 1:
            continue
        stamp(f"s{s}")
        if nt == 2 and s + 1 == OPT["hp1"]:
            e("s_setprio 0")
        if nt == 2 and s == OPT["pf_at"]:
            late_prefetch()
            vq.issue(); vq.issue(); vq.issue()
        if nt == 1 and s == OPT["pf1"]:
            note("slices 4-7 pull w2 and wo from HBM, every line once")
            e(f"""s_cmp_lt_u32 s{S_J}, 4
s_cbranch_scc1 L_nomall
s_lshl2_add_u32 s{S_T0}, s{S_G}, s{S_J}
s_lshl2_add_u32 s{S_T0}, s{S_T0}, s{S_HW}
s_sub_u32 s{S_T0}, s{S_T0}, 16
s_mul_i32 s{S_T5}, s{S_T0}, 2752
buffer_load_dword v63, v73, {sr(SRD_B,4)}, s{S_T5} offen
s_lshl_b32 s{S_T5}, s{S_T0}, 10
s_mov_b64 exec, 0xffff
buffer_load_dword v63, v73, {sr(SRD_C,4)}, s{S_T5} offen
s_mov_b64 exec, -1
L_nomall:""")
    if nt == 2:
        while nd < 38:
            f2_dma(nd - 32, vq); nd += 1
e(f"s_cmp_eq_u32 s{S_TB}, 2\ns_cbranch_scc0 L_f1one")
if OPT["hp1"]:
    e("s_setprio 2")
ffn1(2)
e("L_f1done:")
with outofline():
    e("L_f1one:")
    ffn1(1)
    e("s_branch L_f1done")
stamp("g1")
for k in range(2):
    e(f"buffer_store_dwordx4 {vr(V_NEG,4)}, v{V_L16}, {sr(SRD_WS,4)}, s{S_PC+k} offen sc1")
e(f"ds_write_b32 v{V_FLW}, v{V_ONE} offset:{F_G1}\ns_setprio 2\nv_readfirstlane_b32 s{S_TAG}, v{V_TAG}\nv_readfirstlane_b32 s{S_TAG+1}, v{V_TAG+1}\ns_nop 4")
for ti in range(2):
    e(f"s_cmp_eq_u32 s{S_TB}, 1\ns_cbranch_scc1 L_silu_done" if ti else "s_nop 1")
    for tb in range(2):
        for u in range(2):
            A, T, C, R = F1A + 32 * ti + 16 * tb + 8 * u, 8, V_CS + 2 * tb, 16 + 4 * (4 * ti + 2 * tb + u)
            for k in range(4):
                e(f"v_pk_mul_f32 {vr(T+2*k,2)}, {vr(A+2*k,2)}, {vr(C,2)}")
            for k in range(8):
                e(f"v_exp_f32 v{T+k}, v{T+k}")
            for k in range(4):
                e(f"v_pk_fma_f32 {vr(T+2*k,2)}, {vr(T+2*k,2)}, {vr(C+4,2)}, {vr(C+4,2)}")
            for k in range(8):
                e(f"v_rcp_f32 v{T+k}, v{T+k}")
            for k in range(4):
                e(f"v_pk_mul_f32 {vr(T+2*k,2)}, {vr(T+2*k,2)}, {vr(A+2*k,2)}")
            for k in range(4):
                e(f"v_cvt_pk_bf16_f32 v{R+k}, v{T+2*k}, v{T+2*k+1}")
            e(f"buffer_store_dwordx4 {vr(R,4)}, v{V_L16}, {sr(SRD_A,4)}, s{S_U+4+ti} offen{off(u*2048 + tb*1024)} sc1")
            gi = 4 * ti + 2 * tb + u
            if gi == OPT["eat"]:
                e(EARLY if gi >= 4 else f"s_cmp_eq_u32 s{S_TB}, 1\ns_cbranch_scc1 L_nopoll\n{EARLY}\nL_nopoll:")
            if gi == OPT["eck"]:
                e(f"s_waitcnt vmcnt({OPT['eck'] - OPT['eat']})\nv_cmp_ne_u64 vcc, {sr(S_TAG,2)}, v[6:7]\ns_nop 0\ns_cbranch_vccnz L_noearly\ns_mov_b32 s{S_EOK}, 1")
                for s in range(NE):
                    f2_h(s, Queue("vmcnt"))
                e("L_noearly:")
e("L_silu_done:\ns_setprio 0")
stamp("epi")

PC, RT, RL, OB = 24, 200, 232, 236
def reduce_piece(vp, vl):
    for w in range(4):
        e(f"ds_read_b32 v{RL+w}, v{vl}{off(w*128)}")
    for w in range(4):
        for h in range(2):
            e(f"ds_read_b128 {vr(RT+8*w+4*h,4)}, v{vp}{off(w*8192 + h*1024)}")
def reduce_math(extra):
    e(f"v_add_f32 v{RL}, v{RL}, v{RL+1}\nv_add_f32 v{RL+2}, v{RL+2}, v{RL+3}\nv_add_f32 v{RL}, v{RL}, v{RL+2}\nv_rcp_f32 v{RL+2}, v{RL}")
    e(f"s_waitcnt lgkmcnt({4 + extra})")
    for k in range(4):
        e(f"v_pk_add_f32 {vr(RT+2*k,2)}, {vr(RT+2*k,2)}, {vr(RT+8+2*k,2)}")
    e(f"v_mov_b32 v{RL+3}, v{RL+2}\ns_waitcnt lgkmcnt(0)")
    for k in range(4):
        e(f"v_pk_add_f32 {vr(RT+16+2*k,2)}, {vr(RT+16+2*k,2)}, {vr(RT+24+2*k,2)}")
    for k in range(4):
        e(f"v_pk_add_f32 {vr(RT+2*k,2)}, {vr(RT+2*k,2)}, {vr(RT+16+2*k,2)}")
    for k in range(4):
        e(f"v_pk_mul_f32 {vr(RT+2*k,2)}, {vr(RT+2*k,2)}, {vr(RL+2,2)}")
    for k in range(4):
        e(f"v_cvt_pk_bf16_f32 v{OB+k}, v{RT+2*k}, v{RT+2*k+1}")
duty_code = []
class dutyblock(outofline):
    def __exit__(self, *a):
        duty_code.extend(cur[0]); cur[0] = self.prev
with dutyblock():
    lo, hi = f2u(2.0**-32), f2u(2.0**48)
    e("L_duty:")
    reduce_piece(V_PART, V_LS)
    e(f"""ds_read_b32 v{V_TMP}, v{V_FLR} offset:{F_SLOW}
s_waitcnt lgkmcnt(9)
s_setprio 2
v_max3_u32 v{OB}, v{RL}, v{RL+1}, v{RL+2}
v_max_u32 v{OB}, v{OB}, v{RL+3}
v_cmp_eq_u32 vcc, -1, v{OB}
s_nop 0
s_cbranch_vccnz L_duty_no""")
    reduce_math(1)
    for k in range(4):
        e(f"v_dot2_f32_bf16 v{RL+1}, v{OB+k}, s{S_C11}, {'v%d' % (RL+1) if k else 0}")
    e(f"""v_subrev_u32 v{RL+3}, {hex(lo)}, v{RL}
v_cmp_lt_u32 vcc, {hex(hi-lo)}, v{RL+3}
v_cmp_ne_u32 {sr(S_T0+1,2)}, 0, v{V_TMP}
s_add_u32 s{S_IT}, s{S_IT}, 1
v_cmp_class_f32 {sr(S_EX,2)}, v{RL+1}, s{S_CLS}
s_or_b64 vcc, vcc, {sr(S_T0+1,2)}
s_nop 0
s_or_b64 vcc, vcc, {sr(S_EX,2)}""")
    if OPT["force_slow"]:
        e(f"s_cmp_eq_u32 s{S_IT}, {OPT['force_slow']}\ns_cselect_b64 vcc, -1, vcc")
    e(f"""s_cbranch_vccnz L_duty_bad
buffer_store_dwordx4 {vr(OB,4)}, v{V_L16}, {sr(SRD_WS,4)}, s{S_PC} offen sc1
v_mov_b32 v{V_TMP}, s{S_IT}
s_mov_b32 s{S_BLK}, 9
s_mov_b64 exec, 1
ds_max_u32 v{V_FLW}, v{V_TMP} offset:{F_DUTY}
s_mov_b64 exec, -1
L_duty_next:
ds_write_b32 v{V_FLW}, v{V_ONE} offset:{F_FREE}
v_add_u32 v{V_LS}, 2048, v{V_LS}
s_mov_b32 s{S_PC}, s{S_PC+1}
s_setprio 0
L_duty_ret:
s_setpc_b64 {sr(S_RET,2)}
L_duty_no:
s_setprio 0
s_waitcnt lgkmcnt(0)
s_cmp_eq_u32 s{S_BLK}, 0
s_cbranch_scc1 L_duty_ret
s_sub_u32 s3, s3, 1
s_cbranch_scc1 L_exit
s_cmp_eq_u32 s{S_BLK}, 1
s_cbranch_scc1 L_duty
s_sleep 6
s_branch L_duty
L_duty_bad:
ds_write_b32 v{V_FLR}, v{V_ONE} offset:{F_SLOW}
s_branch L_duty_next""")
def shifted(line):
    line = re.sub(r"v\[(\d+):(\d+)\]", lambda m: f"v[{int(m.group(1))-40}:{int(m.group(2))-40}]" if 200 <= int(m.group(1)) < 240 else m.group(0), line)
    line = re.sub(r"\bv(\d+)\b", lambda m: f"v{int(m.group(1))-40}" if 200 <= int(m.group(1)) < 240 else m.group(0), line)
    return line.replace("L_duty", "L_dutyb")
if OPT["mid"]:
    tail_code.extend(shifted(l) for l in duty_code)
def duty(upto, mode, copy=""):
    skip = label("noduty")
    e(f"s_lshl_b32 s{S_T0}, s{S_IT}, 2\ns_add_u32 s{S_T0}, s{S_T0}, s{S_DW}\ns_mov_b32 s{S_BLK}, {mode}\ns_cmp_lt_u32 s{S_T0}, {upto}\ns_cbranch_scc0 {skip}")
    e(f"s_call_b64 {sr(S_RET,2)}, L_duty{copy}\n{skip}:")

vq, lq = Queue("vmcnt"), Queue("lgkmcnt")
hflag = f"s_mov_b64 exec, 1\nbuffer_store_dwordx2 {vr(V_TAG,2)}, v{V_TAG+2}, {sr(SRD_WS,4)}, s{S_U+7} offen sc1\ns_mov_b64 exec, -1"
e(f"s_waitcnt vmcnt(4)\nds_write_b32 v{V_FLW}, v{V_ONE} offset:{F_PZ}\ns_cmp_eq_u32 s{S_EOK}, 1\ns_cbranch_scc0 L_f2late")
duty(4, 0)
for s in range(6):
    vq.issue(("w2", s))
for s in range(NE):
    vq.issue(("h", s))
for s in range(NE, NE + HD):
    f2_h(s, vq)
e(f"s_waitcnt vmcnt({2*HD+1})\ns_cmp_eq_u32 s{S_BLK}, 9\ns_cbranch_scc1 L_hdrained\ns_waitcnt vmcnt({2*HD})\nL_hdrained:\n{hflag}")
stamp("hfl")
e("L_f2go:")
with outofline():
    q = Queue("vmcnt")
    e(f"L_f2late:\ns_waitcnt vmcnt(0)\n{hflag}")
    stamp("hfl")
    e(f"s_cmp_eq_u32 s{S_TB}, 2\ns_cbranch_scc1 L_f2pre")
    late_prefetch()
    if OPT["dfirst"]:
        duty(4, 0)
    e("s_waitcnt vmcnt(1)" if OPT["dfirst"] else "s_waitcnt vmcnt(0)")
    if OPT["sfirst"]:
        e(f"s_lshl2_add_u32 s{S_T0}, s{S_J}, s{S_HW}\ns_and_b32 s{S_T0}, s{S_T0}, 19\ns_cmp_eq_u32 s{S_T0}, 19\ns_cbranch_scc0 L_nostage\ns_call_b64 {sr(S_RET,2)}, L_stage\nL_nostage:")
    for s in range(6):
        f2_dma(s, q)
    e("L_f2pre:")
    duty(4, 0)
    e(f"L_epoll:\n{EARLY}\ns_waitcnt vmcnt(0)\ns_setprio 2\nv_cmp_ne_u64 vcc, {sr(S_TAG,2)}, v[6:7]\ns_setprio 0")
    retry("L_epoll", OPT["hsl"])
    for s in range(NE + HD):
        f2_h(s, q)
    if OPT["gw"]:
        lds_spin(V_FLR, F_G1, V_TMP, "v_cmp_ne_u32", 1, sleep=2, prio=(2, 0))
    e(f"s_waitcnt vmcnt({2*HD})\ns_cmp_eq_u32 s{S_HW}, 3\ns_cbranch_scc0 L_f2go")
    if OPT["sfirst"]:
        e(f"s_cmp_lt_u32 s{S_J}, 4\ns_cbranch_scc0 L_f2go")
    e(f"s_call_b64 {sr(S_RET,2)}, L_stage\ns_branch L_f2go")
    e("L_stage:")
    lds_spin(V_FLR, F_G1, V_TMP, "v_cmp_ne_u32", 1, sleep=2, prio=(2, OPT["sp"]))
    for u in range(16):
        hh, s_ = divmod(u, 4)
        for p in range(2):
            e(f"s_mov_b32 m0, {L_DUMP + u*2048 + p*1024}\ns_mov_b32 s{S_T5}, {(8*s_ + 4*p + hh)*16384}\nbuffer_load_dwordx4 v{V_S0}, {sr(SRD_C,4)}, s{S_T5} offen lds")
            e(f"s_mov_b32 m0, {L_X + u*2048 + p*1024}\ns_waitcnt vmcnt(40)\nbuffer_load_dwordx4 v{V_WO}, {sr(SRD_C,4)}, s{S_T5} offen lds")
    e(f"s_waitcnt vmcnt(0)\nds_write_b32 v{V_FLR}, v{V_ONE} offset:{F_WOS}\ns_setprio 0\ns_setpc_b64 {sr(S_RET,2)}")
stamp("hok")
def f2_read1(k):
    s, c, i = k // 4, (k // 2) % 2, k % 2
    if k % 4 == 0:
        vq.wait(("w2", s))
    e(f"ds_read_b64_tr_b16 {vr(F2A+8*(s % 2)+4*c+2*i,2)}, v{V_TR2}{off(((s + 2) % 6)*2048 + c*1024 + i*512)}")
    lq.issue(("r", s, c))
def wo_read1(k):
    u, ee, i = k // 4, (k // 2) % 2, k % 2
    e(f"ds_read_b64_tr_b16 {vr(TA+8*u+4*ee+2*i,2)}, v{V_TT}{off(u*2048 + i*512 + ee*8)}")
    lq.issue()
    if k == 63:
        e(f"s_waitcnt lgkmcnt(8)\nds_write_b32 v{V_FLW}, v{V_ONE} offset:{F_WOR}")
        lq.issue()
G, nr, nh, nd, nw, late, wos, mid = OPT["g2"], 0, NE + HD, 6, 0, 0, 0, not OPT["mid"]
while nr < 8:
    f2_read1(nr); nr += 1
NM2 = 80 if OPT["stag"] else 88
for m in range(NM2):
    s, u = divmod(m, 4)
    c, tb = u >> 1, u & 1
    if m % G == 0:
        last = min(m + G, NM2) - 1
        ls, lc = last // 4, (last % 4) >> 1
        e(f"s_waitcnt vmcnt({min(63, vq.left(('h', ls)))}) lgkmcnt({min(lq.left(('r', ls, lc)), 7)})")
    mf32(ACC + 16 * c + 32 * tb, F2A + 8 * (s % 2) + 4 * c, hreg(s) + 4 * tb, ACC + 16 * c + 32 * tb if s else None)
    if m == OPT["ow"]:
        note("the four workgroups of a die pull the O fragments of q blocks 0-5 into L2")
        e(f"""s_and_b32 s{S_T0}, s{S_HW}, 1
s_mul_i32 s{S_T0}, s{S_T0}, 3
s_and_b32 s{S_T5}, s{S_J}, 3
s_lshl2_add_u32 s{S_T5}, s{S_T5}, s{S_HW}
s_lshr_b32 s{S_T5}, s{S_T5}, 1
s_lshl_b32 s{S_T5}, s{S_T5}, 12
s_add_u32 s{S_T5}, s{S_T5}, s{S_OB}
s_setprio 2
v_lshrrev_b32 v6, 8, v{V_L16}
v_add_u32 v6, s{S_T0}, v6
v_lshrrev_b32 v7, 2, v6
v_mul_u32_u24 v7, 28, v7
v_add_lshl_u32 v6, v6, v7, 8
v_and_b32 v7, 0xf0, v{V_L16}
v_add_lshl_u32 v6, v6, v7, 2
s_setprio 0
s_mov_b32 exec_hi, 0xffff
buffer_load_dword v0, v6, {sr(SRD_WS,4)}, s{S_T5} offen sc1
s_mov_b32 exec_hi, -1""")
        vq.issue()
    end = m % G == G - 1 or m == NM2 - 1
    n = 0
    while nr < 88 and nr // 2 - 4 <= (m - 1) // 2 and (end or n < 2) and (end or nr % 4):
        f2_read1(nr); nr += 1; n += 1
    while wos and nw < (64 if mid else 44) and n < (2 if not end else 3) and (TA + 2 * nw + 1 < HE or (TA + 2 * nw + 1 - HE) // 8 <= (m - 3) // 4 or (m - 3) // 4 >= NE - 1):
        wo_read1(nw); nw += 1; n += 1
    if end:
        if not wos and s >= OPT["wat"]:
            lds_spin(V_FLR, F_WOS, V_TMP, "v_cmp_ne_u32", 1, sleep=2, prio=(2, 0))
            wos = 1
        if not late and s >= 7 - OPT["lp"]:
            e(f"buffer_load_dwordx2 v[6:7], v0, {sr(SRD_WS,4)}, s{S_FLB} offen sc1")
            vq.issue("late"); late = 1
        while nh < 22 and nh - HD <= (m - 3) // 4:
            if nh == 11:
                vq.wait("late")
                e(f"s_setprio 2\nv_cmp_ne_u64 vcc, {sr(S_TAG,2)}, v[6:7]\ns_setprio 0\ns_cbranch_vccnz L_lslow\nL_lok:")
                with outofline():
                    e("L_lslow:")
                    glb_spin(0, f"s{S_FLB}", 6, sleep=OPT["hsl"], prio=(2, 0))
                    e("s_branch L_lok")
                stamp("lok")
                e(f"s_sub_u32 s{S_U+2}, s{S_U+2}, {44*2048}\ns_sub_u32 s{S_U+3}, s{S_U+3}, {44*2048}\ns_sub_u32 s{S_STEP}, s{S_STEP}, {44*2048}")
            f2_h(nh, vq); nh += 1
        while nd < 22 and nd - 6 <= (m - 2) // 4:
            f2_dma(nd, vq); nd += 1
        if not mid and m >= OPT["mid"]:
            e("s_waitcnt lgkmcnt(0)")
            duty(7, 0, "b")
            mid = 1
while nw < 64:
    if nw % 8 == 0:
        e("s_waitcnt lgkmcnt(4)")
    wo_read1(nw); nw += 1
e("s_waitcnt lgkmcnt(0)")
stamp("f2")

SLOT = [0, 1, 2, 0, 1, 2, 0, 1]
def piece_loads(t):
    for s_ in range(4):
        e(f"buffer_load_dwordx4 {vr(PC+16*SLOT[t]+4*s_,4)}, v{V_TB}, {sr(SRD_WS,4)}, s{(S_OB, S_U)[t // 4]+s_} offen{off((t % 4)*1024)} sc1")
def wait_duty(mask, sleep):
    top = label("wd")
    e(f"""{top}:
ds_read_b32 v{RL}, v{V_FLR} offset:{F_DUTY}
ds_read_b32 v{RL+1}, v{V_FLR} offset:{F_SLOW}
s_waitcnt lgkmcnt(0)
s_setprio 2
v_lshl_or_b32 v{RL}, v{RL+1}, 1, v{RL}
v_cmp_gt_u32 vcc, 2, v{RL}
s_setprio 0
s_nop 0
s_mov_b32 s{S_T5}, vcc_lo
s_and_b64 vcc, vcc, {mask}""")
    if mask:
        retry(top, sleep)
def consume(t, younger, sleep):
    chk, again = label("chk"), label("again")
    if t == 7 and OPT["inl"]:
        e(f"s_branch {chk}\n{again}:\ns_sub_u32 s3, s3, 1\ns_cbranch_scc1 L_exit")
        piece_loads(t)
    e(f"{chk}:")
    for n in range(4):
        d = PC + 16 * SLOT[t] + 4 * n
        e(f"s_waitcnt vmcnt({younger + 3 - n})")
        if n == 0: e("s_setprio 2")
        e(f"v_max3_u32 v{V_TMP}, v{d}, v{d+3}, v{V_TMP}" if n else f"v_max_u32 v{V_TMP}, v{d}, v{d+3}")
    e(f"v_cmp_eq_u32 vcc, -1, v{V_TMP}\ns_setprio 0\ns_cbranch_vccnz {again}")
    with outofline():
      if not (t == 7 and OPT["inl"]):
        e(f"{again}:\ns_sub_u32 s3, s3, 1\ns_cbranch_scc1 L_exit")
        if sleep:
            e(f"s_sleep {sleep}")
        piece_loads(t)
        if younger:
            e("s_waitcnt vmcnt(0)")
        e(f"s_branch {chk}")
    for s_ in range(4):
        for ee in range(2):
            c = ACC + 8 * (t // 4) + 4 * ee
            mf16(c, TA + 32 * (t % 4) + 8 * s_ + 4 * ee, PC + 16 * SLOT[t] + 4 * s_, c)
def store_out(tb):
    e("s_nop 5\ns_setprio 2")
    for k in range(4):
        e(f"v_cvt_pk_bf16_f32 v{XR+4*tb+k}, v{ACC+8*tb+2*k}, v{ACC+8*tb+2*k+1}")
    e(f"buffer_store_dwordx4 {vr(XR+4*tb,4)}, v{V_OUT}, {sr(SRD_OUT,4)}, s{S_XO+tb} offen{' sc1' if OPT['osc'] >> tb & 1 else ''}")

if not OPT["stag"]:
    duty(4, 2)
    duty(7, 0)
stamp("dty")
e(f"s_lshl_b32 s{S_T0}, s{S_HW}, 13\ns_add_u32 s{S_T0}, s{S_T0}, {L_DUMP}\ns_setprio 2\nv_add_u32 v{V_DW0}, s{S_T0}, v{V_L16}\nv_add_u32 v{V_DR0}, {L_DUMP}, v{V_DR1}\nv_add_u32 v{V_DW1}, s{S_RING}, v{V_L16}")
lds_spin(V_FLR, F_WOR, V_TMP, "v_cmp_ne_u32", 1, sleep=1, prio=(2, 0))
def dump(tb, ct, lo=0, hi=4):
    for a in range(lo, hi):
        e(f"ds_write_b128 v{(V_DW0, V_DW1)[tb]}, {vr(ACC+32*tb+16*ct+4*a,4)}{off(ct*4096 + a*1024)}")
xl = [f"buffer_load_dwordx4 {vr(XR+4*tb,4)}, v{V_OUT}, {sr(SRD_X,4)}, s{S_XO+tb} offen" for tb in range(2)]
if OPT["stag"]:
    assert nr == 88 and nh == 22 and nw == 64
    e("s_waitcnt vmcnt(0)")
    def last2(ct, tb):
        for s in (20, 21):
            mf32(ACC + 16 * ct + 32 * tb, F2A + 8 * (s % 2) + 4 * ct, hreg(s) + 4 * tb, ACC + 16 * ct + 32 * tb)
    last2(0, 0); last2(1, 0)
    e("s_nop 9")
    dump(0, 0); last2(0, 1)
    dump(0, 1); last2(1, 1)
    e("\n".join(xl) + "\ns_waitcnt lgkmcnt(6)\ns_nop 2")
    dump(1, 0)
    e("s_nop 1")
    dump(1, 1)
else:
    e("\n".join(xl))
    for tb in range(2):
        if tb:
            e("s_waitcnt lgkmcnt(6)")
        for ct in range(2):
            dump(tb, ct)
e(f"ds_write_b32 v{V_FLW}, v{V_ONE} offset:{F_D0}\ns_waitcnt lgkmcnt(0)")
stamp("dmp")
for k in range(4):
    e(f"s_add_u32 s{S_U+k}, s{S_OB+k}, 32768")
for t in range(3):
    piece_loads(t)
if OPT["stag"]:
    duty(4, 2)
    duty(7, 0)
lds_spin(V_FLR, F_D0, RL, "v_cmp_ne_u32", 1, sleep=1, prio=(2, 0))
def exchange_sum(tb):
    for w in range(4):
        for h in range(2):
            e(f"ds_read_b128 {vr(RT+8*w+4*h,4)}, v{(V_DR0, V_DR1)[tb]}{off(w*(8192, H_STR)[tb] + h*512)}")
    e("s_waitcnt vmcnt(12) lgkmcnt(4)\ns_setprio 2")
    for k in range(4):
        e(f"v_pk_add_f32 {vr(RT+2*k,2)}, {vr(RT+2*k,2)}, {vr(RT+8+2*k,2)}")
    e("s_waitcnt lgkmcnt(0)")
    for k in range(4):
        e(f"v_pk_add_f32 {vr(RT+16+2*k,2)}, {vr(RT+16+2*k,2)}, {vr(RT+24+2*k,2)}")
    for k in range(4):
        e(f"v_pk_add_f32 {vr(RT+2*k,2)}, {vr(RT+2*k,2)}, {vr(RT+16+2*k,2)}")
    for k in range(4):
        e(f"v_dot2_f32_bf16 v{ACC+8*tb+2*k}, v{XR+4*tb+k}, s{S_C10}, v{RT+2*k}")
        e(f"v_dot2_f32_bf16 v{ACC+8*tb+2*k+1}, v{XR+4*tb+k}, s{S_C01}, v{RT+2*k+1}")
    e("s_setprio 0")
exchange_sum(0)
stamp("d0")
wait_duty(0, 0)
e(f"s_and_b32 s{S_T0}, s{S_T5}, 7\ns_cbranch_scc1 L_early")
def check_ops(t):
    d = PC + 16 * SLOT[t]
    return [f"v_max3_u32 v{V_TMP}, v{d}, v{d+3}, v{d+4}", f"v_max3_u32 v{V_TMP}, v{d+7}, v{d+8}, v{V_TMP}",
            f"v_max3_u32 v{V_TMP}, v{d+11}, v{d+12}, v{V_TMP}", f"v_max_u32 v{V_TMP}, v{d+15}, v{V_TMP}", f"v_cmp_eq_u32 vcc, -1, v{V_TMP}"]
def check_end(t):
    ok, again = label("ok"), label("again")
    e(f"s_cbranch_vccnz {again}\n{ok}:")
    with outofline():
        e(f"{again}:\ns_sub_u32 s3, s3, 1\ns_cbranch_scc1 L_exit")
        piece_loads(t)
        e("s_waitcnt vmcnt(0)\n" + "\n".join(check_ops(t)) + f"\ns_nop 0\ns_cbranch_vccnz {again}\ns_branch {ok}")
def fused(t, nxt, younger, reload):
    ops = check_ops(nxt) if nxt is not None else []
    for k in range(8):
        s_, ee = divmod(k, 2)
        c = ACC + 8 * (t // 4) + 4 * ee
        mf16(c, TA + 32 * (t % 4) + 8 * s_ + 4 * ee, PC + 16 * SLOT[t] + 4 * s_, c)
        if ee and reload is not None:
            e(f"buffer_load_dwordx4 {vr(PC+16*SLOT[reload]+4*s_,4)}, v{V_TB}, {sr(SRD_WS,4)}, s{(S_OB, S_U)[reload // 4]+s_} offen{off((reload % 4)*1024)} sc1")
        if k == 4 and ops:
            e(f"s_waitcnt vmcnt({younger + (2 if reload is not None else 0)})\n{ops[0]}\n{ops[1]}")
        if k == 6 and ops:
            e("\n".join(ops[2:]))
    if ops:
        check_end(nxt)
if OPT["fuse"]:
    e("s_setprio 2\ns_waitcnt vmcnt(8)\n" + "\n".join(check_ops(0)) + "\ns_nop 0")
    check_end(0)
    fused(0, 1, 4, 3)
    fused(1, 2, 4, 4)
    fused(2, 3, 4, 5)
    wait_duty(0, 0)
    e("s_setprio 2")
    fused(3, None, 0, 6)
    store_out(0)
    stamp("tb0")
    e(f"s_bitcmp1_b32 s{S_T5}, 3\ns_cbranch_scc1 L_mid")
    exchange_sum(1)
    e("s_setprio 2\ns_waitcnt vmcnt(9)\n" + "\n".join(check_ops(4)) + "\ns_nop 0")
    check_end(4)
    fused(4, 5, 5, 7)
    stamp("l7")
    fused(5, 6, 5, None)
    fused(6, None, 0, None)
else:
    consume(0, 8, 0)
    piece_loads(3)
    consume(1, 8, 0)
    piece_loads(4)
    consume(2, 8, 0)
    piece_loads(5)
    wait_duty(0, 0)
    consume(3, 8, 0)
    piece_loads(6)
    store_out(0)
    stamp("tb0")
    e(f"s_bitcmp1_b32 s{S_T5}, 3\ns_cbranch_scc1 L_mid")
    exchange_sum(1)
    consume(4, 9, 0)
    piece_loads(7)
    stamp("l7")
    consume(5, 9, 0)
    consume(6, 5, 0)
e("L_last:")
consume(7, 0, 0)
with outofline():
    e(f"L_early:\ns_bitcmp1_b32 s{S_T5}, s{S_DW}\ns_cselect_b32 s{S_IT}, s{S_IT}, 2")
    duty(7, 2 if OPT["eblk"] == 2 else 0)
    consume(0, 8, OPT["csl"])
    piece_loads(3)
    consume(1, 8, OPT["csl"])
    if OPT["eblk"] == 1:
        duty(7, 0)
    consume(2, 4, OPT["csl"])
    wait_duty(0, 0)
    e(f"s_bitcmp1_b32 s{S_T5}, s{S_DW}\ns_cselect_b32 s{S_IT}, s{S_IT}, 2")
    consume(3, 0, OPT["csl"])
    store_out(0)
    e("s_setprio 0")
    stamp("tb0")
    duty(7, 2)
    wait_duty(7, 4)
    piece_loads(4)
    piece_loads(5)
    wait_duty(8, OPT["w8sl"])
    piece_loads(6)
    e("s_branch L_mid2\nL_mid:\ns_setprio 0")
    wait_duty(8, OPT["w8sl"])
    e("L_mid2:")
    stamp("w8")
    exchange_sum(1)
    consume(4, 8, 0)
    consume(5, 4, 0)
    consume(6, 0, 0)
    piece_loads(7)
    stamp("l7")
    e("s_branch L_last")
stamp("fbar")
store_out(1)
e("s_branch L_fin" if OPT["stamps"] or OPT["hold"] != -1 else "s_endpgm")

S_KO = 48
def a_setup():
    e(f"""v_lshlrev_b32 v1, 4, v0
v_and_b32 v4, 15, v0
v_lshlrev_b32 v4, 4, v4
v_lshrrev_b32 v6, 5, v0
v_lshl_add_u32 v4, v6, 8, v4
v_bfe_u32 v6, v0, 4, 1
v_lshl_add_u32 v2, v6, 9, v4
s_lshl_b32 s{S_T2}, s{S_W}, 13
s_add_u32 s{S_T2}, s{S_T2}, {L_P1}
v_add_u32 v5, s{S_T2}, v1
v_and_b32 v6, 31, v0
s_lshl_b32 s{S_T2}, s{S_W}, 7
s_add_u32 s{S_T2}, s{S_T2}, {L_LS}
v_lshl_add_u32 v6, v6, 2, s{S_T2}
v_mov_b32 v7, v{V_FLR}
v_add_u32 v252, {L_Q}, v1
s_lshl_b32 s{S_T0}, s{S_W}, 15
s_mov_b32 s{S_EX}, 0x0000ffff
s_mov_b32 s{S_EX+1}, 0x0000ffff
s_lshl_b32 s{S_T2}, s{S_W}, 11
s_add_u32 s{S_XO}, s{S_T2}, {L_P1}
s_mul_i32 s{S_T2}, s{S_W}, 384
s_add_u32 s{S_XO+1}, s{S_T2}, 2048
s_lshl4_add_u32 s{S_T2}, s{S_G}, s{S_J}
s_lshl2_add_u32 s{S_T2}, s{S_T2}, s{S_W}
s_lshl_b32 s{S_T2}, s{S_T2}, 10
s_add_u32 s{S_PC}, s{S_T2}, {hex(WS_O)}
s_add_u32 s{S_PC+1}, s{S_PC}, 32768
s_movk_i32 s{S_CLS}, 0x207
s_mov_b32 s{S_TA}, 0x07060302""")
    for b in range(16):
        e(f"s_add_u32 s{S_T2}, s{S_C}, {b}\ns_and_b32 s{S_T2}, s{S_T2}, 15\ns_lshl_b32 s{S_T2}, s{S_T2}, 11\ns_add_u32 s{S_KO+b}, s{S_T2}, s{S_T0}")
e(".p2align 6\nL_afront:")
diag_init()
stamp("karg")
e("s_barrier")
common_setup()
e(f"""v_lshlrev_b32 v3, 4, v0
v_mov_b32 v48, -1
v_mov_b32 v49, -1
v_mov_b32 v50, -1
v_mov_b32 v51, -1
s_lshl_b32 s{S_T0}, s{S_W}, 10
s_add_u32 s{S_T0}, s{S_T0}, {L_LS}
v_add_u32 v6, s{S_T0}, v3
ds_write_b128 v6, v[48:51]
v_mov_b32 v52, 0""")
if not OPT["eb"]:
    e(f"v_lshlrev_b32 v6, 2, v0\nv_add_u32 v6, {L_FLG}, v6\nds_write2st64_b32 v6, v52, v52 offset1:1")
unit_addr(0, 2)
unit_addr(1, 3)
def wkv_copy():
    e(f"v_add_u32 v40, {L_WKV}, v1")
    for i in range(4):
        e(f"s_waitcnt vmcnt({3 - i})\nds_write_b128 v40, {vr(XA+4*i,4)}{off(256*i)}")
    e(f"ds_write_b32 v{V_FLW}, v{V_ONE} offset:{F_KVST}")
e(f"s_cmp_eq_u32 s{S_W}, 0\ns_cbranch_scc1 L_kv")
if OPT["wc"] == 0:
    wkv_copy()
def v_init():
    e(f"""v_mov_b32 v42, 0
s_mov_b32 exec_lo, 0x00110000
s_mov_b32 exec_hi, 0x00110000
v_mov_b32 v42, s{S_C11}
s_mov_b64 exec, -1
v_mov_b32 v43, v42""")
    for i in range(0, 128, 2):
        e(f"v_mov_b64 {vr(VV+i,2)}, v[42:43]")
if OPT["bal"] == 2:
    e(f"v_and_b32 v227, 0xfff, v1\ns_lshl_b32 s{S_T0}, s{S_W}, 6\nv_subrev_u32 v2, s{S_T0}, v2\nv_and_b32 v4, 15, v4\ns_add_u32 s{S_T5}, s{S_W}, 1\ns_min_u32 s{S_T5}, s{S_T5}, 3")
    unit_addr(2, f"s{S_T5}")
v_init()
if OPT["wc"] == 1:
    wkv_copy()
e(f"""s_lshl_b32 s{S_T0}, s{S_W}, 3
s_xor_b32 s{S_T0}, s{S_T0}, 8
s_or_b32 s{S_T0}, s{S_T0}, s2
s_cmp_lt_u32 s{S_T0}, 8
s_cbranch_scc0 L_notag
s_memrealtime {sr(S_T0+1,2)}
v_mov_b32 v46, 0
v_mov_b32 v47, 0
s_waitcnt lgkmcnt(0)
s_or_b32 s{S_T0+1}, s{S_T0+1}, 1
v_mov_b32 v44, s{S_T0+1}
v_mov_b32 v45, s{S_T0+2}
s_mov_b64 exec, 1
buffer_atomic_cmpswap_x2 v[44:47], v46, {sr(SRD_DBG,4)}, 0 offen sc1
s_mov_b64 exec, -1
L_notag:""")
e("v_mov_b32 v226, v1")
a_setup()
srd(SRD_W, P_WQ, 512 * 1024)
e(f"""v_lshrrev_b32 v224, 3, v0
v_lshlrev_b32 v224, 10, v224
v_and_b32 v225, 7, v0
v_lshl_add_u32 v224, v225, 6, v224
s_lshl1_add_u32 s{S_T0}, s{S_C}, s{S_W}
s_sub_u32 s{S_T0}, s{S_T0}, 2
s_lshl_b32 s{S_T0}, s{S_T0}, 13
s_and_b32 s{S_T1}, s{S_J}, 4
s_lshl_b32 s{S_T1}, s{S_T1}, 7
s_add_u32 s{S_T0}, s{S_T0}, s{S_T1}
s_cmp_eq_u32 s{S_W}, 1
s_cselect_b32 s{S_T0}, 0x1000000, s{S_T0}""")
stamp("aset")
if not OPT["eb"]:
    e("s_waitcnt lgkmcnt(0)\ns_barrier")
if OPT["pf_wq"] == 4:
    e(f"buffer_load_dword v225, v224, {sr(SRD_W,4)}, s{S_T0} offen")
unit_loads(8, 0, 226)
if OPT["pf_wq"] == 5:
    e(f"buffer_load_dword v225, v224, {sr(SRD_W,4)}, s{S_T0} offen")
unit_loads(24, 1, 226)
if OPT["bal"] == 2:
    unit_loads(40, 2, 227)
if OPT["pf_wq"] == 1:
    e(f"buffer_load_dword v225, v224, {sr(SRD_W,4)}, s{S_T0} offen")
if OPT["m1"] == 1:
    srd(SRD_W, P_W1, 512 * 2752)
    e(f"v_min_u32 v224, 28, v0\nv_lshlrev_b32 v224, 6, v224\ns_mul_i32 s{S_T0}, s2, 3\ns_add_u32 s{S_T0}, s{S_T0}, s{S_W}\ns_sub_u32 s{S_T0}, s{S_T0}, 1\ns_mul_i32 s{S_T0}, s{S_T0}, {29*64}\nbuffer_load_dword v225, v224, {sr(SRD_W,4)}, s{S_T0} offen")
stamp("xis")
if OPT["bal"] == 2:
    ln_centre([8, 24, 40], [8 + (OPT["pf_wq"] in (1, 5)), 4 + (OPT["pf_wq"] == 1), 0 + (OPT["pf_wq"] == 1)], V_WR, 56, 60, 64)
    ln_stats(3, V_ST, 56, 60)
else:
    ln_centre([8, 24], [5 + (OPT["m1"] == 1), 1 + (OPT["m1"] == 1)], V_WR, 56, 58, 60)
    ln_stats(2, V_ST, 56, 58)
e(f"ds_write_b32 v{V_FLW}, v{V_ONE} offset:{F_LNA}")
stamp("lnB")
e("s_branch L_kvwait")
WF, XF, KA = 72, 136, 208
e(f"L_kv:\ns_setprio 3\nds_write_b32 v{V_FLW}, v{V_ONE} offset:{F_LNA}")
e(f"""v_lshlrev_b32 v43, 3, v7
v_bfe_u32 v42, v0, 2, 2
v_lshl_add_u32 v43, v42, 5, v43
v_lshrrev_b32 v42, 4, v0
v_lshl_add_u32 v43, v42, 8, v43
v_add_u32 v43, {L_WKV}, v43
v_mul_u32_u24 v44, {X_STR}, v42
v_lshl_add_u32 v44, v5, 4, v44
s_lshl_b32 s{S_T0}, s{S_T3}, 8
s_add_u32 s{S_T0}, s{S_T0}, {L_X}
v_add_u32 v44, s{S_T0}, v44
s_lshl_b32 s{S_T0}, s{S_T3}, 6
s_add_u32 s{S_T0}, s{S_T0}, {L_RSTD}
v_lshl_add_u32 v45, v5, 2, s{S_T0}
v_lshl_add_u32 v46, v42, 4, s{S_T0}
v_mov_b32 v47, {L_FLG + F_TAG}
v_lshrrev_b32 v41, 5, v0
v_lshlrev_b32 v41, 8, v41
v_lshl_add_u32 v41, v5, 4, v41
s_lshr_b32 s{S_T1}, s{S_T3}, 1
s_lshl1_add_u32 s{S_T0}, s{S_G}, s{S_T1}
s_lshr_b32 s{S_T1}, s{S_J}, 2
s_lshl1_add_u32 s{S_T0}, s{S_T0}, s{S_T1}
s_and_b32 s{S_T1}, s{S_T3}, 1
s_lshl1_add_u32 s{S_T0}, s{S_T0}, s{S_T1}
s_lshl_b32 s{S_T5}, s{S_T0}, 9
s_lshl_b32 s{S_T4}, s{S_J}, {OPT['fsh']}
s_add_u32 s{S_T4}, s{S_T4}, s{S_FLB}""")
wkv_copy()
lds_spin(V_FLR, F_KVST, 53, "v_cmp_ne_u32", 1)
stamp("wkv")
for s in range(16):
    if s % 4 == 0 and s:
        e("s_waitcnt lgkmcnt(6)")
    for i in range(2):
        e(f"ds_read_b64_tr_b16 {vr(WF+4*s+2*i,2)}, v43{off(s*1024 + i*128)}")
stamp("trd")
e(f"s_bitcmp1_b32 s{S_J}, 2\ns_cbranch_scc1 L_kv_v")
def kv_tile(isv):
    lq = Queue("lgkmcnt")
    rs, ok = label("rs"), label("rsok")
    rd = f"ds_read_b32 v53, v{V_FLR} offset:{F_LN}\n" + ("ds_read_b128 v[68:71], v46" if isv else "ds_read_b32 v68, v45")
    top = label("lnp")
    e(f"{top}:\ns_sub_u32 s3, s3, 1\ns_cbranch_scc1 L_exit\nds_read_b32 v53, v{V_FLR} offset:{F_LNP}\ns_waitcnt lgkmcnt(0)\nv_cmp_ne_u32 vcc, 1, v53\ns_nop 0\ns_cbranch_vccnz {top}")
    stamp("bar1")
    def xr(s):
        e(f"ds_read_b128 {vr(XF+4*s,4)}, v44{off(s*4*X_STR)}")
        lq.issue(s)
    for s in range(8):
        xr(s)
    for s in range(16):
        if s + 8 < 16:
            xr(s + 8)
        elif s == 12:
            e(rd)
            lq.issue(); lq.issue()
        lq.wait(s)
        if isv:
            mf16(KA, XF + 4 * s, WF + 4 * s, KA if s else None)
        else:
            mf16(KA, WF + 4 * s, XF + 4 * s, KA if s else None)
    e(f"{ok}:\ns_waitcnt lgkmcnt(0)\nv_cmp_ne_u32 vcc, 1, v53\ns_nop 4\ns_cbranch_vccnz {rs}")
    with outofline():
        e(f"{rs}:\ns_sub_u32 s3, s3, 1\ns_cbranch_scc1 L_exit\n{rd}\ns_branch {ok}")
    for k in range(4):
        e(f"v_mul_f32 v{KA+k}, v{KA+k}, v{68 + (k if isv else 0)}")
    e(f"""v_cvt_pk_bf16_f32 v48, v{KA}, v{KA+1}
v_cvt_pk_bf16_f32 v49, v{KA+2}, v{KA+3}
s_nop 1
v_permlane{16 if isv else 32}_swap_b32 v48, v50
v_permlane{16 if isv else 32}_swap_b32 v49, v51
s_mov_b32 exec_lo, {'0xffff' if isv else -1}
s_mov_b32 exec_hi, {'0xffff' if isv else 0}
buffer_store_dwordx4 v[48:51], v{41 if isv else 3}, {sr(SRD_WS,4)}, s{S_T5} offen sc1
s_mov_b64 exec, -1""")
kv_tile(0)
e("s_branch L_kv_done\nL_kv_v:")
kv_tile(1)
e("L_kv_done:")
stamp("kvst")
e(f"buffer_load_dwordx2 v[54:55], v52, {sr(SRD_DBG,4)}, 0 offen sc1")
v_init()
a_setup()
e(f"""L_tagchk:
s_waitcnt vmcnt(0)
v_cmp_eq_u32 vcc, 0, v54
s_nop 0
s_cbranch_vccnz L_tag
s_mov_b64 exec, 1
buffer_store_dwordx2 v[54:55], v52, {sr(SRD_WS,4)}, s{S_T4} offen sc1
s_mov_b64 exec, -1
ds_write_b64 v47, v[54:55]
ds_write_b32 v{V_FLR}, v{V_ONE} offset:{F_KVS}
s_setprio 0""")
with outofline():
    e(f"L_tag:\ns_sub_u32 s3, s3, 1\ns_cbranch_scc1 L_exit\ns_sleep 2\nbuffer_load_dwordx2 v[54:55], v52, {sr(SRD_DBG,4)}, 0 offen sc1\ns_branch L_tagchk")
stamp("kvfl")
def flag_addr():
    e(f"v_lshrrev_b32 v3, 3, v0\nv_lshlrev_b32 v3, 11, v3\nv_and_b32 v8, 7, v0\nv_lshl_add_u32 v3, v8, {OPT['fsh']}, v3")
if OPT["self"]:
    e("L_kvwait:")
    flag_addr()
    e(f"""v_lshlrev_b32 v12, 2, v8
v_add_u32 v12, {L_FLG + F_KVS}, v12
v_mov_b32 v13, {L_FLG + F_TAG}
s_lshl_b32 s{S_U}, s{S_W}, 14
s_add_u32 s{S_U}, s{S_U}, {hex(WS_FL)}
L_gate:
s_sub_u32 s3, s3, 1
s_cbranch_scc1 L_exit
ds_read_b32 v14, v12
ds_read_b64 v[10:11], v13
s_waitcnt lgkmcnt(0)
v_cmp_ne_u32 vcc, 1, v14
s_nop 0
s_cbranch_vccnz L_gate""")
    if OPT["pdl"]:
        e(f"s_sleep {OPT['pdl']}")
    e(f"L_kvpoll:\nbuffer_load_dwordx2 v[8:9], v3, {sr(SRD_WS,4)}, s{S_U} offen sc1\ns_waitcnt vmcnt(0)\nv_cmp_ne_u64 vcc, v[10:11], v[8:9]\ns_nop 0")
    retry("L_kvpoll", OPT["psl"], lambda: e("s_mov_b64 exec, vcc"))
    e("s_mov_b64 exec, -1")
else:
    e(f"v_readfirstlane_b32 s{S_TAG}, v54\nv_readfirstlane_b32 s{S_TAG+1}, v55")
    flag_addr()
    for k in range(4):
        e(f"s_mov_b32 s{S_U+k}, {hex(WS_FL + k*16384)}")
    lds_spin(7, F_WQI, 8, "v_cmp_ne_u32", 1)
    e("L_kvpoll:")
    for k in range(4):
        e(f"buffer_load_dwordx2 {vr(8+2*k,2)}, v3, {sr(SRD_WS,4)}, s{S_U+k} offen sc1")
    for k in range(4):
        e(f"s_waitcnt vmcnt({3-k})\nv_cmp_ne_u64 {'vcc' if k == 0 else sr(S_U+2+2*k,2)}, {sr(S_TAG,2)}, {vr(8+2*k,2)}")
    e(f"s_or_b64 vcc, vcc, {sr(S_U+4,2)}\ns_or_b64 vcc, vcc, {sr(S_U+6,2)}\ns_or_b64 vcc, vcc, {sr(S_U+8,2)}")
    retry("L_kvpoll", OPT["psl"], lambda: e("s_mov_b64 exec, vcc"))
    e(f"s_mov_b64 exec, -1\nds_write_b32 v7, v255 offset:{F_KVOK}\ns_branch L_kvok")
    e(f"L_kvwait:\ns_sub_u32 s3, s3, 1\ns_cbranch_scc1 L_exit\nds_read_b32 v8, v7 offset:{F_KVOK}\ns_waitcnt lgkmcnt(0)\nv_cmp_ne_u32 vcc, 1, v8\ns_nop 0\ns_cbranch_vccnz L_kvwait\nL_kvok:")
stamp("flags")
vq = Queue("vmcnt")
NB0 = OPT["nb0"]
def k_load(b):
    vq.issue(("K", b))
    return [f"buffer_load_dwordx4 {vr(VK+4*b,4)}, v2, {sr(SRD_WS,4)}, s{S_KO+b} offen sc1"]
def v_load(b):
    vq.issue(); vq.issue(("V", b))
    return ([f"s_mov_b64 exec, {sr(S_EX,2)}"]
            + [f"buffer_load_dwordx4 {vr(VV+8*b+4*i,4)}, v4, {sr(SRD_WS,4)}, s{S_KO+b} offen{off(1024+512*i)} sc1" for i in range(2)]
            + ["s_mov_b64 exec, -1"])
for b in range(NB0):
    e("\n".join(k_load(b) + v_load(b)))
if NB0 == 16:
    e(f"ds_write_b32 v253, v255 offset:{F_KVIS}")
stamp("kvis")
if OPT["q0"]:
    e(f"v_mov_b32 v254, {L_FLG + 4}")
lds_spin(254 if OPT["q0"] else 7, F_Q, 3, "v_cmp_ne_u32", 1)
e(f"ds_read_b128 {vr(VQ,4)}, v252\ns_setprio 1\ns_waitcnt vmcnt({vq.left(('K', 0))}) lgkmcnt(0)")
stamp("go")
mf32(SA, VK, VQ)
VI = 254
e(f"v_mov_b32 v{VI}, 0xdddddddd")
for k in range(0, 16, 2):
    e(f"v_mov_b64 {vr(VO+k,2)}, 0")
e("s_nop 2")

ORDERS = [("e0 e1 b e2 e3 e4 e5 e6 Q n e7 e8 e9 A n e10 e11 e12 e13 e14 e15",
           "e0 e1 b e2 e3 e4 e5 e6 Q n e7 e8 e9 e10 e11 F e12 e13 A n e14 e15"),
          ("a e0 e1 e2 b e3 e4 e5 Q n e6 e7 e8 e9 e10 e11 e12 e13 e14 e15",
           "a e0 e1 e2 b e3 e4 e5 Q n e6 e7 e8 e9 e10 e11 e12 F e13 e14 e15"),
          ("e0 e1 b e2 e3 e4 Q n e5 e6 e7 e8 e9 A n e10 e11 e12 e13 e14 e15",
           "e0 e1 b e2 e3 e4 Q n e5 e6 e7 e8 e9 e10 e11 F e12 e13 A n e14 e15"),
          ("e0 e1 b e2 e3 e4 e5 Q n e6 e7 e8 e9 A n e10 e11 e12 e13 e14 e15",
           "e0 e1 b e2 e3 e4 e5 Q n e6 e7 e8 e9 e10 e11 F e12 e13 A n e14 e15"),
          ("a e0 e1 b e2 e3 Q n e4 e5 e6 e7 e8 e9 e10 e11 e12 e13 e14 e15",
           "a e0 e1 b e2 e3 Q n e4 e5 e6 e7 e8 e9 e10 e11 F e12 e13 e14 e15"),
          ("a e0 e1 e2 b e3 e4 Q n e5 e6 e7 e8 e9 e10 e11 e12 e13 e14 e15",
           "a e0 e1 e2 b e3 e4 Q n e5 e6 e7 e8 e9 e10 e11 e12 F e13 e14 e15"),
          ("a e0 e1 e2 e3 e4 b e5 e6 e7 Q n e8 e9 e10 e11 e12 e13 e14 e15 n n",
           "a e0 e1 e2 b e3 e4 e5 Q n e6 e7 e8 e9 e10 e11 e12 F e13 e14 e15"),
          ("e0 e1 b e2 e3 e4 Q n e5 e6 e7 e8 e9 e10 e11 e12 e13 A n e14 e15",
           "e0 e1 b e2 e3 e4 Q n e5 e6 e7 e8 e9 e10 e11 F e12 e13 A n e14 e15"),
          ("e0 e1 b e2 e3 e4 Q n e5 e6 e7 e8 e9 e10 e11 e12 A n e13 e14 e15",
           "e0 e1 b e2 e3 e4 Q n e5 e6 e7 e8 e9 e10 e11 F e12 e13 A n e14 e15"),
          ("e0 e1 b e2 e3 e4 Q n e5 e6 e7 e8 e9 e10 A n e11 e12 e13 e14 e15",
           "e0 e1 b e2 e3 e4 Q n e5 e6 e7 e8 e9 e10 e11 F e12 e13 A n e14 e15")][OPT["order"]]
CURA = "A" in ORDERS[0]
GUARDS = [(12, F_Q, "q", 15), (76, F_FREE, "f0", 1), (92, F_FREE, "f1", 6), (123, F_FREE, "f3", 8)]
def flush(t):
    o = (t % 4) * 2048
    return [f"ds_write_b128 v5, {vr(VO,4)}{off(o)}", f"ds_write_b128 v5, {vr(VO+4,4)}{off(o+1024)}",
            f"ds_write_b32 v6, v{VO+8}{off(t*512)}"]
for i in range(128):
    t, b = divmod(i, 16)
    S, T = (SA, SB) if i % 2 == 0 else (SB, SA)
    pb = (b - 1) % 16
    after = {}
    AT = "A" if CURA else "a"
    if b == 0:
        note(f"q block {t}")
    if t == 0:
        if b + NB0 < 16 and not CURA:
            after["a"] = k_load(b + NB0)
        after["b"] = [f"s_waitcnt vmcnt({min(vq.left(('K', b+1)), vq.left(('V', b))) if b < 15 else 0})"]
        if b + NB0 < 16:
            if CURA:
                after["Q"], after["A"] = k_load(b + NB0), v_load(b + NB0)
            else:
                after["Q"] = v_load(b + NB0)
        if b + NB0 == 16 - OPT["kvlead"] and NB0 < 16:
            after["e14"] = [f"ds_write_b32 v253, v255 offset:{F_KVIS}"]
    if b == 14 and t < 7:
        after["Q"] = [f"ds_read_b128 {vr(VQ,4)}, v252{off((t+1)*1024)}"]
    if b == 15 and t < 7:
        after["b"] = ["s_waitcnt vmcnt(0) lgkmcnt(0)" if t == 0 else "s_waitcnt lgkmcnt(0)"]
    for at, flag, lab, mask in GUARDS:
        if i == at:
            after["Q"] = [f"ds_read_b32 v3, v7 offset:{flag}"]
        if i == at + 1:
            after["Q"] = ["s_waitcnt lgkmcnt(0)"]
            after["e12"] = ["v_cmp_ne_u32 vcc, 1, v3"]
            after["e14"] = ([f"s_and_b64 vcc, vcc, {mask}"] if mask != 15 else []) + [f"s_cbranch_vccnz L_{lab}slow", f"L_{lab}ok:"]
    if i == 126:
        after["Q"] = [f"ds_read_b32 v3, v253 offset:{F_DUTY}"]
    prev = None
    for tok in ORDERS[1 if b == 0 and t else 0].split():
        k = tok[0]
        if k == "e":
            n = int(tok[1:]); e(f"v_exp_f32 v{S+n}, v{S+n}")
        elif k == "a":
            if i: pv(VO, VV + 8 * pb, T, VI)
        elif k == "A":
            pv(VO, VV + 8 * b, S, VI)
        elif k == "b":
            if i: pv(VO, VV + 8 * pb + 4, T + 8, VI)
        elif k == "Q":
            if i < 127:
                mf32(T, VK + 4 * ((b + 1) % 16), VQ)
        elif k == "n":
            if prev not in after: e("s_nop 0")
        elif k == "F":
            for x in flush(t - 1):
                e(x)
            for r in range(0, 10, 2):
                e(f"v_mov_b64 {vr(VO+r,2)}, 0")
        for x in after.get(tok, []):
            e(x)
        prev = tok
    if b == 15:
        stamp(f"p{t}")
with outofline():
    for at, flag, lab, mask in GUARDS:
        e(f"L_{lab}slow:\ns_sub_u32 s3, s3, 1\ns_cbranch_scc1 L_exit\ns_sleep 1\nds_read_b32 v3, v7 offset:{flag}\ns_waitcnt lgkmcnt(0)\nv_cmp_ne_u32 vcc, 1, v3\ns_nop 1\ns_and_b64 vcc, vcc, {mask}\ns_cbranch_vccnz L_{lab}slow\ns_branch L_{lab}ok")
if CURA:
    e("s_nop 1")
else:
    pv(VO, VV + 8 * 15, SB, VI)
    e("s_nop 0")
pv(VO, VV + 8 * 15 + 4, SB + 8, VI)
e(f"""s_waitcnt lgkmcnt(0)
v_readfirstlane_b32 s{S_IT}, v3
v_mov_b32 v{V_L16}, v1
v_add_u32 v{V_PART}, s{S_XO}, v1
v_add_u32 v{V_LS}, s{S_XO+1}, v6
s_getpc_b64 {sr(S_RET,2)}
L_apc:
s_add_u32 s{S_RET}, s{S_RET}, L_aduty_done-L_apc
s_addc_u32 s{S_RET+1}, s{S_RET+1}, 0
s_mov_b32 s{S_BLK}, 1
s_cmp_eq_u32 s{S_IT}, 1
v_mov_b32 v{V_FLR}, v7
s_nop 0""")
for x in flush(7):
    e(x)
stamp("fbar")
e(f"""s_cbranch_scc0 L_aduty_done
s_mov_b32 s{S_PC}, s{S_PC+1}""")
cur[0].extend(duty_code)
e("L_aduty_done:")
stamp("adone")
e(f"""s_setprio 0
L_status:
s_sleep 4
ds_read_b32 v3, v7 offset:{F_DUTY}
ds_read_b32 v4, v7 offset:{F_SLOW}
s_waitcnt lgkmcnt(0)
v_cmp_ne_u32 vcc, 0, v4
s_nop 0
s_cbranch_vccnz L_slow
v_cmp_ne_u32 vcc, 2, v3
s_nop 0""")
retry("L_status", 0)
e("L_fin:")
if OPT["hold"] == "end":
    e("s_waitcnt vmcnt(0)")
    if OPT["amp"]:
        stamp("fin")
        e(f"s_sub_u32 s{S_ST0+8}, s{S_ST0+8}, s{S_ST0+9}\ns_mul_i32 s{S_ST0+8}, s{S_ST0+8}, 10\nL_amp:\ns_memrealtime {sr(S_STMP,2)}\ns_waitcnt lgkmcnt(0)\ns_sub_u32 s{S_STMP}, s{S_STMP}, s{S_ST0+9}\ns_sub_u32 s{S_STMP}, s{S_STMP}, {OPT['holdT']}\ns_cmp_lt_i32 s{S_STMP}, s{S_ST0+8}\ns_cbranch_scc1 L_amp")
    stamp("end")
if OPT["stamps"]:
    e(f"s_waitcnt vmcnt(0)\ns_memtime {sr(S_STMP,2)}\ns_waitcnt lgkmcnt(0)")
    e(f"s_lshl_b32 s{S_T0}, s{S_G}, 3\ns_add_u32 s{S_T0}, s{S_T0}, s{S_J}\ns_lshl_b32 s{S_T0}, s{S_T0}, 3\ns_add_u32 s{S_T0}, s{S_T0}, s{S_W}\ns_lshl_b32 s{S_T0}, s{S_T0}, 6\ns_add_u32 s{S_T0}, s{S_T0}, {hex(WS_ST)}")
    for k in range(10):
        e(f"v_mov_b32 v{8+k}, s{S_ST0+k}")
    e(f"v_mov_b32 v18, s{S_STMP}\ns_memrealtime {sr(S_STMP,2)}\ns_waitcnt lgkmcnt(0)\nv_mov_b32 v19, s{S_STMP}\nv_mov_b32 v1, 0\ns_mov_b64 exec, 1")
    for k in range(3):
        e(f"buffer_store_dwordx4 {vr(8+4*k,4)}, v1, {sr(SRD_WS,4)}, s{S_T0} offen{off(16*k)}")
e("L_exit:\ns_endpgm")
out += tail_code
tail_code.clear()
e("L_code_end:")

def wave_sync():
    e(f"s_add_u32 s{S_T4}, s{S_T4}, 1\nv_mov_b32 v3, s{S_T4}\nds_write_b32 v253, v3 offset:{F_AS}")
    lds_spin(7, F_AS, 3, "v_cmp_gt_u32", f"s{S_T4}", sleep=1)
e("L_slow:")
lds_spin(7, F_PZ, 3, "v_cmp_ne_u32", 1, sleep=4)
e(f"""s_lshl_b32 s{S_T0}, s{S_W}, 8
s_add_u32 s{S_T0}, s{S_T0}, {L_MB}
v_lshl_add_u32 v2, v0, 2, s{S_T0}
v_and_b32 v4, 31, v0
v_lshlrev_b32 v4, 2, v4
v_add_u32 v4, {L_MB}, v4
v_add_u32 v6, {L_SL - L_LS}, v6
v_add_u32 v254, {L_P1}, v1
v_mov_b32 v255, 0xdddddddd
s_lshl_b32 s{S_T2}, s{S_G}, 16
s_lshl_b32 s{S_T3}, s{S_J}, 12
s_add_u32 s{S_T2}, s{S_T2}, s{S_T3}
s_add_u32 s{S_T2}, s{S_T2}, {hex(WS_O)}
s_mov_b32 s{S_IT}, 0
s_mov_b32 s{S_T4}, 0
L_slow_loop:
ds_read_b128 {vr(VQ,4)}, v252
v_mov_b32 v3, 0xff800000
s_waitcnt lgkmcnt(0)
v_add_u32 v252, 1024, v252""")
for b in range(16):
    mf32(SA, VK + 4 * b, VQ)
    e("s_nop 11")
    for k in range(8):
        e(f"v_max3_f32 v3, v3, v{SA+2*k}, v{SA+2*k+1}")
e("ds_write_b32 v2, v3")
wave_sync()
for k in range(8):
    e(f"ds_read_b32 v{SA+k}, v4{off(128*k)}")
e("s_waitcnt lgkmcnt(0)")
e(f"v_max3_f32 v3, v{SA}, v{SA+1}, v{SA+2}\nv_max3_f32 v3, v3, v{SA+3}, v{SA+4}\nv_max3_f32 v3, v3, v{SA+5}, v{SA+6}\nv_max_f32 v3, v3, v{SA+7}")
for k in range(16):
    e(f"v_sub_f32 v{SB+k}, 0, v3\nv_mov_b32 v{VO+k}, 0")
e("s_nop 1")
for b in range(16):
    mf32(SA, VK + 4 * b, VQ, SB)
    e("s_nop 11")
    for k in range(16):
        e(f"v_exp_f32 v{SA+k}, v{SA+k}")
    e("s_nop 1")
    pv(VO, VV + 8 * b, SA, 255)
    pv(VO, VV + 8 * b + 4, SA + 8, 255)
e("s_nop 11")
for x in flush(0):
    e(x)
wave_sync()
e(f"s_cmp_eq_u32 s{S_W}, 0\ns_cbranch_scc0 L_slow_next")
reduce_piece(254, 6)
e("s_waitcnt lgkmcnt(8)")
reduce_math(0)
for k in range(4):
    e(f"v_min_u32 v{OB+k}, -2, v{OB+k}")
e(f"""s_lshr_b32 s{S_T0}, s{S_IT}, 2
s_lshl_b32 s{S_T0}, s{S_T0}, 15
s_and_b32 s{S_T1}, s{S_IT}, 3
s_lshl_b32 s{S_T1}, s{S_T1}, 10
s_add_u32 s{S_T0}, s{S_T0}, s{S_T1}
s_add_u32 s{S_T0}, s{S_T0}, s{S_T2}
buffer_store_dwordx4 {vr(OB,4)}, v1, {sr(SRD_WS,4)}, s{S_T0} offen sc1
s_waitcnt vmcnt(0)
L_slow_next:
s_add_u32 s{S_IT}, s{S_IT}, 1
s_cmp_lt_u32 s{S_IT}, 8
s_cbranch_scc1 L_slow_loop
s_branch L_fin""")
out += tail_code

e(f""".section .rodata,"a"
.p2align 6
.amdhsa_kernel {NAME}_kernel
.amdhsa_next_free_vgpr 256
.amdhsa_next_free_sgpr 102
.amdhsa_accum_offset 256
.amdhsa_group_segment_fixed_size 0
.amdhsa_kernarg_size 88
.amdhsa_user_sgpr_count 2
.amdhsa_user_sgpr_kernarg_segment_ptr 1
.amdhsa_system_sgpr_workgroup_id_x 1
.end_amdhsa_kernel""")
open(sys.argv[1], "w").write("\n".join(out) + "\n")
```
